```python
import torch

def _softmax(x, axis=-1):
    return torch.softmax(x, dim=axis)
def _gelu(x):
    return torch.nn.functional.gelu(x, approximate="tanh")
def _silu(x):
    return torch.nn.functional.silu(x)
def _sigmoid(x):
    return torch.sigmoid(x)
def _layernorm(x, axis=-1, eps=1e-5):
    m = x.mean(dim=axis, keepdim=True)
    v = x.var(dim=axis, keepdim=True, unbiased=False)
    return (x - m) / torch.sqrt(v + eps)
def _scatter_add(tgt, idx, src, axis=0):
    return tgt.clone().index_add_(axis, idx, src)
def _segment_sum(src, seg, n):
    out = torch.zeros((n,) + src.shape[1:], dtype=src.dtype)
    return out.index_add_(0, seg, src)
def _pad(x, pw):
    flat = tuple(v for pair in reversed(pw) for v in pair)
    return torch.nn.functional.pad(x, flat)

kernel_name = 'concat_heads__compressed_kv_cla__linear_kernel_hedgehog__prompt'

def setup_inputs():

    _w = (lambda a: (lambda t: t.to(torch.bfloat16) if t.is_floating_point() else t)(torch.as_tensor(a)))
    def _A_setup():
        B, H, Sq, Sk, D, M = 1, 32, 2048, 2048, 128, 512
        Dc = 4 * D
        return {
            "x": _w((lambda *s: torch.randn(*s, dtype=torch.bfloat16) * 0.8)(B, Sq, M)),
            "c_kv": _w((lambda *s: torch.randn(*s, dtype=torch.bfloat16) * 0.4)(B, Sk, Dc)),
            "w_q": _w((lambda *s: torch.randn(*s, dtype=torch.bfloat16) * 6.4)(M, H, D) * (M ** -0.5)),
            "w_uk": _w((lambda *s: torch.randn(*s, dtype=torch.bfloat16) * 6.4)(Dc, H, D) * (Dc ** -0.5)),
            "w_uv": _w((lambda *s: torch.randn(*s, dtype=torch.bfloat16) * 0.4)(Dc, H, D) * (Dc ** -0.5)),
            "w_o": _w((lambda *s: torch.randn(*s, dtype=torch.bfloat16) * 0.4)(H, D, M) * ((H * D) ** -0.5)),
        }
    _A_in = _A_setup()

    def _B_setup():
        B, S, D, H = 1, 2048, 512, 32
        Dh = D // H
        return {
            "x": _w((lambda *s: torch.randn(*s, dtype=torch.bfloat16) * 0.4)(B, S, D)),
            "wqkv": _w((lambda *s: torch.randn(*s, dtype=torch.bfloat16) * 0.4)(D, 3 * D)),
            "w_phi": _w((lambda *s: torch.randn(*s, dtype=torch.bfloat16) * 0.4)(H, Dh, Dh) * (Dh ** -0.5)),
            "wo": _w((lambda *s: torch.randn(*s, dtype=torch.bfloat16) * 0.05)(D, D)),
        }
    _B_in = _B_setup()

    return {
        "A_x": _A_in["x"],
        "A_c_kv": _A_in["c_kv"],
        "A_w_q": _A_in["w_q"],
        "A_w_uk": _A_in["w_uk"],
        "A_w_uv": _A_in["w_uv"],
        "A_w_o": _A_in["w_o"],
        "B_x": _B_in["x"],
        "B_wqkv": _B_in["wqkv"],
        "B_w_phi": _B_in["w_phi"],
        "B_wo": _B_in["wo"],
    }

def reference(A_x, A_c_kv, A_w_q, A_w_uk, A_w_uv, A_w_o, B_x, B_wqkv, B_w_phi, B_wo):
    def _A_ref(x, c_kv, w_q, w_uk, w_uv, w_o):
        B, Sq, M = x.shape[0], x.shape[1], x.shape[2]
        Sk = c_kv.shape[1]
        H, D = w_q.shape[1], w_q.shape[2]
        q = torch.einsum("bqm,mhd->bhqd", x, w_q)
        k = torch.einsum("bkc,chd->bhkd", c_kv, w_uk)
        v = torch.einsum("bkc,chd->bhkd", c_kv, w_uv)
        scores = torch.einsum("bhqd,bhkd->bhqk", q, k) * (D ** -0.5)
        off = Sk - Sq
        qi = torch.arange(Sq)[:, None]
        kj = torch.arange(Sk)[None, :]
        cmask = kj <= (qi + off)
        scores = torch.where(cmask[None, None], scores, -1e9)
        p = _softmax(scores, axis=-1)
        ctx = torch.einsum("bhqk,bhkd->bhqd", p, v)
        return torch.einsum("bhqd,hdm->bqm", ctx, w_o)

    def _B_ref(x, wqkv, w_phi, wo):
        B, S, D = x.shape
        H = 32; Dh = D // H
        qkv = (lambda x, *d: x.permute(*d))((x @ wqkv).reshape(B, S, 3, H, Dh), 2, 0, 3, 1, 4)
        q, k, v = qkv[0], qkv[1], qkv[2]
        pq = torch.einsum("bhsd,hdf->bhsf", q, w_phi)
        pk = torch.einsum("bhsd,hdf->bhsf", k, w_phi)
        phi_q = torch.concatenate([_softmax(pq, axis=-1), _softmax(-pq, axis=-1)], axis=-1)
        phi_k = torch.concatenate([_softmax(pk, axis=-1), _softmax(-pk, axis=-1)], axis=-1)
        kv = torch.einsum("bhsf,bhsd->bhfd", phi_k, v)
        z  = torch.einsum("bhsf->bhf", phi_k)
        num = torch.einsum("bhqf,bhfd->bhqd", phi_q, kv)
        den = torch.einsum("bhqf,bhf->bhq", phi_q, z)[..., None] + 1e-6
        o = num / den
        return (lambda x, *d: x.permute(*d))(o, 0, 2, 1, 3).reshape(B, S, D) @ wo

    a = _A_ref(A_x, A_c_kv, A_w_q, A_w_uk, A_w_uv, A_w_o)
    b = _B_ref(B_x, B_wqkv, B_w_phi, B_wo)
    return torch.concatenate([a, b], axis=-1)
```

```python
import re

_REG = re.compile(r'\b([vas])\[(\d+):(\d+)\]|\b([vas])(\d+)\b|\b(vcc|exec|m0|scc)\b')

def regs_of(tok):
    out = set()
    for m in _REG.finditer(tok):
        if m.group(1):
            for i in range(int(m.group(2)), int(m.group(3)) + 1):
                out.add(m.group(1) + str(i))
        elif m.group(4):
            out.add(m.group(4) + m.group(5))
        else:
            out.add(m.group(6))
    return out

TRANS = ("v_exp_f32", "v_log_f32", "v_rcp_f32", "v_rsq_f32", "v_sqrt_f32", "v_sin_f32", "v_cos_f32")

class Ins:
    __slots__ = ("text", "op", "ops", "dst", "src", "kind", "srcC", "srcAB", "passes", "states", "stdata")
    def __init__(self, text):
        self.text = text
        t = text.split(";")[0].strip()
        p = t.split(None, 1)
        self.op = p[0]
        rest = p[1] if len(p) > 1 else ""
        self.ops = [x.strip() for x in rest.split(",")] if rest else []
        op = self.op
        self.dst = set(); self.src = set(); self.srcC = set(); self.srcAB = set(); self.passes = 0
        self.states = 1; self.stdata = set()
        R = [regs_of(x) for x in self.ops]
        if op.startswith("v_mfma"):
            self.kind = "mfma"
            self.dst = R[0]; self.srcAB = R[1] | R[2]; self.srcC = R[3]; self.src = self.srcAB | self.srcC
            self.passes = 8 if "32x32x16" in op else 4
        elif op.startswith("v_"):
            self.kind = "valu"
            if op.startswith("v_cmp"):
                self.dst = R[0]; self.src = set().union(*R[1:])
                if op.startswith("v_cmpx"): self.dst = self.dst | {"exec"}
            elif op.startswith(("v_add_co", "v_sub_co", "v_addc_co", "v_subb_co", "v_subrev_co")):
                self.dst = R[0] | R[1]; self.src = set().union(*R[2:])
            elif op.startswith(("v_permlane32_swap", "v_permlane16_swap", "v_swap")):
                self.dst = R[0] | R[1]; self.src = R[0] | R[1]
            elif op == "v_nop":
                pass
            else:
                self.dst = R[0]; self.src = set().union(*R[1:]) if len(R) > 1 else set()
                if op.startswith(("v_fmac", "v_pk_fmac", "v_writelane", "v_dot2c")): self.src |= R[0]
        elif op.startswith("ds_"):
            self.kind = "ds"
            if op.startswith(("ds_read", "ds_bpermute", "ds_swizzle", "ds_permute")):
                self.dst = R[0]; self.src = set().union(*R[1:])
            else:
                self.src = set().union(*R)
        elif op.startswith(("buffer_", "global_")):
            self.kind = "vmem"
            islds = bool(re.search(r'\blds\b', t))
            if "load" in op and not islds:
                self.dst = R[0]; self.src = set().union(*R[1:])
            else:
                self.src = set().union(*R) if R else set()
                if islds: self.src |= {"m0"}
                if "store" in op and ("x4" in op or "x3" in op):
                    self.stdata = R[0] if op.startswith("buffer_") else R[1]
        elif op.startswith("s_"):
            self.kind = "salu"
            if op == "s_nop":
                self.states = int(self.ops[0], 0) + 1
            elif op.startswith(("s_cmp", "s_waitcnt", "s_barrier", "s_branch", "s_cbranch", "s_endpgm", "s_setprio", "s_sleep", "s_setpc", "s_bitcmp")):
                self.src = set().union(*R) if R else set()
            else:
                self.dst = R[0] if R else set(); self.src = set().union(*R[1:]) if len(R) > 1 else set()
                if "saveexec" in op: self.dst = self.dst | {"exec"}
        else:
            self.kind = "other"

def check_hazards(lines, name=""):
    ins = []
    for l in lines:
        t = l.split(";")[0].strip()
        if not t or t.endswith(":") or t.startswith("."):
            continue
        ins.append(Ins(t))
    probs = []
    n = len(ins)
    for i, c in enumerate(ins):
        dist = 0
        j = i - 1
        while j >= 0 and dist < 20:
            p = ins[j]
            need = 0; why = ""
            isv = lambda s: {r for r in s if r[0] in "va" and r[1:].isdigit()}
            iss = lambda s: {r for r in s if (r[0] == "s" and r[1:].isdigit()) or r == "vcc"}
            if p.kind == "mfma":
                big = 12 if p.passes == 8 else 8
                ovl = 10 if p.passes == 8 else 6
                war = 7 if p.passes == 8 else 3
                if c.kind == "mfma":
                    if p.dst & c.srcAB: need, why = big, "mfma D -> mfma A/B"
                    elif p.dst & c.srcC and (p.dst != c.srcC or p.passes != c.passes): need, why = ovl, "mfma D -> mfma C overlap"
                    elif p.dst & c.dst and not (p.dst & c.srcC): need, why = ovl, "mfma D -> mfma D waw(cons)"
                elif c.kind in ("valu", "ds", "vmem"):
                    if p.dst & (c.src | c.dst): need, why = big, "mfma D -> valu/mem"
                    elif c.kind == "valu" and p.srcC & c.dst: need, why = war, "mfma C read -> valu write"
            elif p.kind == "valu":
                if c.kind == "mfma" and isv(p.dst) & c.src: need, why = 2, "valu -> mfma"
                if c.kind == "mfma" and "exec" in p.dst: need, why = 4, "exec -> mfma"
                if c.kind == "valu":
                    if p.op in TRANS and c.op not in TRANS and p.dst & c.src: need, why = max(need, 1), "trans -> valu"
                    if c.op.startswith(("v_readfirstlane", "v_readlane")) and isv(p.dst) & c.src: need, why = max(need, 1), "valu -> readlane"
                    if c.op.startswith("v_permlane") and isv(p.dst) & c.src: need, why = max(need, 2), "valu -> permlane"
                    if ("dpp" in c.text or "row_" in c.text or "quad_perm" in c.text) and isv(p.dst) & c.src: need, why = max(need, 2), "valu -> dpp"
                    if iss(p.dst) & c.src: need, why = max(need, 2), "valu sgpr -> valu read"
                    if iss(p.dst) & c.src and c.op.startswith(("v_readlane", "v_writelane")): need, why = max(need, 4), "valu sgpr -> lane select"
                if c.kind == "vmem" and iss(p.dst) & c.src: need, why = 5, "valu sgpr -> vmem"
            elif p.kind == "salu":
                if "m0" in p.dst and c.kind == "vmem" and "m0" in c.src: need, why = 1, "m0 -> lds dma"
            elif p.kind == "vmem":
                if p.stdata and (p.stdata & c.dst): need, why = (2 if c.kind == "valu" else 1), "store data WAR"
            if need > dist:
                probs.append("%s: hazard %s need %d have %d:\n    %s\n    %s" % (name, why, need, dist, p.text, c.text))
            dist += p.states
            j -= 1
    return probs

class Asm:
    def __init__(self):
        self.lines = []
        self.launches = []
        self.descs = []
        self._lab = 0
        self.vmq = []
        self.lgq = []
        self._kstart = 0
    def __call__(self, s):
        for l in s.strip("\n").split("\n"):
            l = l.strip()
            if not l: continue
            if l.endswith(":") and " " not in l:
                self.lines.append(l)
            else:
                self.lines.append("    " + l)
    def vm(self, s, tag):
        self(s); self.vmq.append(tag)
    def lg(self, s, tag):
        self(s); self.lgq.append(tag)
    @staticmethod
    def _cnt(q, tags):
        if not isinstance(tags, (list, set)): tags = [tags]
        last = -1
        for i, t in enumerate(q):
            if t in tags: last = i
        return last
    def wait_vm(self, tags, always=False):
        last = self._cnt(self.vmq, tags)
        if last < 0:
            if always: self("s_waitcnt vmcnt(%d)" % min(63, len(self.vmq)))
            return
        n = len(self.vmq) - 1 - last
        assert n <= 63, "vmcnt overflow %d" % n
        self("s_waitcnt vmcnt(%d)" % n)
        self.vmq = self.vmq[last + 1:]
    def wait_lg(self, tags, always=False):
        last = self._cnt(self.lgq, tags)
        if last < 0:
            if always: self("s_waitcnt lgkmcnt(%d)" % min(15, len(self.lgq)))
            return
        n = len(self.lgq) - 1 - last
        if n > 15: n = 15; last = len(self.lgq) - 1 - 15
        self("s_waitcnt lgkmcnt(%d)" % n)
        self.lgq = self.lgq[last + 1:]
    def wait_all(self):
        self("s_waitcnt vmcnt(0) lgkmcnt(0)"); self.vmq = []; self.lgq = []
    diag = False
    def stamp(self, idx, real=False):
        if not self.diag: return
        self("%s s[100:101]" % ("s_memrealtime" if real else "s_memtime"))
        self("s_waitcnt lgkmcnt(0)")
        self("s_mov_b32 s%d, s100" % (64 + idx))
        self.lgq = []
    def stamp_flush(self, srd, swave, n, base, vt=(250, 251), kidx=0):
        if not self.diag: return
        self("s_lshl_b32 s100, s2, 3")
        self("s_add_u32 s100, s100, s%d" % swave)
        self("s_lshl_b32 s100, s100, 7")
        self("s_add_u32 s100, s100, %d" % (base + kidx * 0x40000))
        self("v_mov_b32 v%d, 0" % vt[1])
        self("s_mov_b64 exec, 1")
        for i in range(n):
            self("v_mov_b32 v%d, s%d" % (vt[0], 64 + i))
            self("buffer_store_dword v%d, v%d, s[%d:%d], s100 offen offset:%d" % (vt[0], vt[1], srd, srd + 3, i * 4))
            self("s_nop 1")
        self("s_mov_b64 exec, -1")
    def label(self, name):
        self.lines.append(name + ":")
    def newlabel(self, base="L"):
        self._lab += 1
        return "%s_%d" % (base, self._lab)
    def comment(self, s):
        self.lines.append("    ; " + s)
    def kernel(self, name, grid, block, lds, vgpr, agpr=0, sgpr=102, launch=True):
        if launch:
            self.launches.append((name, grid, block, lds))
        acc_off = (vgpr + 3) // 4 * 4
        nfv = acc_off + agpr if agpr else vgpr
        self.descs.append((name, nfv, sgpr, acc_off, grid))
        self.lines.append(".globl %s" % name)
        self.lines.append(".p2align 8")
        self.lines.append(".type %s,@function" % name)
        self.lines.append("%s:" % name)
        self.vmq = []; self.lgq = []
    def relaunch(self, name, grid, block, lds):
        self.launches.append((name, grid, block, lds))
    def check(self):
        return check_hazards(self.lines)
    def text(self, header=""):
        out = []
        for l in header.strip("\n").split("\n"):
            if l.strip():
                out.append("; " + l.strip().lstrip(";").strip())
        for (n, g, b, lds) in self.launches:
            out.append("; @launch kernel=%s grid=(%d,%d,%d) block=(%d,%d,%d) lds=%d" % (n, g[0], g[1], g[2], b[0], b[1], b[2], lds))
        out.append('.amdgcn_target "amdgcn-amd-amdhsa--gfx950"')
        out.append(".text")
        out += self.lines
        out.append('.section .rodata,"a"')
        for (n, nfv, sgpr, acc, grid) in self.descs:
            out.append(".p2align 6")
            out.append(".amdhsa_kernel %s" % n)
            out.append("  .amdhsa_next_free_vgpr %d" % nfv)
            out.append("  .amdhsa_next_free_sgpr %d" % sgpr)
            out.append("  .amdhsa_accum_offset %d" % acc)
            out.append("  .amdhsa_group_segment_fixed_size 0")
            out.append("  .amdhsa_kernarg_size 104")
            out.append("  .amdhsa_user_sgpr_count 2")
            out.append("  .amdhsa_user_sgpr_kernarg_segment_ptr 1")
            out.append("  .amdhsa_system_sgpr_workgroup_id_x 1")
            if grid[1] > 1:
                out.append("  .amdhsa_system_sgpr_workgroup_id_y 1")
            out.append("  .amdhsa_float_denorm_mode_32 3")
            out.append(".end_amdhsa_kernel")
        return "\n".join(out) + "\n"
```

```python
KWS = 0
VWS = 0x1200000
CTX = 0x2200000
BKV = 0x3400000
BKV_P = 2304
WPK = 0x3500000
DIAG = 0x3A00000
WS_USED = 0x3B00000
CSCALE = (128 ** -0.5) * 1.4426950408889634
LOG2E = 1.4426950408889634
import struct
def f2u(f): return struct.unpack("<I", struct.pack("<f", f))[0]
MF = "v_mfma_f32_16x16x32_bf16"
```

```python
from common import *
MF16 = "v_mfma_f32_16x16x16_bf16"
def hedge_softmax(a, X, EP, EM, MX, TB, PH, vX16, vX32, sLOG2E):
    def allred(ops):
        for xr in (vX16, vX32):
            for i in range(8): a(f"ds_bpermute_b32 v{TB+i}, v{xr}, v{MX+i}")
            for i in range(8):
                a(f"s_waitcnt lgkmcnt({7-i})")
                a(f"{ops[i]} v{MX+i}, v{MX+i}, v{TB+i}")
        a.lgq = []
    a("s_waitcnt lgkmcnt(0)")
    for t in range(4):
        x = X + t * 4
        a(f"v_max3_f32 v{MX+t}, v{x}, v{x+1}, v{x+2}")
        a(f"v_min3_f32 v{MX+4+t}, v{x}, v{x+1}, v{x+2}")
        a(f"v_max_f32 v{MX+t}, v{MX+t}, v{x+3}")
        a(f"v_min_f32 v{MX+4+t}, v{MX+4+t}, v{x+3}")
    allred(["v_max_f32"] * 4 + ["v_min_f32"] * 4)
    for i in range(8): a(f"v_mul_f32 v{MX+i}, s{sLOG2E}, v{MX+i}")
    for t in range(4):
        for r in range(4):
            i = t * 4 + r
            a(f"v_fma_f32 v{EP+i}, v{X+i}, s{sLOG2E}, -v{MX+t}")
            a(f"v_fma_f32 v{EM+i}, -v{X+i}, s{sLOG2E}, v{MX+4+t}")
    for i in range(16):
        a(f"v_exp_f32 v{EP+i}, v{EP+i}")
        a(f"v_exp_f32 v{EM+i}, v{EM+i}")
    for t in range(4):
        for E, o in ((EP, 0), (EM, 4)):
            e = E + t * 4
            a(f"v_add_f32 v{MX+o+t}, v{e}, v{e+1}")
            a(f"v_add_f32 v{TB+o+t}, v{e+2}, v{e+3}")
    for i in range(8): a(f"v_add_f32 v{MX+i}, v{MX+i}, v{TB+i}")
    allred(["v_add_f32"] * 8)
    for i in range(8): a(f"v_rcp_f32 v{MX+i}, v{MX+i}")
    for t in range(4):
        for E, o in ((EP, 0), (EM, 4)):
            for r in range(4):
                a(f"v_mul_f32 v{E+t*4+r}, v{E+t*4+r}, v{MX+o+t}")
    for t in range(4):
        for E, o in ((EP, 0), (EM, 2)):
            e = E + t * 4
            a(f"v_cvt_pk_bf16_f32 v{PH+t*4+o}, v{e}, v{e+1}")
            a(f"v_cvt_pk_bf16_f32 v{PH+t*4+o+1}, v{e+2}, v{e+3}")
```

```python
from asmlib import Asm
from sched import *
from common import *
from phasea import PhaseA, WR, FR, AR
from hedge import *

def gen_k1(a, name="k1_kernel"):
    a.kernel(name, (256,1,1), (256,1,1), 163840, vgpr=256, agpr=256)
    sACT, sW, sWS = 4, 8, 12
    (sWAVE, sRB, sJOB, sSUB, sROW1, sSCALE, sSTB, sWOFF, sA0, sA1, sT0, sT1, sT2, sCNT, sLA, sLW, sSTFIX,
     sWSRC, sROW4, sROW52, sROW8, sSLOTSTR, sLC, sSPLIT) = range(16, 40)
    ACC = 0; WF = 128
    PK = 160
    TM = 192
    vWA = list(range(208, 216)); vXA = [216, 217]
    vAE, vAO, vWE, vWO = 218, 219, 220, 221
    vS = list(range(222, 230))
    vST = [234, 235, 236, 237]
    vDE, vDO = 238, 239
    vL, vT0, vT1, vT2 = 240, 241, 242, 243
    PK2 = 244
    END = a.newlabel("K1_end"); LV = a.newlabel("K1_vtype"); LBKV = a.newlabel("K1_bkv")
    LK = a.newlabel("K1_ktype"); LJ1 = a.newlabel("K1_j1"); LJ2 = a.newlabel("K1_j2"); LJ3 = a.newlabel("K1_j3"); LJD = a.newlabel("K1_jd")
    a(f"""
s_cmp_ge_u32 s2, 256
s_cbranch_scc1 {END}
""")
    a.stamp(14)
    a(f"""
s_load_dwordx4 s[44:47], s[0:1], 8      ; c_kv (44:45)  w_q (46:47)
s_load_dwordx4 s[48:51], s[0:1], 24
s_load_dwordx4 s[52:55], s[0:1], 48     ; B_x (52:53) wqkv (54:55)
s_load_dwordx2 s[56:57], s[0:1], 96     ; ws
s_load_dwordx2 s[58:59], s[0:1], 64     ; w_phi
v_lshrrev_b32 v{vT0}, 6, v0
v_and_b32 v{vL}, 63, v0
v_readfirstlane_b32 s{sWAVE}, v{vT0}
s_lshr_b32 s{sT1}, s2, 3                ; q
s_and_b32 s{sRB}, s2, 1
s_lshl_b32 s{sRB}, s{sRB}, 2
s_and_b32 s{sT0}, s{sT1}, 3
s_add_u32 s{sRB}, s{sRB}, s{sT0}
s_lshr_b32 s{sT1}, s{sT1}, 2
s_and_b32 s{sJOB}, s2, 6
s_lshl_b32 s{sJOB}, s{sJOB}, 2
s_add_u32 s{sJOB}, s{sJOB}, s{sT1}
s_lshl_b32 s{sSTFIX}, s{sRB}, 16
s_lshl_b32 s{sT0}, s{sWAVE}, 14
s_add_u32 s{sSTFIX}, s{sSTFIX}, s{sT0}
s_mov_b32 s{sSPLIT}, 0
s_mov_b32 s{sWS+2}, {WS_USED}
s_mov_b32 s{sWS+3}, 0x20000
s_mov_b32 s{sACT+2}, 0x200000
s_mov_b32 s{sACT+3}, 0x20000
s_mov_b32 s{sW+3}, 0x20000
s_waitcnt lgkmcnt(0)
s_mov_b32 s{sWS}, s56
s_mov_b32 s{sWS+1}, s57
s_cmp_ge_u32 s{sJOB}, 26
s_cbranch_scc1 {LJ2}
s_mov_b32 s{sACT}, s44
s_mov_b32 s{sACT+1}, s45
s_mov_b32 s{sW+2}, 0x400000
s_mov_b32 s{sROW1}, 8192
s_mov_b32 s{sSCALE}, {hex(f2u(CSCALE))}
s_cmp_ge_u32 s{sJOB}, 13
s_cbranch_scc1 {LJ1}
s_mov_b32 s{sW}, s48
s_mov_b32 s{sW+1}, s49
s_mul_i32 s{sSUB}, s{sJOB}, 5
s_min_u32 s{sSUB}, s{sSUB}, 59
s_lshl_b32 s{sWOFF}, s{sSUB}, 7
s_branch {LJD}
{LJ1}:
s_mov_b32 s{sW}, s50
s_mov_b32 s{sW+1}, s51
s_sub_u32 s{sSUB}, s{sJOB}, 13
s_mul_i32 s{sSUB}, s{sSUB}, 5
s_min_u32 s{sSUB}, s{sSUB}, 59
s_lshl_b32 s{sWOFF}, s{sSUB}, 7
s_add_u32 s{sSTFIX}, s{sSTFIX}, {VWS}
s_branch {LJD}
{LJ2}:
s_mov_b32 s{sACT}, s52
s_mov_b32 s{sACT+1}, s53
s_mov_b32 s{sW}, s54
s_mov_b32 s{sW+1}, s55
s_mov_b32 s{sW+2}, 0x180000
s_mov_b32 s{sROW1}, 3072
s_mov_b32 s{sSCALE}, 1.0
s_cmp_ge_u32 s{sJOB}, 28
s_cbranch_scc1 {LJ3}
s_sub_u32 s{sSUB}, s{sJOB}, 26
s_mul_i32 s{sSUB}, s{sSUB}, 3
s_lshl_b32 s{sWOFF}, s{sSUB}, 7
s_add_u32 s{sSUB}, s{sSUB}, 64
s_branch {LJD}
{LJ3}:
s_sub_u32 s{sSUB}, s{sJOB}, 28
s_lshl_b32 s{sSUB}, s{sSUB}, 1
s_lshl_b32 s{sWOFF}, s{sSUB}, 7
s_add_u32 s{sWOFF}, s{sWOFF}, 1024      ; k section
s_mov_b32 s{sSPLIT}, 896
{LJD}:
s_lshl_b32 s{sROW4}, s{sROW1}, 2
s_mul_i32 s{sROW52}, s{sROW1}, 52
s_lshl_b32 s{sROW8}, s{sROW1}, 3
s_lshl_b32 s{sSLOTSTR}, s{sROW1}, 8
s_lshl_b32 s{sA0}, s{sRB}, 18
s_lshl_b32 s{sT0}, s{sWAVE}, 16
s_add_u32 s{sA0}, s{sA0}, s{sT0}
s_add_u32 s{sA1}, s{sA0}, 32768
s_lshl_b32 s{sLA}, s{sWAVE}, 14
s_add_u32 s{sLA}, s{sLA}, {AR}
s_lshl_b32 s{sLW}, s{sWAVE}, 12
s_add_u32 s{sLW}, s{sLW}, {WR}
s_lshl_b32 s{sLC}, s{sWAVE}, 13
s_lshl_b32 s{sT0}, s{sWAVE}, 4
s_mul_i32 s{sWSRC}, s{sT0}, s{sROW1}
s_add_u32 s{sWSRC}, s{sWSRC}, s{sWOFF}
""")
    def mkpa(types):
        return PhaseA(a, ACC, WF, vWA, vXA, vAE, vAO, vWE, vWO, sACT, sW, sA0, sA1, sWSRC, sROW4, sROW52, sLA, sLW, sT2, types)
    pa = mkpa("K" * 8)
    pa.setup_dma(vL, vT0, vT1, vT2, sROW1, split=sSPLIT)
    a.stamp(0); a.stamp(1, real=True)
    for it in pa.chunk_dmas(0): it.fn()
    a.stamp(11)
    pa.setup_read(vL, vT0, vT1, vT2)
    a(f"""
v_lshrrev_b32 v{vT0}, 3, v{vL}
v_mul_lo_u32 v{vT0}, v{vT0}, s{sROW1}
v_and_b32 v{vT1}, 7, v{vL}
v_bfe_u32 v{vT2}, v{vL}, 4, 1
v_lshlrev_b32 v{vT2}, 1, v{vT2}
v_xor_b32 v{vT1}, v{vT1}, v{vT2}
v_lshl_add_u32 v{vDE}, v{vT1}, 4, v{vT0}
v_xor_b32 v{vT1}, 4, v{vT1}
v_lshl_add_u32 v{vDO}, v{vT1}, 4, v{vT0}
v_lshrrev_b32 v{vT0}, 4, v{vL}              ; kq
v_bfe_u32 v{vT1}, v{vL}, 2, 2               ; r
v_lshl_add_u32 v{vT2}, v{vT0}, 3, v{vT1}
v_lshlrev_b32 v{vT2}, 7, v{vT2}             ; (kq*8+r)*128
v_and_b32 v{vT0}, 1, v{vT0}
v_lshrrev_b32 v{vT1}, 1, v{vT1}
v_lshl_add_u32 v{vT1}, v{vT0}, 1, v{vT1}    ; f
v_and_b32 v{vT0}, 3, v{vL}
v_lshl_add_u32 v{vT2}, v{vT0}, 3, v{vT2}
""")
    for nt in range(4):
        a(f"v_xor_b32 v{vT0}, {nt}, v{vT1}")
        a(f"v_lshl_add_u32 v{vS[nt]}, v{vT0}, 5, v{vT2}")
        a(f"v_add_u32 v{vS[4+nt]}, 0x10000, v{vS[nt]}")
    a(f"v_lshlrev_b32 v{vST[0]}, 4, v{vL}")
    for k in range(1, 4):
        a(f"v_add_u32 v{vST[k]}, {4096*k}, v{vST[0]}")
    a(f"""
s_lshl_b32 s{sT0}, s{sWAVE}, 6
s_mul_i32 s{sT0}, s{sT0}, s{sROW1}
s_add_u32 s{sWOFF}, s{sWOFF}, s{sT0}
s_add_u32 s{sWOFF}, s{sWOFF}, 256
""")
    for it in pa.chunk_dmas(1): it.fn()
    a(f"""
s_cmp_ge_u32 s{sJOB}, 28
s_cbranch_scc1 {LBKV}
s_cmp_ge_u32 s{sJOB}, 26
s_cbranch_scc1 {LK}
s_cmp_ge_u32 s{sJOB}, 13
s_cbranch_scc1 {LV}
""")
    state0 = (list(a.vmq), list(a.lgq))
    a.stamp0 = 12
    def acc(buf, nt, st): return ACC + (buf * 16 + nt * 4 + st) * 4
    def wf(ks, nt): return WF + ((ks % 2) * 4 + nt) * 4
    SLOT = [65536, 0, 32768, 98304]
    def tr_item(pair, ks, nt, jj):
        hi, k8 = ks >> 3, ks & 7
        sb = SLOT[2 * pair + hi]
        reg = vS[(sb >> 16) * 4 + nt]; off = (sb & 0xffff) + k8 * 4096 + jj * 512
        b = wf(ks, nt) + jj * 2
        return Item(lambda: a.lg(f"ds_read_b64_tr_b16 v[{b}:{b+1}], v{reg} offset:{off}", ("wf", ks % 2, nt)), 4)
    def slot_dma(slot, i):
        hi = slot & 1
        def f():
            if i == 0:
                if hi: a(f"s_add_u32 s{sT1}, s{sWOFF}, s{sSLOTSTR}")
                else: a(f"s_mov_b32 s{sT1}, s{sWOFF}")
            a(f"s_add_u32 m0, s{sLC}, {SLOT[slot] + i * 1024}")
            if i == 7 and hi: a(f"s_add_u32 s{sWOFF}, s{sWOFF}, 128")
            else: a("s_nop 0")
            a.vm(f"buffer_load_dwordx4 v{vDE if i % 2 == 0 else vDO}, s[{sW}:{sW+3}], s{sT1} offen lds", ("w", slot))
            if i < 7: a(f"s_add_u32 s{sT1}, s{sT1}, s{sROW8}")
        return Item(f, 16)
    def epi_items(typ, buf, pk0=PK, npk=8):
        items = []
        def base():
            d = 11 if typ == "K" else 12
            a(f"s_lshr_b32 s{sSTB}, s{sSUB}, 1")
            a(f"s_lshl_b32 s{sSTB}, s{sSTB}, 19")
            a(f"s_and_b32 s{sT0}, s{sSUB}, 1")
        def base1():
            d = 11 if typ == "K" else 12
            a(f"s_lshl_b32 s{sT0}, s{sT0}, {d}")
            a(f"s_add_u32 s{sSTB}, s{sSTB}, s{sT0}")
        def base2():
            a(f"s_add_u32 s{sSTB}, s{sSTB}, s{sSTFIX}")
            a(f"s_add_u32 s{sSUB}, s{sSUB}, 1")
        items += [Item(base, 12), Item(base1, 8), Item(base2, 8)]
        n = 0
        for u in range(2):
            for x in range(4):
                pk = pk0 + (n % npk) * 4
                for j in range(4):
                    t2 = 2 * u + (j >> 1)
                    r = (acc(buf, t2, x) if typ == "K" else acc(buf, x, t2)) + (j & 1) * 2
                    if typ == "K":
                        t = TM + ((n * 4 + j) % 8) * 2
                        items.append(Item(lambda t=t, r=r: a(f"v_mul_f32 v{t}, s{sSCALE}, v{r}"), 4))
                        items.append(Item(lambda t=t, r=r: a(f"v_mul_f32 v{t+1}, s{sSCALE}, v{r+1}"), 4))
                        items.append(Item(lambda t=t, d=pk+j: a(f"v_cvt_pk_bf16_f32 v{d}, v{t}, v{t+1}"), 4))
                    else:
                        items.append(Item(lambda r=r, d=pk+j: a(f"v_cvt_pk_bf16_f32 v{d}, v{r}, v{r+1}"), 4))
                if typ == "K": vo, off = vST[x], u * 1024
                else: vo, off = vST[u * 2], x * 1024
                items.append(Item(lambda pk=pk, vo=vo, off=off: a.vm(f"buffer_store_dwordx4 v[{pk}:{pk+3}], v{vo}, s[{sWS}:{sWS+3}], s{sSTB} offen offset:{off} sc1", "st"), 8))
                n += 1
        return items
    def barrier_item(tag):
        def f():
            a.wait_vm(tag, always=True); a("s_barrier")
        return Item(f, 8)
    LEAD = 12
    def body(typ, buf):
        B = Body(256)
        for m in range(256):
            ks, nt, st = m >> 4, (m >> 2) & 3, m & 3
            d = acc(buf, nt, st); w = wf(ks, nt)
            c = "0" if ks == 0 else f"v[{d}:{d+3}]"
            if typ == "K": s = f"{MF} v[{d}:{d+3}], v[{w}:{w+3}], {pa.act(ks, st)}, {c}"
            else: s = f"{MF} v[{d}:{d+3}], {pa.act(ks, st)}, v[{w}:{w+3}], {c}"
            B.mfma[m] = (lambda s=s: a(s))
            if st == 0 and nt % 2 == 0:
                B.put_pre(m, Item(lambda ks=ks, nt=nt: a.wait_lg(("wf", ks % 2, nt + 1), always=True), 4))
        for idx in range(LEAD // 4, 64 + LEAD // 4):
            ks, nt = idx >> 2, idx & 3
            g = idx * 4 - LEAD
            if idx == 32: B.put(g - 1, barrier_item(("w", 2 * buf + 1)))
            if idx == 64: B.put(g - 1, barrier_item(("w", 2 * (1 - buf))))
            for jj in range(2):
                B.put(g + jj, tr_item(buf, ks, nt, jj) if ks < 16 else tr_item(1 - buf, ks - 16, nt, jj))
        B.spread([slot_dma(2 * (1 - buf), i) for i in range(8)], 0, 80)
        B.spread([slot_dma(2 * (1 - buf) + 1, i) for i in range(8)], 128 - LEAD, 208 - LEAD)
        B.spread(epi_items(typ, 1 - buf), 8, 240)
        B.emit(a)
    def path(typ):
        a.vmq, a.lgq = list(state0[0]), list(state0[1])
        p = mkpa(typ * 8)
        B = p.build(stamp=2)
        B.spread([slot_dma(0, i) for i in range(8)], p.bar_gap(6) + 6, p.bar_gap(6) + 50)
        B.spread([slot_dma(1, i) for i in range(8)], p.bar_gap(7) + 6, p.bar_gap(7) + 50)
        B.emit(a)
        a.stamp(3)
        a("s_nop 3")
        for it in epi_items(typ, 0): it.fn()
        barrier_item(("w", 0)).fn()
        for idx in range(LEAD // 4):
            for jj in range(2): tr_item(0, idx >> 2, idx & 3, jj).fn()
        a.stamp(4)
        LOOP = a.newlabel("K1_loop"); DONE = a.newlabel("K1_done")
        a(f"s_mov_b32 s{sCNT}, 0")
        a.label(LOOP)
        def it():
            body(typ, 0)
            a.stamp(7)
            a(f"s_cmp_eq_u32 s{sCNT}, 1")
            a(f"s_cbranch_scc1 {DONE}")
            if a.diag: a("s_mov_b32 s69, s71")
            body(typ, 1)
            a.stamp(6)
            a(f"s_mov_b32 s{sCNT}, 1")
            a(f"s_mov_b32 s{sW+2}, 0")
        loop_emit(a, it)
        a(f"s_branch {LOOP}")
        a.label(DONE)
        a("s_nop 3")
        for itm in epi_items(typ, 0): itm.fn()
        a.stamp(8)
        if a.diag: a("s_waitcnt vmcnt(0)")
        a.stamp(9); a.stamp(10, real=True)
        a.stamp_flush(sWS, sWAVE, 24, DIAG)
        a("s_endpgm")
    a.label(LK)
    path("K")
    a.label(LV)
    path("V")
    a.label(LBKV)
    a.vmq, a.lgq = list(state0[0]), list(state0[1])
    sPHI = 40; sLOG2E = 60; sRET = 62
    WPH = 192
    vX16, vX32, vPH, vPW, vPR, vVW, vZ, vONE = 244, 245, 246, 247, 248, 249, 250, 252
    X, EP, EM, MXR, TB, PH, VFR = 64, 80, 96, 112, 120, 160, 128
    a(f"""
s_mov_b32 s{sPHI}, s58
s_mov_b32 s{sPHI+1}, s59
s_mov_b32 s{sPHI+2}, 16384
s_mov_b32 s{sPHI+3}, 0x20000
s_mov_b32 s{sLOG2E}, {hex(f2u(LOG2E))}
s_mov_b32 s{sCNT}, 0
v_xor_b32 v{vT0}, 16, v{vL}
v_lshlrev_b32 v{vX16}, 2, v{vT0}
v_xor_b32 v{vT0}, 32, v{vL}
v_lshlrev_b32 v{vX32}, 2, v{vT0}
v_and_b32 v{vT0}, 15, v{vL}
v_lshrrev_b32 v{vT1}, 4, v{vL}
v_lshlrev_b32 v{vPH}, 1, v{vT0}
v_lshl_add_u32 v{vPH}, v{vT1}, 7, v{vPH}
v_lshlrev_b32 v{vPW}, 6, v{vT0}
v_lshl_add_u32 v{vPW}, v{vT1}, 3, v{vPW}
v_and_b32 v{vT2}, 4, v{vL}
v_lshl_add_u32 v{vPW}, v{vT2}, 3, v{vPW}
s_lshl_b32 s{sT0}, s{sWAVE}, 12
s_add_u32 s{sT0}, s{sT0}, {AR}
v_add_u32 v{vPW}, s{sT0}, v{vPW}
v_bfe_u32 v{vT2}, v{vL}, 2, 2
v_lshl_add_u32 v{vT2}, v{vT1}, 2, v{vT2}
v_lshlrev_b32 v{vPR}, 6, v{vT2}
v_and_b32 v{vT2}, 1, v{vT1}
v_lshl_add_u32 v{vPR}, v{vT2}, 5, v{vPR}
v_and_b32 v{vT2}, 3, v{vL}
v_lshl_add_u32 v{vPR}, v{vT2}, 3, v{vPR}
v_add_u32 v{vPR}, s{sLA}, v{vPR}
v_lshlrev_b32 v{vZ}, 4, v{vT1}
v_mov_b32 v{vONE}, 0x3f803f80
v_mov_b32 v{vONE+1}, 0x3f803f80
v_mov_b32 v{vONE+2}, 0x3f803f80
v_mov_b32 v{vONE+3}, 0x3f803f80
""")
    vPW2, vPR2 = 230, 231
    vVR = 232
    a(f"""
v_xor_b32 v{vPW2}, 32, v{vPW}
v_xor_b32 v{vPR2}, 32, v{vPR}
s_add_u32 s{sT0}, s{sLC}, {FR}
v_add_u32 v{vVW}, s{sT0}, v{vST[0]}
s_lshl_b32 s{sT0}, s{sWAVE}, 10
s_add_u32 s{sT0}, s{sT0}, {FR}
v_add_u32 v{vVR}, s{sT0}, v{vST[0]}
""")
    LP = a.newlabel("K1_bpass"); LSM = a.newlabel("K1_bsm"); LBD = a.newlabel("K1_bdone")
    a.label(LP)
    def bpass():
        a(f"s_lshl_b32 s{sT0}, s{sSUB}, 11")
        for hd in range(4):
            for j in range(4):
                a.vm(f"buffer_load_ushort v{WPH+hd*4+j}, v{vPH}, s[{sPHI}:{sPHI+3}], s{sT0} offen offset:{hd*512 + j*32}", "wphi")
        p = mkpa("KKKKVVVV")
        B = p.build()
        B.emit(a)
        a.wait_vm("wphi", always=True)
        a("s_barrier")
        for hd in range(4):
            a(f"v_lshl_or_b32 v{WPH+hd*4}, v{WPH+hd*4+1}, 16, v{WPH+hd*4}")
            a(f"v_lshl_or_b32 v{WPH+hd*4+1}, v{WPH+hd*4+3}, 16, v{WPH+hd*4+2}")
        for hd in range(4):
            for st in range(4):
                d = acc(0, hd, st)
                a(f"v_cvt_pk_bf16_f32 v{d}, v{d}, v{d+1}")
                a(f"v_cvt_pk_bf16_f32 v{d+1}, v{d+2}, v{d+3}")
        for u in range(2):
            for hd in range(4):
                f = VFR + (u * 4 + hd) * 4
                for j in range(4):
                    r = acc(1, hd, 2 * u + (j >> 1)) + (j & 1) * 2
                    a(f"v_cvt_pk_bf16_f32 v{f+j}, v{r}, v{r+1}")
                a(f"ds_write_b128 v{vVW}, v[{f}:{f+3}] offset:{(u*4+hd)*1024}")
        for hd in range(4):
            for st in range(4):
                d = acc(0, hd, st)
                a(f"{MF16} v[{X+st*4}:{X+st*4+3}], v[{WPH+hd*4}:{WPH+hd*4+1}], v[{d}:{d+1}], 0")
            a(f"s_call_b64 s[{sRET}:{sRET+1}], {LSM}")
            for st in range(4):
                a(f"ds_write_b64 v{vPW}, v[{PH+st*4}:{PH+st*4+1}] offset:{hd*16384 + st*1024}")
                a(f"ds_write_b64 v{vPW2}, v[{PH+st*4+2}:{PH+st*4+3}] offset:{hd*16384 + st*1024}")
        a("s_waitcnt lgkmcnt(0)")
        a("s_barrier")
        a.lgq = []
        KV = 0
        for k in range(8):
            fb = 16 + k * 12
            a.lg(f"ds_read_b128 v[{fb}:{fb+3}], v{vVR} offset:{k*4096}", ("b", k))
            for ft in range(2):
                for jj in range(2):
                    b = fb + 4 + ft * 4 + jj * 2
                    a.lg(f"ds_read_b64_tr_b16 v[{b}:{b+1}], v{vPR if ft == 0 else vPR2} offset:{k*2048 + jj*1024}", ("b", k))
            if k >= 2:
                kk = k - 2
            else: continue
            mfs(kk, KV)
        mfs(6, KV); mfs(7, KV)
        a(f"""
s_lshl_b32 s{sT0}, s{sSUB}, 2
s_add_u32 s{sT0}, s{sT0}, s{sWAVE}
s_lshl_b32 s{sT0}, s{sT0}, 3
s_add_u32 s{sT0}, s{sT0}, s{sRB}
s_mul_i32 s{sT0}, s{sT0}, {BKV_P}
s_add_u32 s{sT0}, s{sT0}, {BKV}
v_and_b32 v{vT0}, 15, v{vL}
v_cmp_eq_u32 vcc, 0, v{vT0}
s_barrier
""")
        a.vm(f"buffer_store_dwordx4 v[{KV}:{KV+3}], v{vST[0]}, s[{sWS}:{sWS+3}], s{sT0} offen sc1", "st")
        a.vm(f"buffer_store_dwordx4 v[{KV+4}:{KV+7}], v{vST[0]}, s[{sWS}:{sWS+3}], s{sT0} offen offset:1024 sc1", "st")
        a("s_mov_b64 exec, vcc")
        a.vm(f"buffer_store_dwordx4 v[{KV+8}:{KV+11}], v{vZ}, s[{sWS}:{sWS+3}], s{sT0} offen offset:2048 sc1", "st")
        a.vm(f"buffer_store_dwordx4 v[{KV+12}:{KV+15}], v{vZ}, s[{sWS}:{sWS+3}], s{sT0} offen offset:2112 sc1", "st")
        a("s_mov_b64 exec, -1")
        a(f"""
s_cmp_eq_u32 s{sCNT}, 1
s_cbranch_scc1 {LBD}
s_mov_b32 s{sCNT}, 1
s_add_u32 s{sSUB}, s{sSUB}, 1
s_sub_u32 s{sWSRC}, s{sWSRC}, {512*3072 - 128}
""")
        for c in range(2):
            for it in p.chunk_dmas(c): it.fn()
    def mfs(k, KV):
        fb = 16 + k * 12
        a.wait_lg(("b", k), always=True)
        for ft in range(2):
            d = KV + ft * 4; c = "0" if k == 0 else f"v[{d}:{d+3}]"
            a(f"{MF} v[{d}:{d+3}], v[{fb+4+ft*4}:{fb+7+ft*4}], v[{fb}:{fb+3}], {c}")
        for ft in range(2):
            d = KV + 8 + ft * 4; c = "0" if k == 0 else f"v[{d}:{d+3}]"
            a(f"{MF} v[{d}:{d+3}], v[{fb+4+ft*4}:{fb+7+ft*4}], v[{vONE}:{vONE+3}], {c}")
    loop_emit(a, bpass)
    a(f"s_branch {LP}")
    a.label(LBD)
    a.stamp(8)
    if a.diag: a("s_waitcnt vmcnt(0)")
    a.stamp(9); a.stamp(10, real=True)
    a.stamp_flush(sWS, sWAVE, 24, DIAG, vt=(241, 242))
    a.label(END)
    a("s_endpgm")
    a.label(LSM)
    a("s_nop 7")
    hedge_softmax(a, X, EP, EM, MXR, TB, PH, vX16, vX32, sLOG2E)
    a(f"s_setpc_b64 s[{sRET}:{sRET+1}]")

if __name__ == "__main__":
    import sys
    a = Asm()
    a.diag = len(sys.argv) > 1
    gen_k1(a)
    for p in a.check(): print(p)
    open("k1.s", "w").write(a.text())
    print(len(a.lines), "lines")
```

```python
from asmlib import Asm
from sched import *
from common import *
from phasea import PhaseA, WR, FR, AR
from hedge import *

BIG = f2u(-1.0e30)
THR = f2u(2.0 ** 60)
RQ = 0x20000
MX = 0xC000

def gen_k2(a, name="k2_kernel"):
    a.kernel(name, (256,1,1), (256,1,1), 163840, vgpr=256, agpr=256)
    sX, sW, sWS = 4, 8, 12
    (sWAVE, sH, sI, sROW1, sA0, sA1, sT0, sT1, sT2, sCNT, sLA, sLW, sWSRC, sROW4, sROW52,
     sKSRC, sVSRC, sKD, sVD, sKAP, sDGA, sDGB, sDMIN, sTHR, sCTXA, sCTXB, sP, sW4) = range(16, 44)
    sRET = 44
    sM = [46, 48, 50, 52]
    Q = 0
    S = 64
    P = 128
    NM = 160
    TE = 192
    LS = 200
    M = 208
    vK, vV, vL16, vL, vT0, vT1, vT2, vT3 = 212, 213, 214, 215, 216, 217, 218, 219
    vX16, vX32, vBIG, vDG = 220, 221, 222, 223
    D = 224
    F = 228
    vST = [232, 233]
    PKR = 236
    pACC, pWF = 64, 0
    vWA = list(range(192, 200)); vXA = [200, 201]; vAE, vAO, vWE, vWO = 202, 203, 204, 205
    O = 0; KF = 128; VF = 160
    END = a.newlabel("K2_end")
    def q(u, dk): b = Q + (u * 4 + dk) * 4; return b
    def s_(buf, u, kt): return S + ((buf * 4 + u) * 2 + kt) * 4
    def p_(buf, u): return P + (buf * 4 + u) * 4
    def nm(u, kt): return NM + (u * 2 + kt) * 4
    def o_(u, dt): return O + (u * 8 + dt) * 4
    def ls(par, u): return LS + par * 4 + u
    a(f"""
s_cmp_ge_u32 s2, 256
s_cbranch_scc1 {END}
""")
    a.stamp(14)
    a(f"""
s_load_dwordx2 s[56:57], s[0:1], 0      ; x
s_load_dwordx2 s[58:59], s[0:1], 16     ; w_q
s_load_dwordx2 s[60:61], s[0:1], 96     ; ws
s_load_dwordx2 s[62:63], s[0:1], 64     ; w_phi
v_lshrrev_b32 v{vT0}, 6, v0
v_and_b32 v{vL}, 63, v0
v_readfirstlane_b32 s{sWAVE}, v{vT0}
s_lshr_b32 s{sT1}, s2, 3
s_and_b32 s{sI}, s{sT1}, 7
s_lshr_b32 s{sT1}, s{sT1}, 3
s_and_b32 s{sH}, s2, 7
s_lshl_b32 s{sH}, s{sH}, 2
s_add_u32 s{sH}, s{sH}, s{sT1}
s_mov_b32 s{sROW1}, 8192
s_mov_b32 s{sROW4}, 32768
s_mov_b32 s{sROW52}, {52*8192}
s_sub_u32 s{sT0}, 15, s{sI}             ; L
s_lshl_b32 s{sDGA}, s{sT0}, 2
s_add_u32 s{sDGA}, s{sDGA}, s{sWAVE}
s_lshl_b32 s{sDGB}, s{sI}, 2
s_add_u32 s{sDGB}, s{sDGB}, s{sWAVE}
s_lshl_b32 s{sA0}, s{sDGA}, 15
s_lshl_b32 s{sA1}, s{sDGB}, 15
s_lshl_b32 s{sLA}, s{sWAVE}, 14
s_add_u32 s{sLA}, s{sLA}, {AR}
s_lshl_b32 s{sW4}, s{sWAVE}, 12
s_add_u32 s{sLW}, s{sW4}, {WR}
s_lshl_b32 s{sWSRC}, s{sWAVE}, 17       ; 16 rows * 8192
s_lshl_b32 s{sT0}, s{sH}, 8
s_add_u32 s{sWSRC}, s{sWSRC}, s{sT0}
s_lshl_b32 s{sKSRC}, s{sH}, 19
s_add_u32 s{sKSRC}, s{sKSRC}, s{sW4}
s_add_u32 s{sVSRC}, s{sKSRC}, {VWS}
s_mov_b32 s{sX+2}, 0x200000
s_mov_b32 s{sX+3}, 0x20000
s_mov_b32 s{sW+2}, 0x400000
s_mov_b32 s{sW+3}, 0x20000
s_mov_b32 s{sWS+2}, {WS_USED}
s_mov_b32 s{sWS+3}, 0x20000
""")
    pa = PhaseA(a, pACC, pWF, vWA, vXA, vAE, vAO, vWE, vWO, sX, sW, sA0, sA1, sWSRC, sROW4, sROW52, sLA, sLW, sT2, "K" * 8)
    pa.setup_dma(vL, vT0, vT1, vT2, sROW1)
    a(f"""
s_waitcnt lgkmcnt(0)
s_mov_b32 s{sX}, s56
s_mov_b32 s{sX+1}, s57
s_mov_b32 s{sW}, s58
s_mov_b32 s{sW+1}, s59
s_mov_b32 s{sWS}, s60
s_mov_b32 s{sWS+1}, s61
""")
    a.stamp(0); a.stamp(1, real=True)
    for it in pa.chunk_dmas(0): it.fn()
    a.stamp(11)
    pa.setup_read(vL, vT0, vT1, vT2)
    a(f"""
v_lshlrev_b32 v{vL16}, 4, v{vL}
v_xor_b32 v{vT0}, 16, v{vL}
v_lshlrev_b32 v{vX16}, 2, v{vT0}
v_xor_b32 v{vT0}, 32, v{vL}
v_lshlrev_b32 v{vX32}, 2, v{vT0}
v_mov_b32 v{vBIG}, {hex(BIG)}
v_and_b32 v{vT0}, 15, v{vL}
v_lshrrev_b32 v{vT1}, 4, v{vL}
v_lshlrev_b32 v{vT1}, 2, v{vT1}
v_sub_u32 v{vDG}, v{vT0}, v{vT1}
v_mov_b32 v{vST[0]}, v{vL16}
v_add_u32 v{vST[1]}, {144*1024}, v{vL16}
s_mov_b32 s{sTHR}, {hex(THR)}
s_and_b32 s{sP}, s{sWAVE}, 1
s_mul_i32 s{sCTXA}, s{sDGA}, {2*144*1024}
s_mul_i32 s{sCTXB}, s{sDGB}, {2*144*1024}
s_lshl_b32 s{sT0}, s{sH}, 12
s_add_u32 s{sT0}, s{sT0}, {CTX}
s_add_u32 s{sCTXA}, s{sCTXA}, s{sT0}
s_add_u32 s{sCTXB}, s{sCTXB}, s{sT0}
""")
    for it in pa.chunk_dmas(1): it.fn()
    def tile_dma(src, ldsexpr, tag, srcadd=0):
        its = []
        for i in range(4):
            def f(i=i):
                if i == 0:
                    a(f"s_add_u32 m0, s{ldsexpr[0]}, {ldsexpr[1]}")
                    if srcadd: a(f"s_add_u32 s{sT1}, s{src}, {srcadd}")
                    else: a("s_nop 0")
                a.vm(f"buffer_load_dwordx4 v{vL16}, s[{sWS}:{sWS+3}], s{sT1 if srcadd else src} offen offset:{i*1024} lds", tag)
            its.append(Item(f, 16 if i == 0 else 8))
        return its
    B = pa.build(stamp=2)
    g6 = pa.bar_gap(6) + 6
    B.spread(tile_dma(sKSRC, (sW4, 0x10000), "kv") + tile_dma(sVSRC, (sW4, 0x14000), "kv") + tile_dma(sKSRC, (sW4, 0), "kv", 16384), g6, g6 + 56)
    B.emit(a)
    a.stamp(3)
    a("s_nop 3")
    for u in range(4):
        for dk in range(4):
            for j in range(4):
                r = pa.acc(2 * dk + (j >> 1), u) + (j & 1) * 2
                a(f"v_cvt_pk_bf16_f32 v{q(u, dk) + j}, v{r}, v{r+1}")
    for r in range(128): a(f"v_accvgpr_write_b32 a{O + r}, 0")
    for r in range(32): a(f"v_mov_b32 v{NM + r}, 0")
    for r in range(8): a(f"v_mov_b32 v{LS + r}, 0")
    for r in range(4): a(f"v_mov_b32 v{M + r}, 0")
    a(f"""
v_add_u32 v{vK}, 0x10000, v{vL16}
v_add_u32 v{vV}, 0x10000, v{vL16}
s_lshl_b32 s{sT0}, s{sWAVE}, 13
s_add_u32 s{sT0}, s{sT0}, {RQ}
v_add_u32 v{vT3}, s{sT0}, v{vL16}
s_add_u32 s{sKSRC}, s{sKSRC}, 32768
s_add_u32 s{sVSRC}, s{sVSRC}, 16384
s_add_u32 s{sKD}, s{sW4}, 0x10000         ; K(2) -> parity 0
s_add_u32 s{sVD}, s{sW4}, 0x4000          ; V(1) -> parity 1
s_mov_b32 s{sKAP}, 0
s_min_u32 s{sDMIN}, s{sDGA}, s{sDGB}
""")
    a.wait_vm("kv"); a("s_barrier")
    a(f"""
s_lshl_b32 s{sT0}, s{sI}, 15
s_add_u32 s{sT0}, s{sT0}, s{sKSRC}
""")
    for it in tile_dma(sT0, (sW4, 0x18000), "kv", 16384): it.fn()
    for u in range(2):
        for dk in range(4):
            a.lg(f"ds_write_b128 v{vT3}, v[{q(u,dk)}:{q(u,dk)+3}] offset:{(u*4+dk)*1024}", "qx")
    a.stamp(4)

    LMASK = a.newlabel("K2_mask"); LADJ = [a.newlabel("K2_adj0"), a.newlabel("K2_adj1")]; LADJF = a.newlabel("K2_adjf")
    def kread(hs, f):
        b = KF + f * 4
        return Item(lambda: a.lg(f"ds_read_b128 a[{b}:{b+3}], v{vK} offset:{hs*8192 + f*1024}", ("kf", f)), 4)
    def vread(hs, f):
        b = VF + f * 4
        return Item(lambda: a.lg(f"ds_read_b128 a[{b}:{b+3}], v{vV} offset:{0x4000 + hs*8192 + f*1024}", ("vf", f)), 4)
    def qk_mfma(B, base, buf):
        for f in range(8):
            kt, dk = f >> 2, f & 3
            for u in range(4):
                d = s_(buf, u, kt); c = nm(u, kt) if dk == 0 else d
                st = f"{MF} v[{d}:{d+3}], a[{KF+f*4}:{KF+f*4+3}], v[{q(u,dk)}:{q(u,dk)+3}], v[{c}:{c+3}]"
                B.mfma[base + f * 4 + u] = (lambda st=st: a(st))
            if f % 2 == 0: B.put_pre(base + f * 4, Item(lambda f=f: a.wait_lg(("kf", f + 1), always=True), 4))
    def pv_mfma(B, base, buf):
        for f in range(8):
            for u in range(4):
                o = o_(u, f); p = p_(buf, u)
                st = f"{MF} a[{o}:{o+3}], a[{VF+f*4}:{VF+f*4+3}], v[{p}:{p+3}], a[{o}:{o+3}]"
                B.mfma[base + f * 4 + u] = (lambda st=st: a(st))
            if f % 2 == 0: B.put_pre(base + f * 4, Item(lambda f=f: a.wait_lg(("vf", f + 1), always=True), 4))
    def softmax_items(par, check=True):
        its = []
        LAG = 3
        sb = S + par * 32; pb = P + par * 16
        for i in range(32 + LAG):
            if i < 32: its.append(Item(lambda i=i: a(f"v_exp_f32 v{TE+i%8}, v{sb+i}"), 8))
            j = i - LAG
            if j >= 0:
                u = j >> 3
                src = ls(par ^ 1, u) if j % 8 == 0 else ls(par, u)
                its.append(Item(lambda j=j, u=u, src=src: a(f"v_add_f32 v{ls(par,u)}, v{src}, v{TE+j%8}"), 4))
                if j & 1: its.append(Item(lambda j=j: a(f"v_cvt_pk_bf16_f32 v{pb+(j>>1)}, v{TE+(j-1)%8}, v{TE+j%8}"), 4))
        if check:
            its.append(Item(lambda: a(f"v_max3_f32 v{vT0}, v{ls(par,0)}, v{ls(par,1)}, v{ls(par,2)}"), 4))
            its.append(Item(lambda: a(f"v_max_f32 v{vT0}, v{vT0}, v{ls(par,3)}"), 4))
            its.append(Item(lambda: a(f"v_cmp_nle_f32 vcc, v{vT0}, v{vT2}"), 4))
        return its
    def check_item(par):
        def f():
            L = a.newlabel("K2_ok")
            a(f"s_cbranch_vccz {L}")
            a(f"s_call_b64 s[{sRET}:{sRET+1}], {LADJ[par]}")
            a.label(L)
        return Item(f, 4)
    def mask_item(inc):
        def f():
            L = a.newlabel("K2_nm")
            a(f"s_cmp_lt_u32 s{sKAP}, s{sDMIN}")
            a(f"s_cbranch_scc1 {L}")
            a(f"s_call_b64 s[{sRET}:{sRET+1}], {LMASK}")
            a.label(L)
            a(f"s_add_u32 s{sKAP}, s{sKAP}, {inc}")
        return Item(f, 12)
    def bar_item():
        def f():
            a.wait_vm("kv", always=True); a("s_waitcnt lgkmcnt(0)"); a.lgq = []; a("s_barrier")
        return Item(f, 12)
    def togK(): return Item(lambda: a(f"v_xor_b32 v{vK}, 0x10000, v{vK}"), 4)
    def togV(): return Item(lambda: a(f"v_xor_b32 v{vV}, 0x10000, v{vV}"), 4)
    def seg_dmas(two):
        its = tile_dma(sKSRC, (sKD, 0), "kv")
        if two: its += tile_dma(sKSRC, (sKD, 0x8000), "kv", 16384)
        its += tile_dma(sVSRC, (sVD, 0), "kv")
        if two: its += tile_dma(sVSRC, (sVD, 0x8000), "kv", 16384)
        def adv():
            st = 32768 if two else 16384
            a(f"s_add_u32 s{sKSRC}, s{sKSRC}, {st}")
            a(f"s_add_u32 s{sVSRC}, s{sVSRC}, {st}")
        def adv2():
            a(f"s_xor_b32 s{sKD}, s{sKD}, 0x10000")
            a(f"s_xor_b32 s{sVD}, s{sVD}, 0x10000")
        return its + [Item(adv, 8), Item(adv2, 8)]
    NPRE = 6
    def body(two):
        B = Body(128)
        qk_mfma(B, 0, 0); pv_mfma(B, 32, 0); qk_mfma(B, 64, 1); pv_mfma(B, 96, 1)
        B.pre[0].insert(0, mask_item(1))
        B.put(61, mask_item(3 if two else 1))
        for f in range(NPRE, 8): B.put(4 * (f - NPRE), kread(0, f))
        for f in range(8): B.put(8 + 3 * f, vread(0, f))
        for f in range(8): B.put(40 + 3 * f, kread(1, f))
        B.put(64, togK())
        for f in range(8): B.put(66 + 3 * f, vread(1, f))
        B.put(90, togV())
        B.put(102, bar_item())
        for f in range(NPRE): B.put(104 + 4 * f, kread(0, f))
        B.put(63, check_item(1)); B.put(127, check_item(0))
        B.spread(seg_dmas(two), 1, 60)
        B.spread(softmax_items(1), 0, 61)
        B.spread(softmax_items(0), 64, 125)
        B.emit(a)
    def fill(first, two):
        B = Body(64)
        qk_mfma(B, 0, 0); qk_mfma(B, 32, 1)
        mask_item(1).fn()
        for f in range(NPRE): kread(0, f).fn()
        for f in range(NPRE, 8): B.put(4 * (f - NPRE), kread(0, f))
        B.put(29, mask_item(3 if two else 1))
        for f in range(8): B.put(8 + 4 * f, kread(1, f))
        B.put(40, togK())
        if not first:
            B.spread(softmax_items(0), 36, 64)
        B.emit(a)
        if first: a(f"s_call_b64 s[{sRET}:{sRET+1}], {LADJF}")
        else: a("s_nop 1"); check_item(0).fn()
        bar_item().fn()
        for f in range(NPRE): kread(0, f).fn()
    def drain(dmas):
        B = Body(64)
        pv_mfma(B, 0, 0); pv_mfma(B, 32, 1)
        for f in range(NPRE): vread(0, f).fn()
        for f in range(NPRE, 8): B.put(4 * (f - NPRE), vread(0, f))
        for f in range(8): B.put(8 + 4 * f, vread(1, f))
        B.put(40, togV())
        B.put(31, Item(lambda: a("s_nop 1"), 4)); B.put(31, check_item(1))
        B.spread(softmax_items(1), 0, 31)
        if dmas: B.spread(seg_dmas(True), 33, 63)
        B.emit(a)
    def quad_reduce(regs, op):
        for xr in (vX16, vX32):
            for i, r in enumerate(regs): a(f"ds_bpermute_b32 v{TE+i}, v{xr}, v{r}")
            a("s_waitcnt lgkmcnt(0)"); a.lgq = []
            for i, r in enumerate(regs): a(f"{op} v{r}, v{r}, v{TE+i}")
    def finalize(us, sCTX, scale, other=None):
        n = 0
        for ui, u in enumerate(us):
            for dk in range(4):
                pk = PKR + (n % 4) * 4
                for j in range(4):
                    r = o_(u, 2 * dk + (j >> 1)) + (j & 1) * 2
                    t = TE + (j % 4) * 2
                    a(f"v_accvgpr_read_b32 v{t}, a{r}")
                    a(f"v_accvgpr_read_b32 v{t+1}, a{r+1}")
                    a(f"v_mul_f32 v{t}, v{t}, v{scale[ui]}")
                    a(f"v_mul_f32 v{t+1}, v{t+1}, v{scale[ui]}")
                    if other is not None:
                        ob = other[0] + r - o_(us[0], 0)
                        a(f"v_fmac_f32 v{t}, v{ob}, v{other[1][ui]}")
                        a(f"v_fmac_f32 v{t+1}, v{ob+1}, v{other[1][ui]}")
                    a(f"v_cvt_pk_bf16_f32 v{pk+j}, v{t}, v{t+1}")
                a.vm(f"buffer_store_dwordx4 v[{pk}:{pk+3}], v{vST[ui]}, s[{sWS}:{sWS+3}], s{sCTX} offen offset:{dk*1024} sc1", "st")
                n += 1

    a(f"v_mov_b32 v{vT2}, s{sTHR}")
    fill(True, False)
    a.stamp(5)
    LD = a.newlabel("K2_dual")
    a(f"""
s_lshl_b32 s{sCNT}, s{sI}, 1
s_add_u32 s{sCNT}, s{sCNT}, 1
""")
    a(".p2align 3")
    a.label(LD)
    loop_emit(a, lambda: body(False))
    a(f"""
s_sub_u32 s{sCNT}, s{sCNT}, 1
s_cmp_lg_u32 s{sCNT}, 0
s_cbranch_scc1 {LD}
s_add_u32 s{sKSRC}, s{sKSRC}, 16384
""")
    a.stamp(6)
    drain(True)
    a(f"""
s_lshl_b32 s{sT0}, s{sWAVE}, 9
s_add_u32 s{sT0}, s{sT0}, {MX}
v_lshlrev_b32 v{vT0}, 3, v{vL}
v_add_u32 v{vT0}, s{sT0}, v{vT0}
ds_write_b64 v{vT0}, v[{M}:{M+1}]
v_xor_b32 v{vT0}, 512, v{vT0}
v_xor_b32 v{vT3}, 0x2000, v{vT3}
s_waitcnt lgkmcnt(0)
s_barrier
ds_read_b64 v[{M+2}:{M+3}], v{vT0}
""")
    a.lgq = []
    for u in range(2):
        for dk in range(4):
            a(f"ds_read_b128 v[{q(2+u,dk)}:{q(2+u,dk)+3}], v{vT3} offset:{(u*4+dk)*1024}")
    quad_reduce([ls(1, 2), ls(1, 3)], "v_add_f32")
    a(f"v_rcp_f32 v{F}, v{ls(1,2)}")
    a(f"v_rcp_f32 v{F+1}, v{ls(1,3)}")
    a("s_nop 0")
    finalize([2, 3], sCTXB, [F, F + 1])
    for r in range(64): a(f"v_accvgpr_write_b32 a{o_(2, 0) + r}, 0")
    for u in (2, 3):
        a(f"v_mov_b32 v{ls(0,u)}, 0")
        a(f"v_mov_b32 v{ls(1,u)}, 0")
        for r in range(8): a(f"v_sub_f32 v{nm(u,0)+r}, 0, v{M+u}")
    a(f"""
s_xor_b32 s{sDGB}, s{sDGA}, 1
s_min_u32 s{sDMIN}, s{sDGA}, s{sDGB}
s_lshl_b32 s{sT0}, s{sP}, 1
s_add_u32 s{sKAP}, s{sKAP}, s{sT0}
s_lshl_b32 s{sT0}, s{sP}, 15
v_add_u32 v{vK}, s{sT0}, v{vK}
v_add_u32 v{vV}, s{sT0}, v{vV}
""")
    a.stamp(7)
    fill(False, True)
    LS1 = a.newlabel("K2_single"); LS2 = a.newlabel("K2_sdone")
    a(f"""
s_lshl_b32 s{sCNT}, s{sI}, 1
s_sub_u32 s{sCNT}, 14, s{sCNT}
s_cmp_eq_u32 s{sCNT}, 0
s_cbranch_scc1 {LS2}
""")
    st = (list(a.vmq), list(a.lgq))
    a(".p2align 3")
    a.label(LS1)
    loop_emit(a, lambda: body(True))
    a(f"""
s_sub_u32 s{sCNT}, s{sCNT}, 1
s_cmp_lg_u32 s{sCNT}, 0
s_cbranch_scc1 {LS1}
""")
    a.label(LS2)
    assert st[1] == a.lgq, (st[1], a.lgq)
    a.stamp(8)
    sPHI = sX
    BQ, BW = 152, 252
    a(f"""
s_mov_b32 s{sPHI}, s62
s_mov_b32 s{sPHI+1}, s63
s_mov_b32 s{sPHI+2}, 16384
s_mul_i32 s{sT0}, s{sH}, {8 * BKV_P}
s_add_u32 s{sT0}, s{sT0}, {BKV}
v_lshrrev_b32 v{vT1}, 4, v{vL}
v_lshlrev_b32 v{vT0}, 4, v{vT1}
v_and_b32 v{D}, 15, v{vL}
v_lshlrev_b32 v{D}, 1, v{D}
v_lshl_add_u32 v{D}, v{vT1}, 7, v{D}
s_lshr_b32 s{sT1}, s{sH}, 3
s_add_u32 s{sT1}, s{sT1}, 32
s_lshl_b32 s{sT1}, s{sT1}, 19
s_lshl_b32 s{sT2}, s{sI}, 16
s_add_u32 s{sT1}, s{sT1}, s{sT2}
s_lshl_b32 s{sT2}, s{sWAVE}, 14
s_add_u32 s{sT1}, s{sT1}, s{sT2}
s_and_b32 s{sT2}, s{sH}, 6
s_lshl_b32 s{sT2}, s{sT2}, 9
s_add_u32 s{sT1}, s{sT1}, s{sT2}
s_and_b32 s{sT2}, s{sH}, 1
s_lshl_b32 s{sT2}, s{sT2}, 3
s_add_u32 s{sT1}, s{sT1}, s{sT2}
s_lshl_b32 s{sKAP}, s{sH}, 9
""")
    for j in range(4):
        a.vm(f"buffer_load_ushort v{BW+j}, v{D}, s[{sPHI}:{sPHI+3}], s{sKAP} offen offset:{j*32}", "bl")
    for t in range(4):
        a.vm(f"buffer_load_dwordx2 a[{BQ+2*t}:{BQ+2*t+1}], v{vL16}, s[{sWS}:{sWS+3}], s{sT1} offen", "bl")
        a(f"s_add_u32 s{sT1}, s{sT1}, 4096")
    for pp in range(8):
        for ft in range(2):
            a.vm(f"buffer_load_dwordx4 v[{Q+pp*8+ft*4}:{Q+pp*8+ft*4+3}], v{vL16}, s[{sWS}:{sWS+3}], s{sT0} offen offset:{ft*1024}", "bl")
            a.vm(f"buffer_load_dwordx4 a[{192+pp*8+ft*4}:{192+pp*8+ft*4+3}], v{vT0}, s[{sWS}:{sWS+3}], s{sT0} offen offset:{2048+ft*64}", "bl")
        a(f"s_add_u32 s{sT0}, s{sT0}, {BKV_P}")
    drain(False)
    a(f"""
s_lshl_b32 s{sT0}, s{sWAVE}, 15
v_add_u32 v{vT0}, s{sT0}, v{vL16}
v_mov_b32 v{D}, v{M+2}
v_mov_b32 v{D+1}, v{M+3}
v_mov_b32 v{D+2}, v{ls(1,2)}
v_mov_b32 v{D+3}, v{ls(1,3)}
v_xor_b32 v{vT3}, 0x2000, v{vT3}
s_nop 3
ds_write_b128 v{vT3}, v[{D}:{D+3}]
""")
    for r in range(16):
        a(f"ds_write_b128 v{vT0}, a[{o_(2,0)+r*4}:{o_(2,0)+r*4+3}] offset:{r*1024}")
    a(f"""
v_xor_b32 v{vT0}, 0x8000, v{vT0}
v_xor_b32 v{vT3}, 0x2000, v{vT3}
s_waitcnt lgkmcnt(0)
s_barrier
ds_read_b128 v[{D}:{D+3}], v{vT3}
""")
    for r in range(16):
        a(f"ds_read_b128 v[{S+r*4}:{S+r*4+3}], v{vT0} offset:{r*1024}")
        if r == 13: a("s_waitcnt lgkmcnt(14)")
    for u in range(2):
        a(f"v_max_f32 v{vT1}, v{M+u}, v{D+u}")
        a(f"v_sub_f32 v{F+u}, v{M+u}, v{vT1}")
        a(f"v_sub_f32 v{F+2+u}, v{D+u}, v{vT1}")
        a(f"v_exp_f32 v{F+u}, v{F+u}")
        a(f"v_exp_f32 v{F+2+u}, v{F+2+u}")
        a("s_nop 0")
        a(f"v_mul_f32 v{ls(1,u)}, v{ls(1,u)}, v{F+u}")
        a(f"v_fmac_f32 v{ls(1,u)}, v{D+2+u}, v{F+2+u}")
    quad_reduce([ls(1, 0), ls(1, 1)], "v_add_f32")
    for u in range(2):
        a(f"v_rcp_f32 v{vT1}, v{ls(1,u)}")
        a("s_nop 0")
        a(f"v_mul_f32 v{F+u}, v{F+u}, v{vT1}")
        a(f"v_mul_f32 v{F+2+u}, v{F+2+u}, v{vT1}")
    finalize([0, 1], sCTXA, [F, F + 1], other=(S, [F + 2, F + 3]))
    a.stamp(9)
    a.wait_vm("bl")
    X, EP, EM, MXR, TB, PH = S, S + 16, S + 32, S + 48, S + 56, P
    ZS = P + 16
    a(f"v_lshl_or_b32 v{BW}, v{BW+1}, 16, v{BW}")
    a(f"v_lshl_or_b32 v{BW+1}, v{BW+3}, 16, v{BW+2}")
    a(f"s_mov_b32 s{sKAP}, {hex(f2u(LOG2E))}")
    a("s_nop 0")
    for t in range(4):
        a(f"{MF16} v[{X+t*4}:{X+t*4+3}], v[{BW}:{BW+1}], a[{BQ+2*t}:{BQ+2*t+1}], 0")
    for pp in range(1, 8):
        for r in range(8): a(f"v_add_f32 v{Q+r}, v{Q+r}, v{Q+pp*8+r}")
    for r in range(8): a(f"v_accvgpr_read_b32 v{ZS+r}, a{192+r}")
    for pp in range(1, 8):
        for r in range(8): a(f"v_accvgpr_read_b32 v{TE+r}, a{192+pp*8+r}")
        for r in range(8): a(f"v_add_f32 v{ZS+r}, v{ZS+r}, v{TE+r}")
    KVF, ZF = Q + 8, Q + 12
    for j in range(4):
        a(f"v_cvt_pk_bf16_f32 v{KVF+j}, v{Q+2*j}, v{Q+2*j+1}")
        a(f"v_cvt_pk_bf16_f32 v{ZF+j}, v{ZS+2*j}, v{ZS+2*j+1}")
    hedge_softmax(a, X, EP, EM, MXR, TB, PH, vX16, vX32, sKAP)
    a("s_nop 1")
    NUM, DEN = Q + 16, Q + 32
    for t in range(4):
        a(f"{MF} v[{NUM+t*4}:{NUM+t*4+3}], v[{KVF}:{KVF+3}], v[{PH+t*4}:{PH+t*4+3}], 0")
        a(f"{MF} v[{DEN+t*4}:{DEN+t*4+3}], v[{ZF}:{ZF+3}], v[{PH+t*4}:{PH+t*4+3}], 0")
    a(f"""
s_lshl_b32 s{sT0}, s{sI}, 2
s_add_u32 s{sT0}, s{sT0}, s{sWAVE}
s_mul_i32 s{sT0}, s{sT0}, {4*144*1024}
s_lshr_b32 s{sT1}, s{sH}, 1
s_lshl_b32 s{sT1}, s{sT1}, 10
s_add_u32 s{sT0}, s{sT0}, s{sT1}
s_add_u32 s{sT0}, s{sT0}, s{sT2}
s_add_u32 s{sT0}, s{sT0}, {CTX + 128*1024}
""")
    for t in range(4): a(f"v_add_f32 v{TE+t}, {hex(f2u(1e-6))}, v{DEN+t*4}")
    for t in range(4): a(f"v_rcp_f32 v{TE+t}, v{TE+t}")
    for t in range(4):
        for r in range(4): a(f"v_mul_f32 v{NUM+t*4+r}, v{NUM+t*4+r}, v{TE+t}")
        a(f"v_cvt_pk_bf16_f32 v{NUM+t*4}, v{NUM+t*4}, v{NUM+t*4+1}")
        a(f"v_cvt_pk_bf16_f32 v{NUM+t*4+1}, v{NUM+t*4+2}, v{NUM+t*4+3}")
        a.vm(f"buffer_store_dwordx2 v[{NUM+t*4}:{NUM+t*4+1}], v{vL16}, s[{sWS}:{sWS+3}], s{sT0} offen sc1", "st")
        a(f"s_add_u32 s{sT0}, s{sT0}, {144*1024}")
    a.stamp(12)
    if a.diag: a("s_waitcnt vmcnt(0)")
    a.stamp(23); a.stamp(10, real=True)
    a.stamp_flush(sWS, sWAVE, 24, DIAG, kidx=1)
    a.label(END)
    a("s_endpgm")

    a.label(LMASK)
    for g, sD in ((0, sDGA), (1, sDGB)):
        L1 = a.newlabel("K2_m1"); L2 = a.newlabel("K2_m2")
        a(f"""
s_cmp_lt_u32 s{sKAP}, s{sD}
s_cbranch_scc1 {L2}
s_cmp_eq_u32 s{sKAP}, s{sD}
s_cbranch_scc1 {L1}
""")
        for r in range(16): a(f"v_mov_b32 v{nm(2*g,0)+r}, v{vBIG}")
        a(f"s_branch {L2}")
        a.label(L1)
        for r in range(4): a(f"v_cmp_gt_i32 s[{sM[r]}:{sM[r]+1}], {r}, v{vDG}")
        for r in range(4): a(f"v_mov_b32 v{nm(2*g,1)+r}, v{vBIG}")
        for r in range(4):
            a(f"v_cndmask_b32 v{nm(2*g,0)+r}, v{nm(2*g,0)+r}, v{vBIG}, s[{sM[r]}:{sM[r]+1}]")
            a(f"v_cndmask_b32 v{nm(2*g+1,1)+r}, v{nm(2*g+1,1)+r}, v{vBIG}, s[{sM[r]}:{sM[r]+1}]")
        a.label(L2)
    a("s_nop 1")
    a(f"s_setpc_b64 s[{sRET}:{sRET+1}]")
    def adjust(par, first):
        a("s_nop 15")
        for u in range(4):
            b = s_(par, u, 0)
            a(f"v_max3_f32 v{D+u}, v{b}, v{b+1}, v{b+2}")
            a(f"v_max3_f32 v{D+u}, v{D+u}, v{b+3}, v{b+4}")
            a(f"v_max3_f32 v{D+u}, v{D+u}, v{b+5}, v{b+6}")
            a(f"v_max_f32 v{D+u}, v{D+u}, v{b+7}")
        quad_reduce([D + u for u in range(4)], "v_max_f32")
        for u in range(4): a(f"v_add_f32 v{D+u}, {hex(f2u(40.0))}, v{D+u}")
        if not first:
            for u in range(4): a(f"v_max_f32 v{D+u}, 0, v{D+u}")
            for u in range(4): a(f"v_exp_f32 v{F+u}, -v{D+u}")
            a("s_nop 0")
            for u in range(4):
                a(f"v_mul_f32 v{ls(par^1,u)}, v{ls(par^1,u)}, v{F+u}")
                for r in range(32):
                    t = TE + r % 8
                    a(f"v_accvgpr_read_b32 v{t}, a{o_(u,0)+r}")
                    a(f"v_mul_f32 v{t}, v{t}, v{F+u}")
                    a(f"v_accvgpr_write_b32 a{o_(u,0)+r}, v{t}")
        for u in range(4):
            a(f"v_add_f32 v{M+u}, v{M+u}, v{D+u}")
            for r in range(8):
                a(f"v_sub_f32 v{s_(0,u,0)+r}, v{s_(0,u,0)+r}, v{D+u}")
                a(f"v_sub_f32 v{s_(1,u,0)+r}, v{s_(1,u,0)+r}, v{D+u}")
                a(f"v_sub_f32 v{nm(u,0)+r}, v{nm(u,0)+r}, v{D+u}")
        for it in softmax_items(par, check=False): it.fn()
        a("s_nop 1")
        a(f"s_setpc_b64 s[{sRET}:{sRET+1}]")
    for par in range(2):
        a.label(LADJ[par]); adjust(par, False)
    a.label(LADJF); adjust(0, True)

if __name__ == "__main__":
    import sys
    from k1 import gen_k1
    a = Asm()
    a.diag = len(sys.argv) > 1
    gen_k1(a)
    gen_k2(a)
    for p in a.check(): print(p)
    open("k12.s", "w").write(a.text())
    print(len(a.lines), "lines")
```

```python
from asmlib import Asm
from sched import *
from common import *

def gen_k3(a, name="k3_kernel"):
    NST = 4
    a.kernel(name, (256,1,1), (256,1,1), NST * 32768, vgpr=112)
    sWO, sWB, sWS, sOUT = 4, 8, 12, 16
    (sWAVE, sRBK, sCB, sT0, sT1, sCNT, sCSRC, sWSRC, sLD, sW4, sOB) = range(20, 31)
    ACC = 0
    ACB = 16
    FR = 32
    vL16, vWD, vC, vL, vT0, vT1, vT2, vO = 96, 97, 98, 99, 100, 101, 102, 103
    vW = [104, 105]
    vWD2 = [106, 107, 108]
    END = a.newlabel("K3_end")
    a(f"""
s_cmp_ge_u32 s2, 256
s_cbranch_scc1 {END}
""")
    a.stamp(14)
    a(f"""
s_load_dwordx2 s[40:41], s[0:1], 40     ; w_o
s_load_dwordx4 s[44:47], s[0:1], 72
s_load_dwordx2 s[48:49], s[0:1], 96     ; ws
v_lshrrev_b32 v{vT0}, 6, v0
v_and_b32 v{vL}, 63, v0
v_readfirstlane_b32 s{sWAVE}, v{vT0}
s_lshr_b32 s{sT1}, s2, 3
s_and_b32 s{sCB}, s{sT1}, 7
s_lshr_b32 s{sT1}, s{sT1}, 3
s_and_b32 s{sRBK}, s2, 7
s_lshl_b32 s{sRBK}, s{sRBK}, 2
s_add_u32 s{sRBK}, s{sRBK}, s{sT1}
s_lshl_b32 s{sT0}, s{sRBK}, 2
s_add_u32 s{sT0}, s{sT0}, s{sWAVE}
s_mul_i32 s{sCSRC}, s{sT0}, {144*1024}
s_add_u32 s{sCSRC}, s{sCSRC}, {CTX}
s_lshl_b32 s{sWSRC}, s{sWAVE}, 15       ; 32 rows * 1024
s_lshl_b32 s{sT0}, s{sCB}, 7
s_add_u32 s{sWSRC}, s{sWSRC}, s{sT0}
s_lshl_b32 s{sW4}, s{sWAVE}, 12
s_mov_b32 s{sWO+2}, 0x400000
s_mov_b32 s{sWO+3}, 0x20000
s_mov_b32 s{sWB+2}, 0x80000
s_mov_b32 s{sWB+3}, 0x20000
s_mov_b32 s{sWS+2}, {WS_USED}
s_mov_b32 s{sWS+3}, 0x20000
s_mov_b32 s{sOUT+2}, 0x400000
s_mov_b32 s{sOUT+3}, 0x20000
v_lshlrev_b32 v{vL16}, 4, v{vL}
v_lshrrev_b32 v{vT0}, 3, v{vL}
v_lshlrev_b32 v{vT0}, 10, v{vT0}
v_and_b32 v{vT1}, 7, v{vL}
v_lshrrev_b32 v{vT2}, 4, v{vL}
v_lshlrev_b32 v{vT2}, 1, v{vT2}
v_xor_b32 v{vT1}, v{vT1}, v{vT2}
v_lshl_add_u32 v{vWD}, v{vT1}, 4, v{vT0}
v_add_u32 v{vWD2[0]}, {7*1024}, v{vWD}
v_add_u32 v{vWD2[1]}, {14*1024}, v{vWD}
v_add_u32 v{vWD2[2]}, {21*1024}, v{vWD}
s_waitcnt lgkmcnt(0)
s_mov_b32 s{sWO}, s40
s_mov_b32 s{sWO+1}, s41
s_mov_b32 s{sWB}, s44
s_mov_b32 s{sWB+1}, s45
s_mov_b32 s{sOUT}, s46
s_mov_b32 s{sOUT+1}, s47
s_mov_b32 s{sWS}, s48
s_mov_b32 s{sWS+1}, s49
""")
    a.stamp(0); a.stamp(1, real=True)
    def stage_dma(slot, srd):
        a(f"s_add_u32 m0, s{sW4}, {slot * 32768}")
        a("s_nop 0")
        for i in range(4):
            a.vm(f"buffer_load_dwordx4 v{vL16}, s[{sWS}:{sWS+3}], s{sCSRC} offen offset:{i*1024} lds", ("st", slot))
        a(f"s_add_u32 m0, s{sW4}, {slot * 32768 + 16384}")
        a(f"s_add_u32 s{sCSRC}, s{sCSRC}, 4096")
        for i in range(4):
            a.vm(f"buffer_load_dwordx4 v{vWD if i == 0 else vWD2[i-1]}, s[{srd}:{srd+3}], s{sWSRC} offen offset:{i*1024} lds", ("st", slot))
        a(f"s_add_u32 s{sWSRC}, s{sWSRC}, 0x20000")
    stage_dma(0, sWO)
    a(f"""
s_lshr_b32 s{sT0}, s{sWAVE}, 1
s_and_b32 s{sT1}, s{sWAVE}, 1
s_lshl_b32 s{sLD}, s{sT0}, 13
v_add_u32 v{vC}, s{sLD}, v{vL16}
v_lshrrev_b32 v{vT0}, 4, v{vL}              ; kq
v_bfe_u32 v{vT1}, v{vL}, 2, 2               ; r
v_lshl_add_u32 v{vT2}, v{vT0}, 2, v{vT1}    ; kq*4+r
v_bfe_u32 v{vT1}, v{vT2}, 1, 2              ; f
v_lshlrev_b32 v{vT2}, 7, v{vT2}
v_and_b32 v{vT0}, 3, v{vL}
v_lshl_add_u32 v{vT2}, v{vT0}, 3, v{vT2}
v_add_u32 v{vT2}, 16384, v{vT2}
s_lshl_b32 s{sLD}, s{sT1}, 1
v_xor_b32 v{vT0}, s{sLD}, v{vT1}
v_lshl_add_u32 v{vW[0]}, v{vT0}, 5, v{vT2}
v_xor_b32 v{vT0}, 1, v{vT0}
v_lshl_add_u32 v{vW[1]}, v{vT0}, 5, v{vT2}
v_and_b32 v{vT0}, 15, v{vL}
v_lshlrev_b32 v{vT0}, 11, v{vT0}
v_lshrrev_b32 v{vT1}, 4, v{vL}
v_lshl_add_u32 v{vO}, v{vT1}, 3, v{vT0}
s_lshl_b32 s{sOB}, s{sRBK}, 17
s_lshl_b32 s{sT0}, s{sT0}, 16
s_add_u32 s{sOB}, s{sOB}, s{sT0}
s_lshl_b32 s{sT0}, s{sCB}, 7
s_add_u32 s{sOB}, s{sOB}, s{sT0}
s_lshl_b32 s{sT1}, s{sT1}, 6
s_add_u32 s{sOB}, s{sOB}, s{sT1}
""")
    for r in range(32): a(f"v_mov_b32 v{r}, 0")
    stage_dma(1, sWO); stage_dma(2, sWO)
    vC2, vW2 = 109, [110, 111]
    a(f"v_add_u32 v{vC2}, 0x10000, v{vC}")
    a(f"v_add_u32 v{vW2[0]}, 0x10000, v{vW[0]}")
    a(f"v_add_u32 v{vW2[1]}, 0x10000, v{vW[1]}")
    def stage(slot, acc, nxt):
        a.wait_vm(("st", slot), always=True)
        a("s_barrier")
        c = vC if slot < 2 else vC2; w = vW if slot < 2 else vW2
        so = (slot & 1) * 32768
        def reads(k):
            fb = FR + k * 16
            for qt in range(2):
                a.lg(f"ds_read_b128 v[{fb+qt*4}:{fb+qt*4+3}], v{c} offset:{so + qt*4096 + k*1024}", ("f", k))
            for mt in range(2):
                for jj in range(2):
                    b = fb + 8 + mt * 4 + jj * 2
                    a.lg(f"ds_read_b64_tr_b16 v[{b}:{b+1}], v{w[mt]} offset:{so + k*4096 + jj*2048}", ("f", k))
        def mf(k):
            fb = FR + k * 16
            a.wait_lg(("f", k), always=True)
            for mt in range(2):
                for qt in range(2):
                    d = acc + (mt * 2 + qt) * 4
                    a(f"{MF} v[{d}:{d+3}], v[{fb+8+mt*4}:{fb+8+mt*4+3}], v[{fb+qt*4}:{fb+qt*4+3}], v[{d}:{d+3}]")
        reads(0); reads(1)
        if nxt is not None: stage_dma((slot + 3) % 4, nxt)
        mf(0); reads(2); mf(1); reads(3); mf(2); mf(3)
    L = a.newlabel("K3_loop")
    a(f"s_mov_b32 s{sCNT}, 7")
    a.stamp(2)
    a.label(L)
    def it():
        for s in range(4): stage(s, ACC, sWO)
    loop_emit(a, it)
    a(f"""
s_sub_u32 s{sCNT}, s{sCNT}, 1
s_cmp_lg_u32 s{sCNT}, 0
s_cbranch_scc1 {L}
""")
    stage(0, ACC, sWO)
    a(f"s_sub_u32 s{sWSRC}, s{sWSRC}, 0x400000")
    stage(1, ACC, sWB); stage(2, ACC, sWB); stage(3, ACC, sWB)
    a.stamp(3)
    stage(0, ACB, sWB)
    def store(acc, coff):
        for mt in range(2):
            for qt in range(2):
                d = acc + (mt * 2 + qt) * 4
                a(f"v_cvt_pk_bf16_f32 v{d}, v{d}, v{d+1}")
                a(f"v_cvt_pk_bf16_f32 v{d+1}, v{d+2}, v{d+3}")
        a(f"s_add_u32 s{sT0}, s{sOB}, 32768")
        for mt in range(2):
            for qt in range(2):
                d = acc + (mt * 2 + qt) * 4
                a.vm(f"buffer_store_dwordx2 v[{d}:{d+1}], v{vO}, s[{sOUT}:{sOUT+3}], s{sOB if qt == 0 else sT0} offen offset:{coff + mt*32}", "out")
    store(ACC, 0)
    stage(1, ACB, None); stage(2, ACB, None); stage(3, ACB, None)
    a("s_nop 7")
    store(ACB, 1024)
    a.stamp(9)
    if a.diag: a("s_waitcnt vmcnt(0)")
    a.stamp(23); a.stamp(10, real=True)
    a.stamp_flush(sWS, sWAVE, 24, DIAG, vt=(100, 101), kidx=2)
    a.label(END)
    a("s_endpgm")
```

```python
from sched import *
from common import *
WR, FR, AR = 0, 65536, 98304

class PhaseA:
    LEAD = 14
    def __init__(self, a, ACC, WF, vWA, vXA, vAE, vAO, vWE, vWO, sACT, sW, sA0, sA1, sWSRC, sROW4, sROW52, sLA, sLW, sT, types):
        self.__dict__.update(locals())
    def acc(self, nt, st): return self.ACC + ((nt >> 2) * 16 + (nt & 3) * 4 + st) * 4
    def act(self, ks, st): b = (ks * 4 + st) * 4; return f"a[{b}:{b+3}]"
    def wf(self, ks, nt): return self.WF + ((ks % 2) * 8 + nt) * 4
    def setup_dma(self, vL, vT0, vT1, vT2, sROW1, split=None):
        a = self.a
        a(f"""
v_lshrrev_b32 v{vT0}, 3, v{vL}
v_lshlrev_b32 v{vT0}, 10, v{vT0}
v_and_b32 v{vT1}, 7, v{vL}
v_lshrrev_b32 v{vT2}, 4, v{vL}
v_xor_b32 v{vT1}, v{vT1}, v{vT2}
v_lshl_add_u32 v{self.vAE}, v{vT1}, 4, v{vT0}
v_xor_b32 v{vT1}, 4, v{vT1}
v_lshl_add_u32 v{self.vAO}, v{vT1}, 4, v{vT0}
v_mul_lo_u32 v{vT0}, v{vT2}, s{sROW1}
v_and_b32 v{vT1}, 15, v{vL}
v_lshlrev_b32 v{vT2}, 1, v{vT2}
v_xor_b32 v{vT1}, v{vT1}, v{vT2}
v_lshl_add_u32 v{self.vWE}, v{vT1}, 4, v{vT0}
v_xor_b32 v{vT2}, 8, v{vT1}
v_lshl_add_u32 v{self.vWO}, v{vT2}, 4, v{vT0}
""")
        if split is not None:
            a(f"""
v_lshrrev_b32 v{vT1}, 3, v{vT1}
v_mul_lo_u32 v{vT1}, v{vT1}, s{split}
v_add_u32 v{self.vWE}, v{self.vWE}, v{vT1}
v_lshrrev_b32 v{vT2}, 3, v{vT2}
v_mul_lo_u32 v{vT2}, v{vT2}, s{split}
v_add_u32 v{self.vWO}, v{self.vWO}, v{vT2}
""")
    def setup_read(self, vL, vT0, vT1, vT2):
        a = self.a
        a(f"""
v_lshrrev_b32 v{vT0}, 4, v{vL}              ; kq
v_bfe_u32 v{vT1}, v{vL}, 2, 2               ; r
v_lshl_add_u32 v{vT2}, v{vT0}, 3, v{vT1}    ; kq*8+r
v_lshlrev_b32 v{vT2}, 8, v{vT2}
v_and_b32 v{vT0}, 1, v{vT0}
v_lshl_add_u32 v{vT1}, v{vT0}, 2, v{vT1}    ; f = r | (kq&1)<<2
v_and_b32 v{vT0}, 3, v{vL}
v_lshl_add_u32 v{vT2}, v{vT0}, 3, v{vT2}    ; + c4*8
""")
        for nt in range(8):
            a(f"v_xor_b32 v{vT0}, {nt}, v{vT1}")
            a(f"v_lshl_add_u32 v{self.vWA[nt]}, v{vT0}, 5, v{vT2}")
        a(f"""
v_and_b32 v{vT0}, 15, v{vL}
v_lshlrev_b32 v{vT0}, 7, v{vT0}
v_add_u32 v{vT0}, s{self.sLA}, v{vT0}
v_bfe_u32 v{vT1}, v{vL}, 1, 3
v_lshrrev_b32 v{vT2}, 4, v{vL}
v_xor_b32 v{vT1}, v{vT1}, v{vT2}
v_lshl_add_u32 v{self.vXA[0]}, v{vT1}, 4, v{vT0}
v_xor_b32 v{vT1}, 4, v{vT1}
v_lshl_add_u32 v{self.vXA[1]}, v{vT1}, 4, v{vT0}
""")
    def act_dma(self, c, i):
        a = self.a
        def f():
            a(f"s_add_u32 m0, s{self.sLA}, {(c % 2) * 8192 + i * 1024}")
            base = self.sA0 if i < 4 else self.sA1
            a(f"s_add_u32 s{self.sT}, s{base}, {(i & 3) * 8192 + c * 128}")
            a.vm(f"buffer_load_dwordx4 v{self.vAE if i % 2 == 0 else self.vAO}, s[{self.sACT}:{self.sACT+3}], s{self.sT} offen lds", ("pa", c))
        return Item(f, 12)
    def w_dma(self, c, i):
        a = self.a
        def f():
            a(f"s_add_u32 m0, s{self.sLW}, {(c % 4) * 16384 + i * 1024}")
            a("s_nop 0")
            a.vm(f"buffer_load_dwordx4 v{self.vWE if i < 2 else self.vWO}, s[{self.sW}:{self.sW+3}], s{self.sWSRC} offen lds", ("pa", c))
            a(f"s_add_u32 s{self.sWSRC}, s{self.sWSRC}, s{self.sROW4 if i < 3 else self.sROW52}")
        return Item(f, 16)
    def chunk_dmas(self, c):
        return [self.w_dma(c, i) for i in range(4)] + [self.act_dma(c, i) for i in range(8)]
    def ar(self, ks, st):
        a = self.a; c = ks >> 1
        return Item(lambda: a.lg(f"ds_read_b128 {self.act(ks, st)}, v{self.vXA[ks & 1]} offset:{(c % 2) * 8192 + st * 2048}", ("par", ks, st)), 4)
    def wr(self, ks, nt, jj):
        a = self.a; c = ks >> 1
        b = self.wf(ks, nt) + jj * 2
        return Item(lambda: a.lg(f"ds_read_b64_tr_b16 v[{b}:{b+1}], v{self.vWA[nt]} offset:{WR + (c % 4) * 16384 + (ks & 1) * 8192 + jj * 1024}", ("pwr", ks, nt)), 4)
    def bar_gap(self, c): return 64 * c - self.LEAD - 5
    def build(self, stamp=None):
        a = self.a
        LEAD = self.LEAD
        B = Body(512)
        for m in range(512):
            ks, nt, st = m >> 5, (m >> 2) & 7, m & 3
            d = self.acc(nt, st); w = self.wf(ks, nt)
            c = "0" if ks == 0 else f"v[{d}:{d+3}]"
            if self.types[nt] == "K": s = f"{MF} v[{d}:{d+3}], v[{w}:{w+3}], {self.act(ks, st)}, {c}"
            else: s = f"{MF} v[{d}:{d+3}], {self.act(ks, st)}, v[{w}:{w+3}], {c}"
            B.mfma[m] = (lambda s=s: a(s))
            if st == 0 and nt % 2 == 0:
                B.put_pre(m, Item(lambda ks=ks, nt=nt: a.wait_lg(("pwr", ks, nt + 1), always=True), 4))
        if stamp is not None: a.stamp(12)
        a.wait_vm(("pa", 0))
        if stamp is not None: a.stamp(13)
        a("s_barrier")
        if stamp is not None: a.stamp(stamp)
        for st in range(4): self.ar(0, st).fn()
        for nt in range(4):
            for jj in range(2): self.wr(0, nt, jj).fn()
        for c in range(8):
            if c > 0:
                def bar(c=c):
                    a.wait_vm(("pa", c), always=True); a("s_barrier")
                    if stamp is not None: a.stamp(15 + c)
                B.put(self.bar_gap(c), Item(bar, 8))
                for st in range(4): B.put(self.bar_gap(c) + 1 + st, self.ar(2 * c, st))
            for st in range(4): B.put(max(64 * c - LEAD + 2 + 4 * st, st), self.ar(2 * c + 1, st))
            for ks in (2 * c, 2 * c + 1):
                for nt in range(8):
                    if ks == 0 and nt < 4: continue
                    for jj in range(2):
                        B.put(ks * 32 + nt * 4 - LEAD + jj, self.wr(ks, nt, jj))
        for c in range(6):
            g = max(self.bar_gap(c) + 6, 1)
            B.spread([self.w_dma(c + 2, i) for i in range(4)], g, 64 * c + 16)
            B.spread([self.act_dma(c + 2, i) for i in range(8)], 64 * c + 17, 64 * c + 43)
        return B
```

```python
import re
class Item:
    def __init__(self, fn, cost=4):
        self.fn = fn; self.cost = cost

def merge_prop(*streams):
    items = []
    for li, l in enumerate(streams):
        n = len(l)
        for i, x in enumerate(l):
            items.append(((i + 0.5) / n, li, i, x))
    items.sort(key=lambda t: (t[0], t[1], t[2]))
    return [t[3] for t in items]

class Body:
    def __init__(self, n):
        self.n = n
        self.mfma = [None] * n
        self.pre = [[] for _ in range(n)]
        self.gap = [[] for _ in range(n)]
        self.load = [0] * n
    def put(self, m, item, front=False):
        if front: self.gap[m].insert(0, item)
        else: self.gap[m].append(item)
        self.load[m] += item.cost
    def put_pre(self, m, item):
        self.pre[m].append(item)
        if m > 0: self.load[m - 1] += item.cost
    def spread(self, items, start, end):
        total = sum(i.cost for i in items) + sum(self.load[start:end])
        target = total / float(end - start)
        g = start
        cum = 0.0
        for it in items:
            while g < end - 1 and cum + self.load[g] + it.cost * 0.5 > target * (g - start + 1):
                cum += self.load[g]; g += 1
            self.put(g, it)
    def emit(self, a):
        for m in range(self.n):
            for it in self.pre[m]: it.fn()
            self.mfma[m]()
            for it in self.gap[m]: it.fn()

_W = re.compile(r's_waitcnt (vmcnt|lgkmcnt)\((\d+)\)$')
def loop_emit(a, gen, nsim=2):
    start = len(a.lines)
    first = None
    lab = a._lab
    for p in range(nsim):
        a._lab = lab
        gen()
        seg = a.lines[start:]
        del a.lines[start:]
        if first is None: first = seg
        else:
            assert len(seg) == len(first), "loop passes differ in length %d %d" % (len(seg), len(first))
            for i, (x, y) in enumerate(zip(first, seg)):
                if x != y:
                    mx, my = _W.search(x), _W.search(y)
                    assert mx and my and mx.group(1) == my.group(1), (x, y)
                    if int(my.group(2)) < int(mx.group(2)): first[i] = y
    a.lines.extend(first)
```

```python
import sys
from asmlib import Asm
from k1 import gen_k1
from k2 import gen_k2
from k3 import gen_k3
HEADER = open("concat_heads__compressed_kv_cla__linear_kernel_hedgehog__prompt.s.ref").read().split("; Override launch")[0]
def build(diag, out, k1kw={}, k2kw={}, **k3kw):
    a = Asm()
    a.diag = diag
    gen_k1(a, **k1kw); gen_k2(a, **k2kw); gen_k3(a, **k3kw)
    probs = a.check()
    for p in probs: print(p)
    open(out, "w").write(a.text(HEADER))
    print(out, len(a.lines), "lines", len(probs), "hazards")
if __name__ == "__main__":
    build(True, "all_diag.s")
    build(False, "all.s")
    build(False, "v1.s", k2kw=dict(L2W=0))
    build(False, "fus.s", k1kw=dict(fused=True), k2kw=dict(fused=True))
    build(True, "fus_diag.s", k1kw=dict(fused=True), k2kw=dict(fused=True))
```

```python
import re

_REG = re.compile(r'\b([vas])\[(\d+):(\d+)\]|\b([vas])(\d+)\b|\b(vcc|exec|m0|scc)\b')

def regs_of(tok):
    out = set()
    for m in _REG.finditer(tok):
        if m.group(1):
            for i in range(int(m.group(2)), int(m.group(3)) + 1):
                out.add(m.group(1) + str(i))
        elif m.group(4):
            out.add(m.group(4) + m.group(5))
        else:
            out.add(m.group(6))
    return out

TRANS = ("v_exp_f32", "v_log_f32", "v_rcp_f32", "v_rsq_f32", "v_sqrt_f32", "v_sin_f32", "v_cos_f32")

class Ins:
    __slots__ = ("text", "op", "ops", "dst", "src", "kind", "srcC", "srcAB", "passes", "states", "stdata")
    def __init__(self, text):
        self.text = text
        t = text.split(";")[0].strip()
        p = t.split(None, 1)
        self.op = p[0]
        rest = p[1] if len(p) > 1 else ""
        self.ops = [x.strip() for x in rest.split(",")] if rest else []
        op = self.op
        self.dst = set(); self.src = set(); self.srcC = set(); self.srcAB = set(); self.passes = 0
        self.states = 1; self.stdata = set()
        R = [regs_of(x) for x in self.ops]
        if op.startswith("v_mfma"):
            self.kind = "mfma"
            self.dst = R[0]; self.srcAB = R[1] | R[2]; self.srcC = R[3]; self.src = self.srcAB | self.srcC
            self.passes = 8 if "32x32x16" in op else 4
        elif op.startswith("v_"):
            self.kind = "valu"
            if op.startswith("v_cmp"):
                self.dst = R[0]; self.src = set().union(*R[1:])
                if op.startswith("v_cmpx"): self.dst = self.dst | {"exec"}
            elif op.startswith(("v_add_co", "v_sub_co", "v_addc_co", "v_subb_co", "v_subrev_co")):
                self.dst = R[0] | R[1]; self.src = set().union(*R[2:])
            elif op.startswith(("v_permlane32_swap", "v_permlane16_swap", "v_swap")):
                self.dst = R[0] | R[1]; self.src = R[0] | R[1]
            elif op == "v_nop":
                pass
            else:
                self.dst = R[0]; self.src = set().union(*R[1:]) if len(R) > 1 else set()
                if op.startswith(("v_fmac", "v_pk_fmac", "v_writelane", "v_dot2c")): self.src |= R[0]
        elif op.startswith("ds_"):
            self.kind = "ds"
            if op.startswith(("ds_read", "ds_bpermute", "ds_swizzle", "ds_permute")):
                self.dst = R[0]; self.src = set().union(*R[1:])
            else:
                self.src = set().union(*R)
        elif op.startswith(("buffer_", "global_")):
            self.kind = "vmem"
            islds = bool(re.search(r'\blds\b', t))
            if "load" in op and not islds:
                self.dst = R[0]; self.src = set().union(*R[1:])
            else:
                self.src = set().union(*R) if R else set()
                if islds: self.src |= {"m0"}
                if "store" in op and ("x4" in op or "x3" in op):
                    self.stdata = R[0] if op.startswith("buffer_") else R[1]
        elif op.startswith("s_"):
            self.kind = "salu"
            if op == "s_nop":
                self.states = int(self.ops[0], 0) + 1
            elif op.startswith(("s_cmp", "s_waitcnt", "s_barrier", "s_branch", "s_cbranch", "s_endpgm", "s_setprio", "s_sleep", "s_setpc", "s_bitcmp")):
                self.src = set().union(*R) if R else set()
            else:
                self.dst = R[0] if R else set(); self.src = set().union(*R[1:]) if len(R) > 1 else set()
                if "saveexec" in op: self.dst = self.dst | {"exec"}
        else:
            self.kind = "other"

def check_hazards(lines, name=""):
    ins = []
    for l in lines:
        t = l.split(";")[0].strip()
        if not t or t.endswith(":") or t.startswith("."):
            continue
        ins.append(Ins(t))
    probs = []
    n = len(ins)
    for i, c in enumerate(ins):
        dist = 0
        j = i - 1
        while j >= 0 and dist < 20:
            p = ins[j]
            need = 0; why = ""
            isv = lambda s: {r for r in s if r[0] in "va" and r[1:].isdigit()}
            iss = lambda s: {r for r in s if (r[0] == "s" and r[1:].isdigit()) or r == "vcc"}
            if p.kind == "mfma":
                big = 12 if p.passes == 8 else 8
                ovl = 10 if p.passes == 8 else 6
                war = 7 if p.passes == 8 else 3
                if c.kind == "mfma":
                    if p.dst & c.srcAB: need, why = big, "mfma D -> mfma A/B"
                    elif p.dst & c.srcC and (p.dst != c.srcC or p.passes != c.passes): need, why = ovl, "mfma D -> mfma C overlap"
                    elif p.dst & c.dst and not (p.dst & c.srcC): need, why = ovl, "mfma D -> mfma D waw(cons)"
                elif c.kind in ("valu", "ds", "vmem"):
                    if p.dst & (c.src | c.dst): need, why = big, "mfma D -> valu/mem"
                    elif c.kind == "valu" and p.srcC & c.dst: need, why = war, "mfma C read -> valu write"
            elif p.kind == "valu":
                if c.kind == "mfma" and isv(p.dst) & c.src: need, why = 2, "valu -> mfma"
                if c.kind == "mfma" and "exec" in p.dst: need, why = 4, "exec -> mfma"
                if c.kind == "valu":
                    if p.op in TRANS and c.op not in TRANS and p.dst & c.src: need, why = max(need, 1), "trans -> valu"
                    if c.op.startswith(("v_readfirstlane", "v_readlane")) and isv(p.dst) & c.src: need, why = max(need, 1), "valu -> readlane"
                    if c.op.startswith("v_permlane") and isv(p.dst) & c.src: need, why = max(need, 2), "valu -> permlane"
                    if ("dpp" in c.text or "row_" in c.text or "quad_perm" in c.text) and isv(p.dst) & c.src: need, why = max(need, 2), "valu -> dpp"
                    if iss(p.dst) & c.src: need, why = max(need, 2), "valu sgpr -> valu read"
                    if iss(p.dst) & c.src and c.op.startswith(("v_readlane", "v_writelane")): need, why = max(need, 4), "valu sgpr -> lane select"
                if c.kind == "vmem" and iss(p.dst) & c.src: need, why = 5, "valu sgpr -> vmem"
            elif p.kind == "salu":
                if "m0" in p.dst and c.kind == "vmem" and "m0" in c.src: need, why = 1, "m0 -> lds dma"
            elif p.kind == "vmem":
                if p.stdata and (p.stdata & c.dst): need, why = (2 if c.kind == "valu" else 1), "store data WAR"
            if need > dist:
                probs.append("%s: hazard %s need %d have %d:\n    %s\n    %s" % (name, why, need, dist, p.text, c.text))
            dist += p.states
            j -= 1
    return probs

class Asm:
    def __init__(self):
        self.lines = []
        self.launches = []
        self.descs = []
        self._lab = 0
        self.vmq = []
        self.lgq = []
        self._kstart = 0
        self.stubs = []
    def __call__(self, s):
        for l in s.strip("\n").split("\n"):
            l = l.strip()
            if not l: continue
            if l.endswith(":") and " " not in l:
                self.lines.append(l)
            else:
                self.lines.append("    " + l)
    def vm(self, s, tag):
        self(s); self.vmq.append(tag)
    def lg(self, s, tag):
        self(s); self.lgq.append(tag)
    @staticmethod
    def _cnt(q, tags):
        if not isinstance(tags, (list, set)): tags = [tags]
        last = -1
        for i, t in enumerate(q):
            if t in tags: last = i
        return last
    def wait_vm(self, tags, always=False, lg0=False):
        last = self._cnt(self.vmq, tags)
        sfx = " lgkmcnt(0)" if lg0 else ""
        if lg0: self.lgq = []
        if last < 0:
            if always or lg0: self("s_waitcnt vmcnt(%d)%s" % (min(63, len(self.vmq)), sfx))
            return
        n = len(self.vmq) - 1 - last
        assert n <= 63, "vmcnt overflow %d" % n
        self("s_waitcnt vmcnt(%d)%s" % (n, sfx))
        self.vmq = self.vmq[last + 1:]
    def flush_stubs(self):
        for t in self.stubs: self(t)
        self.stubs = []
    def wait_lg(self, tags, always=False):
        last = self._cnt(self.lgq, tags)
        if last < 0:
            if always: self("s_waitcnt lgkmcnt(%d)" % min(15, len(self.lgq)))
            return
        n = len(self.lgq) - 1 - last
        if n > 15: n = 15; last = len(self.lgq) - 1 - 15
        self("s_waitcnt lgkmcnt(%d)" % n)
        self.lgq = self.lgq[last + 1:]
    def wait_all(self):
        self("s_waitcnt vmcnt(0) lgkmcnt(0)"); self.vmq = []; self.lgq = []
    diag = False
    def stamp(self, idx, real=False):
        if not self.diag: return
        self("%s s[100:101]" % ("s_memrealtime" if real else "s_memtime"))
        self("s_waitcnt lgkmcnt(0)")
        self("s_mov_b32 s%d, s100" % (64 + idx))
        self.lgq = []
    def stamp_flush(self, srd, swave, n, base, vt=(250, 251), kidx=0):
        if not self.diag: return
        self("s_lshl_b32 s100, s2, 3")
        self("s_add_u32 s100, s100, s%d" % swave)
        self("s_lshl_b32 s100, s100, 7")
        self("s_add_u32 s100, s100, %d" % (base + kidx * 0x40000))
        self("v_mov_b32 v%d, 0" % vt[1])
        self("s_mov_b64 exec, 1")
        for i in range(n):
            self("v_mov_b32 v%d, s%d" % (vt[0], 64 + i))
            self("buffer_store_dword v%d, v%d, s[%d:%d], s100 offen offset:%d" % (vt[0], vt[1], srd, srd + 3, i * 4))
            self("s_nop 1")
        self("s_mov_b64 exec, -1")
    def label(self, name):
        self.lines.append(name + ":")
    def newlabel(self, base="L"):
        self._lab += 1
        return "%s_%d" % (base, self._lab)
    def comment(self, s):
        self.lines.append("    ; " + s)
    def kernel(self, name, grid, block, lds, vgpr, agpr=0, sgpr=102, launch=True):
        if launch:
            self.launches.append((name, grid, block, lds))
        acc_off = (vgpr + 3) // 4 * 4
        nfv = acc_off + agpr if agpr else vgpr
        self.descs.append((name, nfv, sgpr, acc_off, grid))
        self.lines.append(".globl %s" % name)
        self.lines.append(".p2align 8")
        self.lines.append(".type %s,@function" % name)
        self.lines.append("%s:" % name)
        self.vmq = []; self.lgq = []
    def relaunch(self, name, grid, block, lds):
        self.launches.append((name, grid, block, lds))
    def check(self):
        return check_hazards(self.lines)
    def text(self, header=""):
        out = []
        for l in header.strip("\n").split("\n"):
            if l.strip():
                out.append("; " + l.strip().lstrip(";").strip())
        for (n, g, b, lds) in self.launches:
            out.append("; @launch kernel=%s grid=(%d,%d,%d) block=(%d,%d,%d) lds=%d" % (n, g[0], g[1], g[2], b[0], b[1], b[2], lds))
        out.append('.amdgcn_target "amdgcn-amd-amdhsa--gfx950"')
        out.append(".text")
        out += self.lines
        out.append('.section .rodata,"a"')
        for (n, nfv, sgpr, acc, grid) in self.descs:
            out.append(".p2align 6")
            out.append(".amdhsa_kernel %s" % n)
            out.append("  .amdhsa_next_free_vgpr %d" % nfv)
            out.append("  .amdhsa_next_free_sgpr %d" % sgpr)
            out.append("  .amdhsa_accum_offset %d" % acc)
            out.append("  .amdhsa_group_segment_fixed_size 0")
            out.append("  .amdhsa_kernarg_size 104")
            out.append("  .amdhsa_user_sgpr_count 2")
            out.append("  .amdhsa_user_sgpr_kernarg_segment_ptr 1")
            out.append("  .amdhsa_system_sgpr_workgroup_id_x 1")
            if grid[1] > 1:
                out.append("  .amdhsa_system_sgpr_workgroup_id_y 1")
            out.append("  .amdhsa_float_denorm_mode_32 3")
            out.append(".end_amdhsa_kernel")
        return "\n".join(out) + "\n"
```

```python
from asmlib import Asm
from sched import *
from common import *
from phasea import PhaseA, WR, FR, AR
from hedge import *

def gen_k1(a, name="k1_kernel", W0=0, ST="sc1", STL="sc1", MAP=1, WB=0, PT=2, ROT=1):
    a.kernel(name, (256,1,1), (256,1,1), 163840, vgpr=256, agpr=256)
    sACT, sW, sWS = 4, 8, 12
    (sWAVE, sRB, sJOB, sSUB, sSCALE, sROW1, sSTB, sWOFF, sA0, sA1, sT0, sT1, sT2, sCNT, sLA, sLW, sSTFIX,
     sWSRC, sROW4, sROWH, sROW8, sWL, sLC, sSPLIT) = range(16, 40)
    sCO, sWB, sA0c, sA1c, sWH, sHU = 92, 93, 94, 95, 96, 97
    ACC = 0; WF = 128
    PK = 160
    TM = 192
    vWA = list(range(208, 216)); vXA = [216, 217]
    vAE, vAO, vWE, vWO = 218, 219, 220, 221
    vS = list(range(222, 230))
    vST = [234, 235, 236, 237]
    vDE, vDO = 238, 239
    vL, vT0, vT1, vT2 = 240, 241, 242, 243
    PK2 = 244
    END = a.newlabel("K1_end"); LV = a.newlabel("K1_vtype"); LBKV = a.newlabel("K1_bkv")
    LK = a.newlabel("K1_ktype"); LJ1 = a.newlabel("K1_j1"); LJ2 = a.newlabel("K1_j2"); LJ3 = a.newlabel("K1_j3"); LJD = a.newlabel("K1_jd")
    a(f"""
s_cmp_ge_u32 s2, 256
s_cbranch_scc1 {END}
""")
    a.stamp(14)
    a(f"""
s_load_dwordx4 s[44:47], s[0:1], 8      ; c_kv (44:45)  w_q (46:47)
s_load_dwordx4 s[48:51], s[0:1], 24
s_load_dwordx4 s[52:55], s[0:1], 48     ; B_x (52:53) wqkv (54:55)
s_load_dwordx2 s[56:57], s[0:1], 96     ; ws
s_load_dwordx2 s[58:59], s[0:1], 64     ; w_phi
v_lshrrev_b32 v{vT0}, 6, v0
v_and_b32 v{vL}, 63, v0
v_readfirstlane_b32 s{sWAVE}, v{vT0}
s_lshr_b32 s{sT1}, s2, 3                ; q
s_and_b32 s{sRB}, s2, 1
s_lshl_b32 s{sRB}, s{sRB}, 2
s_and_b32 s{sT0}, s{sT1}, 3
s_add_u32 s{sRB}, s{sRB}, s{sT0}
s_lshr_b32 s{sT1}, s{sT1}, 2
""")
    if MAP == 0:
        a(f"""
s_and_b32 s{sJOB}, s2, 6
s_lshl_b32 s{sJOB}, s{sJOB}, 2
s_add_u32 s{sJOB}, s{sJOB}, s{sT1}
""")
    else:
        a(f"""
s_and_b32 s{sT0}, s2, 6
s_mul_i32 s{sJOB}, s{sT0}, 3
s_add_u32 s{sJOB}, s{sJOB}, s{sT1}
s_add_u32 s{sT0}, s{sT0}, s{sT1}
s_add_u32 s{sT0}, s{sT0}, 18
s_cmp_ge_u32 s{sT1}, 6
s_cselect_b32 s{sJOB}, s{sT0}, s{sJOB}
""")
    a(f"""
s_lshl_b32 s{sSTFIX}, s{sRB}, 16
s_lshl_b32 s{sT0}, s{sWAVE}, 14
s_add_u32 s{sSTFIX}, s{sSTFIX}, s{sT0}
s_mov_b32 s{sSPLIT}, 0
s_mov_b32 s{sWS+2}, {WS_USED}
s_mov_b32 s{sWS+3}, 0x20000
s_mov_b32 s{sACT+2}, 0x200000
s_mov_b32 s{sACT+3}, 0x20000
s_mov_b32 s{sW+3}, 0x20000
s_waitcnt lgkmcnt(0)
s_mov_b32 s{sWS}, s56
s_mov_b32 s{sWS+1}, s57
s_cmp_ge_u32 s{sJOB}, 24
s_cbranch_scc1 {LJ2}
s_mov_b32 s{sACT}, s44
s_mov_b32 s{sACT+1}, s45
s_mov_b32 s{sW+2}, 0x400000
s_mov_b32 s{sROW1}, 8192
s_mov_b32 s{sSCALE}, {hex(f2u(CSCALE))}
s_mov_b32 s{sW}, s48
s_mov_b32 s{sW+1}, s49
s_mov_b32 s{sSUB}, s{sJOB}
s_cmp_lt_u32 s{sJOB}, 12
s_cbranch_scc1 {LJ1}
s_mov_b32 s{sW}, s50
s_mov_b32 s{sW+1}, s51
s_sub_u32 s{sSUB}, s{sJOB}, 12
s_add_u32 s{sSTFIX}, s{sSTFIX}, {VWS}
{LJ1}:
s_mul_i32 s{sT0}, s{sSUB}, 43
s_lshr_b32 s{sT0}, s{sT0}, 7             ; j/3
s_mul_i32 s{sT2}, s{sT0}, 3
s_sub_u32 s{sT2}, s{sSUB}, s{sT2}        ; j%3
s_lshl_b32 s{sT0}, s{sT0}, 5
s_lshl_b32 s{sT2}, s{sT2}, 3
s_lshr_b32 s{sSUB}, 0x160c00, s{sT2}
s_and_b32 s{sSUB}, s{sSUB}, 0xff
s_add_u32 s{sSUB}, s{sSUB}, s{sT0}
s_lshr_b32 s{sHU}, 0x1f0b0a, s{sT2}
s_and_b32 s{sHU}, s{sHU}, 0xff
s_add_u32 s{sHU}, s{sHU}, s{sT0}
s_lshl_b32 s{sWOFF}, s{sSUB}, 6
s_branch {LJD}
{LJ2}:
s_mov_b32 s{sACT}, s52
s_mov_b32 s{sACT+1}, s53
s_mov_b32 s{sW}, s54
s_mov_b32 s{sW+1}, s55
s_mov_b32 s{sW+2}, 0x180000
s_mov_b32 s{sROW1}, 3072
s_mov_b32 s{sSCALE}, 1.0
s_sub_u32 s{sSUB}, s{sJOB}, 24
s_lshl_b32 s{sWOFF}, s{sSUB}, 7
s_add_u32 s{sWOFF}, s{sWOFF}, 1024      ; k section
s_mov_b32 s{sSPLIT}, 896
{LJD}:
s_lshl_b32 s{sROW4}, s{sROW1}, 2
s_lshr_b32 s{sROWH}, s{sROW1}, 1
s_lshl_b32 s{sROW8}, s{sROW1}, 3
s_lshl_b32 s{sCO}, s{sRB}, 1
s_add_u32 s{sCO}, s{sCO}, s{sT1}
s_and_b32 s{sCO}, s{sCO}, {7 if ROT else 0}      ; rotation
s_add_u32 s{sT0}, s{sCO}, s{sWAVE}
s_and_b32 s{sT0}, s{sT0}, 7
s_lshl_b32 s{sT0}, s{sT0}, 6
s_mul_i32 s{sWL}, s{sT0}, s{sROW1}
s_xor_b32 s{sT0}, s{sT0}, 256
s_mul_i32 s{sWH}, s{sT0}, s{sROW1}
s_lshl_b32 s{sCO}, s{sCO}, 7
s_sub_u32 s{sCO}, s{sCO}, 128
s_lshl_b32 s{sA0}, s{sRB}, 18
s_lshl_b32 s{sT0}, s{sWAVE}, 16
s_add_u32 s{sA0}, s{sA0}, s{sT0}
s_add_u32 s{sA1}, s{sA0}, 32768
s_lshl_b32 s{sLA}, s{sWAVE}, 14
s_add_u32 s{sLA}, s{sLA}, {AR}
s_lshl_b32 s{sLW}, s{sWAVE}, 12
s_add_u32 s{sLW}, s{sLW}, {WR}
s_lshl_b32 s{sLC}, s{sWAVE}, 13
s_lshl_b32 s{sT0}, s{sWAVE}, 4
s_mul_i32 s{sWB}, s{sT0}, s{sROW1}
s_add_u32 s{sWB}, s{sWB}, s{sWOFF}
""")
    def mkpa(types):
        return PhaseA(a, ACC, WF, vWA, vXA, vAE, vAO, vWE, vWO, sACT, sW, sA0, sA1, sWSRC, sROW4, sROWH, sLA, sLW, sT2, types, sCO, sWB, sA0c, sA1c)
    pa = mkpa("K" * 8)
    mk = Mk(a)
    pa.setup_dma(vL, vT0, vT1, vT2, sROW1, split=sSPLIT)
    a.stamp(0); a.stamp(1, real=True)
    for it in pa.chunk_dmas(0): it.fn()
    a.stamp(11)
    pa.setup_read(vL, vT0, vT1, vT2)
    a(f"""
v_lshrrev_b32 v{vT0}, 3, v{vL}
v_mul_lo_u32 v{vT0}, v{vT0}, s{sROW1}
v_and_b32 v{vT1}, 7, v{vL}
v_bfe_u32 v{vT2}, v{vL}, 4, 1
v_lshlrev_b32 v{vT2}, 1, v{vT2}
v_xor_b32 v{vT1}, v{vT1}, v{vT2}
v_lshl_add_u32 v{vDE}, v{vT1}, 4, v{vT0}
v_xor_b32 v{vT1}, 4, v{vT1}
v_lshl_add_u32 v{vDO}, v{vT1}, 4, v{vT0}
v_lshrrev_b32 v{vT0}, 4, v{vL}              ; kq
v_bfe_u32 v{vT1}, v{vL}, 2, 2               ; r
v_lshl_add_u32 v{vT2}, v{vT0}, 3, v{vT1}
v_lshlrev_b32 v{vT2}, 7, v{vT2}             ; (kq*8+r)*128
v_and_b32 v{vT0}, 1, v{vT0}
v_lshrrev_b32 v{vT1}, 1, v{vT1}
v_lshl_add_u32 v{vT1}, v{vT0}, 1, v{vT1}    ; f
v_and_b32 v{vT0}, 3, v{vL}
v_lshl_add_u32 v{vT2}, v{vT0}, 3, v{vT2}
""")
    for nt in range(4):
        a(f"v_xor_b32 v{vT0}, {nt}, v{vT1}")
        a(f"v_lshl_add_u32 v{vS[nt]}, v{vT0}, 5, v{vT2}")
        a(f"v_add_u32 v{vS[4+nt]}, 0x10000, v{vS[nt]}")
    a(f"v_lshlrev_b32 v{vST[0]}, 4, v{vL}")
    for k in range(1, 4):
        a(f"v_add_u32 v{vST[k]}, {4096*k}, v{vST[0]}")
    a(f"""
s_add_u32 s{sWOFF}, s{sWOFF}, 256
""")
    def touch(bufs, tag):
        a(f"""
s_lshl_b32 s{sT0}, s2, 2
s_add_u32 s{sT0}, s{sT0}, s{sWAVE}
s_mov_b32 s91, 0x20000
""")
        for ptr, size in bufs:
            lg = (size - 1).bit_length() - 10
            a(f"v_and_b32 v{vT0}, {(1 << (lg - 7)) - 1}, v{vL}")
            a(f"v_lshlrev_b32 v{vT0}, 7, v{vT0}")
            a(f"s_lshl_b32 s{sT2}, s{sT0}, {lg}")
            a(f"s_mov_b32 s88, s{ptr}")
            a(f"s_mov_b32 s89, s{ptr+1}")
            a(f"s_mov_b32 s90, {size}")
            a.vm(f"buffer_load_dword v233, v{vT0}, s[88:91], s{sT2} offen", tag)
    def warm0():
        touch(((44, 0x200000), (48, 0x400000), (50, 0x400000), (52, 0x200000), (54, 0x180000)), "warm")
    if W0 == 2: warm0()
    for it in pa.chunk_dmas(1): it.fn()
    if W0 == 1: warm0()
    a(f"""
s_cmp_ge_u32 s{sJOB}, 24
s_cbranch_scc1 {LBKV}
s_cmp_ge_u32 s{sJOB}, 12
s_cbranch_scc1 {LV}
""")
    state0 = (list(a.vmq), list(a.lgq))
    vTW = 244
    a.stamp0 = 12
    def acc(buf, nt, st): return ACC + (buf * 16 + nt * 4 + st) * 4
    def wf(ks, nt): return WF + ((ks % 2) * 4 + nt) * 4
    SLOT = [65536, 0, 32768, 98304]
    def tr_item(pair, ks, nt, jj, SL=SLOT):
        hi, k8 = ks >> 3, ks & 7
        sb = SL[2 * pair + hi]
        reg = vS[(sb >> 16) * 4 + nt]; off = (sb & 0xffff) + k8 * 4096 + jj * 512
        b = wf(ks, nt) + jj * 2
        return mk.LG(f"ds_read_b64_tr_b16 v[{b}:{b+1}], v{reg} offset:{off}", ("wf", ks % 2, nt))
    def slot_dma(slot, SL=SLOT):
        hi = slot & 1
        its = []
        for i in range(8):
            its.append(mk.I(f"s_add_u32 m0, s{sLC}, {SL[slot] + i * 1024}"))
            if i == 0: its.append(mk.I(f"s_add_u32 s{sT1}, s{sWOFF}, s{sWH if hi else sWL}"))
            else: its.append(mk.I(f"s_add_u32 s{sT1}, s{sT1}, s{sROW8}"))
            its.append(mk.VM(f"buffer_load_dwordx4 v{vDE if i % 2 == 0 else vDO}, s[{sW}:{sW+3}], s{sT1} offen lds", ("w", slot)))
        if hi: its.append(mk.I(f"s_add_u32 s{sWOFF}, s{sWOFF}, 128"))
        return its
    def epi_items(typ, buf, units=(0, 1), packed=False, st=None):
        items = []
        d = 10 if typ == "K" else 11
        for u in units:
            items += [mk.I(t) for t in (f"s_lshr_b32 s{sSTB}, s{sSUB}, 2", f"s_lshl_b32 s{sSTB}, s{sSTB}, 19", f"s_and_b32 s{sT0}, s{sSUB}, 3",
                                       f"s_lshl_b32 s{sT0}, s{sT0}, {d}", f"s_add_u32 s{sSTB}, s{sSTB}, s{sT0}",
                                       f"s_add_u32 s{sSTB}, s{sSTB}, s{sSTFIX}", f"s_add_u32 s{sSUB}, s{sSUB}, 1")]
            for x in range(4):
                n = u * 4 + x
                pk = PK + n * 4
                for j in range(4):
                    if typ == "K": r = acc(buf, 2 * u + (j >> 1), x) + (j & 1) * 2
                    else: r = acc(buf, 2 * u + (x & 1), (x >> 1) * 2 + (j >> 1)) + (j & 1) * 2
                    if typ == "K":
                        t = TM + ((n * 4 + j) % 8) * 2
                        if packed: items.append(mk.I(f"v_pk_mul_f32 v[{t}:{t+1}], v[{r}:{r+1}], s[{sSCALE}:{sSCALE+1}] op_sel_hi:[1,0]"))
                        else:
                            items.append(mk.I(f"v_mul_f32 v{t}, s{sSCALE}, v{r}"))
                            items.append(mk.I(f"v_mul_f32 v{t+1}, s{sSCALE}, v{r+1}"))
                        items.append(mk.I(f"v_cvt_pk_bf16_f32 v{pk+j}, v{t}, v{t+1}"))
                    else:
                        items.append(mk.I(f"v_cvt_pk_bf16_f32 v{pk+j}, v{r}, v{r+1}"))
                if typ == "K": vo, off = vST[x], 0
                else: vo, off = vST[(x >> 1) * 2], (x & 1) * 1024
                items.append(mk.VM(f"buffer_store_dwordx4 v[{pk}:{pk+3}], v{vo}, s[{sWS}:{sWS+3}], s{sSTB} offen offset:{off} {ST if st is None else st}", "st"))
        return items
    def put_bar(B, g, tag):
        B.put(g, mk.WV(tag)); B.put(g, mk.I("s_barrier"), 3)
    LEAD = 12
    def mf(typ, d, w, ks, st):
        c = "0" if ks == 0 else f"v[{d}:{d+3}]"
        if typ == "K": s = f"{MF} v[{d}:{d+3}], v[{w}:{w+3}], {pa.act(ks, st)}, {c}"
        else: s = f"{MF} v[{d}:{d+3}], {pa.act(ks, st)}, v[{w}:{w+3}], {c}"
        return lambda: a(s)
    def body(typ, buf, SL=SLOT, epi=True, dma=True, nxt=True, extra=None):
        B = Body(256)
        for m in range(256):
            ks, nt, st = m >> 4, (m >> 2) & 3, m & 3
            B.mfma[m] = mf(typ, acc(buf, nt, st), wf(ks, nt), ks, st)
            if st == 0 and nt % 2 == 0: B.put_pre(m, mk.WL(("wf", ks % 2, nt + 1)))
        for idx in range(LEAD // 4, 64 + (LEAD // 4 if nxt else 0)):
            ks, nt = idx >> 2, idx & 3
            g = idx * 4 - LEAD
            if idx == 32: put_bar(B, g - 2, ("w", 2 * buf + 1))
            if idx == 64: put_bar(B, g - 2, ("w", 2 * (1 - buf)))
            for jj in range(2):
                B.put(g, tr_item(buf, ks, nt, jj, SL) if ks < 16 else tr_item(1 - buf, ks - 16, nt, jj, SL))
        if dma:
            B.stream(slot_dma(2 * (1 - buf), SL), 0, 26)
            B.stream(slot_dma(2 * (1 - buf) + 1, SL), 128 - LEAD, 154 - LEAD)
        if epi:
            B.stream(epi_items(typ, 1 - buf, (0,)), 14, 110)
            B.stream(epi_items(typ, 1 - buf, (1,)), 132, 236)
        if extra: B.stream(extra, 4, 200)
        B.emit(a)
    def half_body(typ, buf):
        B = Body(128)
        for m in range(128):
            ks, nt, st = m >> 3, (m >> 2) & 1, m & 3
            B.mfma[m] = mf(typ, acc(buf, nt, st), wf(ks, nt), ks, st)
            if st == 0: B.put_pre(m, mk.WL(("wf", ks % 2, nt)))
        for jj in range(2): tr_item(buf, 1, 0, jj).fn()
        for idx in range(3, 32):
            ks, nt = idx >> 1, idx & 1
            g = idx * 4 - 12
            if idx == 16: put_bar(B, g - 2, ("w", 2 * buf + 1))
            for jj in range(2): B.put(g, tr_item(buf, ks, nt, jj))
        B.stream(epi_items(typ, 1 - buf, st=STL), 8, 124)
        B.emit(a)
    def warm():
        a(f"""
s_load_dwordx2 s[44:45], s[0:1], 0
s_sub_u32 s{sT0}, s{sJOB}, 24
s_lshl_b32 s{sT0}, s{sT0}, 3
s_add_u32 s{sT0}, s{sT0}, s{sRB}
s_lshl_b32 s{sT0}, s{sT0}, 2
s_add_u32 s{sT0}, s{sT0}, s{sWAVE}
v_lshlrev_b32 v{vT0}, 7, v{vL}
s_mov_b32 s{sW}, s46
s_mov_b32 s{sW+1}, s47
s_mov_b32 s{sW+2}, 0x400000
s_lshl_b32 s{sT1}, s{sT0}, 14
buffer_load_dword v233, v{vT0}, s[{sW}:{sW+3}], s{sT1} offen
s_add_u32 s{sT1}, s{sT1}, 8192
buffer_load_dword v233, v{vT0}, s[{sW}:{sW+3}], s{sT1} offen
s_waitcnt lgkmcnt(0)
s_mov_b32 s{sACT}, s44
s_mov_b32 s{sACT+1}, s45
s_lshl_b32 s{sT1}, s{sT0}, 13
buffer_load_dword v233, v{vT0}, s[{sACT}:{sACT+3}], s{sT1} offen
""")
    def path(typ):
        a.vmq, a.lgq = list(state0[0]), list(state0[1])
        p = mkpa(typ * 8)
        if PT:
            a(f"""
s_sub_u32 s{sT0}, s{sJOB}, {0 if typ == "K" else 12}
s_lshl_b32 s{sT0}, s{sT0}, 3
s_add_u32 s{sT0}, s{sT0}, s{sRB}
s_lshl_b32 s{sT0}, s{sT0}, 2
s_add_u32 s{sT0}, s{sT0}, s{sWAVE}
s_mul_i32 s{sT0}, s{sT0}, {11*128}
v_min_u32 v{vTW}, 10, v{vL}
v_lshlrev_b32 v{vTW}, 7, v{vTW}
v_add_u32 v{vTW}, s{sT0}, v{vTW}
""")
        B = p.build(stamp=2)
        if PT:
            for c in range(8):
                B.stream([mk.I(f"s_mov_b32 s{sT0}, {((c + PT + 2) & 7) * 0x80000}"),
                          mk.VM(f"buffer_load_dword v233, v{vTW}, s[{sW}:{sW+3}], s{sT0} offen", "pt")], 64 * c + 43, 64 * c + 47)
        B.stream(slot_dma(0), p.bar_gap(6) + 3, p.bar_gap(6) + 50)
        B.stream(slot_dma(1), p.bar_gap(7) + 3, p.bar_gap(7) + 50)
        B.emit(a)
        a.stamp(3)
        a("s_nop 3")
        for it in epi_items(typ, 0, packed=True): it.fn()
        a.wait_vm(("w", 0)); a("s_barrier")
        for idx in range(LEAD // 4):
            for jj in range(2): tr_item(0, idx >> 2, idx & 3, jj).fn()
        a.stamp(4)
        LOOP = a.newlabel("K1_loop"); DONE = a.newlabel("K1_done")
        a(f"s_mov_b32 s{sCNT}, 0")
        a.label(LOOP)
        mid = []
        def it():
            body(typ, 0)
            a.stamp(7)
            a(f"s_cmp_eq_u32 s{sCNT}, 1")
            a(f"s_cbranch_scc1 {DONE}")
            mid[:] = [list(a.vmq), list(a.lgq)]
            if a.diag: a("s_mov_b32 s69, s71")
            body(typ, 1)
            a.stamp(6)
            a(f"s_mov_b32 s{sCNT}, 1")
            a(f"s_lshl_b32 s{sWOFF}, s{sHU}, 6")
            a(f"v_and_b32 v{vDE}, 0xffffffbf, v{vDE}")
            a(f"v_and_b32 v{vDO}, 0xffffffbf, v{vDO}")
        loop_emit(a, it)
        a(f"s_branch {LOOP}")
        a.label(DONE)
        a.vmq, a.lgq = mid
        half_body(typ, 1)
        a.stamp(12)
        a(f"s_mov_b32 s{sSUB}, s{sHU}")
        a("s_nop 3")
        for itm in epi_items(typ, 1, (0,), packed=True, st=STL): itm.fn()
        a.stamp(8)
        if a.diag: a("s_waitcnt vmcnt(0)")
        a.stamp(9); a.stamp(10, real=True)
        a.stamp_flush(sWS, sWAVE, 24, DIAG)
        a("s_endpgm")
    a.label(LK)
    path("K")
    a.label(LV)
    path("V")
    a.label(LBKV)
    a.vmq, a.lgq = list(state0[0]), list(state0[1])
    sPHI = 40; sLOG2E = 60; sRET = 62
    sHM = [48, 50, 52, 54]
    WPH = 192
    vPH, vPW, vPR, vVW, vZ, vONE = 246, 247, 248, 249, 250, 252
    vPW2, vPR2, vVR = 230, 231, 232
    BSL = [0, 32768, 65536, 98304]
    a(f"""
s_mov_b32 s{sPHI}, s58
s_mov_b32 s{sPHI+1}, s59
s_mov_b32 s{sPHI+2}, 16384
s_mov_b32 s{sPHI+3}, 0x20000
s_mov_b32 s{sLOG2E}, {hex(f2u(LOG2E))}
s_sub_u32 s{sWOFF}, s{sWOFF}, 1280
v_and_b32 v{vT0}, 15, v{vL}
v_lshrrev_b32 v{vT1}, 4, v{vL}
v_bfe_u32 v{vT2}, v{vL}, 2, 2                  ; hq
v_cmp_eq_u32 s[{sHM[0]}:{sHM[0]+1}], 0, v{vT2}
v_cmp_eq_u32 s[{sHM[1]}:{sHM[1]+1}], 1, v{vT2}
v_cmp_eq_u32 s[{sHM[2]}:{sHM[2]+1}], 2, v{vT2}
v_cmp_eq_u32 s[{sHM[3]}:{sHM[3]+1}], 3, v{vT2}
v_and_b32 v{vPH}, 3, v{vL}
v_lshlrev_b32 v{vPH}, 1, v{vPH}
v_lshl_add_u32 v{vPH}, v{vT1}, 7, v{vPH}
v_lshl_add_u32 v{vPH}, v{vT2}, 9, v{vPH}
v_lshlrev_b32 v{vPW}, 6, v{vT0}
v_lshl_add_u32 v{vPW}, v{vT1}, 14, v{vPW}
v_and_b32 v{vZ}, 4, v{vL}
v_lshl_add_u32 v{vPW}, v{vZ}, 3, v{vPW}
s_lshl_b32 s{sT0}, s{sWAVE}, 12
s_add_u32 s{sT0}, s{sT0}, {AR}
v_add_u32 v{vPW}, s{sT0}, v{vPW}
v_lshl_add_u32 v{vT2}, v{vT1}, 2, v{vT2}
v_lshlrev_b32 v{vPR}, 6, v{vT2}
v_and_b32 v{vT2}, 1, v{vT1}
v_lshl_add_u32 v{vPR}, v{vT2}, 5, v{vPR}
v_and_b32 v{vT2}, 3, v{vL}
v_lshl_add_u32 v{vPR}, v{vT2}, 3, v{vPR}
v_add_u32 v{vPR}, s{sLA}, v{vPR}
v_lshlrev_b32 v{vZ}, 4, v{vT1}
v_mov_b32 v{vONE}, 0x3f803f80
v_mov_b32 v{vONE+1}, 0x3f803f80
v_mov_b32 v{vONE+2}, 0x3f803f80
v_mov_b32 v{vONE+3}, 0x3f803f80
v_xor_b32 v{vPW2}, 32, v{vPW}
v_xor_b32 v{vPR2}, 32, v{vPR}
s_add_u32 s{sT0}, s{sLC}, {FR}
v_add_u32 v{vVW}, s{sT0}, v{vST[0]}
s_lshl_b32 s{sT0}, s{sWAVE}, 10
s_add_u32 s{sT0}, s{sT0}, {FR}
v_add_u32 v{vVR}, s{sT0}, v{vST[0]}
""")
    def post():
        a.lgq = []
        VFR, KFR, AW = 128, 160, 0
        X = [64, 80]; EP, EM, PHO, MX = 96, 112, 32, 48
        for i in range(4):
            a(f"v_lshl_or_b32 v{WPH+i*4}, v{WPH+i*4+1}, 16, v{WPH+i*4}")
            a(f"v_lshl_or_b32 v{WPH+i*4+1}, v{WPH+i*4+3}, 16, v{WPH+i*4+2}")
        for st in range(4):
            for kp in range(2):
                f = KFR + (st * 2 + kp) * 4
                for j in range(4):
                    r = acc(0, 2 * kp + (j >> 1), st) + (j & 1) * 2
                    a(f"v_cvt_pk_bf16_f32 v{f+j}, v{r}, v{r+1}")
        for i in range(4):
            for hq in range(4):
                for e in range(2):
                    a(f"v_cndmask_b32 v{AW+i*8+hq*2+e}, 0, v{WPH+i*4+e}, s[{sHM[hq]}:{sHM[hq]+1}]")
        for u in range(2):
            for hd in range(4):
                f = VFR + (u * 4 + hd) * 4
                for j in range(4):
                    r = acc(1, hd, 2 * u + (j >> 1)) + (j & 1) * 2
                    a(f"v_cvt_pk_bf16_f32 v{f+j}, v{r}, v{r+1}")
                a(f"ds_write_b128 v{vVW}, v[{f}:{f+3}] offset:{(u*4+hd)*1024}")
        def pk_mfma(st):
            x = X[st & 1]
            for kp in range(2):
                for i in range(4):
                    f = KFR + (st * 2 + kp) * 4
                    c = "0" if kp == 0 else f"v[{x+i*4}:{x+i*4+3}]"
                    a(f"{MF} v[{x+i*4}:{x+i*4+3}], v[{AW+i*8+kp*4}:{AW+i*8+kp*4+3}], v[{f}:{f+3}], {c}")
        pk_mfma(0)
        for st in range(4):
            if st < 3: pk_mfma(st + 1)
            else: a("s_nop 0")
            x = X[st & 1]
            a(f"v_max3_f32 v{MX}, v{x}, v{x+1}, v{x+2}")
            a(f"v_min3_f32 v{MX+1}, v{x}, v{x+1}, v{x+2}")
            for k in range(3, 15, 2):
                a(f"v_max3_f32 v{MX}, v{MX}, v{x+k}, v{x+k+1}")
                a(f"v_min3_f32 v{MX+1}, v{MX+1}, v{x+k}, v{x+k+1}")
            a(f"v_max_f32 v{MX}, v{MX}, v{x+15}")
            a(f"v_min_f32 v{MX+1}, v{MX+1}, v{x+15}")
            a(f"v_pk_mul_f32 v[{MX}:{MX+1}], v[{MX}:{MX+1}], s[{sLOG2E}:{sLOG2E+1}] op_sel_hi:[1,0]")
            for k in range(0, 16, 2):
                a(f"v_pk_fma_f32 v[{EP+k}:{EP+k+1}], v[{x+k}:{x+k+1}], s[{sLOG2E}:{sLOG2E+1}], v[{MX}:{MX+1}] op_sel_hi:[1,0,0] neg_lo:[0,0,1] neg_hi:[0,0,1]")
                a(f"v_pk_fma_f32 v[{EM+k}:{EM+k+1}], v[{x+k}:{x+k+1}], s[{sLOG2E}:{sLOG2E+1}], v[{MX}:{MX+1}] op_sel:[0,0,1] op_sel_hi:[1,0,1] neg_lo:[1,0,0] neg_hi:[1,0,0]")
            for k in range(16):
                a(f"v_exp_f32 v{EP+k}, v{EP+k}")
                a(f"v_exp_f32 v{EM+k}, v{EM+k}")
            SP, SM = MX + 2, MX + 4
            a(f"v_pk_add_f32 v[{SP}:{SP+1}], v[{EP}:{EP+1}], v[{EP+2}:{EP+3}]")
            a(f"v_pk_add_f32 v[{SM}:{SM+1}], v[{EM}:{EM+1}], v[{EM+2}:{EM+3}]")
            for k in range(4, 16, 2):
                a(f"v_pk_add_f32 v[{SP}:{SP+1}], v[{SP}:{SP+1}], v[{EP+k}:{EP+k+1}]")
                a(f"v_pk_add_f32 v[{SM}:{SM+1}], v[{SM}:{SM+1}], v[{EM+k}:{EM+k+1}]")
            a(f"v_add_f32 v{SP}, v{SP}, v{SP+1}")
            a(f"v_add_f32 v{SM}, v{SM}, v{SM+1}")
            a(f"v_rcp_f32 v{SP}, v{SP}")
            a(f"v_rcp_f32 v{SM}, v{SM}")
            a("s_nop 0")
            for k in range(0, 16, 2):
                a(f"v_pk_mul_f32 v[{EP+k}:{EP+k+1}], v[{EP+k}:{EP+k+1}], v[{SP}:{SP+1}] op_sel_hi:[1,0]")
                a(f"v_pk_mul_f32 v[{EM+k}:{EM+k+1}], v[{EM+k}:{EM+k+1}], v[{SM}:{SM+1}] op_sel_hi:[1,0]")
            for k in range(8):
                a(f"v_cvt_pk_bf16_f32 v{PHO+k}, v{EP+2*k}, v{EP+2*k+1}")
                a(f"v_cvt_pk_bf16_f32 v{PHO+8+k}, v{EM+2*k}, v{EM+2*k+1}")
            for ft in range(2):
                for e in range(2):
                    b = PHO + ft * 8 + e * 4
                    a(f"ds_write_b128 v{vPW if ft == 0 else vPW2}, v[{b}:{b+3}] offset:{st*1024 + e*16}")
        a("s_waitcnt lgkmcnt(0)")
        a("s_barrier")
        KV = 0
        def mfs(k):
            fb = 16 + k * 12
            a.wait_lg(("b", k), always=True)
            for ft in range(2):
                d = KV + ft * 4; c = "0" if k == 0 else f"v[{d}:{d+3}]"
                a(f"{MF} v[{d}:{d+3}], v[{fb+4+ft*4}:{fb+7+ft*4}], v[{fb}:{fb+3}], {c}")
            for ft in range(2):
                d = KV + 8 + ft * 4; c = "0" if k == 0 else f"v[{d}:{d+3}]"
                a(f"{MF} v[{d}:{d+3}], v[{fb+4+ft*4}:{fb+7+ft*4}], v[{vONE}:{vONE+3}], {c}")
        for k in range(8):
            fb = 16 + k * 12
            a.lg(f"ds_read_b128 v[{fb}:{fb+3}], v{vVR} offset:{k*4096}", ("b", k))
            for ft in range(2):
                for jj in range(2):
                    b = fb + 4 + ft * 4 + jj * 2
                    a.lg(f"ds_read_b64_tr_b16 v[{b}:{b+1}], v{vPR if ft == 0 else vPR2} offset:{k*2048 + jj*1024}", ("b", k))
            if k >= 2: mfs(k - 2)
        mfs(6); mfs(7)
        a(f"""
s_lshl_b32 s{sT0}, s{sSUB}, 2
s_add_u32 s{sT0}, s{sT0}, s{sWAVE}
s_lshl_b32 s{sT0}, s{sT0}, 3
s_add_u32 s{sT0}, s{sT0}, s{sRB}
s_mul_i32 s{sT0}, s{sT0}, {BKV_P}
s_add_u32 s{sT0}, s{sT0}, {BKV}
v_and_b32 v{vT0}, 15, v{vL}
v_cmp_eq_u32 vcc, 0, v{vT0}
buffer_store_dwordx4 v[{KV}:{KV+3}], v{vST[0]}, s[{sWS}:{sWS+3}], s{sT0} offen sc1
buffer_store_dwordx4 v[{KV+4}:{KV+7}], v{vST[0]}, s[{sWS}:{sWS+3}], s{sT0} offen offset:1024 sc1
s_mov_b64 exec, vcc
buffer_store_dwordx4 v[{KV+8}:{KV+11}], v{vZ}, s[{sWS}:{sWS+3}], s{sT0} offen offset:2048 sc1
buffer_store_dwordx4 v[{KV+12}:{KV+15}], v{vZ}, s[{sWS}:{sWS+3}], s{sT0} offen offset:2112 sc1
s_mov_b64 exec, -1
""")
        a.vmq += ["st"] * 4
    def wphi_loads():
        a(f"s_lshl_b32 s{sT0}, s{sSUB}, 11")
        for i in range(4):
            for j in range(4):
                a.vm(f"buffer_load_ushort v{WPH+i*4+j}, v{vPH}, s[{sPHI}:{sPHI+3}], s{sT0} offen offset:{j*32 + i*8}", "wphi")
    wphi_loads()
    p = mkpa("KKKKVVVV")
    B = p.build()
    B.stream(slot_dma(0, BSL), p.bar_gap(7) + 3, p.bar_gap(7) + 50)
    B.emit(a)
    a.stamp(3)
    a("s_barrier")
    for it in slot_dma(1, BSL): it.fn()
    post()
    a.stamp(4)
    a.wait_vm(("w", 0)); a("s_barrier")
    for idx in range(LEAD // 4):
        for jj in range(2): tr_item(0, idx >> 2, idx & 3, jj, BSL).fn()
    a(f"""
s_lshl_b32 s{sSUB}, s{sSUB}, 1
s_add_u32 s{sSUB}, s{sSUB}, 128
""")
    body("K", 0, BSL, epi=False, dma=False, nxt=False)
    a.stamp(5)
    a("s_nop 3")
    for itm in epi_items("K", 0, packed=True): itm.fn()
    a.stamp(6)
    warm()
    if WB:
        LW = a.newlabel("K1_nowb")
        a(f"s_cmp_lg_u32 s{sWAVE}, 0")
        a(f"s_cbranch_scc1 {LW}")
        for i in range(WB):
            a("buffer_wbl2 sc1")
            a("s_waitcnt vmcnt(0)")
        a.label(LW)
    a.stamp(8)
    if a.diag: a("s_waitcnt vmcnt(0)")
    a.stamp(9); a.stamp(10, real=True)
    a.stamp_flush(sWS, sWAVE, 24, DIAG, vt=(241, 242))
    a.label(END)
    a("s_endpgm")

if __name__ == "__main__":
    import sys
    a = Asm()
    a.diag = len(sys.argv) > 1
    gen_k1(a)
    for p in a.check(): print(p)
    open("k1.s", "w").write(a.text())
    print(len(a.lines), "lines")
```

```python
from asmlib import Asm
from sched import *
from common import *
from phasea import PhaseA, WR, FR, AR
from hedge import *

BIG = f2u(-1.0e30)
THR = f2u(2.0 ** 60)
OFFS = f2u(40.0)
RQ = 0x20000
MX = 0xC000
MF32 = "v_mfma_f32_32x32x16_bf16"

def gen_k2(a, name="k2_kernel", CPF=0, ROT=0):
    a.kernel(name, (256,1,1), (256,1,1), 163840, vgpr=256, agpr=256)
    sX, sW, sWS = 4, 8, 12
    (sWAVE, sH, sI, sROW1, sA0, sA1, sT0, sT1, sT2, sCNT, sLA, sLW, sWSRC, sROW4, sROWH,
     sKSRC, sVSRC, sKD, sVD, sKAP, sDGA, sDGB, sDMIN, sTHR, sCTXA, sCTXB, sP, sW4) = range(16, 44)
    sRET = 44
    sM = [46, 48, 50, 52]
    sB0, sB1 = 54, 55
    sCO, sWB, sA0c, sA1c = 46, 47, 48, 49
    sOFF = sTHR
    Q = 0; S = 64; P = 128; NM = 160; TE = 192; LC = 200; M = 208
    vK, vV, vL16, vL, vT0, vT1, vTHR, vQX = 212, 213, 214, 215, 216, 217, 218, 219
    vX16, vX32, vBIG, vDG = 220, 221, 222, 223
    D = 224; F = 228; vST = [232, 233]; vMX = 234; vT2 = 235
    ZERO = 236
    PKR = 240
    pACC, pWF = 64, 0
    vWA = list(range(192, 200)); vXA = [200, 201]; vAE, vAO, vWE, vWO = 202, 203, 204, 205
    O = 0; KF = 128; VF = 160; LA = 192; ONES = 208
    END = a.newlabel("K2_end")
    def q(u, dk): return Q + (u * 4 + dk) * 4
    def s_(buf, u, kt): return S + ((buf * 4 + u) * 2 + kt) * 4
    def p_(buf, u): return P + (buf * 4 + u) * 4
    def nm(u, kt): return NM + (u * 2 + kt) * 4
    def o_(u, dt): return O + (u * 8 + dt) * 4
    def lc(par, u): return LC + par * 4 + u
    mk = Mk(a)
    I = lambda s, c=None: mk.I(s)
    a(f"""
s_cmp_ge_u32 s2, 256
s_cbranch_scc1 {END}
""")
    a.stamp(14)
    a(f"""
s_load_dwordx2 s[56:57], s[0:1], 0      ; x
s_load_dwordx2 s[58:59], s[0:1], 16     ; w_q
s_load_dwordx2 s[60:61], s[0:1], 96     ; ws
s_load_dwordx2 s[62:63], s[0:1], 64     ; w_phi
s_load_dwordx2 s[88:89], s[0:1], 40     ; w_o
s_load_dwordx2 s[92:93], s[0:1], 72     ; wo
v_lshrrev_b32 v{vT0}, 6, v0
v_and_b32 v{vL}, 63, v0
v_readfirstlane_b32 s{sWAVE}, v{vT0}
s_lshr_b32 s{sT1}, s2, 3
s_and_b32 s{sI}, s{sT1}, 7
s_lshr_b32 s{sT1}, s{sT1}, 3
s_and_b32 s{sH}, s2, 7
s_lshl_b32 s{sH}, s{sH}, 2
s_add_u32 s{sH}, s{sH}, s{sT1}
s_mov_b32 s{sROW1}, 8192
s_mov_b32 s{sROW4}, 32768
s_mov_b32 s{sROWH}, 4096
s_lshl_b32 s{sCO}, s{sT1}, 1
s_add_u32 s{sCO}, s{sCO}, s{sI}
s_and_b32 s{sCO}, s{sCO}, {7 if ROT else 0}
s_lshl_b32 s{sCO}, s{sCO}, 7
s_sub_u32 s{sCO}, s{sCO}, 128
s_sub_u32 s{sT0}, 15, s{sI}             ; L
s_lshl_b32 s{sDGA}, s{sT0}, 2
s_add_u32 s{sDGA}, s{sDGA}, s{sWAVE}
s_lshl_b32 s{sDGB}, s{sI}, 2
s_add_u32 s{sDGB}, s{sDGB}, s{sWAVE}
s_lshl_b32 s{sA0}, s{sDGA}, 15
s_lshl_b32 s{sA1}, s{sDGB}, 15
s_lshl_b32 s{sLA}, s{sWAVE}, 14
s_add_u32 s{sLA}, s{sLA}, {AR}
s_lshl_b32 s{sW4}, s{sWAVE}, 12
s_add_u32 s{sLW}, s{sW4}, {WR}
s_lshl_b32 s{sWB}, s{sWAVE}, 17       ; 16 rows * 8192
s_lshl_b32 s{sT0}, s{sH}, 8
s_add_u32 s{sWB}, s{sWB}, s{sT0}
s_lshl_b32 s{sKSRC}, s{sH}, 19
s_add_u32 s{sKSRC}, s{sKSRC}, s{sW4}
s_add_u32 s{sVSRC}, s{sKSRC}, {VWS}
s_mov_b32 s{sX+2}, 0x200000
s_mov_b32 s{sX+3}, 0x20000
s_mov_b32 s{sW+2}, 0x400000
s_mov_b32 s{sW+3}, 0x20000
s_mov_b32 s{sWS+2}, {WS_USED}
s_mov_b32 s{sWS+3}, 0x20000
""")
    pa = PhaseA(a, pACC, pWF, vWA, vXA, vAE, vAO, vWE, vWO, sX, sW, sA0, sA1, sWSRC, sROW4, sROWH, sLA, sLW, sT2, "K" * 8, sCO, sWB, sA0c, sA1c)
    pa.ring = 128
    pa.setup_dma(vL, vT0, vT1, vT2, sROW1)
    a(f"""
s_waitcnt lgkmcnt(0)
s_mov_b32 s{sX}, s56
s_mov_b32 s{sX+1}, s57
s_mov_b32 s{sW}, s58
s_mov_b32 s{sW+1}, s59
s_mov_b32 s{sWS}, s60
s_mov_b32 s{sWS+1}, s61
""")
    a.stamp(0); a.stamp(1, real=True)
    for it in pa.chunk_dmas(0): it.fn()
    a.stamp(11)
    pa.setup_read(vL, vT0, vT1, vT2)
    a(f"""
v_lshlrev_b32 v{vL16}, 4, v{vL}
v_xor_b32 v{vT0}, 16, v{vL}
v_lshlrev_b32 v{vX16}, 2, v{vT0}
v_xor_b32 v{vT0}, 32, v{vL}
v_lshlrev_b32 v{vX32}, 2, v{vT0}
v_mov_b32 v{vBIG}, {hex(BIG)}
v_mov_b32 v{vTHR}, {hex(THR)}
v_and_b32 v{vT0}, 15, v{vL}
v_lshrrev_b32 v{vT1}, 4, v{vL}
v_lshlrev_b32 v{vT1}, 2, v{vT1}
v_sub_u32 v{vDG}, v{vT0}, v{vT1}
v_mov_b32 v{vST[0]}, v{vL16}
v_add_u32 v{vST[1]}, {144*1024}, v{vL16}
v_mov_b32 v{ZERO}, 0
v_mov_b32 v{ZERO+1}, 0
v_mov_b32 v{ZERO+2}, 0
v_mov_b32 v{ZERO+3}, 0
v_mov_b32 v{vT0}, 0x3f803f80
s_and_b32 s{sP}, s{sWAVE}, 1
s_mul_i32 s{sCTXA}, s{sDGA}, {2*144*1024}
s_mul_i32 s{sCTXB}, s{sDGB}, {2*144*1024}
s_lshl_b32 s{sT0}, s{sH}, 12
s_add_u32 s{sT0}, s{sT0}, {CTX}
s_add_u32 s{sCTXA}, s{sCTXA}, s{sT0}
s_add_u32 s{sCTXB}, s{sCTXB}, s{sT0}
v_add_u32 v{vK}, 0x10000, v{vL16}
v_add_u32 v{vV}, 0x10000, v{vL16}
s_lshl_b32 s{sT0}, s{sWAVE}, 13
s_add_u32 s{sT0}, s{sT0}, {RQ}
v_add_u32 v{vQX}, s{sT0}, v{vL16}
s_lshl_b32 s{sT0}, s{sWAVE}, 9
s_add_u32 s{sT0}, s{sT0}, {MX}
v_lshlrev_b32 v{vMX}, 3, v{vL}
v_add_u32 v{vMX}, s{sT0}, v{vMX}
s_add_u32 s{sKD}, s{sW4}, 0x10000         ; K(2) -> parity 0
s_add_u32 s{sVD}, s{sW4}, 0x4000          ; V(1) -> parity 1
s_mov_b32 s{sKAP}, -1
s_min_u32 s{sDMIN}, s{sDGA}, s{sDGB}
s_mov_b32 s90, 0x400000
s_mov_b32 s91, 0x20000
s_mov_b32 s94, 0x80000
s_mov_b32 s95, 0x20000
""")
    for r in range(4): a(f"v_accvgpr_write_b32 a{ONES+r}, v{vT0}")
    def zero16(reg):
        return f"{MF32} {reg}, v[{ZERO}:{ZERO+3}], v[{ZERO}:{ZERO+3}], 0"
    for k in range(8): a(zero16(f"a[{O+k*16}:{O+k*16+15}]"))
    a(zero16(f"a[{LA}:{LA+15}]"))
    for it in pa.chunk_dmas(1): it.fn()
    if CPF:
        LPC = a.newlabel("K2_pc")
        a(f"""
s_getpc_b64 s[96:97]
{LPC}:
v_lshlrev_b32 v{vT1}, 7, v{vL}
s_lshl_b32 s{sT0}, s{sWAVE}, 13
v_add_u32 v{vT1}, s{sT0}, v{vT1}
v_min_u32 v{vT1}, K2_code_end - {LPC} - 4, v{vT1}
""")
        a.vm(f"global_load_dword v{vT2}, v{vT1}, s[96:97]", "cpf")
    def tile_dma(src, ldsexpr, tag, srcadd=None, post=()):
        its = [I(f"s_add_u32 m0, s{ldsexpr[0]}, {ldsexpr[1]}"), I(f"s_add_u32 s{sT1}, s{src}, {srcadd}" if srcadd is not None else "s_nop 0")]
        for i in range(4):
            its.append(mk.VM(f"buffer_load_dwordx4 v{vL16}, s[{sWS}:{sWS+3}], s{sT1 if srcadd is not None else src} offen offset:{i*1024} lds", tag))
        return its + [I(t) for t in post]
    B = pa.build(stamp=2)
    g6 = pa.bar_gap(6) + 6
    B.spread(tile_dma(sKSRC, (sW4, 0x10000), "kv") + tile_dma(sVSRC, (sW4, 0x14000), "kv") + tile_dma(sKSRC, (sW4, 0), "kv", 16384), g6, g6 + 56)
    def qcvt(u, dk, j):
        r = pa.acc(2 * dk + (j >> 1), u) + (j & 1) * 2
        return f"v_cvt_pk_bf16_f32 v{q(u, dk) + j}, v{r}, v{r+1}"
    qearly = []
    for dk in range(2):
        its = [I(qcvt(u, dk, j), 5) for u in range(2) for j in range(4)]
        B.spread(its, 480 + dk * 8 + 14, 480 + dk * 8 + 22)
        qearly += [(u, dk) for u in range(2)]
    B.emit(a)
    a.stamp(3)
    a.wait_vm("kv"); a("s_barrier")

    LMASK = a.newlabel("K2_mask"); LADJ = [a.newlabel("K2_adj0"), a.newlabel("K2_adj1")]
    def kread(hs, f):
        b = KF + f * 4
        return mk.LG(f"ds_read_b128 a[{b}:{b+3}], v{vK} offset:{hs*8192 + f*1024}", ("kf", f))
    def vread(hs, f):
        b = VF + f * 4
        return mk.LG(f"ds_read_b128 a[{b}:{b+3}], v{vV} offset:{0x4000 + hs*8192 + f*1024}", ("vf", f))
    def qk_mfma(B, base, buf, wait=2, late=False):
        for f in range(8):
            kt, dk = f >> 2, f & 3
            for u in range(4):
                d = s_(buf, u, kt); c = nm(u, kt) if dk == 0 else d
                st = f"{MF} v[{d}:{d+3}], a[{KF+f*4}:{KF+f*4+3}], v[{q(u,dk)}:{q(u,dk)+3}], v[{c}:{c+3}]"
                B.mfma[base + f * 4 + u] = (lambda st=st: a(st))
            if f % wait == 0: B.put_pre(base + f * 4, mk.WL(("kf", f + wait - 1)))
    def pv_mfma(B, base, buf, wait=2, order="d"):
        for f in range(8):
            for u in range(4):
                o = o_(u, f); p = p_(buf, u)
                st = f"{MF} a[{o}:{o+3}], a[{VF+f*4}:{VF+f*4+3}], v[{p}:{p+3}], a[{o}:{o+3}]"
                m = {"d": f * 4 + u, "b": (0 if u >= 2 else 16) + f * 2 + (u & 1), "u": u * 8 + f}[order]
                B.mfma[base + m] = (lambda st=st: a(st))
            if f % wait == 0:
                B.put_pre(base + {"d": f * 4, "b": f * 2, "u": f}[order], mk.WL(("vf", f + wait - 1)))
    def lmfma(par, u):
        t = f"{MF} a[{LA+u*4}:{LA+u*4+3}], a[{ONES}:{ONES+3}], v[{p_(par,u)}:{p_(par,u)+3}], a[{LA+u*4}:{LA+u*4+3}]"
        return Item(lambda: a(t), 8, "v")
    def lread(par, u): return I(f"v_accvgpr_read_b32 v{lc(par,u)}, a{LA+u*4}")
    def ex(par, i): return I(f"v_exp_f32 v{TE+i%8}, v{S+par*32+i}")
    def cv(par, c): return I(f"v_cvt_pk_bf16_f32 v{P+par*16+c}, v{TE+(2*c)%8}, v{TE+(2*c+1)%8}")
    def early(par):
        return [ex(par, 0), ex(par, 1), ex(par, 2), cv(par, 0), ex(par, 3), ex(par, 4), cv(par, 1), ex(par, 5)]
    def softmax_items(par, skip_early=False):
        its = [] if skip_early else early(par)
        for i in range(6, 34):
            if i < 32: its.append(ex(par, i))
            if i == 32: its.append(I("v_nop"))
            if i % 2 == 0 and i // 2 - 1 < 16: its.append(cv(par, i // 2 - 1))
            if i in (10, 18, 26): its.append(lmfma(par, (i >> 3) - 1))
            if i in (20, 28): its.append(lread(par, (i >> 3) - 2))
        return its
    def softmax_tail(B, g, par, check=True):
        B.put(g, I("v_nop")); B.put(g, lmfma(par, 3))
        B.put(g + 2, lread(par, 2))
        if check: B.put(g + 3, I(f"v_max3_f32 v{vT0}, v{lc(par,0)}, v{lc(par,1)}, v{lc(par,2)}"))
        B.put(g + 7, lread(par, 3))
        if check:
            B.put(g + 8, I(f"v_max_f32 v{vT0}, v{vT0}, v{lc(par,3)}"))
            B.put(g + 8, I(f"v_cmp_nle_f32 vcc, v{vT0}, v{vTHR}"))
            B.put(g + 10, check_item(par), 3)
    def call_stub(branch, target):
        def f():
            L = a.newlabel("K2_st"); R = a.newlabel("K2_rt")
            a(f"{branch} {L}")
            a.label(R)
            a.stubs.append(f"{L}:\ns_call_b64 s[{sRET}:{sRET+1}], {target}\ns_branch {R}")
        return Item(f, 4, "s")
    def check_item(par): return call_stub("s_cbranch_vccnz", LADJ[par])
    def mask_items():
        return [I(f"s_add_u32 s{sKAP}, s{sKAP}, 1"), I(f"s_cmp_ge_u32 s{sKAP}, s{sDMIN}"), call_stub("s_cbranch_scc1", LMASK)]
    def put_mask(B, g):
        m = mask_items()
        B.put(g, m[0]); B.put(g, Item(lambda: (m[1].fn(), m[2].fn()), 8, "X"), 3)
    def put_bar(B, g):
        B.put(g, mk.WV("kv", lg0=True), 3); B.put(g, I("s_barrier"), 3)
    def togK(): return I(f"v_xor_b32 v{vK}, 0x10000, v{vK}")
    def togV(): return I(f"v_xor_b32 v{vV}, 0x10000, v{vV}")
    def kv_dmas(src, dst, two):
        adv = (f"s_add_u32 s{src}, s{src}, 16384", f"s_xor_b32 s{dst}, s{dst}, 0x10000")
        if not two: return tile_dma(src, (dst, 0), "kv", post=adv)
        return tile_dma(src, (dst, 0), "kv") + tile_dma(src, (dst, 0x8000), "kv", f"s{sOFF}", post=adv)
    NPRE = 6
    def body_emit(two):
        B = Body(128)
        qk_mfma(B, 0, 0, 4); pv_mfma(B, 32, 0, 4, "u"); qk_mfma(B, 64, 1, 4); pv_mfma(B, 96, 1, 8, "u")
        ins = []
        for par, G0 in ((1, -12), (0, 52), (1, 116)):
            for i in range(32):
                g = G0 + 2 * i
                if 0 <= g < 128: B.put(g, ex(par, i))
            for c in range(16):
                g = G0 + 4 * c + 5
                if 0 <= g < 128: B.put(g, cv(par, c))
            if G0 < 100:
                for u in range(4):
                    ins.append((G0 + 16 * u + 19, lmfma(par, u).fn))
                    B.put(G0 + 16 * u + 23, lread(par, u))
                B.put(G0 + 55, I(f"v_max3_f32 v{vT0}, v{lc(par,0)}, v{lc(par,1)}, v{lc(par,2)}"))
                B.put(G0 + 71, I(f"v_max_f32 v{vT0}, v{vT0}, v{lc(par,3)}"))
                B.put(G0 + 73, I(f"v_cmp_nle_f32 vcc, v{vT0}, v{vTHR}"))
                B.put(G0 + 75, check_item(par), 3)
        B.put(1, kread(0, 6)); B.put(5, kread(0, 7))
        for f, g in enumerate((9, 11, 13, 17, 21, 25, 27, 29)): B.put(g, vread(0, f))
        for f, g in enumerate((33, 37, 41, 45, 47, 49, 53, 57)): B.put(g, kread(1, f))
        B.put(63, togK())
        for f, g in enumerate((65, 69, 73, 75, 77, 81, 85, 89)): B.put(g, vread(1, f))
        B.put(91, togV())
        put_bar(B, 95)
        for f, g in enumerate((101, 105, 109, 113, 117, 121)): B.put(g, kread(0, f))
        put_mask(B, 51)
        put_mask(B, 87)
        B.put(84, I(f"s_sub_u32 s{sCNT}, s{sCNT}, 1"))
        for after, fn in sorted(ins, reverse=True): B.insert_mfma(after, fn)
        r = lambda v: v + sum(1 for x, _ in ins if x < v)
        B.stream(kv_dmas(sVSRC, sVD, two), 0, r(50), even=False)
        B.stream(kv_dmas(sKSRC, sKD, two), r(95) + 1, r(127), even=False)
        print("body est", two, B.est())
        B.emit(a)
    def quad_max(regs, tmp):
        for sw in ("v_permlane16_swap_b32", "v_permlane32_swap_b32"):
            for i, r in enumerate(regs): a(f"v_mov_b32 v{tmp+i}, v{r}")
            for i, r in enumerate(regs): a(f"{sw} v{r}, v{tmp+i}")
            for i, r in enumerate(regs): a(f"v_max_f32 v{r}, v{r}, v{tmp+i}")
    def row_max(par, dst):
        for u in range(4):
            b = s_(par, u, 0)
            a(f"v_max3_f32 v{dst[u]}, v{b}, v{b+1}, v{b+2}")
            a(f"v_max3_f32 v{TE+u}, v{b+3}, v{b+4}, v{b+5}")
        for u in range(4):
            b = s_(par, u, 0)
            a(f"v_max3_f32 v{dst[u]}, v{dst[u]}, v{b+6}, v{b+7}")
        for u in range(4): a(f"v_max_f32 v{dst[u]}, v{dst[u]}, v{TE+u}")
        quad_max(dst, TE)
        for u in range(4): a(f"v_add_f32 v{dst[u]}, {hex(OFFS)}, v{dst[u]}")
    def fin_items(us, sCTX, scale, T):
        its = []; n = 0
        for ui, u in enumerate(us):
            for dk in range(4):
                pk = PKR + (n % 4) * 4
                for j in range(4):
                    r = o_(u, 2 * dk + (j >> 1)) + (j & 1) * 2
                    t = T + (j % 4) * 2
                    its.append(I(f"v_accvgpr_read_b32 v{t}, a{r}", 5))
                    its.append(I(f"v_accvgpr_read_b32 v{t+1}, a{r+1}", 5))
                    its.append(I(f"v_mul_f32 v{t}, v{t}, v{scale[ui]}"))
                    its.append(I(f"v_mul_f32 v{t+1}, v{t+1}, v{scale[ui]}"))
                    its.append(I(f"v_cvt_pk_bf16_f32 v{pk+j}, v{t}, v{t+1}", 5))
                its.append(mk.VM(f"buffer_store_dwordx4 v[{pk}:{pk+3}], v{vST[ui]}, s[{sWS}:{sWS+3}], s{sCTX} offen offset:{dk*1024} sc1", "st"))
                n += 1
        return its

    for f in range(NPRE): kread(0, f).fn()
    for u in range(4):
        for dk in range(4):
            if (u, dk) in qearly: continue
            for j in range(4): a(qcvt(u, dk, j))
    a(zero16(f"v[{NM}:{NM+15}]")); a(zero16(f"v[{NM+16}:{NM+31}]"))
    a(f"""
s_add_u32 s{sKSRC}, s{sKSRC}, 32768
s_add_u32 s{sVSRC}, s{sVSRC}, 16384
s_lshl_b32 s{sOFF}, s{sI}, 15
s_sub_u32 s{sOFF}, {15*16384}, s{sOFF}    ; T tiles
s_add_u32 s{sT0}, s{sKSRC}, {15*16384}    ; tile D+T = 17
""")
    for u in range(2):
        for dk in range(4):
            a.lg(f"ds_write_b128 v{vQX}, v[{q(u,dk)}:{q(u,dk)+3}] offset:{(u*4+dk)*1024}", "qx")
    a.stamp(4)
    for it in mask_items(): it.fn()
    B = Body(32)
    qk_mfma(B, 0, 0)
    for f in range(NPRE, 8): B.put(4 * (f - NPRE), kread(0, f))
    for f in range(NPRE): B.put(8 + 4 * f, kread(1, f))
    B.spread(tile_dma(sT0, (sW4, 0x18000), "kd") + tile_dma(sT0, (sW4, 0x8000), "kd", 16384), 1, 25)
    put_mask(B, 26)
    B.emit(a)
    for f in range(NPRE, 8): kread(1, f).fn()
    togK().fn()
    a("s_nop 4")
    DE = [D, D + 2, F, F + 2]
    row_max(0, DE)
    for u in range(4):
        a(f"v_mov_b32 v{M+u}, v{DE[u]}")
        for r in range(0, 8, 2):
            a(f"v_pk_add_f32 v[{nm(u,0)+r}:{nm(u,0)+r+1}], v[{nm(u,0)+r}:{nm(u,0)+r+1}], v[{DE[u]}:{DE[u]+1}] op_sel_hi:[1,0] neg_lo:[0,1] neg_hi:[0,1]")
    for k in range(0, 32, 2):
        a(f"v_pk_add_f32 v[{S+k}:{S+k+1}], v[{S+k}:{S+k+1}], v[{DE[k>>3]}:{DE[k>>3]+1}] op_sel_hi:[1,0] neg_lo:[0,1] neg_hi:[0,1]")
    B = Body(32)
    qk_mfma(B, 0, 1, 8)
    put_bar(B, 1)
    for f in range(NPRE): B.put(8 + 4 * f, kread(0, f))
    softmax_tail(B, 23, 0, check=False)
    B.spread(softmax_items(0), 0, 23)
    put_mask(B, 25)
    B.stream(kv_dmas(sKSRC, sKD, False), 23, 32)
    B.emit(a)
    a("s_nop 3")
    for it in early(1): it.fn()
    a.stamp(5)
    LD = a.newlabel("K2_dual")
    a(f"""
s_lshl_b32 s{sCNT}, s{sI}, 1
s_add_u32 s{sCNT}, s{sCNT}, 1
""")
    a(".p2align 3")
    a.label(LD)
    loop_emit(a, lambda: body_emit(False))
    a(f"""
s_cmp_lg_u32 s{sCNT}, 0
s_cbranch_scc1 {LD}
""")
    a.stamp(6)
    B = Body(128)
    pv_mfma(B, 0, 0); pv_mfma(B, 32, 1, 2, "b"); qk_mfma(B, 64, 0, 4); qk_mfma(B, 96, 1, 4)
    for f in range(NPRE): vread(0, f).fn()
    for f in range(NPRE, 8): B.put(3 * (f - NPRE), vread(0, f))
    for f in range(7): B.put(4 * f + 4, vread(1, f))
    B.put(31, vread(1, 7))
    softmax_tail(B, 21, 1)
    B.spread(softmax_items(1, True), 0, 21)
    def sw1():
        a.lg(f"ds_write_b64 v{vMX}, v[{M}:{M+1}]", "mx")
        a(f"v_xor_b32 v{vMX}, 512, v{vMX}")
        a(f"v_xor_b32 v{vQX}, 0x2000, v{vQX}")
        a(f"v_rcp_f32 v{F}, v{lc(1,2)}")
        a(f"v_rcp_f32 v{F+1}, v{lc(1,3)}")
    B.put(32, Item(sw1, 28))
    B.put(33, togV())
    def sw2():
        a(f"""
s_xor_b32 s{sDGB}, s{sDGA}, 1
s_min_u32 s{sDMIN}, s{sDGA}, s{sDGB}
s_sub_u32 s{sKAP}, s{sKAP}, 1
s_cmp_eq_u32 s{sP}, 1
s_cselect_b32 s{sKAP}, 33, s{sKAP}
s_lshl_b32 s{sT0}, s{sP}, 15
v_add_u32 v{vK}, s{sT0}, v{vK}
v_add_u32 v{vV}, s{sT0}, v{vV}
""")
    B.put(34, Item(sw2, 28))
    def sw3():
        a("s_waitcnt lgkmcnt(0)"); a.lgq = []
        a("s_barrier")
        a.lg(f"ds_read_b64 v[{M+2}:{M+3}], v{vMX}", "mx")
    B.put(36, Item(sw3, 12))
    for k in range(8):
        u, dk = k >> 2, k & 3
        B.put(37 + k, mk.LG(f"ds_read_b128 v[{q(2+u,dk)}:{q(2+u,dk)+3}], v{vQX} offset:{(u*4+dk)*1024}", "qx"))
    for f in range(8): B.put(46 + 2 * f, kread(0, f))
    B.put(45, mk.WL("mx"), 3)
    nmi = []
    for u in (2, 3):
        for r in range(8): nmi.append(I(f"v_sub_f32 v{nm(u,0)+r}, 0, v{M+u}"))
        nmi.append(I(f"v_mov_b32 v{lc(1,u)}, 0"))
        nmi.append(I(f"v_accvgpr_write_b32 a{LA+4*u}, 0", 5))
    B.spread(nmi, 46, 56)
    put_mask(B, 60)
    put_mask(B, 92)
    for f in range(8): B.put(68 + 4 * f, kread(1, f))
    B.put(97, togK())
    put_bar(B, 104)
    for f in range(NPRE): B.put(106 + 4 * f, kread(0, f)) if 106 + 4 * f < 128 else None
    B.spread(kv_dmas(sVSRC, sVD, True), 22, 56)
    B.spread(fin_items([2, 3], sCTXB, [F, F + 1], S + 32), 56, 95)
    zs = [Item(lambda k=k: a(zero16(f"a[{o_(2,0)+k*16}:{o_(2,0)+k*16+15}]")), 32, "X") for k in range(4)]
    for k in range(4): B.put(96 + k, zs[k])
    softmax_tail(B, 117, 0)
    B.spread(softmax_items(0), 100, 117)
    put_mask(B, 121)
    B.stream(kv_dmas(sKSRC, sKD, True), 108, 127)
    B.emit(a)
    a("s_nop 2")
    for it in early(1): it.fn()
    a.stamp(7)
    LS1 = a.newlabel("K2_single"); LS2 = a.newlabel("K2_sdone")
    a(f"""
s_lshl_b32 s{sT0}, s2, 2
s_add_u32 s{sT0}, s{sT0}, s{sWAVE}
v_and_b32 v{vT1}, 31, v{vL}
v_lshlrev_b32 v{vT1}, 7, v{vT1}
s_lshl_b32 s{sT1}, s{sT0}, 12
""")
    a.vm(f"buffer_load_dword v{vT2}, v{vT1}, s[88:91], s{sT1} offen", "warm")
    a(f"v_and_b32 v{vT1}, 0x180, v{vT1}")
    a(f"s_lshl_b32 s{sT1}, s{sT0}, 9")
    a.vm(f"buffer_load_dword v{vT2}, v{vT1}, s[92:95], s{sT1} offen", "warm")
    a(f"""
s_lshl_b32 s{sCNT}, s{sI}, 1
s_sub_u32 s{sCNT}, 14, s{sCNT}
s_cmp_eq_u32 s{sCNT}, 0
s_cbranch_scc1 {LS2}
""")
    st = (list(a.vmq), list(a.lgq))
    a(".p2align 3")
    a.label(LS1)
    loop_emit(a, lambda: body_emit(True))
    a(f"""
s_cmp_lg_u32 s{sCNT}, 0
s_cbranch_scc1 {LS1}
""")
    a.label(LS2)
    assert a.diag or st[1] == a.lgq, (st[1], a.lgq)
    a.vmq = ["kv"]
    a.stamp(8)
    sPHI = sX
    BQ, BZ = 152, 212
    BW = NM
    a(f"""
s_mov_b32 s{sPHI}, s62
s_mov_b32 s{sPHI+1}, s63
s_mov_b32 s{sPHI+2}, 16384
s_mul_i32 s{sB0}, s{sH}, {8 * BKV_P}
s_add_u32 s{sB0}, s{sB0}, {BKV}
s_lshr_b32 s{sB1}, s{sH}, 3
s_add_u32 s{sB1}, s{sB1}, 32
s_lshl_b32 s{sB1}, s{sB1}, 19
s_lshl_b32 s{sT2}, s{sI}, 16
s_add_u32 s{sB1}, s{sB1}, s{sT2}
s_lshl_b32 s{sT2}, s{sWAVE}, 14
s_add_u32 s{sB1}, s{sB1}, s{sT2}
s_and_b32 s{sT2}, s{sH}, 6
s_lshl_b32 s{sT2}, s{sT2}, 9
s_add_u32 s{sB1}, s{sB1}, s{sT2}
s_and_b32 s{sT2}, s{sH}, 1
s_lshl_b32 s{sT2}, s{sT2}, 3
s_add_u32 s{sB1}, s{sB1}, s{sT2}
s_lshl_b32 s{sKAP}, s{sH}, 9
s_lshl_b32 s{sT0}, s{sWAVE}, 15
v_add_u32 v{vK}, s{sT0}, v{vL16}
v_lshrrev_b32 v{vT1}, 4, v{vL}
v_and_b32 v{vDG}, 15, v{vL}
v_lshlrev_b32 v{vDG}, 1, v{vDG}
v_lshl_add_u32 v{vDG}, v{vT1}, 7, v{vDG}
v_and_b32 v{vMX}, 7, v{vL}
v_mul_u32_u24 v{vMX}, {BKV_P}, v{vMX}
v_lshl_add_u32 v{vMX}, v{vT1}, 4, v{vMX}
v_xor_b32 v{vQX}, 0x2000, v{vQX}
""")
    B = Body(64)
    pv_mfma(B, 0, 0); pv_mfma(B, 32, 1, 2, "b")
    for f in range(NPRE): vread(0, f).fn()
    for f in range(NPRE, 8): B.put(3 * (f - NPRE), vread(0, f))
    for f in range(7): B.put(4 * f + 4, vread(1, f))
    B.put(31, vread(1, 7))
    softmax_tail(B, 21, 1)
    bl = []
    for ft in range(2):
        bl.append(Item(lambda ft=ft: a.vm(f"buffer_load_dwordx4 a[{BZ+ft*4}:{BZ+ft*4+3}], v{vMX}, s[{sWS}:{sWS+3}], s{sB0} offen offset:{2048+ft*64}", "bl"), 8))
    for t in range(4):
        bl.append(Item(lambda t=t: (a.vm(f"buffer_load_dwordx2 a[{BQ+2*t}:{BQ+2*t+1}], v{vL16}, s[{sWS}:{sWS+3}], s{sB1} offen", "bl"), a(f"s_add_u32 s{sB1}, s{sB1}, 4096")), 12))
    for pp in range(8):
        for ft in range(2):
            def f(pp=pp, ft=ft):
                a.vm(f"buffer_load_dwordx4 v[{Q+pp*8+ft*4}:{Q+pp*8+ft*4+3}], v{vL16}, s[{sWS}:{sWS+3}], s{sB0} offen offset:{ft*1024}", "bl")
                if ft: a(f"s_add_u32 s{sB0}, s{sB0}, {BKV_P}")
            bl.append(Item(f, 8 + 4 * ft))
    B.spread(bl, 0, 31)
    B.spread(softmax_items(1, True), 0, 21)
    def st1():
        a(f"v_mov_b32 v{D}, v{M+2}")
        a(f"v_mov_b32 v{D+1}, v{M+3}")
        a(f"v_mov_b32 v{D+2}, v{lc(1,2)}")
        a(f"v_mov_b32 v{D+3}, v{lc(1,3)}")
        a.lg(f"ds_write_b128 v{vQX}, v[{D}:{D+3}]", "sx")
        a(f"v_xor_b32 v{vQX}, 0x2000, v{vQX}")
    B.put(32, Item(st1, 24))
    for j in range(4):
        B.put(33 + j, Item(lambda j=j: a.vm(f"buffer_load_ushort v{BW+j}, v{vDG}, s[{sPHI}:{sPHI+3}], s{sKAP} offen offset:{j*32}", "bl"), 8))
    def st2():
        a.wait_vm("kv", always=True)
        a("s_waitcnt lgkmcnt(0)"); a.lgq = []
        a("s_barrier")
        a.lg(f"ds_read_b128 v[{D}:{D+3}], v{vQX}", "sx")
    B.put(38, Item(st2, 12))
    for f in range(8):
        for ub in range(2):
            o = o_(2 + ub, f)
            B.put(min(32 + 2 * f + ub + 10, 63), Item(lambda o=o, f=f, ub=ub: a.lg(f"ds_write_b128 v{vK}, a[{o}:{o+3}] offset:{(ub*8+f)*1024}", "ox"), 8))
    FA = [F, F + 2]; FB = [TE, TE + 2]
    def st3():
        a.wait_lg("sx", always=True)
        for u in range(2):
            a(f"v_max_f32 v{vT1}, v{M+u}, v{D+u}")
            a(f"v_sub_f32 v{FA[u]}, v{M+u}, v{vT1}")
            a(f"v_sub_f32 v{FB[u]}, v{D+u}, v{vT1}")
        for u in range(2):
            a(f"v_exp_f32 v{FA[u]}, v{FA[u]}")
            a(f"v_exp_f32 v{FB[u]}, v{FB[u]}")
    def st4():
        for u in range(2):
            a(f"v_mul_f32 v{lc(1,u)}, v{lc(1,u)}, v{FA[u]}")
            a(f"v_fmac_f32 v{lc(1,u)}, v{D+2+u}, v{FB[u]}")
        for u in range(2): a(f"v_rcp_f32 v{lc(1,u)}, v{lc(1,u)}")
    def st5():
        for u in range(2):
            a(f"v_mul_f32 v{FA[u]}, v{FA[u]}, v{lc(1,u)}")
            a(f"v_mul_f32 v{FB[u]}, v{FB[u]}, v{lc(1,u)}")
    B.put(46, Item(st3, 60)); B.put(50, Item(st4, 32)); B.put(53, Item(st5, 16))
    B.emit(a)
    a(f"""
v_xor_b32 v{vK}, 0x8000, v{vK}
s_waitcnt lgkmcnt(0)
s_barrier
""")
    a.lgq = []
    OB = S
    for r in range(15): a.lg(f"ds_read_b128 v[{OB+r*4}:{OB+r*4+3}], v{vK} offset:{r*1024}", ("ob", r))
    T = P
    n = 0
    for u in range(2):
        for r in range(32): a(f"v_accvgpr_read_b32 v{T+r}, a{o_(u,0)+r}")
        if u == 0: a.lg(f"ds_read_b128 v[{OB+60}:{OB+63}], v{vK} offset:{15*1024}", ("ob", 15))
        for r in range(0, 32, 2):
            a(f"v_pk_mul_f32 v[{T+r}:{T+r+1}], v[{T+r}:{T+r+1}], v[{FA[u]}:{FA[u]+1}] op_sel_hi:[1,0]")
        a.wait_lg(("ob", u * 8 + 7))
        for dk in range(4):
            pk = PKR + (n % 4) * 4
            for j in range(4):
                r = dk * 8 + j * 2
                a(f"v_pk_fma_f32 v[{T+r}:{T+r+1}], v[{OB+u*32+r}:{OB+u*32+r+1}], v[{FB[u]}:{FB[u]+1}], v[{T+r}:{T+r+1}] op_sel_hi:[1,0,1]")
            for j in range(4):
                r = dk * 8 + j * 2
                a(f"v_cvt_pk_bf16_f32 v{pk+j}, v{T+r}, v{T+r+1}")
            a.vm(f"buffer_store_dwordx4 v[{pk}:{pk+3}], v{vST[u]}, s[{sWS}:{sWS+3}], s{sCTXA} offen offset:{dk*1024} sc1", "st")
            n += 1
    a.stamp(9)
    a.wait_vm("bl")
    X, EP, EM, MXR, TB, PH = S, S + 16, S + 32, S + 48, S + 56, P
    ZS = P + 16
    a(f"v_lshl_or_b32 v{BW}, v{BW+1}, 16, v{BW}")
    a(f"v_lshl_or_b32 v{BW+1}, v{BW+3}, 16, v{BW+2}")
    a(f"s_mov_b32 s{sKAP}, {hex(f2u(LOG2E))}")
    for r in range(8): a(f"v_accvgpr_read_b32 v{ZS+r}, a{BZ+r}")
    for t in range(4):
        a(f"{MF16} v[{X+t*4}:{X+t*4+3}], v[{BW}:{BW+1}], a[{BQ+2*t}:{BQ+2*t+1}], 0")
    for step in (32, 16, 8):
        for r in range(0, step, 2): a(f"v_pk_add_f32 v[{Q+r}:{Q+r+1}], v[{Q+r}:{Q+r+1}], v[{Q+step+r}:{Q+step+r+1}]")
    for dpp in ("quad_perm:[1,0,3,2]", "quad_perm:[2,3,0,1]", "row_half_mirror"):
        for r in range(8): a(f"v_add_f32_dpp v{ZS+r}, v{ZS+r}, v{ZS+r} {dpp} row_mask:0xf bank_mask:0xf")
    KVF, ZF = Q + 8, Q + 12
    for j in range(4):
        a(f"v_cvt_pk_bf16_f32 v{KVF+j}, v{Q+2*j}, v{Q+2*j+1}")
        a(f"v_cvt_pk_bf16_f32 v{ZF+j}, v{ZS+2*j}, v{ZS+2*j+1}")
    hedge_softmax(a, X, EP, EM, MXR, TB, PH, vX16, vX32, sKAP)
    a("s_nop 1")
    NUM, DEN = Q + 16, Q + 32
    for t in range(4):
        a(f"{MF} v[{NUM+t*4}:{NUM+t*4+3}], v[{KVF}:{KVF+3}], v[{PH+t*4}:{PH+t*4+3}], 0")
        a(f"{MF} v[{DEN+t*4}:{DEN+t*4+3}], v[{ZF}:{ZF+3}], v[{PH+t*4}:{PH+t*4+3}], 0")
    a(f"""
s_lshl_b32 s{sT0}, s{sI}, 2
s_add_u32 s{sT0}, s{sT0}, s{sWAVE}
s_mul_i32 s{sT0}, s{sT0}, {4*144*1024}
s_lshr_b32 s{sT1}, s{sH}, 1
s_lshl_b32 s{sT1}, s{sT1}, 10
s_add_u32 s{sT0}, s{sT0}, s{sT1}
s_add_u32 s{sT0}, s{sT0}, s{sT2}
s_add_u32 s{sT0}, s{sT0}, {CTX + 128*1024}
""")
    for t in range(4): a(f"v_add_f32 v{TE+t}, {hex(f2u(1e-6))}, v{DEN+t*4}")
    for t in range(4): a(f"v_rcp_f32 v{TE+t}, v{TE+t}")
    for t in range(4):
        for r in range(4): a(f"v_mul_f32 v{NUM+t*4+r}, v{NUM+t*4+r}, v{TE+t}")
        a(f"v_cvt_pk_bf16_f32 v{NUM+t*4}, v{NUM+t*4}, v{NUM+t*4+1}")
        a(f"v_cvt_pk_bf16_f32 v{NUM+t*4+1}, v{NUM+t*4+2}, v{NUM+t*4+3}")
        a.vm(f"buffer_store_dwordx2 v[{NUM+t*4}:{NUM+t*4+1}], v{vL16}, s[{sWS}:{sWS+3}], s{sT0} offen sc1", "st")
        a(f"s_add_u32 s{sT0}, s{sT0}, {144*1024}")
    a.stamp(12)
    if a.diag: a("s_waitcnt vmcnt(0)")
    a.stamp(23); a.stamp(10, real=True)
    a.stamp_flush(sWS, sWAVE, 24, DIAG, kidx=1)
    a.label(END)
    a("s_endpgm")
    a.flush_stubs()

    a.label(LMASK)
    for g, sD in ((0, sDGA), (1, sDGB)):
        L1 = a.newlabel("K2_m1"); L2 = a.newlabel("K2_m2")
        a(f"""
s_cmp_lt_u32 s{sKAP}, s{sD}
s_cbranch_scc1 {L2}
s_cmp_eq_u32 s{sKAP}, s{sD}
s_cbranch_scc1 {L1}
""")
        for r in range(16): a(f"v_mov_b32 v{nm(2*g,0)+r}, v{vBIG}")
        a(f"s_branch {L2}")
        a.label(L1)
        for r in range(4): a(f"v_cmp_gt_i32 s[{sM[r]}:{sM[r]+1}], {r}, v{vDG}")
        for r in range(4): a(f"v_mov_b32 v{nm(2*g,1)+r}, v{vBIG}")
        for r in range(4):
            a(f"v_cndmask_b32 v{nm(2*g,0)+r}, v{nm(2*g,0)+r}, v{vBIG}, s[{sM[r]}:{sM[r]+1}]")
            a(f"v_cndmask_b32 v{nm(2*g+1,1)+r}, v{nm(2*g+1,1)+r}, v{vBIG}, s[{sM[r]}:{sM[r]+1}]")
        a.label(L2)
    a("s_nop 1")
    a(f"s_setpc_b64 s[{sRET}:{sRET+1}]")
    def adjust(par):
        a("s_nop 15")
        DD = [D + u for u in range(4)]
        row_max(par, DD)
        for u in range(4): a(f"v_max_f32 v{D+u}, 0, v{D+u}")
        for u in range(4): a(f"v_exp_f32 v{F+u}, -v{D+u}")
        a("s_nop 0")
        for u in range(4):
            a(f"v_mul_f32 v{lc(par^1,u)}, v{lc(par^1,u)}, v{F+u}")
            a(f"v_accvgpr_write_b32 a{LA+4*u}, v{lc(par^1,u)}")
            for r in range(32):
                t = TE + r % 8
                a(f"v_accvgpr_read_b32 v{t}, a{o_(u,0)+r}")
                a(f"v_mul_f32 v{t}, v{t}, v{F+u}")
                a(f"v_accvgpr_write_b32 a{o_(u,0)+r}, v{t}")
        for u in range(4):
            a(f"v_add_f32 v{M+u}, v{M+u}, v{D+u}")
            for r in range(8):
                a(f"v_sub_f32 v{s_(0,u,0)+r}, v{s_(0,u,0)+r}, v{D+u}")
                a(f"v_sub_f32 v{s_(1,u,0)+r}, v{s_(1,u,0)+r}, v{D+u}")
                a(f"v_sub_f32 v{nm(u,0)+r}, v{nm(u,0)+r}, v{D+u}")
        for it in softmax_items(par): it.fn()
        a("s_nop 1"); lmfma(par, 3).fn(); a("s_nop 7")
        lread(par, 2).fn(); lread(par, 3).fn()
        for it in early(par ^ 1): it.fn()
        a("s_nop 1")
        a(f"s_setpc_b64 s[{sRET}:{sRET+1}]")
    for par in range(2):
        a.label(LADJ[par]); adjust(par)
    a.label("K2_code_end")
    a("s_endpgm")
```

```python
from asmlib import Asm
from sched import *
from common import *

PART = 0

def gen_k3(a, name="k3_kernel"):
    a.kernel(name, (256,1,1), (256,1,1), 131072, vgpr=208)
    sWO, sWB, sWS, sOUT, sDBG = 4, 8, 12, 16, 20
    (sWAVE, sRB, sCB, sKQ, sT0, sT1, sCNT, sCSRC, sWSRC, sW4, sOB, sGRP, sPSRC, sPDST, sOBB, sRH, sCH) = range(24, 41)
    ACC = 0
    ACB = 64
    FR = 80
    RX = 144
    vL16, vC2, vL, vT0, vT1, vT2, vO, vCR, vCR2 = 192, 193, 194, 195, 196, 197, 198, 199, 200
    vWD = [201, 202, 203, 204]
    vZ = 205
    vWR = [144, 145, 146, 147]; vWR2 = [148, 149, 150, 151]
    vBD = [152, 153, 154, 155]; vBC = [156, 157]; vBW = [158, 159, 160, 161]
    END = a.newlabel("K3_end")
    a(f"""
s_cmp_ge_u32 s2, 256
s_cbranch_scc1 {END}
""")
    a.stamp(14)
    a(f"""
s_load_dwordx2 s[44:45], s[0:1], 40     ; w_o
s_load_dwordx4 s[48:51], s[0:1], 72
s_load_dwordx4 s[52:55], s[0:1], 88
v_lshrrev_b32 v{vT0}, 6, v0
v_and_b32 v{vL}, 63, v0
v_readfirstlane_b32 s{sWAVE}, v{vT0}
s_lshr_b32 s{sT1}, s2, 3                ; q
s_and_b32 s{sCB}, s{sT1}, 3
s_lshr_b32 s{sRB}, s{sT1}, 2
s_and_b32 s{sT0}, s2, 1
s_lshl_b32 s{sT0}, s{sT0}, 3
s_add_u32 s{sRB}, s{sRB}, s{sT0}
s_bfe_u32 s{sKQ}, s2, 0x20001           ; K quarter
s_lshl_b32 s{sGRP}, s{sRB}, 2
s_add_u32 s{sGRP}, s{sGRP}, s{sCB}
s_lshl_b32 s{sT0}, s{sRB}, 2
s_add_u32 s{sT0}, s{sT0}, s{sWAVE}
s_mul_i32 s{sCSRC}, s{sT0}, {2*144*1024}
s_lshl_b32 s{sT0}, s{sKQ}, 15
s_add_u32 s{sCSRC}, s{sCSRC}, s{sT0}
s_add_u32 s{sCSRC}, s{sCSRC}, {CTX}
s_lshl_b32 s{sWSRC}, s{sKQ}, 20
s_lshl_b32 s{sT0}, s{sWAVE}, 14
s_add_u32 s{sWSRC}, s{sWSRC}, s{sT0}
s_lshl_b32 s{sT0}, s{sCB}, 8
s_add_u32 s{sWSRC}, s{sWSRC}, s{sT0}
s_lshl_b32 s{sW4}, s{sWAVE}, 12
s_mov_b32 s{sWO+2}, 0x400000
s_mov_b32 s{sWO+3}, 0x20000
s_mov_b32 s{sWB+2}, 0x80000
s_mov_b32 s{sWB+3}, 0x20000
s_mov_b32 s{sWS+2}, {WS_USED}
s_mov_b32 s{sWS+3}, 0x20000
s_mov_b32 s{sOUT+2}, 0x400000
s_mov_b32 s{sOUT+3}, 0x20000
s_mov_b32 s{sDBG+2}, 256
s_mov_b32 s{sDBG+3}, 0x20000
v_lshlrev_b32 v{vL16}, 4, v{vL}
v_add_u32 v{vC2}, {144*1024 - 2048}, v{vL16}
v_lshrrev_b32 v{vT2}, 4, v{vL}
v_lshlrev_b32 v{vT0}, 10, v{vT2}
v_and_b32 v{vT1}, 15, v{vL}
v_lshlrev_b32 v{vT2}, 1, v{vT2}
v_xor_b32 v{vT1}, v{vT1}, v{vT2}
v_lshl_add_u32 v{vWD[0]}, v{vT1}, 4, v{vT0}
v_xor_b32 v{vT1}, 8, v{vT1}
v_lshl_add_u32 v{vWD[1]}, v{vT1}, 4, v{vT0}
v_add_u32 v{vWD[1]}, 3072, v{vWD[1]}
v_add_u32 v{vWD[2]}, 6144, v{vWD[0]}
v_add_u32 v{vWD[3]}, 6144, v{vWD[1]}
s_waitcnt lgkmcnt(0)
s_mov_b32 s{sWO}, s44
s_mov_b32 s{sWO+1}, s45
s_mov_b32 s{sWB}, s48
s_mov_b32 s{sWB+1}, s49
s_mov_b32 s{sOUT}, s50
s_mov_b32 s{sOUT+1}, s51
s_mov_b32 s{sDBG}, s52
s_mov_b32 s{sDBG+1}, s53
s_mov_b32 s{sWS}, s54
s_mov_b32 s{sWS+1}, s55
""")
    a.stamp(0); a.stamp(1, real=True)
    mk = Mk(a); I = mk.I
    def a_dma(slot):
        its = [I(f"s_add_u32 m0, s{sW4}, {slot * 32768}"), I("s_nop 0")]
        for i in range(4):
            its.append(mk.VM(f"buffer_load_dwordx4 v{vL16 if i < 2 else vC2}, s[{sWS}:{sWS+3}], s{sCSRC} offen offset:{i*1024} lds", ("st", slot)))
        its += [I(f"s_add_u32 m0, s{sW4}, {slot * 32768 + 16384}"), I(f"s_add_u32 s{sCSRC}, s{sCSRC}, 2048")]
        for i in range(4):
            its.append(mk.VM(f"buffer_load_dwordx4 v{vWD[i]}, s[{sWO}:{sWO+3}], s{sWSRC} offen offset:{i*1024} lds", ("st", slot)))
        its.append(I(f"s_add_u32 s{sWSRC}, s{sWSRC}, 0x10000"))
        return its
    def b_dma(slot):
        its = [I(f"s_add_u32 m0, s{sW4}, {slot * 32768}"), I("s_nop 0")]
        for i in range(4):
            its.append(mk.VM(f"buffer_load_dwordx4 v{vL16}, s[{sWS}:{sWS+3}], s{sCSRC} offen offset:{i*1024} lds", ("st", slot)))
        its += [I(f"s_add_u32 m0, s{sW4}, {slot * 32768 + 16384}"), I(f"s_add_u32 s{sCSRC}, s{sCSRC}, 4096")]
        for i in range(4):
            its.append(mk.VM(f"buffer_load_dwordx4 v{vBD[i]}, s[{sWB}:{sWB+3}], s{sWSRC} offen offset:{i*1024} lds", ("st", slot)))
        its.append(I(f"s_add_u32 s{sWSRC}, s{sWSRC}, 0x20000"))
        return its
    for it in a_dma(0): it.fn()
    a(f"""
s_lshr_b32 s{sRH}, s{sWAVE}, 1
s_and_b32 s{sCH}, s{sWAVE}, 1
s_lshl_b32 s{sT0}, s{sRH}, 13
v_add_u32 v{vCR}, s{sT0}, v{vL16}
v_add_u32 v{vCR2}, 0x10000, v{vCR}
v_mov_b32 v{vBC[0]}, v{vCR}
v_mov_b32 v{vBC[1]}, v{vCR2}
v_lshrrev_b32 v{vT0}, 4, v{vL}              ; kq
v_bfe_u32 v{vT1}, v{vL}, 2, 2               ; r
v_lshl_add_u32 v{vT2}, v{vT0}, 2, v{vT1}    ; kq*4+r
v_and_b32 v{vT0}, 3, v{vL}
v_lshlrev_b32 v{vT0}, 3, v{vT0}
v_add_u32 v{vT0}, 16384, v{vT0}             ; c4*8 + W part
v_lshl_add_u32 v{vZ}, v{vT2}, 8, v{vT0}
v_and_b32 v{vT1}, 7, v{vT2}
s_lshl_b32 s{sT0}, s{sCH}, 2
v_xor_b32 v{vT1}, s{sT0}, v{vT1}
""")
    for mt in range(4):
        a(f"v_xor_b32 v{vO}, {mt}, v{vT1}")
        a(f"v_lshl_add_u32 v{vWR[mt]}, v{vO}, 5, v{vZ}")
        a(f"v_add_u32 v{vWR2[mt]}, 0x10000, v{vWR[mt]}")
    a(f"""
v_lshl_add_u32 v{vZ}, v{vT2}, 7, v{vT0}
v_bfe_u32 v{vT1}, v{vT2}, 1, 2
s_lshl_b32 s{sT0}, s{sCH}, 1
v_xor_b32 v{vT1}, s{sT0}, v{vT1}
v_lshl_add_u32 v{vBW[0]}, v{vT1}, 5, v{vZ}
v_xor_b32 v{vT1}, 1, v{vT1}
v_lshl_add_u32 v{vBW[1]}, v{vT1}, 5, v{vZ}
v_add_u32 v{vBW[2]}, 0x10000, v{vBW[0]}
v_add_u32 v{vBW[3]}, 0x10000, v{vBW[1]}
v_lshrrev_b32 v{vT0}, 3, v{vL}
v_lshlrev_b32 v{vT0}, 10, v{vT0}
v_and_b32 v{vT1}, 7, v{vL}
v_lshrrev_b32 v{vT2}, 4, v{vL}
v_lshlrev_b32 v{vT2}, 1, v{vT2}
v_xor_b32 v{vT1}, v{vT1}, v{vT2}
v_lshl_add_u32 v{vBD[0]}, v{vT1}, 4, v{vT0}
v_add_u32 v{vBD[1]}, {7*1024}, v{vBD[0]}
v_add_u32 v{vBD[2]}, {14*1024}, v{vBD[0]}
v_add_u32 v{vBD[3]}, {21*1024}, v{vBD[0]}
v_and_b32 v{vT0}, 15, v{vL}
v_lshlrev_b32 v{vT0}, 11, v{vT0}
v_lshrrev_b32 v{vT1}, 4, v{vL}
v_lshl_add_u32 v{vO}, v{vT1}, 3, v{vT0}
v_mov_b32 v{vZ}, 0
s_lshl_b32 s{sOB}, s{sRB}, 18
s_lshl_b32 s{sT0}, s{sCB}, 8
s_add_u32 s{sOB}, s{sOB}, s{sT0}
s_mov_b32 s{sOBB}, s{sOB}
s_lshl_b32 s{sT0}, s{sRH}, 17
s_add_u32 s{sOB}, s{sOB}, s{sT0}
s_lshl_b32 s{sT0}, s{sKQ}, 15
s_add_u32 s{sOB}, s{sOB}, s{sT0}
s_lshl_b32 s{sT0}, s{sCH}, 7
s_add_u32 s{sOB}, s{sOB}, s{sT0}
s_lshr_b32 s{sT0}, s{sKQ}, 1
s_lshl_b32 s{sT0}, s{sT0}, 17
s_add_u32 s{sOBB}, s{sOBB}, s{sT0}
s_lshl_b32 s{sT0}, s{sRH}, 16
s_add_u32 s{sOBB}, s{sOBB}, s{sT0}
s_and_b32 s{sT0}, s{sKQ}, 1
s_lshl_b32 s{sT0}, s{sT0}, 7
s_add_u32 s{sOBB}, s{sOBB}, s{sT0}
s_lshl_b32 s{sT0}, s{sCH}, 6
s_add_u32 s{sOBB}, s{sOBB}, s{sT0}
s_lshl_b32 s{sPSRC}, s{sGRP}, 18
s_add_u32 s{sPSRC}, s{sPSRC}, s{sW4}
s_lshl_b32 s{sT0}, s{sKQ}, 14
s_add_u32 s{sPDST}, s{sPSRC}, s{sT0}
s_lshl_b32 s{sT0}, s{sKQ}, 16
s_add_u32 s{sPSRC}, s{sPSRC}, s{sT0}
""")
    for r in range(80): a(f"v_mov_b32 v{r}, 0")
    for it in a_dma(1) + a_dma(2): it.fn()
    def a_reads(slot, k, st):
        c = vCR if slot < 2 else vCR2; w = vWR if slot < 2 else vWR2
        so = (slot & 1) * 32768
        fb = FR + st * 32
        its = []
        for x in range(4):
            its.append(mk.LG(f"ds_read_b128 v[{fb+x*4}:{fb+x*4+3}], v{c} offset:{so + x*2048 + k*1024}", ("fc", st)))
        for x in range(4):
            for jj in range(2):
                b = fb + 16 + x * 4 + jj * 2
                its.append(mk.LG(f"ds_read_b64_tr_b16 v[{b}:{b+1}], v{w[x]} offset:{so + k*8192 + jj*4096}", ("fw", st, x)))
        return its
    def a_stage(slot, refill, nxt=True):
        B = Body(32)
        for k in range(2):
            fb = FR + k * 32
            for mt in range(4):
                for qt in range(4):
                    d = ACC + (qt * 4 + mt) * 4
                    s = f"{MF} v[{d}:{d+3}], v[{fb+16+mt*4}:{fb+19+mt*4}], v[{fb+qt*4}:{fb+qt*4+3}], v[{d}:{d+3}]"
                    B.mfma[k * 16 + mt * 4 + qt] = (lambda s=s: a(s))
                if mt % 2 == 0: B.put_pre(k * 16 + mt * 4, mk.WL(("fw", k, mt + 1)))
        r1 = a_reads(slot, 1, 1)
        for j, it in enumerate(r1): B.put(2 * (j >> 1), it)
        if nxt:
            n = (slot + 1) % 4
            B.put(16, mk.WV(("st", n), lg0=True), 3); B.put(16, I("s_barrier"), 3)
            for j, it in enumerate(a_reads(n, 0, 0)): B.put(18 + 2 * (j >> 1), it)
        if refill: B.stream(refill, 0, 32)
        B.emit(a)
    a.wait_vm(("st", 0)); a("s_barrier")
    for it in a_reads(0, 0, 0): it.fn()
    L = a.newlabel("K3_loop")
    a(f"s_mov_b32 s{sCNT}, 3")
    a.stamp(2)
    a.label(L)
    def it_():
        for s in range(4): a_stage(s, a_dma((s + 3) % 4))
    loop_emit(a, it_)
    a(f"""
s_sub_u32 s{sCNT}, s{sCNT}, 1
s_cmp_lg_u32 s{sCNT}, 0
s_cbranch_scc1 {L}
""")
    a_stage(0, a_dma(3))
    a(f"""
s_lshl_b32 s{sT0}, s{sRB}, 3
s_and_b32 s{sT1}, s{sKQ}, 2
s_lshl_b32 s{sT1}, s{sT1}, 1
s_add_u32 s{sT0}, s{sT0}, s{sT1}
s_add_u32 s{sT0}, s{sT0}, s{sWAVE}
s_mul_i32 s{sCSRC}, s{sT0}, {144*1024}
s_add_u32 s{sCSRC}, s{sCSRC}, {CTX + 128*1024}
s_lshl_b32 s{sWSRC}, s{sWAVE}, 15
s_lshl_b32 s{sT0}, s{sCB}, 8
s_add_u32 s{sWSRC}, s{sWSRC}, s{sT0}
s_and_b32 s{sT0}, s{sKQ}, 1
s_lshl_b32 s{sT0}, s{sT0}, 7
s_add_u32 s{sWSRC}, s{sWSRC}, s{sT0}
""")
    a_stage(1, b_dma(0)); a_stage(2, b_dma(1)); a_stage(3, b_dma(2), nxt=False)
    a.stamp(3)
    OWN = RX + 32
    a("s_nop 7")
    for dst in range(4):
        LS = a.newlabel("K3_own"); LN = a.newlabel("K3_nx")
        a(f"s_cmp_eq_u32 s{sKQ}, {dst}")
        a(f"s_cbranch_scc1 {LS}")
        a(f"s_add_u32 s{sT0}, s{sPSRC}, {dst * 16384}")
        for mt in range(4):
            d = ACC + (dst * 4 + mt) * 4
            a(f"buffer_store_dwordx4 v[{d}:{d+3}], v{vL16}, s[{sWS}:{sWS+3}], s{sT0} offen offset:{mt*1024} sc1")
        a(f"s_branch {LN}")
        a.label(LS)
        for r in range(16): a(f"v_mov_b32 v{OWN+r}, v{ACC+dst*16+r}")
        a.label(LN)
    a.vmq += ["pub"] * 12
    def b_stage(slot, after_bar=None):
        a.wait_vm(("st", slot), always=True)
        a("s_barrier")
        if after_bar: after_bar()
        c = vBC[slot >> 1]; w = vBW[(slot >> 1) * 2:(slot >> 1) * 2 + 2]
        so = (slot & 1) * 32768
        def reads(k):
            fb = FR + k * 16
            for qt in range(2):
                a.lg(f"ds_read_b128 v[{fb+qt*4}:{fb+qt*4+3}], v{c} offset:{so + qt*4096 + k*1024}", ("f", k))
            for mt in range(2):
                for jj in range(2):
                    b = fb + 8 + mt * 4 + jj * 2
                    a.lg(f"ds_read_b64_tr_b16 v[{b}:{b+1}], v{w[mt]} offset:{so + k*4096 + jj*2048}", ("f", k))
        def mf(k):
            fb = FR + k * 16
            a.wait_lg(("f", k), always=True)
            for mt in range(2):
                for qt in range(2):
                    d = ACB + (mt * 2 + qt) * 4
                    a(f"{MF} v[{d}:{d+3}], v[{fb+8+mt*4}:{fb+8+mt*4+3}], v[{fb+qt*4}:{fb+qt*4+3}], v[{d}:{d+3}]")
        reads(0); reads(1); mf(0); reads(2); mf(1); reads(3); mf(2); mf(3)
    def refill3():
        for it in b_dma(3): it.fn()
    def signal():
        LS = a.newlabel("K3_sig")
        a(f"""
s_cmp_lg_u32 s{sWAVE}, 0
s_cbranch_scc1 {LS}
s_lshl_b32 s{sT0}, s{sGRP}, 2
v_mov_b32 v{vT0}, 1
s_mov_b64 exec, 1
buffer_atomic_add v{vT0}, v{vZ}, s[{sDBG}:{sDBG+3}], s{sT0} offen sc1
s_mov_b64 exec, -1
{LS}:
""")
    b_stage(0, refill3); b_stage(1); b_stage(2); b_stage(3, signal)
    a.stamp(4)
    for mt in range(2):
        for qt in range(2):
            d = ACB + (mt * 2 + qt) * 4
            if mt == 0 and qt == 0: a("s_nop 7")
            a(f"v_cvt_pk_bf16_f32 v{d}, v{d}, v{d+1}")
            a(f"v_cvt_pk_bf16_f32 v{d+1}, v{d+2}, v{d+3}")
    a(f"s_add_u32 s{sT0}, s{sOBB}, 32768")
    for mt in range(2):
        for qt in range(2):
            d = ACB + (mt * 2 + qt) * 4
            a(f"buffer_store_dwordx2 v[{d}:{d+1}], v{vO}, s[{sOUT}:{sOUT+3}], s{sOBB if qt == 0 else sT0} offen offset:{1024 + mt*32}")
    LP = a.newlabel("K3_poll"); LPD = a.newlabel("K3_polled")
    a(f"""
s_cmp_lg_u32 s{sWAVE}, 0
s_cbranch_scc1 {LPD}
s_lshl_b32 s{sT0}, s{sGRP}, 2
s_mov_b32 s{sCNT}, 0x40000
{LP}:
buffer_load_dword v{vT0}, v{vZ}, s[{sDBG}:{sDBG+3}], s{sT0} offen sc1
s_waitcnt vmcnt(0)
v_readfirstlane_b32 s{sT1}, v{vT0}
s_nop 0
s_cmp_ge_u32 s{sT1}, 4
s_cbranch_scc1 {LPD}
s_sleep 1
s_sub_u32 s{sCNT}, s{sCNT}, 1
s_cmp_lg_u32 s{sCNT}, 0
s_cbranch_scc1 {LP}
{LPD}:
s_barrier
""")
    a.stamp(5)
    a.vmq = []
    for j in range(3):
        a(f"s_add_u32 s{sT0}, s{sKQ}, {j+1}")
        a(f"s_and_b32 s{sT0}, s{sT0}, 3")
        a(f"s_lshl_b32 s{sT0}, s{sT0}, 16")
        a(f"s_add_u32 s{sT0}, s{sT0}, s{sPDST}")
        for mt in range(4):
            d = j * 16 + mt * 4
            a.vm(f"buffer_load_dwordx4 v[{d}:{d+3}], v{vL16}, s[{sWS}:{sWS+3}], s{sT0} offen offset:{mt*1024} sc1", ("rx", j))
    for j in range(3):
        a.wait_vm(("rx", j))
        for r in range(0, 16, 2):
            a(f"v_pk_add_f32 v[{OWN+r}:{OWN+r+1}], v[{OWN+r}:{OWN+r+1}], v[{j*16+r}:{j*16+r+1}]")
    for mt in range(4):
        d = OWN + mt * 4
        a(f"v_cvt_pk_bf16_f32 v{d}, v{d}, v{d+1}")
        a(f"v_cvt_pk_bf16_f32 v{d+1}, v{d+2}, v{d+3}")
        a(f"buffer_store_dwordx2 v[{d}:{d+1}], v{vO}, s[{sOUT}:{sOUT+3}], s{sOB} offen offset:{mt*32}")
    a.stamp(9)
    if a.diag: a("s_waitcnt vmcnt(0)")
    a.stamp(23); a.stamp(10, real=True)
    a.stamp_flush(sWS, sWAVE, 24, DIAG, vt=(195, 196), kidx=2)
    a.label(END)
    a("s_endpgm")
```

```python
from sched import *
from common import *
WR, FR, AR = 0, 65536, 98304

class PhaseA:
    LEAD = 16
    def __init__(self, a, ACC, WF, vWA, vXA, vAE, vAO, vWE, vWO, sACT, sW, sA0, sA1, sWSRC, sROW4, sROWH, sLA, sLW, sT, types, sCO, sWB, sA0c, sA1c):
        self.__dict__.update(locals())
    def acc(self, nt, st): return self.ACC + ((nt >> 2) * 16 + (nt & 3) * 4 + st) * 4
    ring = None
    def act(self, ks, st):
        b = (ks * 4 + st) * 4 if self.ring is None else self.ring + ((ks % 4) * 4 + st) * 4
        return f"a[{b}:{b+3}]"
    def wf(self, ks, nt): return self.WF + ((ks % 2) * 8 + nt) * 4
    def setup_dma(self, vL, vT0, vT1, vT2, sROW1, split=None):
        a = self.a
        a(f"""
v_lshrrev_b32 v{vT0}, 3, v{vL}
v_lshlrev_b32 v{vT0}, 10, v{vT0}
v_and_b32 v{vT1}, 7, v{vL}
v_lshrrev_b32 v{vT2}, 4, v{vL}
v_xor_b32 v{vT1}, v{vT1}, v{vT2}
v_lshl_add_u32 v{self.vAE}, v{vT1}, 4, v{vT0}
v_xor_b32 v{vT1}, 4, v{vT1}
v_lshl_add_u32 v{self.vAO}, v{vT1}, 4, v{vT0}
v_mul_lo_u32 v{vT0}, v{vT2}, s{sROW1}
v_and_b32 v{vT1}, 15, v{vL}
v_lshlrev_b32 v{vT2}, 1, v{vT2}
v_xor_b32 v{vT1}, v{vT1}, v{vT2}
v_lshl_add_u32 v{self.vWE}, v{vT1}, 4, v{vT0}
v_xor_b32 v{vT2}, 8, v{vT1}
v_lshl_add_u32 v{self.vWO}, v{vT2}, 4, v{vT0}
""")
        if split is not None:
            a(f"""
v_lshrrev_b32 v{vT1}, 3, v{vT1}
v_mul_lo_u32 v{vT1}, v{vT1}, s{split}
v_add_u32 v{self.vWE}, v{self.vWE}, v{vT1}
v_lshrrev_b32 v{vT2}, 3, v{vT2}
v_mul_lo_u32 v{vT2}, v{vT2}, s{split}
v_add_u32 v{self.vWO}, v{self.vWO}, v{vT2}
""")
    def setup_read(self, vL, vT0, vT1, vT2):
        a = self.a
        a(f"""
v_lshrrev_b32 v{vT0}, 4, v{vL}              ; kq
v_bfe_u32 v{vT1}, v{vL}, 2, 2               ; r
v_lshl_add_u32 v{vT2}, v{vT0}, 3, v{vT1}    ; kq*8+r
v_lshlrev_b32 v{vT2}, 8, v{vT2}
v_and_b32 v{vT0}, 1, v{vT0}
v_lshl_add_u32 v{vT1}, v{vT0}, 2, v{vT1}    ; f = r | (kq&1)<<2
v_and_b32 v{vT0}, 3, v{vL}
v_lshl_add_u32 v{vT2}, v{vT0}, 3, v{vT2}    ; + c4*8
""")
        for nt in range(8):
            a(f"v_xor_b32 v{vT0}, {nt}, v{vT1}")
            a(f"v_lshl_add_u32 v{self.vWA[nt]}, v{vT0}, 5, v{vT2}")
        a(f"""
v_and_b32 v{vT0}, 15, v{vL}
v_lshlrev_b32 v{vT0}, 7, v{vT0}
v_add_u32 v{vT0}, s{self.sLA}, v{vT0}
v_bfe_u32 v{vT1}, v{vL}, 1, 3
v_lshrrev_b32 v{vT2}, 4, v{vL}
v_xor_b32 v{vT1}, v{vT1}, v{vT2}
v_lshl_add_u32 v{self.vXA[0]}, v{vT1}, 4, v{vT0}
v_xor_b32 v{vT1}, 4, v{vT1}
v_lshl_add_u32 v{self.vXA[1]}, v{vT1}, 4, v{vT0}
""")
    def act_dma(self, c, i):
        k = Mk(self.a)
        base = self.sA0c if i < 4 else self.sA1c
        pre = []
        if i == 0: pre = [k.I(f"s_add_u32 s{self.sA0c}, s{self.sA0}, s{self.sCO}"), k.I(f"s_add_u32 s{self.sA1c}, s{self.sA1}, s{self.sCO}")]
        return pre + [k.I(f"s_add_u32 m0, s{self.sLA}, {(c % 2) * 8192 + i * 1024}"),
                k.I(f"s_add_u32 s{self.sT}, s{base}, {(i & 3) * 8192}"),
                k.VM(f"buffer_load_dwordx4 v{self.vAE if i % 2 == 0 else self.vAO}, s[{self.sACT}:{self.sACT+3}], s{self.sT} offen lds", ("pa", c))]
    def w_dma(self, c, i):
        k = Mk(self.a)
        pre = []
        if i == 0: pre = [k.I(f"s_add_u32 s{self.sCO}, s{self.sCO}, 128"), k.I(f"s_and_b32 s{self.sCO}, s{self.sCO}, 0x3ff"),
                          k.I(f"s_mul_i32 s{self.sWSRC}, s{self.sCO}, s{self.sROWH}")]
        return pre + [k.I(f"s_add_u32 m0, s{self.sLW}, {(c % 4) * 16384 + i * 1024}"),
                k.I(f"s_add_u32 s{self.sWSRC}, s{self.sWSRC}, s{self.sROW4 if i > 0 else self.sWB}"),
                k.VM(f"buffer_load_dwordx4 v{self.vWE if i < 2 else self.vWO}, s[{self.sW}:{self.sW+3}], s{self.sWSRC} offen lds", ("pa", c))]
    def chunk_dmas(self, c):
        return sum([self.w_dma(c, i) for i in range(4)] + [self.act_dma(c, i) for i in range(8)], [])
    def ar(self, ks, st):
        c = ks >> 1
        return Mk(self.a).LG(f"ds_read_b128 {self.act(ks, st)}, v{self.vXA[ks & 1]} offset:{(c % 2) * 8192 + st * 2048}", ("par", ks, st))
    def wr(self, ks, nt, jj):
        c = ks >> 1
        b = self.wf(ks, nt) + jj * 2
        return Mk(self.a).LG(f"ds_read_b64_tr_b16 v[{b}:{b+1}], v{self.vWA[nt]} offset:{WR + (c % 4) * 16384 + (ks & 1) * 8192 + jj * 1024}", ("pwr", ks, nt))
    def bar_gap(self, c): return 64 * c - self.LEAD - 4
    def build(self, stamp=None):
        a = self.a; k = Mk(a)
        LEAD = self.LEAD
        B = Body(512)
        for m in range(512):
            ks, nt, st = m >> 5, (m >> 2) & 7, m & 3
            d = self.acc(nt, st); w = self.wf(ks, nt)
            c = "0" if ks == 0 else f"v[{d}:{d+3}]"
            if self.types[nt] == "K": s = f"{MF} v[{d}:{d+3}], v[{w}:{w+3}], {self.act(ks, st)}, {c}"
            else: s = f"{MF} v[{d}:{d+3}], {self.act(ks, st)}, v[{w}:{w+3}], {c}"
            B.mfma[m] = (lambda s=s: a(s))
            if st == 0 and nt % 2 == 0: B.put_pre(m, k.WL(("pwr", ks, nt + 1)))
        if stamp is not None: a.stamp(12)
        a.wait_vm(("pa", 0))
        if stamp is not None: a.stamp(13)
        a("s_barrier")
        if stamp is not None: a.stamp(stamp)
        for st in range(4): self.ar(0, st).fn()
        for nt in range(4):
            for jj in range(2): self.wr(0, nt, jj).fn()
        for c in range(8):
            if c > 0:
                g = self.bar_gap(c)
                B.put(g, k.WV(("pa", c)), 0 if not B.gap[g].c[0] else 3)
                B.put(g, k.I("s_barrier"), 3)
                if stamp is not None: B.put(g, Item(lambda c=c: a.stamp(15 + c), 0), 3)
                for st in range(4): B.put(g + 1 + (st >> 1), self.ar(2 * c, st))
            for st in range(4): B.put(max(64 * c - LEAD + 2 + 4 * (st >> 1), st >> 1), self.ar(2 * c + 1, st))
            for ks in (2 * c, 2 * c + 1):
                for nt in range(8):
                    if ks == 0 and nt < 4: continue
                    for jj in range(2):
                        B.put(ks * 32 + nt * 4 - LEAD, self.wr(ks, nt, jj))
        for c in range(6):
            g = max(self.bar_gap(c) + 3, 1)
            s0 = 64 * c + 9 if c else 17
            B.stream(sum([self.w_dma(c + 2, i) for i in range(4)], []), g, s0)
            B.stream(sum([self.act_dma(c + 2, i) for i in range(8)], []), s0, 64 * c + 43)
        return B
```

```python
import re
class Item:
    def __init__(self, fn, cost=4, kind="X"):
        self.fn = fn; self.cost = cost; self.kind = kind

def kind_of(text):
    op = text.split()[0]
    if op.startswith("s_"): return "s"
    if op.startswith("ds_"): return "l"
    if op.startswith(("buffer_", "global_")): return "d"
    if op in ("v_exp_f32", "v_rcp_f32", "v_log_f32") or op.startswith("v_permlane"): return "e"
    return "v"
COST = {"s": 4, "l": 4, "d": 8, "v": 4, "e": 8}

class Gap:
    def __init__(self):
        self.c = [[], [], [], []]
    def used(self, extra=None):
        c = [list(x) for x in self.c]
        if extra: c[extra[0]].append(extra[1])
        u = sum(i.cost for k in (1, 2, 3) for i in c[k])
        if c[0] and any(i.kind == "d" for i in c[1]): u += 4
        return u
    def classes(self, it):
        if it.kind == "s": return ([0] if not self.c[0] else []) + [3]
        if it.kind in "ld": return [1]
        if it.kind in "ve": return [2]
        return [3]

class Body:
    def __init__(self, n, budget=8):
        self.n = n
        self.mfma = [None] * n
        self.pre0 = []
        self.gap = [Gap() for _ in range(n)]
        self.budget = budget
    @property
    def load(self): return [g.used() for g in self.gap]
    def put(self, m, item, cls=None):
        g = self.gap[m]
        if cls is None: cls = g.classes(item)[0]
        g.c[cls].append(item)
        return cls
    def put_pre(self, m, item):
        if m == 0: self.pre0.append(item)
        else: self.put(m - 1, item)
    def put_pre_late(self, m, item):
        if m == 0: self.pre0.append(item)
        else: self.put(m - 1, item, 3)
    def stream(self, items, start, end, even=True):
        n = len(items)
        pos = (start, -1)
        span = end - start
        tot = float(sum(i.cost for i in items)); cum = 0.0
        for k, it in enumerate(items):
            ideal = start + int(span * cum / tot) if even else start
            cum += it.cost
            lo = max(ideal, pos[0])
            hi = min(end, max(lo + 1, start + int(span * cum / tot) + 6))
            best = None
            for g in range(lo, hi):
                for cls in self.gap[g].classes(it):
                    if (g, cls) < pos: continue
                    if (g, cls) == pos and cls == 0: continue
                    before = max(0, self.gap[g].used() - self.budget)
                    after = max(0, self.gap[g].used((cls, it)) - self.budget)
                    add = after - before
                    key = (add, after, g)
                    if best is None or key < best[0]: best = (key, g, cls)
                if best is not None and best[0][0] == 0 and best[0][1] == 0: break
            if best is None:
                g = min(max(pos[0], lo), end - 1); best = (None, g, 3)
            self.gap[best[1]].c[best[2]].append(it)
            pos = (best[1], best[2])
    spread = stream
    def insert_mfma(self, after, fn):
        m = after + 1
        self.mfma.insert(m, fn); self.gap.insert(m, Gap()); self.n += 1
    def est(self):
        return sum(16 + max(0, g.used() - self.budget) for g in self.gap)
    def emit(self, a):
        for it in self.pre0: it.fn()
        for m in range(self.n):
            self.mfma[m]()
            for cl in self.gap[m].c:
                for it in cl: it.fn()

_W = re.compile(r's_waitcnt (vmcnt|lgkmcnt)\((\d+)\)( lgkmcnt\(0\))?$')
def loop_emit(a, gen, nsim=2):
    start = len(a.lines)
    first = None
    lab = a._lab
    nst = len(a.stubs)
    for p in range(nsim):
        a._lab = lab
        del a.stubs[nst:]
        gen()
        seg = a.lines[start:]
        del a.lines[start:]
        if first is None: first = seg
        else:
            assert len(seg) == len(first), "loop passes differ in length %d %d" % (len(seg), len(first))
            for i, (x, y) in enumerate(zip(first, seg)):
                if x != y:
                    mx, my = _W.search(x), _W.search(y)
                    assert mx and my and mx.group(1) == my.group(1), (x, y)
                    if int(my.group(2)) < int(mx.group(2)): first[i] = y
    a.lines.extend(first)

class Mk:
    def __init__(self, a): self.a = a
    def I(self, text):
        k = kind_of(text); return Item(lambda: self.a(text), COST[k], k)
    def LG(self, text, tag): return Item(lambda: self.a.lg(text, tag), 4, "l")
    def VM(self, text, tag): return Item(lambda: self.a.vm(text, tag), 8, "d")
    def WL(self, tag): return Item(lambda: self.a.wait_lg(tag, always=True), 4, "s")
    def WV(self, tag, lg0=False): return Item(lambda: self.a.wait_vm(tag, always=True, lg0=lg0), 4, "s")
    def run(self, items):
        prev = None
        for it in items:
            it.fn()
```

```python
from asmlib import Asm
from sched import *
from common import *
from phasea import PhaseA, WR, FR, AR
from hedge import *

def gen_k1(a, name="k1_kernel", W0=0, ST="sc1", STL="sc1", MAP=1, WB=0, PT=0, ROT=1, fused=False):
    a.kernel(name, (256,1,1), (256,1,1), 163840, vgpr=256, agpr=256)
    sACT, sW, sWS = 4, 8, 12
    (sWAVE, sRB, sJOB, sSUB, sSCALE, sROW1, sSTB, sWOFF, sA0, sA1, sT0, sT1, sT2, sCNT, sLA, sLW, sSTFIX,
     sWSRC, sROW4, sROWH, sROW8, sWL, sLC, sSPLIT) = range(16, 40)
    sCO, sWB, sA0c, sA1c, sWH, sHU = 92, 93, 94, 95, 96, 97
    ACC = 0; WF = 128
    PK = 160
    TM = 192
    vWA = list(range(208, 216)); vXA = [216, 217]
    vAE, vAO, vWE, vWO = 218, 219, 220, 221
    vS = list(range(222, 230))
    vST = [234, 235, 236, 237]
    vDE, vDO = 238, 239
    vL, vT0, vT1, vT2 = 240, 241, 242, 243
    PK2 = 244
    END = a.newlabel("K1_end"); LV = a.newlabel("K1_vtype"); LBKV = a.newlabel("K1_bkv")
    LK = a.newlabel("K1_ktype"); LJ1 = a.newlabel("K1_j1"); LJ2 = a.newlabel("K1_j2"); LJ3 = a.newlabel("K1_j3"); LJD = a.newlabel("K1_jd")
    a(f"""
s_cmp_ge_u32 s2, 256
s_cbranch_scc1 {END}
""")
    a.stamp(14)
    a(f"""
s_load_dwordx4 s[44:47], s[0:1], 8      ; c_kv (44:45)  w_q (46:47)
s_load_dwordx4 s[48:51], s[0:1], 24
s_load_dwordx4 s[52:55], s[0:1], 48     ; B_x (52:53) wqkv (54:55)
s_load_dwordx2 s[56:57], s[0:1], 96     ; ws
s_load_dwordx2 s[58:59], s[0:1], 64     ; w_phi
v_lshrrev_b32 v{vT0}, 6, v0
v_and_b32 v{vL}, 63, v0
v_readfirstlane_b32 s{sWAVE}, v{vT0}
s_lshr_b32 s{sT1}, s2, 3                ; q
s_and_b32 s{sRB}, s2, 1
s_lshl_b32 s{sRB}, s{sRB}, 2
s_and_b32 s{sT0}, s{sT1}, 3
s_add_u32 s{sRB}, s{sRB}, s{sT0}
s_lshr_b32 s{sT1}, s{sT1}, 2
""")
    if MAP == 0:
        a(f"""
s_and_b32 s{sJOB}, s2, 6
s_lshl_b32 s{sJOB}, s{sJOB}, 2
s_add_u32 s{sJOB}, s{sJOB}, s{sT1}
""")
    else:
        a(f"""
s_and_b32 s{sT0}, s2, 6
s_mul_i32 s{sJOB}, s{sT0}, 3
s_add_u32 s{sJOB}, s{sJOB}, s{sT1}
s_add_u32 s{sT0}, s{sT0}, s{sT1}
s_add_u32 s{sT0}, s{sT0}, 18
s_cmp_ge_u32 s{sT1}, 6
s_cselect_b32 s{sJOB}, s{sT0}, s{sJOB}
""")
    a(f"""
s_lshl_b32 s{sSTFIX}, s{sRB}, 16
s_lshl_b32 s{sT0}, s{sWAVE}, 14
s_add_u32 s{sSTFIX}, s{sSTFIX}, s{sT0}
s_mov_b32 s{sSPLIT}, 0
s_mov_b32 s{sWS+2}, {WS_USED}
s_mov_b32 s{sWS+3}, 0x20000
s_mov_b32 s{sACT+2}, 0x200000
s_mov_b32 s{sACT+3}, 0x20000
s_mov_b32 s{sW+3}, 0x20000
s_waitcnt lgkmcnt(0)
s_mov_b32 s{sWS}, s56
s_mov_b32 s{sWS+1}, s57
s_cmp_ge_u32 s{sJOB}, 24
s_cbranch_scc1 {LJ2}
s_mov_b32 s{sACT}, s44
s_mov_b32 s{sACT+1}, s45
s_mov_b32 s{sW+2}, 0x400000
s_mov_b32 s{sROW1}, 8192
s_mov_b32 s{sSCALE}, {hex(f2u(CSCALE))}
s_mov_b32 s{sW}, s48
s_mov_b32 s{sW+1}, s49
s_mov_b32 s{sSUB}, s{sJOB}
s_cmp_lt_u32 s{sJOB}, 12
s_cbranch_scc1 {LJ1}
s_mov_b32 s{sW}, s50
s_mov_b32 s{sW+1}, s51
s_sub_u32 s{sSUB}, s{sJOB}, 12
s_add_u32 s{sSTFIX}, s{sSTFIX}, {VWS}
{LJ1}:
s_mul_i32 s{sT0}, s{sSUB}, 43
s_lshr_b32 s{sT0}, s{sT0}, 7             ; j/3
s_mul_i32 s{sT2}, s{sT0}, 3
s_sub_u32 s{sT2}, s{sSUB}, s{sT2}        ; j%3
s_lshl_b32 s{sT0}, s{sT0}, 5
s_lshl_b32 s{sT2}, s{sT2}, 3
s_lshr_b32 s{sSUB}, 0x160c00, s{sT2}
s_and_b32 s{sSUB}, s{sSUB}, 0xff
s_add_u32 s{sSUB}, s{sSUB}, s{sT0}
s_lshr_b32 s{sHU}, 0x1f0b0a, s{sT2}
s_and_b32 s{sHU}, s{sHU}, 0xff
s_add_u32 s{sHU}, s{sHU}, s{sT0}
s_lshl_b32 s{sWOFF}, s{sSUB}, 6
s_branch {LJD}
{LJ2}:
s_mov_b32 s{sACT}, s52
s_mov_b32 s{sACT+1}, s53
s_mov_b32 s{sW}, s54
s_mov_b32 s{sW+1}, s55
s_mov_b32 s{sW+2}, 0x180000
s_mov_b32 s{sROW1}, 3072
s_mov_b32 s{sSCALE}, 1.0
s_sub_u32 s{sSUB}, s{sJOB}, 24
s_lshl_b32 s{sWOFF}, s{sSUB}, 7
s_add_u32 s{sWOFF}, s{sWOFF}, 1024      ; k section
s_mov_b32 s{sSPLIT}, 896
{LJD}:
s_lshl_b32 s{sROW4}, s{sROW1}, 2
s_lshr_b32 s{sROWH}, s{sROW1}, 1
s_lshl_b32 s{sROW8}, s{sROW1}, 3
s_lshl_b32 s{sCO}, s{sRB}, 1
s_add_u32 s{sCO}, s{sCO}, s{sT1}
s_and_b32 s{sCO}, s{sCO}, {7 if ROT else 0}      ; rotation
s_add_u32 s{sT0}, s{sCO}, s{sWAVE}
s_and_b32 s{sT0}, s{sT0}, 7
s_lshl_b32 s{sT0}, s{sT0}, 6
s_mul_i32 s{sWL}, s{sT0}, s{sROW1}
s_xor_b32 s{sT0}, s{sT0}, 256
s_mul_i32 s{sWH}, s{sT0}, s{sROW1}
s_lshl_b32 s{sCO}, s{sCO}, 7
s_sub_u32 s{sCO}, s{sCO}, 128
s_lshl_b32 s{sA0}, s{sRB}, 18
s_lshl_b32 s{sT0}, s{sWAVE}, 16
s_add_u32 s{sA0}, s{sA0}, s{sT0}
s_add_u32 s{sA1}, s{sA0}, 32768
s_lshl_b32 s{sLA}, s{sWAVE}, 14
s_add_u32 s{sLA}, s{sLA}, {AR}
s_lshl_b32 s{sLW}, s{sWAVE}, 12
s_add_u32 s{sLW}, s{sLW}, {WR}
s_lshl_b32 s{sLC}, s{sWAVE}, 13
s_lshl_b32 s{sT0}, s{sWAVE}, 4
s_mul_i32 s{sWB}, s{sT0}, s{sROW1}
s_add_u32 s{sWB}, s{sWB}, s{sWOFF}
""")
    def mkpa(types):
        return PhaseA(a, ACC, WF, vWA, vXA, vAE, vAO, vWE, vWO, sACT, sW, sA0, sA1, sWSRC, sROW4, sROWH, sLA, sLW, sT2, types, sCO, sWB, sA0c, sA1c)
    pa = mkpa("K" * 8)
    mk = Mk(a)
    pa.setup_dma(vL, vT0, vT1, vT2, sROW1, split=sSPLIT)
    a.stamp(0); a.stamp(1, real=True)
    for it in pa.chunk_dmas(0): it.fn()
    a.stamp(11)
    pa.setup_read(vL, vT0, vT1, vT2)
    a(f"""
v_lshrrev_b32 v{vT0}, 3, v{vL}
v_mul_lo_u32 v{vT0}, v{vT0}, s{sROW1}
v_and_b32 v{vT1}, 7, v{vL}
v_bfe_u32 v{vT2}, v{vL}, 4, 1
v_lshlrev_b32 v{vT2}, 1, v{vT2}
v_xor_b32 v{vT1}, v{vT1}, v{vT2}
v_lshl_add_u32 v{vDE}, v{vT1}, 4, v{vT0}
v_xor_b32 v{vT1}, 4, v{vT1}
v_lshl_add_u32 v{vDO}, v{vT1}, 4, v{vT0}
v_lshrrev_b32 v{vT0}, 4, v{vL}              ; kq
v_bfe_u32 v{vT1}, v{vL}, 2, 2               ; r
v_lshl_add_u32 v{vT2}, v{vT0}, 3, v{vT1}
v_lshlrev_b32 v{vT2}, 7, v{vT2}             ; (kq*8+r)*128
v_and_b32 v{vT0}, 1, v{vT0}
v_lshrrev_b32 v{vT1}, 1, v{vT1}
v_lshl_add_u32 v{vT1}, v{vT0}, 1, v{vT1}    ; f
v_and_b32 v{vT0}, 3, v{vL}
v_lshl_add_u32 v{vT2}, v{vT0}, 3, v{vT2}
""")
    for nt in range(4):
        a(f"v_xor_b32 v{vT0}, {nt}, v{vT1}")
        a(f"v_lshl_add_u32 v{vS[nt]}, v{vT0}, 5, v{vT2}")
        a(f"v_add_u32 v{vS[4+nt]}, 0x10000, v{vS[nt]}")
    a(f"v_lshlrev_b32 v{vST[0]}, 4, v{vL}")
    for k in range(1, 4):
        a(f"v_add_u32 v{vST[k]}, {4096*k}, v{vST[0]}")
    a(f"""
s_add_u32 s{sWOFF}, s{sWOFF}, 256
""")
    def touch(bufs, tag):
        a(f"""
s_lshl_b32 s{sT0}, s2, 2
s_add_u32 s{sT0}, s{sT0}, s{sWAVE}
s_mov_b32 s91, 0x20000
""")
        for ptr, size in bufs:
            lg = (size - 1).bit_length() - 10
            a(f"v_and_b32 v{vT0}, {(1 << (lg - 7)) - 1}, v{vL}")
            a(f"v_lshlrev_b32 v{vT0}, 7, v{vT0}")
            a(f"s_lshl_b32 s{sT2}, s{sT0}, {lg}")
            a(f"s_mov_b32 s88, s{ptr}")
            a(f"s_mov_b32 s89, s{ptr+1}")
            a(f"s_mov_b32 s90, {size}")
            a.vm(f"buffer_load_dword v245, v{vT0}, s[88:91], s{sT2} offen", tag)
    def warm0():
        touch(((44, 0x200000), (48, 0x400000), (50, 0x400000), (52, 0x200000), (54, 0x180000)), "warm")
    if W0 == 2: warm0()
    for it in pa.chunk_dmas(1): it.fn()
    if W0 == 1: warm0()
    a(f"""
s_cmp_ge_u32 s{sJOB}, 24
s_cbranch_scc1 {LBKV}
s_cmp_ge_u32 s{sJOB}, 12
s_cbranch_scc1 {LV}
""")
    state0 = (list(a.vmq), list(a.lgq))
    vTW = 244
    a.stamp0 = 12
    def acc(buf, nt, st): return ACC + (buf * 16 + nt * 4 + st) * 4
    def wf(ks, nt): return WF + ((ks % 2) * 4 + nt) * 4
    SLOT = [65536, 0, 32768, 98304]
    def tr_item(pair, ks, nt, jj, SL=SLOT):
        hi, k8 = ks >> 3, ks & 7
        sb = SL[2 * pair + hi]
        reg = vS[(sb >> 16) * 4 + nt]; off = (sb & 0xffff) + k8 * 4096 + jj * 512
        b = wf(ks, nt) + jj * 2
        return mk.LG(f"ds_read_b64_tr_b16 v[{b}:{b+1}], v{reg} offset:{off}", ("wf", ks % 2, nt))
    def slot_dma(slot, SL=SLOT):
        hi = slot & 1
        its = []
        for i in range(8):
            its.append(mk.I(f"s_add_u32 m0, s{sLC}, {SL[slot] + i * 1024}"))
            if i == 0: its.append(mk.I(f"s_add_u32 s{sT1}, s{sWOFF}, s{sWH if hi else sWL}"))
            else: its.append(mk.I(f"s_add_u32 s{sT1}, s{sT1}, s{sROW8}"))
            its.append(mk.VM(f"buffer_load_dwordx4 v{vDE if i % 2 == 0 else vDO}, s[{sW}:{sW+3}], s{sT1} offen lds", ("w", slot)))
        if hi: its.append(mk.I(f"s_add_u32 s{sWOFF}, s{sWOFF}, 128"))
        return its
    def epi_items(typ, buf, units=(0, 1), packed=False, st=None):
        items = []
        d = 10 if typ == "K" else 11
        for u in units:
            items += [mk.I(t) for t in (f"s_lshr_b32 s{sSTB}, s{sSUB}, 2", f"s_lshl_b32 s{sSTB}, s{sSTB}, 19", f"s_and_b32 s{sT0}, s{sSUB}, 3",
                                       f"s_lshl_b32 s{sT0}, s{sT0}, {d}", f"s_add_u32 s{sSTB}, s{sSTB}, s{sT0}",
                                       f"s_add_u32 s{sSTB}, s{sSTB}, s{sSTFIX}", f"s_add_u32 s{sSUB}, s{sSUB}, 1")]
            for x in range(4):
                n = u * 4 + x
                pk = PK + n * 4
                for j in range(4):
                    if typ == "K": r = acc(buf, 2 * u + (j >> 1), x) + (j & 1) * 2
                    else: r = acc(buf, 2 * u + (x & 1), (x >> 1) * 2 + (j >> 1)) + (j & 1) * 2
                    if typ == "K":
                        t = TM + ((n * 4 + j) % 8) * 2
                        if packed: items.append(mk.I(f"v_pk_mul_f32 v[{t}:{t+1}], v[{r}:{r+1}], s[{sSCALE}:{sSCALE+1}] op_sel_hi:[1,0]"))
                        else:
                            items.append(mk.I(f"v_mul_f32 v{t}, s{sSCALE}, v{r}"))
                            items.append(mk.I(f"v_mul_f32 v{t+1}, s{sSCALE}, v{r+1}"))
                        items.append(mk.I(f"v_cvt_pk_bf16_f32 v{pk+j}, v{t}, v{t+1}"))
                    else:
                        items.append(mk.I(f"v_cvt_pk_bf16_f32 v{pk+j}, v{r}, v{r+1}"))
                if typ == "K": vo, off = vST[x], 0
                else: vo, off = vST[(x >> 1) * 2], (x & 1) * 1024
                items.append(mk.VM(f"buffer_store_dwordx4 v[{pk}:{pk+3}], v{vo}, s[{sWS}:{sWS+3}], s{sSTB} offen offset:{off} {ST if st is None else st}", "st"))
        return items
    def put_bar(B, g, tag):
        B.put(g, mk.WV(tag)); B.put(g, mk.I("s_barrier"), 3)
    LEAD = 12
    def mf(typ, d, w, ks, st):
        c = "0" if ks == 0 else f"v[{d}:{d+3}]"
        if typ == "K": s = f"{MF} v[{d}:{d+3}], v[{w}:{w+3}], {pa.act(ks, st)}, {c}"
        else: s = f"{MF} v[{d}:{d+3}], {pa.act(ks, st)}, v[{w}:{w+3}], {c}"
        return lambda: a(s)
    def body(typ, buf, SL=SLOT, epi=True, dma=True, nxt=True, extra=None):
        B = Body(256)
        for m in range(256):
            ks, nt, st = m >> 4, (m >> 2) & 3, m & 3
            B.mfma[m] = mf(typ, acc(buf, nt, st), wf(ks, nt), ks, st)
            if st == 0 and nt % 2 == 0: B.put_pre(m, mk.WL(("wf", ks % 2, nt + 1)))
        for idx in range(LEAD // 4, 64 + (LEAD // 4 if nxt else 0)):
            ks, nt = idx >> 2, idx & 3
            g = idx * 4 - LEAD
            if idx == 32: put_bar(B, g - 2, ("w", 2 * buf + 1))
            if idx == 64: put_bar(B, g - 2, ("w", 2 * (1 - buf)))
            for jj in range(2):
                B.put(g, tr_item(buf, ks, nt, jj, SL) if ks < 16 else tr_item(1 - buf, ks - 16, nt, jj, SL))
        if dma:
            B.stream(slot_dma(2 * (1 - buf), SL), 0, 26)
            B.stream(slot_dma(2 * (1 - buf) + 1, SL), 128 - LEAD, 154 - LEAD)
        if epi:
            B.stream(epi_items(typ, 1 - buf, (0,)), 14, 110)
            B.stream(epi_items(typ, 1 - buf, (1,)), 132, 236)
        if extra: B.stream(extra, 4, 200)
        B.emit(a)
    def half_body(typ, buf):
        B = Body(128)
        for m in range(128):
            ks, nt, st = m >> 3, (m >> 2) & 1, m & 3
            B.mfma[m] = mf(typ, acc(buf, nt, st), wf(ks, nt), ks, st)
            if st == 0: B.put_pre(m, mk.WL(("wf", ks % 2, nt)))
        for jj in range(2): tr_item(buf, 1, 0, jj).fn()
        for idx in range(3, 32):
            ks, nt = idx >> 1, idx & 1
            g = idx * 4 - 12
            if idx == 16: put_bar(B, g - 2, ("w", 2 * buf + 1))
            for jj in range(2): B.put(g, tr_item(buf, ks, nt, jj))
        B.stream(epi_items(typ, 1 - buf, st=STL), 8, 124)
        B.emit(a)
    def warm():
        a(f"""
s_load_dwordx2 s[44:45], s[0:1], 0
s_sub_u32 s{sT0}, s{sJOB}, 24
s_lshl_b32 s{sT0}, s{sT0}, 3
s_add_u32 s{sT0}, s{sT0}, s{sRB}
s_lshl_b32 s{sT0}, s{sT0}, 2
s_add_u32 s{sT0}, s{sT0}, s{sWAVE}
v_lshlrev_b32 v{vT0}, 7, v{vL}
s_mov_b32 s88, s46
s_mov_b32 s89, s47
s_mov_b32 s90, 0x400000
s_mov_b32 s91, 0x20000
s_lshl_b32 s{sT1}, s{sT0}, 14
""")
        a.vm(f"buffer_load_dword v245, v{vT0}, s[88:91], s{sT1} offen", "warm")
        a(f"s_add_u32 s{sT1}, s{sT1}, 8192")
        a.vm(f"buffer_load_dword v245, v{vT0}, s[88:91], s{sT1} offen", "warm")
        a(f"""
s_waitcnt lgkmcnt(0)
s_mov_b32 s{sACT}, s44
s_mov_b32 s{sACT+1}, s45
s_lshl_b32 s{sT1}, s{sT0}, 13
""")
        a.vm(f"buffer_load_dword v245, v{vT0}, s[{sACT}:{sACT+3}], s{sT1} offen", "warm")
    def path(typ):
        a.vmq, a.lgq = list(state0[0]), list(state0[1])
        p = mkpa(typ * 8)
        if PT:
            a(f"""
s_sub_u32 s{sT0}, s{sJOB}, {0 if typ == "K" else 12}
s_lshl_b32 s{sT0}, s{sT0}, 3
s_add_u32 s{sT0}, s{sT0}, s{sRB}
s_lshl_b32 s{sT0}, s{sT0}, 2
s_add_u32 s{sT0}, s{sT0}, s{sWAVE}
s_mul_i32 s{sT0}, s{sT0}, {11*128}
v_min_u32 v{vTW}, 10, v{vL}
v_lshlrev_b32 v{vTW}, 7, v{vTW}
v_add_u32 v{vTW}, s{sT0}, v{vTW}
""")
        B = p.build(stamp=2)
        if PT:
            for c in range(8):
                B.stream([mk.I(f"s_mov_b32 s{sT0}, {((c + PT + 2) & 7) * 0x80000}"),
                          mk.VM(f"buffer_load_dword v245, v{vTW}, s[{sW}:{sW+3}], s{sT0} offen", "pt")], 64 * c + 43, 64 * c + 47)
        B.stream(slot_dma(0), p.bar_gap(6) + 3, p.bar_gap(6) + 50)
        B.stream(slot_dma(1), p.bar_gap(7) + 3, p.bar_gap(7) + 50)
        B.emit(a)
        a.stamp(3)
        a("s_nop 3")
        for it in epi_items(typ, 0, packed=True): it.fn()
        a.wait_vm(("w", 0)); a("s_barrier")
        for idx in range(LEAD // 4):
            for jj in range(2): tr_item(0, idx >> 2, idx & 3, jj).fn()
        a.stamp(4)
        LOOP = a.newlabel("K1_loop"); DONE = a.newlabel("K1_done")
        a(f"s_mov_b32 s{sCNT}, 0")
        a.label(LOOP)
        mid = []
        def it():
            body(typ, 0)
            a.stamp(7)
            a(f"s_cmp_eq_u32 s{sCNT}, 1")
            a(f"s_cbranch_scc1 {DONE}")
            mid[:] = [list(a.vmq), list(a.lgq)]
            if a.diag: a("s_mov_b32 s69, s71")
            body(typ, 1)
            a.stamp(6)
            a(f"s_mov_b32 s{sCNT}, 1")
            a(f"s_lshl_b32 s{sWOFF}, s{sHU}, 6")
            a(f"v_and_b32 v{vDE}, 0xffffffbf, v{vDE}")
            a(f"v_and_b32 v{vDO}, 0xffffffbf, v{vDO}")
        loop_emit(a, it)
        a(f"s_branch {LOOP}")
        a.label(DONE)
        a.vmq, a.lgq = mid
        half_body(typ, 1)
        a.stamp(12)
        a(f"s_mov_b32 s{sSUB}, s{sHU}")
        a("s_nop 3")
        for itm in epi_items(typ, 1, (0,), packed=True, st=STL): itm.fn()
        a.stamp(8)
        if a.diag and not fused: a("s_waitcnt vmcnt(0)")
        a.stamp(9); a.stamp(10, real=True)
        a.stamp_flush(sWS, sWAVE, 24, DIAG)
        a("s_branch K2_fused_entry" if fused else "s_endpgm")
    a.label(LK)
    path("K")
    a.label(LV)
    path("V")
    a.label(LBKV)
    a.vmq, a.lgq = list(state0[0]), list(state0[1])
    sPHI = 40; sLOG2E = 60; sRET = 62
    sHM = [48, 50, 52, 54]
    WPH = 192
    vPH, vPW, vPR, vVW, vZ, vONE = 246, 247, 248, 249, 250, 252
    vPW2, vPR2, vVR = 230, 231, 232
    BSL = [0, 32768, 65536, 98304]
    a(f"""
s_mov_b32 s{sPHI}, s58
s_mov_b32 s{sPHI+1}, s59
s_mov_b32 s{sPHI+2}, 16384
s_mov_b32 s{sPHI+3}, 0x20000
s_mov_b32 s{sLOG2E}, {hex(f2u(LOG2E))}
s_sub_u32 s{sWOFF}, s{sWOFF}, 1280
v_and_b32 v{vT0}, 15, v{vL}
v_lshrrev_b32 v{vT1}, 4, v{vL}
v_bfe_u32 v{vT2}, v{vL}, 2, 2                  ; hq
v_cmp_eq_u32 s[{sHM[0]}:{sHM[0]+1}], 0, v{vT2}
v_cmp_eq_u32 s[{sHM[1]}:{sHM[1]+1}], 1, v{vT2}
v_cmp_eq_u32 s[{sHM[2]}:{sHM[2]+1}], 2, v{vT2}
v_cmp_eq_u32 s[{sHM[3]}:{sHM[3]+1}], 3, v{vT2}
v_and_b32 v{vPH}, 3, v{vL}
v_lshlrev_b32 v{vPH}, 1, v{vPH}
v_lshl_add_u32 v{vPH}, v{vT1}, 7, v{vPH}
v_lshl_add_u32 v{vPH}, v{vT2}, 9, v{vPH}
v_lshlrev_b32 v{vPW}, 6, v{vT0}
v_lshl_add_u32 v{vPW}, v{vT1}, 14, v{vPW}
v_and_b32 v{vZ}, 4, v{vL}
v_lshl_add_u32 v{vPW}, v{vZ}, 3, v{vPW}
s_lshl_b32 s{sT0}, s{sWAVE}, 12
s_add_u32 s{sT0}, s{sT0}, {AR}
v_add_u32 v{vPW}, s{sT0}, v{vPW}
v_lshl_add_u32 v{vT2}, v{vT1}, 2, v{vT2}
v_lshlrev_b32 v{vPR}, 6, v{vT2}
v_and_b32 v{vT2}, 1, v{vT1}
v_lshl_add_u32 v{vPR}, v{vT2}, 5, v{vPR}
v_and_b32 v{vT2}, 3, v{vL}
v_lshl_add_u32 v{vPR}, v{vT2}, 3, v{vPR}
v_add_u32 v{vPR}, s{sLA}, v{vPR}
v_lshlrev_b32 v{vZ}, 4, v{vT1}
v_mov_b32 v{vONE}, 0x3f803f80
v_mov_b32 v{vONE+1}, 0x3f803f80
v_mov_b32 v{vONE+2}, 0x3f803f80
v_mov_b32 v{vONE+3}, 0x3f803f80
v_xor_b32 v{vPW2}, 32, v{vPW}
v_xor_b32 v{vPR2}, 32, v{vPR}
s_add_u32 s{sT0}, s{sLC}, {FR}
v_add_u32 v{vVW}, s{sT0}, v{vST[0]}
s_lshl_b32 s{sT0}, s{sWAVE}, 10
s_add_u32 s{sT0}, s{sT0}, {FR}
v_add_u32 v{vVR}, s{sT0}, v{vST[0]}
""")
    def post():
        a.lgq = []
        VFR, KFR, AW = 128, 160, 0
        X = [64, 80]; EP, EM, PHO, MX = 96, 112, 32, 48
        for i in range(4):
            a(f"v_lshl_or_b32 v{WPH+i*4}, v{WPH+i*4+1}, 16, v{WPH+i*4}")
            a(f"v_lshl_or_b32 v{WPH+i*4+1}, v{WPH+i*4+3}, 16, v{WPH+i*4+2}")
        for st in range(4):
            for kp in range(2):
                f = KFR + (st * 2 + kp) * 4
                for j in range(4):
                    r = acc(0, 2 * kp + (j >> 1), st) + (j & 1) * 2
                    a(f"v_cvt_pk_bf16_f32 v{f+j}, v{r}, v{r+1}")
        for i in range(4):
            for hq in range(4):
                for e in range(2):
                    a(f"v_cndmask_b32 v{AW+i*8+hq*2+e}, 0, v{WPH+i*4+e}, s[{sHM[hq]}:{sHM[hq]+1}]")
        for u in range(2):
            for hd in range(4):
                f = VFR + (u * 4 + hd) * 4
                for j in range(4):
                    r = acc(1, hd, 2 * u + (j >> 1)) + (j & 1) * 2
                    a(f"v_cvt_pk_bf16_f32 v{f+j}, v{r}, v{r+1}")
                a(f"ds_write_b128 v{vVW}, v[{f}:{f+3}] offset:{(u*4+hd)*1024}")
        def pk_mfma(st):
            x = X[st & 1]
            for kp in range(2):
                for i in range(4):
                    f = KFR + (st * 2 + kp) * 4
                    c = "0" if kp == 0 else f"v[{x+i*4}:{x+i*4+3}]"
                    a(f"{MF} v[{x+i*4}:{x+i*4+3}], v[{AW+i*8+kp*4}:{AW+i*8+kp*4+3}], v[{f}:{f+3}], {c}")
        pk_mfma(0)
        for st in range(4):
            if st < 3: pk_mfma(st + 1)
            else: a("s_nop 0")
            x = X[st & 1]
            a(f"v_max3_f32 v{MX}, v{x}, v{x+1}, v{x+2}")
            a(f"v_min3_f32 v{MX+1}, v{x}, v{x+1}, v{x+2}")
            for k in range(3, 15, 2):
                a(f"v_max3_f32 v{MX}, v{MX}, v{x+k}, v{x+k+1}")
                a(f"v_min3_f32 v{MX+1}, v{MX+1}, v{x+k}, v{x+k+1}")
            a(f"v_max_f32 v{MX}, v{MX}, v{x+15}")
            a(f"v_min_f32 v{MX+1}, v{MX+1}, v{x+15}")
            a(f"v_pk_mul_f32 v[{MX}:{MX+1}], v[{MX}:{MX+1}], s[{sLOG2E}:{sLOG2E+1}] op_sel_hi:[1,0]")
            for k in range(0, 16, 2):
                a(f"v_pk_fma_f32 v[{EP+k}:{EP+k+1}], v[{x+k}:{x+k+1}], s[{sLOG2E}:{sLOG2E+1}], v[{MX}:{MX+1}] op_sel_hi:[1,0,0] neg_lo:[0,0,1] neg_hi:[0,0,1]")
                a(f"v_pk_fma_f32 v[{EM+k}:{EM+k+1}], v[{x+k}:{x+k+1}], s[{sLOG2E}:{sLOG2E+1}], v[{MX}:{MX+1}] op_sel:[0,0,1] op_sel_hi:[1,0,1] neg_lo:[1,0,0] neg_hi:[1,0,0]")
            for k in range(16):
                a(f"v_exp_f32 v{EP+k}, v{EP+k}")
                a(f"v_exp_f32 v{EM+k}, v{EM+k}")
            SP, SM = MX + 2, MX + 4
            a(f"v_pk_add_f32 v[{SP}:{SP+1}], v[{EP}:{EP+1}], v[{EP+2}:{EP+3}]")
            a(f"v_pk_add_f32 v[{SM}:{SM+1}], v[{EM}:{EM+1}], v[{EM+2}:{EM+3}]")
            for k in range(4, 16, 2):
                a(f"v_pk_add_f32 v[{SP}:{SP+1}], v[{SP}:{SP+1}], v[{EP+k}:{EP+k+1}]")
                a(f"v_pk_add_f32 v[{SM}:{SM+1}], v[{SM}:{SM+1}], v[{EM+k}:{EM+k+1}]")
            a(f"v_add_f32 v{SP}, v{SP}, v{SP+1}")
            a(f"v_add_f32 v{SM}, v{SM}, v{SM+1}")
            a(f"v_rcp_f32 v{SP}, v{SP}")
            a(f"v_rcp_f32 v{SM}, v{SM}")
            a("s_nop 0")
            for k in range(0, 16, 2):
                a(f"v_pk_mul_f32 v[{EP+k}:{EP+k+1}], v[{EP+k}:{EP+k+1}], v[{SP}:{SP+1}] op_sel_hi:[1,0]")
                a(f"v_pk_mul_f32 v[{EM+k}:{EM+k+1}], v[{EM+k}:{EM+k+1}], v[{SM}:{SM+1}] op_sel_hi:[1,0]")
            for k in range(8):
                a(f"v_cvt_pk_bf16_f32 v{PHO+k}, v{EP+2*k}, v{EP+2*k+1}")
                a(f"v_cvt_pk_bf16_f32 v{PHO+8+k}, v{EM+2*k}, v{EM+2*k+1}")
            for ft in range(2):
                for e in range(2):
                    b = PHO + ft * 8 + e * 4
                    a(f"ds_write_b128 v{vPW if ft == 0 else vPW2}, v[{b}:{b+3}] offset:{st*1024 + e*16}")
        a("s_waitcnt lgkmcnt(0)")
        a("s_barrier")
        KV = 0
        def mfs(k):
            fb = 16 + k * 12
            a.wait_lg(("b", k), always=True)
            for ft in range(2):
                d = KV + ft * 4; c = "0" if k == 0 else f"v[{d}:{d+3}]"
                a(f"{MF} v[{d}:{d+3}], v[{fb+4+ft*4}:{fb+7+ft*4}], v[{fb}:{fb+3}], {c}")
            for ft in range(2):
                d = KV + 8 + ft * 4; c = "0" if k == 0 else f"v[{d}:{d+3}]"
                a(f"{MF} v[{d}:{d+3}], v[{fb+4+ft*4}:{fb+7+ft*4}], v[{vONE}:{vONE+3}], {c}")
        for k in range(8):
            fb = 16 + k * 12
            a.lg(f"ds_read_b128 v[{fb}:{fb+3}], v{vVR} offset:{k*4096}", ("b", k))
            for ft in range(2):
                for jj in range(2):
                    b = fb + 4 + ft * 4 + jj * 2
                    a.lg(f"ds_read_b64_tr_b16 v[{b}:{b+1}], v{vPR if ft == 0 else vPR2} offset:{k*2048 + jj*1024}", ("b", k))
            if k >= 2: mfs(k - 2)
        mfs(6); mfs(7)
        a(f"""
s_lshl_b32 s{sT0}, s{sSUB}, 2
s_add_u32 s{sT0}, s{sT0}, s{sWAVE}
s_lshl_b32 s{sT0}, s{sT0}, 3
s_add_u32 s{sT0}, s{sT0}, s{sRB}
s_mul_i32 s{sT0}, s{sT0}, {BKV_P}
s_add_u32 s{sT0}, s{sT0}, {BKV}
v_and_b32 v{vT0}, 15, v{vL}
v_cmp_eq_u32 vcc, 0, v{vT0}
buffer_store_dwordx4 v[{KV}:{KV+3}], v{vST[0]}, s[{sWS}:{sWS+3}], s{sT0} offen sc1
buffer_store_dwordx4 v[{KV+4}:{KV+7}], v{vST[0]}, s[{sWS}:{sWS+3}], s{sT0} offen offset:1024 sc1
s_mov_b64 exec, vcc
buffer_store_dwordx4 v[{KV+8}:{KV+11}], v{vZ}, s[{sWS}:{sWS+3}], s{sT0} offen offset:2048 sc1
buffer_store_dwordx4 v[{KV+12}:{KV+15}], v{vZ}, s[{sWS}:{sWS+3}], s{sT0} offen offset:2112 sc1
s_mov_b64 exec, -1
""")
        a.vmq += ["st"] * 4
    def wphi_loads():
        a(f"s_lshl_b32 s{sT0}, s{sSUB}, 11")
        for i in range(4):
            for j in range(4):
                a.vm(f"buffer_load_ushort v{WPH+i*4+j}, v{vPH}, s[{sPHI}:{sPHI+3}], s{sT0} offen offset:{j*32 + i*8}", "wphi")
    wphi_loads()
    p = mkpa("KKKKVVVV")
    B = p.build()
    B.stream(slot_dma(0, BSL), p.bar_gap(7) + 3, p.bar_gap(7) + 50)
    B.emit(a)
    a.stamp(3)
    a("s_barrier")
    for it in slot_dma(1, BSL): it.fn()
    warm()
    post()
    a.stamp(4)
    a.wait_vm(("w", 0)); a("s_barrier")
    for idx in range(LEAD // 4):
        for jj in range(2): tr_item(0, idx >> 2, idx & 3, jj, BSL).fn()
    a(f"""
s_lshl_b32 s{sSUB}, s{sSUB}, 1
s_add_u32 s{sSUB}, s{sSUB}, 128
""")
    body("K", 0, BSL, epi=False, dma=False, nxt=False)
    a.stamp(5)
    a("s_nop 3")
    for itm in epi_items("K", 0, packed=True): itm.fn()
    a.stamp(6)
    if WB:
        LW = a.newlabel("K1_nowb")
        a(f"s_cmp_lg_u32 s{sWAVE}, 0")
        a(f"s_cbranch_scc1 {LW}")
        for i in range(WB):
            a("buffer_wbl2 sc1")
            a("s_waitcnt vmcnt(0)")
        a.label(LW)
    a.stamp(8)
    if a.diag and not fused: a("s_waitcnt vmcnt(0)")
    a.stamp(9); a.stamp(10, real=True)
    a.stamp_flush(sWS, sWAVE, 24, DIAG, vt=(241, 242))
    if fused: a("s_branch K2_fused_entry")
    a.label(END)
    a("s_endpgm")

if __name__ == "__main__":
    import sys
    a = Asm()
    a.diag = len(sys.argv) > 1
    gen_k1(a)
    for p in a.check(): print(p)
    open("k1.s", "w").write(a.text())
    print(len(a.lines), "lines")
```

```python
from asmlib import Asm
from sched import *
from common import *
from phasea import PhaseA, WR, FR, AR
from hedge import *

BIG = f2u(-1.0e30)
THR = f2u(2.0 ** 60)
OFFS = f2u(40.0)
RQ = 0x20000
MX = 0xC000
MF32 = "v_mfma_f32_32x32x16_bf16"

def gen_k2(a, name="k2_kernel", CPF=0, ROT=0, fused=False, PLEAD=50, PSLEEP=12):
    if not fused: a.kernel(name, (256,1,1), (256,1,1), 163840, vgpr=256, agpr=256)
    SC = " sc1" if fused else ""
    sX, sW, sWS = 4, 8, 12
    (sWAVE, sH, sI, sROW1, sA0, sA1, sT0, sT1, sT2, sCNT, sLA, sLW, sWSRC, sROW4, sROWH,
     sKSRC, sVSRC, sKD, sVD, sKAP, sDGA, sDGB, sDMIN, sTHR, sCTXA, sCTXB, sP, sW4) = range(16, 44)
    sRET = 44
    sM = [46, 48, 50, 52]
    sB0, sB1 = 54, 55
    sEVA, sEVB = 98, 99
    sCO, sWB, sA0c, sA1c = 46, 47, 48, 49
    sOFF = sTHR
    Q = 0; S = 64; P = 128; NM = 160; TE = 192; LC = 200; M = 208
    vK, vV, vL16, vL, vT0, vT1, vTHR, vQX = 212, 213, 214, 215, 216, 217, 218, 219
    vX16, vX32, vBIG, vDG = 220, 221, 222, 223
    D = 224; F = 228; vST = [232, 233]; vMX = 234; vT2 = 235
    ZERO = 236
    PKR = 240
    pACC, pWF = 64, 0
    vWA = list(range(192, 200)); vXA = [200, 201]; vAE, vAO, vWE, vWO = 202, 203, 204, 205
    O = 0; KF = 128; VF = 160; LA = 192; ONES = 208
    END = a.newlabel("K2_end")
    def q(u, dk): return Q + (u * 4 + dk) * 4
    def s_(buf, u, kt): return S + ((buf * 4 + u) * 2 + kt) * 4
    def p_(buf, u): return P + (buf * 4 + u) * 4
    def nm(u, kt): return NM + (u * 2 + kt) * 4
    def o_(u, dt): return O + (u * 8 + dt) * 4
    def lc(par, u): return LC + par * 4 + u
    mk = Mk(a)
    I = lambda s, c=None: mk.I(s)
    if fused:
        a.label("K2_fused_entry")
        a.vmq = []; a.lgq = []
        a(f"v_mov_b32 v{vL}, v240")
    else:
        a(f"""
s_cmp_ge_u32 s2, 256
s_cbranch_scc1 {END}
v_lshrrev_b32 v{vT0}, 6, v0
v_and_b32 v{vL}, 63, v0
v_readfirstlane_b32 s{sWAVE}, v{vT0}
""")
    a.stamp(14)
    a(f"""
s_load_dwordx2 s[56:57], s[0:1], 0      ; x
s_load_dwordx2 s[58:59], s[0:1], 16     ; w_q
s_load_dwordx2 s[60:61], s[0:1], 96     ; ws
s_load_dwordx2 s[62:63], s[0:1], 64     ; w_phi
s_load_dwordx2 s[88:89], s[0:1], 40     ; w_o
s_load_dwordx2 s[92:93], s[0:1], 72     ; wo
s_load_dwordx2 s[52:53], s[0:1], 88
s_lshr_b32 s{sT1}, s2, 3
s_and_b32 s{sI}, s{sT1}, 7
s_lshr_b32 s{sT1}, s{sT1}, 3
s_and_b32 s{sH}, s2, 7
s_lshl_b32 s{sH}, s{sH}, 2
s_add_u32 s{sH}, s{sH}, s{sT1}
s_mov_b32 s{sROW1}, 8192
s_mov_b32 s{sROW4}, 32768
s_mov_b32 s{sROWH}, 4096
s_lshl_b32 s{sCO}, s{sT1}, 1
s_add_u32 s{sCO}, s{sCO}, s{sI}
s_and_b32 s{sCO}, s{sCO}, {7 if ROT else 0}
s_lshl_b32 s{sCO}, s{sCO}, 7
s_sub_u32 s{sCO}, s{sCO}, 128
s_sub_u32 s{sT0}, 15, s{sI}             ; L
s_lshl_b32 s{sDGA}, s{sT0}, 2
s_add_u32 s{sDGA}, s{sDGA}, s{sWAVE}
s_lshl_b32 s{sDGB}, s{sI}, 2
s_add_u32 s{sDGB}, s{sDGB}, s{sWAVE}
s_lshl_b32 s{sA0}, s{sDGA}, 15
s_lshl_b32 s{sA1}, s{sDGB}, 15
s_lshl_b32 s{sLA}, s{sWAVE}, 14
s_add_u32 s{sLA}, s{sLA}, {AR}
s_lshl_b32 s{sW4}, s{sWAVE}, 12
s_add_u32 s{sLW}, s{sW4}, {WR}
s_lshl_b32 s{sWB}, s{sWAVE}, 17       ; 16 rows * 8192
s_lshl_b32 s{sT0}, s{sH}, 8
s_add_u32 s{sWB}, s{sWB}, s{sT0}
s_lshl_b32 s{sKSRC}, s{sH}, 19
s_add_u32 s{sKSRC}, s{sKSRC}, s{sW4}
s_add_u32 s{sVSRC}, s{sKSRC}, {VWS}
s_mov_b32 s{sX+2}, 0x200000
s_mov_b32 s{sX+3}, 0x20000
s_mov_b32 s{sW+2}, 0x400000
s_mov_b32 s{sW+3}, 0x20000
s_mov_b32 s{sWS+2}, {WS_USED}
s_mov_b32 s{sWS+3}, 0x20000
""")
    pa = PhaseA(a, pACC, pWF, vWA, vXA, vAE, vAO, vWE, vWO, sX, sW, sA0, sA1, sWSRC, sROW4, sROWH, sLA, sLW, sT2, "K" * 8, sCO, sWB, sA0c, sA1c)
    pa.ring = 128
    pa.setup_dma(vL, vT0, vT1, vT2, sROW1)
    a(f"""
s_waitcnt lgkmcnt(0)
s_mov_b32 s{sX}, s56
s_mov_b32 s{sX+1}, s57
s_mov_b32 s{sW}, s58
s_mov_b32 s{sW+1}, s59
s_mov_b32 s{sWS}, s60
s_mov_b32 s{sWS+1}, s61
s_mov_b32 s54, 256
s_mov_b32 s55, 0x20000
""")
    if fused: a("s_barrier")
    a.stamp(0); a.stamp(1, real=True)
    for it in pa.chunk_dmas(0): it.fn()
    a.stamp(11)
    pa.setup_read(vL, vT0, vT1, vT2)
    a(f"""
v_lshlrev_b32 v{vL16}, 4, v{vL}
v_xor_b32 v{vT0}, 16, v{vL}
v_lshlrev_b32 v{vX16}, 2, v{vT0}
v_xor_b32 v{vT0}, 32, v{vL}
v_lshlrev_b32 v{vX32}, 2, v{vT0}
v_mov_b32 v{vBIG}, {hex(BIG)}
v_mov_b32 v{vTHR}, {hex(THR)}
v_and_b32 v{vT0}, 15, v{vL}
v_lshrrev_b32 v{vT1}, 4, v{vL}
v_lshlrev_b32 v{vT1}, 2, v{vT1}
v_sub_u32 v{vDG}, v{vT0}, v{vT1}
v_mov_b32 v{vST[0]}, v{vL16}
v_add_u32 v{vST[1]}, {144*1024}, v{vL16}
v_mov_b32 v{ZERO}, 0
v_mov_b32 v{ZERO+1}, 0
v_mov_b32 v{ZERO+2}, 0
v_mov_b32 v{ZERO+3}, 0
v_mov_b32 v{vT0}, 0x3f803f80
s_and_b32 s{sP}, s{sWAVE}, 1
s_mul_i32 s{sCTXA}, s{sDGA}, {2*144*1024}
s_mul_i32 s{sCTXB}, s{sDGB}, {2*144*1024}
s_lshl_b32 s{sT0}, s{sH}, 12
s_add_u32 s{sT0}, s{sT0}, {CTX}
s_add_u32 s{sCTXA}, s{sCTXA}, s{sT0}
s_add_u32 s{sCTXB}, s{sCTXB}, s{sT0}
v_add_u32 v{vK}, 0x10000, v{vL16}
v_add_u32 v{vV}, 0x10000, v{vL16}
s_lshl_b32 s{sT0}, s{sWAVE}, 13
s_add_u32 s{sT0}, s{sT0}, {RQ}
v_add_u32 v{vQX}, s{sT0}, v{vL16}
s_lshl_b32 s{sT0}, s{sWAVE}, 9
s_add_u32 s{sT0}, s{sT0}, {MX}
v_lshlrev_b32 v{vMX}, 3, v{vL}
v_add_u32 v{vMX}, s{sT0}, v{vMX}
s_add_u32 s{sKD}, s{sW4}, 0x10000         ; K(2) -> parity 0
s_add_u32 s{sVD}, s{sW4}, 0x4000          ; V(1) -> parity 1
s_mov_b32 s{sKAP}, -1
s_min_u32 s{sDMIN}, s{sDGA}, s{sDGB}
s_mov_b32 s{sEVA}, s{sDGA}
s_mov_b32 s{sEVB}, s{sDGB}
s_mov_b32 s90, 0x400000
s_mov_b32 s91, 0x20000
s_mov_b32 s94, 0x80000
s_mov_b32 s95, 0x20000
""")
    for r in range(4): a(f"v_accvgpr_write_b32 a{ONES+r}, v{vT0}")
    def zero16(reg):
        return f"{MF32} {reg}, v[{ZERO}:{ZERO+3}], v[{ZERO}:{ZERO+3}], 0"
    for k in range(8): a(zero16(f"a[{O+k*16}:{O+k*16+15}]"))
    a(zero16(f"a[{LA}:{LA+15}]"))
    for it in pa.chunk_dmas(1): it.fn()
    if CPF:
        LPC = a.newlabel("K2_pc")
        a(f"""
s_getpc_b64 s[96:97]
{LPC}:
v_lshlrev_b32 v{vT1}, 7, v{vL}
s_lshl_b32 s{sT0}, s{sWAVE}, 13
v_add_u32 v{vT1}, s{sT0}, v{vT1}
v_min_u32 v{vT1}, K2_code_end - {LPC} - 4, v{vT1}
""")
        a.vm(f"global_load_dword v{vT2}, v{vT1}, s[96:97]", "cpf")
    def tile_dma(src, ldsexpr, tag, srcadd=None, post=()):
        its = [I(f"s_add_u32 m0, s{ldsexpr[0]}, {ldsexpr[1]}"), I(f"s_add_u32 s{sT1}, s{src}, {srcadd}" if srcadd is not None else "s_nop 0")]
        for i in range(4):
            its.append(mk.VM(f"buffer_load_dwordx4 v{vL16}, s[{sWS}:{sWS+3}], s{sT1 if srcadd is not None else src} offen offset:{i*1024}{SC} lds", tag))
        return its + [I(t) for t in post]
    B = pa.build(stamp=2)
    g6 = pa.bar_gap(6) + 6
    if fused:
        def sig():
            L = a.newlabel("K2_sig")
            a(f"""
s_cmp_lg_u32 s{sWAVE}, 0
s_cbranch_scc1 {L}
v_mov_b32 v{vT0}, 1
s_mov_b64 exec, 1
buffer_atomic_add v{vT0}, v{ZERO}, s[52:55], 0 offen sc1
s_mov_b64 exec, -1
{L}:
""")
        sig()
        a(f"s_cmp_eq_u32 s{sWAVE}, 0")
        a(f"s_cselect_b32 s50, 256, 0")
        B.put(pa.bar_gap(6) - PLEAD, mk.VM(f"buffer_load_dword v{vT2}, v{ZERO}, s[52:55], s{sW4} offen sc1", "poll"))
        def chk():
            L = a.newlabel("K2_spin"); R = a.newlabel("K2_spun"); LP = a.newlabel("K2_spl")
            a.wait_vm("poll", always=True)
            a(f"v_readfirstlane_b32 s{sT0}, v{vT2}")
            a("s_nop 0")
            a(f"s_cmp_lt_u32 s{sT0}, s50")
            a(f"s_cbranch_scc1 {L}")
            a.label(R)
            a.stubs.append(f"""{L}:
s_mov_b32 s{sT1}, 0x40000
{LP}:
s_sleep {PSLEEP}
buffer_load_dword v{vT2}, v{ZERO}, s[52:55], 0 offen sc1
s_waitcnt vmcnt(0)
v_readfirstlane_b32 s{sT0}, v{vT2}
s_sub_u32 s{sT1}, s{sT1}, 1
s_cmp_eq_u32 s{sT1}, 0
s_cbranch_scc1 {R}
s_cmp_lt_u32 s{sT0}, 256
s_cbranch_scc1 {LP}
s_branch {R}""")
        B.put(pa.bar_gap(6) - 1, Item(chk, 20, "X"), 3)
    B.spread(tile_dma(sKSRC, (sW4, 0x10000), "kv") + tile_dma(sVSRC, (sW4, 0x14000), "kv") + tile_dma(sKSRC, (sW4, 0), "kv", 16384), g6, g6 + 56)
    def qcvt(u, dk, j):
        r = pa.acc(2 * dk + (j >> 1), u) + (j & 1) * 2
        return f"v_cvt_pk_bf16_f32 v{q(u, dk) + j}, v{r}, v{r+1}"
    qearly = []
    for dk in range(2):
        its = [I(qcvt(u, dk, j), 5) for u in range(2) for j in range(4)]
        B.spread(its, 480 + dk * 8 + 14, 480 + dk * 8 + 22)
        qearly += [(u, dk) for u in range(2)]
    B.emit(a)
    a.stamp(3)
    a.wait_vm("kv"); a("s_barrier")

    LMASK = a.newlabel("K2_mask"); LADJ = [a.newlabel("K2_adj0"), a.newlabel("K2_adj1")]
    def kread(hs, f):
        b = KF + f * 4
        return mk.LG(f"ds_read_b128 a[{b}:{b+3}], v{vK} offset:{hs*8192 + f*1024}", ("kf", f))
    def vread(hs, f):
        b = VF + f * 4
        return mk.LG(f"ds_read_b128 a[{b}:{b+3}], v{vV} offset:{0x4000 + hs*8192 + f*1024}", ("vf", f))
    def qk_mfma(B, base, buf, wait=2, late=False):
        for f in range(8):
            kt, dk = f >> 2, f & 3
            for u in range(4):
                d = s_(buf, u, kt); c = nm(u, kt) if dk == 0 else d
                st = f"{MF} v[{d}:{d+3}], a[{KF+f*4}:{KF+f*4+3}], v[{q(u,dk)}:{q(u,dk)+3}], v[{c}:{c+3}]"
                B.mfma[base + f * 4 + u] = (lambda st=st: a(st))
            if f % wait == 0: B.put_pre(base + f * 4, mk.WL(("kf", f + wait - 1)))
    def pv_mfma(B, base, buf, wait=2, order="d"):
        for f in range(8):
            for u in range(4):
                o = o_(u, f); p = p_(buf, u)
                st = f"{MF} a[{o}:{o+3}], a[{VF+f*4}:{VF+f*4+3}], v[{p}:{p+3}], a[{o}:{o+3}]"
                m = {"d": f * 4 + u, "b": (0 if u >= 2 else 16) + f * 2 + (u & 1), "u": u * 8 + f}[order]
                B.mfma[base + m] = (lambda st=st: a(st))
            if f % wait == 0:
                B.put_pre(base + {"d": f * 4, "b": f * 2, "u": f}[order], mk.WL(("vf", f + wait - 1)))
    def lmfma(par, u):
        t = f"{MF} a[{LA+u*4}:{LA+u*4+3}], a[{ONES}:{ONES+3}], v[{p_(par,u)}:{p_(par,u)+3}], a[{LA+u*4}:{LA+u*4+3}]"
        return Item(lambda: a(t), 8, "v")
    def lread(par, u): return I(f"v_accvgpr_read_b32 v{lc(par,u)}, a{LA+u*4}")
    def ex(par, i): return I(f"v_exp_f32 v{TE+i%8}, v{S+par*32+i}")
    def cv(par, c): return I(f"v_cvt_pk_bf16_f32 v{P+par*16+c}, v{TE+(2*c)%8}, v{TE+(2*c+1)%8}")
    def early(par):
        return [ex(par, 0), ex(par, 1), ex(par, 2), cv(par, 0), ex(par, 3), ex(par, 4), cv(par, 1), ex(par, 5)]
    def softmax_items(par, skip_early=False):
        its = [] if skip_early else early(par)
        for i in range(6, 34):
            if i < 32: its.append(ex(par, i))
            if i == 32: its.append(I("v_nop"))
            if i % 2 == 0 and i // 2 - 1 < 16: its.append(cv(par, i // 2 - 1))
            if i in (10, 18, 26): its.append(lmfma(par, (i >> 3) - 1))
            if i in (20, 28): its.append(lread(par, (i >> 3) - 2))
        return its
    def softmax_tail(B, g, par, check=True):
        B.put(g, I("v_nop")); B.put(g, lmfma(par, 3))
        B.put(g + 2, lread(par, 2))
        if check: B.put(g + 3, I(f"v_max3_f32 v{vT0}, v{lc(par,0)}, v{lc(par,1)}, v{lc(par,2)}"))
        B.put(g + 7, lread(par, 3))
        if check:
            B.put(g + 8, I(f"v_max_f32 v{vT0}, v{vT0}, v{lc(par,3)}"))
            B.put(g + 8, I(f"v_cmp_nle_f32 vcc, v{vT0}, v{vTHR}"))
            B.put(g + 10, check_item(par), 3)
    def call_stub(branch, target):
        def f():
            L = a.newlabel("K2_st"); R = a.newlabel("K2_rt")
            a(f"{branch} {L}")
            a.label(R)
            a.stubs.append(f"{L}:\ns_call_b64 s[{sRET}:{sRET+1}], {target}\ns_branch {R}")
        return Item(f, 4, "s")
    def check_item(par): return call_stub("s_cbranch_vccnz", LADJ[par])
    def mask_items():
        return [I(f"s_add_u32 s{sKAP}, s{sKAP}, 1"), I(f"s_cmp_ge_u32 s{sKAP}, s{sDMIN}"),
                Item(lambda: a(f"s_getpc_b64 s[{sRET}:{sRET+1}]\ns_cbranch_scc1 {LMASK}"), 8, "X")]
    def put_mask(B, g):
        m = mask_items()
        B.put(g - 1, m[0])
        assert not B.gap[g].c[0] and not B.gap[g].c[3]
        B.put(g, m[1], 0); B.put(g, m[2], 3)
    def put_bar(B, g):
        B.put(g, mk.WV("kv", lg0=True), 3); B.put(g, I("s_barrier"), 3)
    def togK(): return I(f"v_xor_b32 v{vK}, 0x10000, v{vK}")
    def togV(): return I(f"v_xor_b32 v{vV}, 0x10000, v{vV}")
    def kv_dmas(src, dst, two):
        adv = (f"s_add_u32 s{src}, s{src}, 16384", f"s_xor_b32 s{dst}, s{dst}, 0x10000")
        if not two: return tile_dma(src, (dst, 0), "kv", post=adv)
        return tile_dma(src, (dst, 0), "kv") + tile_dma(src, (dst, 0x8000), "kv", f"s{sOFF}", post=adv)
    NPRE = 6
    def body_emit(two):
        B = Body(128)
        qk_mfma(B, 0, 0, 4); pv_mfma(B, 32, 0, 4, "u"); qk_mfma(B, 64, 1, 4); pv_mfma(B, 96, 1, 8, "u")
        ins = []
        for par, G0 in ((1, -12), (0, 52), (1, 116)):
            for i in range(32):
                g = G0 + 2 * i
                if 0 <= g < 128: B.put(g, ex(par, i))
            for c in range(16):
                g = G0 + 4 * c + 5
                if 0 <= g < 128: B.put(g, cv(par, c))
            if G0 < 100:
                for u in range(4):
                    ins.append((G0 + 16 * u + 19, lmfma(par, u).fn))
                    B.put(G0 + 16 * u + 23, lread(par, u))
                B.put(G0 + 55, I(f"v_max3_f32 v{vT0}, v{lc(par,0)}, v{lc(par,1)}, v{lc(par,2)}"))
                B.put(G0 + 71, I(f"v_max_f32 v{vT0}, v{vT0}, v{lc(par,3)}"))
                B.put(G0 + 73, I(f"v_cmp_nle_f32 vcc, v{vT0}, v{vTHR}"))
                B.put(G0 + 75, check_item(par), 3)
        B.put(1, kread(0, 6)); B.put(5, kread(0, 7))
        for f, g in enumerate((9, 11, 13, 17, 21, 25, 27, 29)): B.put(g, vread(0, f))
        for f, g in enumerate((33, 37, 41, 45, 47, 49, 53, 57)): B.put(g, kread(1, f))
        B.put(63, togK())
        for f, g in enumerate((65, 69, 73, 75, 77, 81, 85, 89)): B.put(g, vread(1, f))
        B.put(91, togV())
        put_bar(B, 95)
        for f, g in enumerate((101, 105, 109, 113, 117, 121)): B.put(g, kread(0, f))
        put_mask(B, 51)
        put_mask(B, 87)
        B.put(84, I(f"s_sub_u32 s{sCNT}, s{sCNT}, 1"))
        for after, fn in sorted(ins, reverse=True): B.insert_mfma(after, fn)
        r = lambda v: v + sum(1 for x, _ in ins if x < v)
        B.stream(kv_dmas(sVSRC, sVD, two), 0, r(50), even=False)
        B.stream(kv_dmas(sKSRC, sKD, two), r(95) + 1, r(127), even=False)
        print("body est", two, B.est())
        B.emit(a)
    def quad_max(regs, tmp):
        for sw in ("v_permlane16_swap_b32", "v_permlane32_swap_b32"):
            for i, r in enumerate(regs): a(f"v_mov_b32 v{tmp+i}, v{r}")
            for i, r in enumerate(regs): a(f"{sw} v{r}, v{tmp+i}")
            for i, r in enumerate(regs): a(f"v_max_f32 v{r}, v{r}, v{tmp+i}")
    def row_max(par, dst):
        for u in range(4):
            b = s_(par, u, 0)
            a(f"v_max3_f32 v{dst[u]}, v{b}, v{b+1}, v{b+2}")
            a(f"v_max3_f32 v{TE+u}, v{b+3}, v{b+4}, v{b+5}")
        for u in range(4):
            b = s_(par, u, 0)
            a(f"v_max3_f32 v{dst[u]}, v{dst[u]}, v{b+6}, v{b+7}")
        for u in range(4): a(f"v_max_f32 v{dst[u]}, v{dst[u]}, v{TE+u}")
        quad_max(dst, TE)
        for u in range(4): a(f"v_add_f32 v{dst[u]}, {hex(OFFS)}, v{dst[u]}")
    def fin_items(us, sCTX, scale, T):
        its = []; n = 0
        for ui, u in enumerate(us):
            for dk in range(4):
                pk = PKR + (n % 4) * 4
                for j in range(4):
                    r = o_(u, 2 * dk + (j >> 1)) + (j & 1) * 2
                    t = T + (j % 4) * 2
                    its.append(I(f"v_accvgpr_read_b32 v{t}, a{r}", 5))
                    its.append(I(f"v_accvgpr_read_b32 v{t+1}, a{r+1}", 5))
                    its.append(I(f"v_mul_f32 v{t}, v{t}, v{scale[ui]}"))
                    its.append(I(f"v_mul_f32 v{t+1}, v{t+1}, v{scale[ui]}"))
                    its.append(I(f"v_cvt_pk_bf16_f32 v{pk+j}, v{t}, v{t+1}", 5))
                its.append(mk.VM(f"buffer_store_dwordx4 v[{pk}:{pk+3}], v{vST[ui]}, s[{sWS}:{sWS+3}], s{sCTX} offen offset:{dk*1024} sc1", "st"))
                n += 1
        return its

    for f in range(NPRE): kread(0, f).fn()
    for u in range(4):
        for dk in range(4):
            if (u, dk) in qearly: continue
            for j in range(4): a(qcvt(u, dk, j))
    a(zero16(f"v[{NM}:{NM+15}]")); a(zero16(f"v[{NM+16}:{NM+31}]"))
    for r in range(4): a(f"v_cmp_gt_i32 s[{sM[r]}:{sM[r]+1}], {r}, v{vDG}")
    a(f"""
s_add_u32 s{sKSRC}, s{sKSRC}, 32768
s_add_u32 s{sVSRC}, s{sVSRC}, 16384
s_lshl_b32 s{sOFF}, s{sI}, 15
s_sub_u32 s{sOFF}, {15*16384}, s{sOFF}    ; T tiles
s_add_u32 s{sT0}, s{sKSRC}, {15*16384}    ; tile D+T = 17
""")
    for u in range(2):
        for dk in range(4):
            a.lg(f"ds_write_b128 v{vQX}, v[{q(u,dk)}:{q(u,dk)+3}] offset:{(u*4+dk)*1024}", "qx")
    a.stamp(4)
    for it in mask_items(): it.fn()
    B = Body(32)
    qk_mfma(B, 0, 0)
    for f in range(NPRE, 8): B.put(4 * (f - NPRE), kread(0, f))
    for f in range(NPRE): B.put(8 + 4 * f, kread(1, f))
    B.spread(tile_dma(sT0, (sW4, 0x18000), "kd") + tile_dma(sT0, (sW4, 0x8000), "kd", 16384), 1, 25)
    put_mask(B, 26)
    B.emit(a)
    for f in range(NPRE, 8): kread(1, f).fn()
    togK().fn()
    a("s_nop 4")
    DE = [D, D + 2, F, F + 2]
    row_max(0, DE)
    for u in range(4):
        a(f"v_mov_b32 v{M+u}, v{DE[u]}")
        for r in range(0, 8, 2):
            a(f"v_pk_add_f32 v[{nm(u,0)+r}:{nm(u,0)+r+1}], v[{nm(u,0)+r}:{nm(u,0)+r+1}], v[{DE[u]}:{DE[u]+1}] op_sel_hi:[1,0] neg_lo:[0,1] neg_hi:[0,1]")
    for k in range(0, 32, 2):
        a(f"v_pk_add_f32 v[{S+k}:{S+k+1}], v[{S+k}:{S+k+1}], v[{DE[k>>3]}:{DE[k>>3]+1}] op_sel_hi:[1,0] neg_lo:[0,1] neg_hi:[0,1]")
    B = Body(32)
    qk_mfma(B, 0, 1, 8)
    put_bar(B, 1)
    for f in range(NPRE): B.put(8 + 4 * f, kread(0, f))
    softmax_tail(B, 23, 0, check=False)
    B.spread(softmax_items(0), 0, 23)
    put_mask(B, 25)
    B.stream(kv_dmas(sKSRC, sKD, False), 23, 32)
    B.emit(a)
    a("s_nop 3")
    for it in early(1): it.fn()
    a.stamp(5)
    LD = a.newlabel("K2_dual")
    a(f"""
s_lshl_b32 s{sCNT}, s{sI}, 1
s_add_u32 s{sCNT}, s{sCNT}, 1
""")
    a(".p2align 3")
    a.label(LD)
    loop_emit(a, lambda: body_emit(False))
    a(f"""
s_cmp_lg_u32 s{sCNT}, 0
s_cbranch_scc1 {LD}
""")
    a.stamp(6)
    B = Body(128)
    pv_mfma(B, 0, 0); pv_mfma(B, 32, 1, 2, "b"); qk_mfma(B, 64, 0, 4); qk_mfma(B, 96, 1, 4)
    for f in range(NPRE): vread(0, f).fn()
    for f in range(NPRE, 8): B.put(3 * (f - NPRE), vread(0, f))
    for f in range(7): B.put(4 * f + 4, vread(1, f))
    B.put(31, vread(1, 7))
    softmax_tail(B, 21, 1)
    B.spread(softmax_items(1, True), 0, 21)
    def sw1():
        a.lg(f"ds_write_b64 v{vMX}, v[{M}:{M+1}]", "mx")
        a(f"v_xor_b32 v{vMX}, 512, v{vMX}")
        a(f"v_xor_b32 v{vQX}, 0x2000, v{vQX}")
        a(f"v_rcp_f32 v{F}, v{lc(1,2)}")
        a(f"v_rcp_f32 v{F+1}, v{lc(1,3)}")
    B.put(32, Item(sw1, 28))
    B.put(33, togV())
    def sw2():
        a(f"""
s_xor_b32 s{sDGB}, s{sDGA}, 1
s_mov_b32 s{sEVB}, s{sDGB}
s_min_u32 s{sDMIN}, s{sEVA}, s{sEVB}
s_sub_u32 s{sKAP}, s{sKAP}, 1
s_cmp_eq_u32 s{sP}, 1
s_cselect_b32 s{sKAP}, 33, s{sKAP}
s_lshl_b32 s{sT0}, s{sP}, 15
v_add_u32 v{vK}, s{sT0}, v{vK}
v_add_u32 v{vV}, s{sT0}, v{vV}
""")
    B.put(34, Item(sw2, 28))
    def sw3():
        a("s_waitcnt lgkmcnt(0)"); a.lgq = []
        a("s_barrier")
        a.lg(f"ds_read_b64 v[{M+2}:{M+3}], v{vMX}", "mx")
    B.put(36, Item(sw3, 12))
    for k in range(8):
        u, dk = k >> 2, k & 3
        B.put(37 + k, mk.LG(f"ds_read_b128 v[{q(2+u,dk)}:{q(2+u,dk)+3}], v{vQX} offset:{(u*4+dk)*1024}", "qx"))
    for f in range(8): B.put(46 + 2 * f, kread(0, f))
    B.put(45, mk.WL("mx"), 3)
    nmi = []
    for u in (2, 3):
        for r in range(8): nmi.append(I(f"v_sub_f32 v{nm(u,0)+r}, 0, v{M+u}"))
        nmi.append(I(f"v_mov_b32 v{lc(1,u)}, 0"))
        nmi.append(I(f"v_accvgpr_write_b32 a{LA+4*u}, 0", 5))
    B.spread(nmi, 46, 56)
    put_mask(B, 60)
    put_mask(B, 92)
    for f in range(8): B.put(68 + 4 * f, kread(1, f))
    B.put(97, togK())
    put_bar(B, 104)
    for f in range(NPRE): B.put(106 + 4 * f, kread(0, f)) if 106 + 4 * f < 128 else None
    B.spread(kv_dmas(sVSRC, sVD, True), 22, 56)
    B.spread(fin_items([2, 3], sCTXB, [F, F + 1], S + 32), 56, 95)
    zs = [Item(lambda k=k: a(zero16(f"a[{o_(2,0)+k*16}:{o_(2,0)+k*16+15}]")), 32, "X") for k in range(4)]
    for k in range(4): B.put(96 + k, zs[k])
    softmax_tail(B, 117, 0)
    B.spread(softmax_items(0), 100, 117)
    put_mask(B, 121)
    B.stream(kv_dmas(sKSRC, sKD, True), 108, 127)
    B.emit(a)
    a("s_nop 2")
    for it in early(1): it.fn()
    a.stamp(7)
    LS1 = a.newlabel("K2_single"); LS2 = a.newlabel("K2_sdone")
    a(f"""
s_lshl_b32 s{sT0}, s2, 2
s_add_u32 s{sT0}, s{sT0}, s{sWAVE}
v_and_b32 v{vT1}, 31, v{vL}
v_lshlrev_b32 v{vT1}, 7, v{vT1}
s_lshl_b32 s{sT1}, s{sT0}, 12
""")
    a.vm(f"buffer_load_dword v{vT2}, v{vT1}, s[88:91], s{sT1} offen", "warm")
    a(f"v_and_b32 v{vT1}, 0x180, v{vT1}")
    a(f"s_lshl_b32 s{sT1}, s{sT0}, 9")
    a.vm(f"buffer_load_dword v{vT2}, v{vT1}, s[92:95], s{sT1} offen", "warm")
    a(f"""
s_lshl_b32 s{sCNT}, s{sI}, 1
s_sub_u32 s{sCNT}, 14, s{sCNT}
s_cmp_eq_u32 s{sCNT}, 0
s_cbranch_scc1 {LS2}
""")
    st = (list(a.vmq), list(a.lgq))
    a(".p2align 3")
    a.label(LS1)
    loop_emit(a, lambda: body_emit(True))
    a(f"""
s_cmp_lg_u32 s{sCNT}, 0
s_cbranch_scc1 {LS1}
""")
    a.label(LS2)
    assert a.diag or st[1] == a.lgq, (st[1], a.lgq)
    a.vmq = ["kv"]
    a.stamp(8)
    sPHI = sX
    BQ, BZ = 152, 212
    BW = NM
    a(f"""
s_mov_b32 s{sPHI}, s62
s_mov_b32 s{sPHI+1}, s63
s_mov_b32 s{sPHI+2}, 16384
s_mul_i32 s{sB0}, s{sH}, {8 * BKV_P}
s_add_u32 s{sB0}, s{sB0}, {BKV}
s_lshr_b32 s{sB1}, s{sH}, 3
s_add_u32 s{sB1}, s{sB1}, 32
s_lshl_b32 s{sB1}, s{sB1}, 19
s_lshl_b32 s{sT2}, s{sI}, 16
s_add_u32 s{sB1}, s{sB1}, s{sT2}
s_lshl_b32 s{sT2}, s{sWAVE}, 14
s_add_u32 s{sB1}, s{sB1}, s{sT2}
s_and_b32 s{sT2}, s{sH}, 6
s_lshl_b32 s{sT2}, s{sT2}, 9
s_add_u32 s{sB1}, s{sB1}, s{sT2}
s_and_b32 s{sT2}, s{sH}, 1
s_lshl_b32 s{sT2}, s{sT2}, 3
s_add_u32 s{sB1}, s{sB1}, s{sT2}
s_lshl_b32 s{sKAP}, s{sH}, 9
s_lshl_b32 s{sT0}, s{sWAVE}, 15
v_add_u32 v{vK}, s{sT0}, v{vL16}
v_lshrrev_b32 v{vT1}, 4, v{vL}
v_and_b32 v{vDG}, 15, v{vL}
v_lshlrev_b32 v{vDG}, 1, v{vDG}
v_lshl_add_u32 v{vDG}, v{vT1}, 7, v{vDG}
v_and_b32 v{vMX}, 7, v{vL}
v_mul_u32_u24 v{vMX}, {BKV_P}, v{vMX}
v_lshl_add_u32 v{vMX}, v{vT1}, 4, v{vMX}
v_xor_b32 v{vQX}, 0x2000, v{vQX}
""")
    B = Body(64)
    pv_mfma(B, 0, 0); pv_mfma(B, 32, 1, 2, "b")
    for f in range(NPRE): vread(0, f).fn()
    for f in range(NPRE, 8): B.put(3 * (f - NPRE), vread(0, f))
    for f in range(7): B.put(4 * f + 4, vread(1, f))
    B.put(31, vread(1, 7))
    softmax_tail(B, 21, 1)
    bl = []
    for ft in range(2):
        bl.append(Item(lambda ft=ft: a.vm(f"buffer_load_dwordx4 a[{BZ+ft*4}:{BZ+ft*4+3}], v{vMX}, s[{sWS}:{sWS+3}], s{sB0} offen offset:{2048+ft*64}{SC}", "bl"), 8))
    for t in range(4):
        bl.append(Item(lambda t=t: (a.vm(f"buffer_load_dwordx2 a[{BQ+2*t}:{BQ+2*t+1}], v{vL16}, s[{sWS}:{sWS+3}], s{sB1} offen{SC}", "bl"), a(f"s_add_u32 s{sB1}, s{sB1}, 4096")), 12))
    for pp in range(8):
        for ft in range(2):
            def f(pp=pp, ft=ft):
                a.vm(f"buffer_load_dwordx4 v[{Q+pp*8+ft*4}:{Q+pp*8+ft*4+3}], v{vL16}, s[{sWS}:{sWS+3}], s{sB0} offen offset:{ft*1024}{SC}", "bl")
                if ft: a(f"s_add_u32 s{sB0}, s{sB0}, {BKV_P}")
            bl.append(Item(f, 8 + 4 * ft))
    B.spread(bl, 0, 31)
    B.spread(softmax_items(1, True), 0, 21)
    def st1():
        a(f"v_mov_b32 v{D}, v{M+2}")
        a(f"v_mov_b32 v{D+1}, v{M+3}")
        a(f"v_mov_b32 v{D+2}, v{lc(1,2)}")
        a(f"v_mov_b32 v{D+3}, v{lc(1,3)}")
        a.lg(f"ds_write_b128 v{vQX}, v[{D}:{D+3}]", "sx")
        a(f"v_xor_b32 v{vQX}, 0x2000, v{vQX}")
    B.put(32, Item(st1, 24))
    for j in range(4):
        B.put(33 + j, Item(lambda j=j: a.vm(f"buffer_load_ushort v{BW+j}, v{vDG}, s[{sPHI}:{sPHI+3}], s{sKAP} offen offset:{j*32}", "bl"), 8))
    def st2():
        a.wait_vm("kv", always=True)
        a("s_waitcnt lgkmcnt(0)"); a.lgq = []
        a("s_barrier")
        a.lg(f"ds_read_b128 v[{D}:{D+3}], v{vQX}", "sx")
    B.put(38, Item(st2, 12))
    for f in range(8):
        for ub in range(2):
            o = o_(2 + ub, f)
            B.put(min(32 + 2 * f + ub + 10, 63), Item(lambda o=o, f=f, ub=ub: a.lg(f"ds_write_b128 v{vK}, a[{o}:{o+3}] offset:{(ub*8+f)*1024}", "ox"), 8))
    FA = [F, F + 2]; FB = [TE, TE + 2]
    def st3():
        a.wait_lg("sx", always=True)
        for u in range(2):
            a(f"v_max_f32 v{vT1}, v{M+u}, v{D+u}")
            a(f"v_sub_f32 v{FA[u]}, v{M+u}, v{vT1}")
            a(f"v_sub_f32 v{FB[u]}, v{D+u}, v{vT1}")
        for u in range(2):
            a(f"v_exp_f32 v{FA[u]}, v{FA[u]}")
            a(f"v_exp_f32 v{FB[u]}, v{FB[u]}")
    def st4():
        for u in range(2):
            a(f"v_mul_f32 v{lc(1,u)}, v{lc(1,u)}, v{FA[u]}")
            a(f"v_fmac_f32 v{lc(1,u)}, v{D+2+u}, v{FB[u]}")
        for u in range(2): a(f"v_rcp_f32 v{lc(1,u)}, v{lc(1,u)}")
    def st5():
        for u in range(2):
            a(f"v_mul_f32 v{FA[u]}, v{FA[u]}, v{lc(1,u)}")
            a(f"v_mul_f32 v{FB[u]}, v{FB[u]}, v{lc(1,u)}")
    B.put(46, Item(st3, 60)); B.put(50, Item(st4, 32)); B.put(53, Item(st5, 16))
    B.emit(a)
    a(f"""
v_xor_b32 v{vK}, 0x8000, v{vK}
s_waitcnt lgkmcnt(0)
s_barrier
""")
    a.lgq = []
    OB = S
    for r in range(15): a.lg(f"ds_read_b128 v[{OB+r*4}:{OB+r*4+3}], v{vK} offset:{r*1024}", ("ob", r))
    T = P
    n = 0
    for u in range(2):
        for r in range(32): a(f"v_accvgpr_read_b32 v{T+r}, a{o_(u,0)+r}")
        if u == 0: a.lg(f"ds_read_b128 v[{OB+60}:{OB+63}], v{vK} offset:{15*1024}", ("ob", 15))
        for r in range(0, 32, 2):
            a(f"v_pk_mul_f32 v[{T+r}:{T+r+1}], v[{T+r}:{T+r+1}], v[{FA[u]}:{FA[u]+1}] op_sel_hi:[1,0]")
        a.wait_lg(("ob", u * 8 + 7))
        for dk in range(4):
            pk = PKR + (n % 4) * 4
            for j in range(4):
                r = dk * 8 + j * 2
                a(f"v_pk_fma_f32 v[{T+r}:{T+r+1}], v[{OB+u*32+r}:{OB+u*32+r+1}], v[{FB[u]}:{FB[u]+1}], v[{T+r}:{T+r+1}] op_sel_hi:[1,0,1]")
            for j in range(4):
                r = dk * 8 + j * 2
                a(f"v_cvt_pk_bf16_f32 v{pk+j}, v{T+r}, v{T+r+1}")
            a.vm(f"buffer_store_dwordx4 v[{pk}:{pk+3}], v{vST[u]}, s[{sWS}:{sWS+3}], s{sCTXA} offen offset:{dk*1024} sc1", "st")
            n += 1
    a.stamp(9)
    a.wait_vm("bl")
    X, EP, EM, MXR, TB, PH = S, S + 16, S + 32, S + 48, S + 56, P
    ZS = P + 16
    a(f"v_lshl_or_b32 v{BW}, v{BW+1}, 16, v{BW}")
    a(f"v_lshl_or_b32 v{BW+1}, v{BW+3}, 16, v{BW+2}")
    a(f"s_mov_b32 s{sKAP}, {hex(f2u(LOG2E))}")
    for r in range(8): a(f"v_accvgpr_read_b32 v{ZS+r}, a{BZ+r}")
    for t in range(4):
        a(f"{MF16} v[{X+t*4}:{X+t*4+3}], v[{BW}:{BW+1}], a[{BQ+2*t}:{BQ+2*t+1}], 0")
    for step in (32, 16, 8):
        for r in range(0, step, 2): a(f"v_pk_add_f32 v[{Q+r}:{Q+r+1}], v[{Q+r}:{Q+r+1}], v[{Q+step+r}:{Q+step+r+1}]")
    for dpp in ("quad_perm:[1,0,3,2]", "quad_perm:[2,3,0,1]", "row_half_mirror"):
        for r in range(8): a(f"v_add_f32_dpp v{ZS+r}, v{ZS+r}, v{ZS+r} {dpp} row_mask:0xf bank_mask:0xf")
    KVF, ZF = Q + 8, Q + 12
    for j in range(4):
        a(f"v_cvt_pk_bf16_f32 v{KVF+j}, v{Q+2*j}, v{Q+2*j+1}")
        a(f"v_cvt_pk_bf16_f32 v{ZF+j}, v{ZS+2*j}, v{ZS+2*j+1}")
    hedge_softmax(a, X, EP, EM, MXR, TB, PH, vX16, vX32, sKAP)
    a("s_nop 1")
    NUM, DEN = Q + 16, Q + 32
    for t in range(4):
        a(f"{MF} v[{NUM+t*4}:{NUM+t*4+3}], v[{KVF}:{KVF+3}], v[{PH+t*4}:{PH+t*4+3}], 0")
        a(f"{MF} v[{DEN+t*4}:{DEN+t*4+3}], v[{ZF}:{ZF+3}], v[{PH+t*4}:{PH+t*4+3}], 0")
    a(f"""
s_lshl_b32 s{sT0}, s{sI}, 2
s_add_u32 s{sT0}, s{sT0}, s{sWAVE}
s_mul_i32 s{sT0}, s{sT0}, {4*144*1024}
s_lshr_b32 s{sT1}, s{sH}, 1
s_lshl_b32 s{sT1}, s{sT1}, 10
s_add_u32 s{sT0}, s{sT0}, s{sT1}
s_add_u32 s{sT0}, s{sT0}, s{sT2}
s_add_u32 s{sT0}, s{sT0}, {CTX + 128*1024}
""")
    for t in range(4): a(f"v_add_f32 v{TE+t}, {hex(f2u(1e-6))}, v{DEN+t*4}")
    for t in range(4): a(f"v_rcp_f32 v{TE+t}, v{TE+t}")
    for t in range(4):
        for r in range(4): a(f"v_mul_f32 v{NUM+t*4+r}, v{NUM+t*4+r}, v{TE+t}")
        a(f"v_cvt_pk_bf16_f32 v{NUM+t*4}, v{NUM+t*4}, v{NUM+t*4+1}")
        a(f"v_cvt_pk_bf16_f32 v{NUM+t*4+1}, v{NUM+t*4+2}, v{NUM+t*4+3}")
        a.vm(f"buffer_store_dwordx2 v[{NUM+t*4}:{NUM+t*4+1}], v{vL16}, s[{sWS}:{sWS+3}], s{sT0} offen sc1", "st")
        a(f"s_add_u32 s{sT0}, s{sT0}, {144*1024}")
    a.stamp(12)
    if a.diag: a("s_waitcnt vmcnt(0)")
    a.stamp(23); a.stamp(10, real=True)
    a.stamp_flush(sWS, sWAVE, 24, DIAG, kidx=1)
    a.label(END)
    a("s_endpgm")
    a.flush_stubs()

    a.label(LMASK)
    a(f"s_add_u32 s{sRET}, s{sRET}, 4")
    a(f"s_addc_u32 s{sRET+1}, s{sRET+1}, 0")
    for g, sD, sE in ((0, sDGA, sEVA), (1, sDGB, sEVB)):
        L1 = a.newlabel("K2_m1"); L2 = a.newlabel("K2_m2")
        a(f"""
s_cmp_lt_u32 s{sKAP}, s{sE}
s_cbranch_scc1 {L2}
s_cmp_eq_u32 s{sKAP}, s{sD}
s_cbranch_scc1 {L1}
s_mov_b32 s{sE}, 0x7fffffff
""")
        for r in range(0, 16, 2): a(f"v_pk_mov_b32 v[{nm(2*g,0)+r}:{nm(2*g,0)+r+1}], v[{vBIG}:{vBIG+1}], v[{vBIG}:{vBIG+1}] op_sel:[0,0]")
        a(f"s_branch {L2}")
        a.label(L1)
        a(f"s_add_u32 s{sE}, s{sD}, 1")
        for r in range(0, 4, 2): a(f"v_pk_mov_b32 v[{nm(2*g,1)+r}:{nm(2*g,1)+r+1}], v[{vBIG}:{vBIG+1}], v[{vBIG}:{vBIG+1}] op_sel:[0,0]")
        for r in range(4):
            a(f"v_cndmask_b32 v{nm(2*g,0)+r}, v{nm(2*g,0)+r}, v{vBIG}, s[{sM[r]}:{sM[r]+1}]")
            a(f"v_cndmask_b32 v{nm(2*g+1,1)+r}, v{nm(2*g+1,1)+r}, v{vBIG}, s[{sM[r]}:{sM[r]+1}]")
        a.label(L2)
    a(f"s_min_u32 s{sDMIN}, s{sEVA}, s{sEVB}")
    a(f"s_setpc_b64 s[{sRET}:{sRET+1}]")
    def adjust(par):
        a("s_nop 15")
        DD = [D + u for u in range(4)]
        row_max(par, DD)
        for u in range(4): a(f"v_max_f32 v{D+u}, 0, v{D+u}")
        for u in range(4): a(f"v_exp_f32 v{F+u}, -v{D+u}")
        a("s_nop 0")
        for u in range(4):
            a(f"v_mul_f32 v{lc(par^1,u)}, v{lc(par^1,u)}, v{F+u}")
            a(f"v_accvgpr_write_b32 a{LA+4*u}, v{lc(par^1,u)}")
            for r in range(32):
                t = TE + r % 8
                a(f"v_accvgpr_read_b32 v{t}, a{o_(u,0)+r}")
                a(f"v_mul_f32 v{t}, v{t}, v{F+u}")
                a(f"v_accvgpr_write_b32 a{o_(u,0)+r}, v{t}")
        for u in range(4):
            a(f"v_add_f32 v{M+u}, v{M+u}, v{D+u}")
            for r in range(8):
                a(f"v_sub_f32 v{s_(0,u,0)+r}, v{s_(0,u,0)+r}, v{D+u}")
                a(f"v_sub_f32 v{s_(1,u,0)+r}, v{s_(1,u,0)+r}, v{D+u}")
                a(f"v_sub_f32 v{nm(u,0)+r}, v{nm(u,0)+r}, v{D+u}")
        for it in softmax_items(par): it.fn()
        a("s_nop 1"); lmfma(par, 3).fn(); a("s_nop 7")
        lread(par, 2).fn(); lread(par, 3).fn()
        for it in early(par ^ 1): it.fn()
        a("s_nop 1")
        a(f"s_setpc_b64 s[{sRET}:{sRET+1}]")
    for par in range(2):
        a.label(LADJ[par]); adjust(par)
    a.label("K2_code_end")
    a("s_endpgm")
```

```python
from asmlib import Asm
from sched import *
from common import *

PART = 0

def gen_k3(a, name="k3_kernel"):
    a.kernel(name, (256,1,1), (256,1,1), 131072, vgpr=208)
    sWO, sWB, sWS, sOUT, sDBG = 4, 8, 12, 16, 20
    (sWAVE, sRB, sCB, sKQ, sT0, sT1, sCNT, sCSRC, sWSRC, sW4, sOB, sGRP, sPSRC, sPDST, sOBB, sRH, sCH) = range(24, 41)
    ACC = 0
    ACB = 64
    FR = 80
    RX = 144
    vL16, vC2, vL, vT0, vT1, vT2, vO, vCR, vCR2 = 192, 193, 194, 195, 196, 197, 198, 199, 200
    vWD = [201, 202, 203, 204]
    vZ = 205
    vWR = [144, 145, 146, 147]; vWR2 = [148, 149, 150, 151]
    vBD = [152, 153, 154, 155]; vBC = [156, 157]; vBW = [158, 159, 160, 161]
    END = a.newlabel("K3_end")
    a(f"""
s_cmp_ge_u32 s2, 256
s_cbranch_scc1 {END}
""")
    a.stamp(14)
    a(f"""
s_load_dwordx2 s[44:45], s[0:1], 40     ; w_o
s_load_dwordx4 s[48:51], s[0:1], 72
s_load_dwordx4 s[52:55], s[0:1], 88
v_lshrrev_b32 v{vT0}, 6, v0
v_and_b32 v{vL}, 63, v0
v_readfirstlane_b32 s{sWAVE}, v{vT0}
s_lshr_b32 s{sT1}, s2, 3                ; q
s_and_b32 s{sCB}, s{sT1}, 3
s_lshr_b32 s{sRB}, s{sT1}, 2
s_and_b32 s{sT0}, s2, 1
s_lshl_b32 s{sT0}, s{sT0}, 3
s_add_u32 s{sRB}, s{sRB}, s{sT0}
s_bfe_u32 s{sKQ}, s2, 0x20001           ; K quarter
s_lshl_b32 s{sGRP}, s{sRB}, 2
s_add_u32 s{sGRP}, s{sGRP}, s{sCB}
s_lshl_b32 s{sT0}, s{sRB}, 2
s_add_u32 s{sT0}, s{sT0}, s{sWAVE}
s_mul_i32 s{sCSRC}, s{sT0}, {2*144*1024}
s_lshl_b32 s{sT0}, s{sKQ}, 15
s_add_u32 s{sCSRC}, s{sCSRC}, s{sT0}
s_add_u32 s{sCSRC}, s{sCSRC}, {CTX}
s_lshl_b32 s{sWSRC}, s{sKQ}, 20
s_lshl_b32 s{sT0}, s{sWAVE}, 14
s_add_u32 s{sWSRC}, s{sWSRC}, s{sT0}
s_lshl_b32 s{sT0}, s{sCB}, 8
s_add_u32 s{sWSRC}, s{sWSRC}, s{sT0}
s_lshl_b32 s{sW4}, s{sWAVE}, 12
s_mov_b32 s{sWO+2}, 0x400000
s_mov_b32 s{sWO+3}, 0x20000
s_mov_b32 s{sWB+2}, 0x80000
s_mov_b32 s{sWB+3}, 0x20000
s_mov_b32 s{sWS+2}, {WS_USED}
s_mov_b32 s{sWS+3}, 0x20000
s_mov_b32 s{sOUT+2}, 0x400000
s_mov_b32 s{sOUT+3}, 0x20000
s_mov_b32 s{sDBG+2}, 256
s_mov_b32 s{sDBG+3}, 0x20000
v_lshlrev_b32 v{vL16}, 4, v{vL}
v_add_u32 v{vC2}, {144*1024 - 2048}, v{vL16}
v_lshrrev_b32 v{vT2}, 4, v{vL}
v_lshlrev_b32 v{vT0}, 10, v{vT2}
v_and_b32 v{vT1}, 15, v{vL}
v_lshlrev_b32 v{vT2}, 1, v{vT2}
v_xor_b32 v{vT1}, v{vT1}, v{vT2}
v_lshl_add_u32 v{vWD[0]}, v{vT1}, 4, v{vT0}
v_xor_b32 v{vT1}, 8, v{vT1}
v_lshl_add_u32 v{vWD[1]}, v{vT1}, 4, v{vT0}
v_add_u32 v{vWD[1]}, 3072, v{vWD[1]}
v_add_u32 v{vWD[2]}, 6144, v{vWD[0]}
v_add_u32 v{vWD[3]}, 6144, v{vWD[1]}
s_waitcnt lgkmcnt(0)
s_mov_b32 s{sWO}, s44
s_mov_b32 s{sWO+1}, s45
s_mov_b32 s{sWB}, s48
s_mov_b32 s{sWB+1}, s49
s_mov_b32 s{sOUT}, s50
s_mov_b32 s{sOUT+1}, s51
s_mov_b32 s{sDBG}, s52
s_mov_b32 s{sDBG+1}, s53
s_mov_b32 s{sWS}, s54
s_mov_b32 s{sWS+1}, s55
""")
    a.stamp(0); a.stamp(1, real=True)
    mk = Mk(a); I = mk.I
    def a_dma(slot):
        its = [I(f"s_add_u32 m0, s{sW4}, {slot * 32768}"), I("s_nop 0")]
        for i in range(4):
            its.append(mk.VM(f"buffer_load_dwordx4 v{vL16 if i < 2 else vC2}, s[{sWS}:{sWS+3}], s{sCSRC} offen offset:{i*1024} lds", ("st", slot)))
        its += [I(f"s_add_u32 m0, s{sW4}, {slot * 32768 + 16384}"), I(f"s_add_u32 s{sCSRC}, s{sCSRC}, 2048")]
        for i in range(4):
            its.append(mk.VM(f"buffer_load_dwordx4 v{vWD[i]}, s[{sWO}:{sWO+3}], s{sWSRC} offen offset:{i*1024} lds", ("st", slot)))
        its.append(I(f"s_add_u32 s{sWSRC}, s{sWSRC}, 0x10000"))
        return its
    def b_dma(slot):
        its = [I(f"s_add_u32 m0, s{sW4}, {slot * 32768}"), I("s_nop 0")]
        for i in range(4):
            its.append(mk.VM(f"buffer_load_dwordx4 v{vL16}, s[{sWS}:{sWS+3}], s{sCSRC} offen offset:{i*1024} lds", ("st", slot)))
        its += [I(f"s_add_u32 m0, s{sW4}, {slot * 32768 + 16384}"), I(f"s_add_u32 s{sCSRC}, s{sCSRC}, 4096")]
        for i in range(4):
            its.append(mk.VM(f"buffer_load_dwordx4 v{vBD[i]}, s[{sWB}:{sWB+3}], s{sWSRC} offen offset:{i*1024} lds", ("st", slot)))
        its.append(I(f"s_add_u32 s{sWSRC}, s{sWSRC}, 0x20000"))
        return its
    for it in a_dma(0): it.fn()
    a(f"""
s_lshr_b32 s{sRH}, s{sWAVE}, 1
s_and_b32 s{sCH}, s{sWAVE}, 1
s_lshl_b32 s{sT0}, s{sRH}, 13
v_add_u32 v{vCR}, s{sT0}, v{vL16}
v_add_u32 v{vCR2}, 0x10000, v{vCR}
v_mov_b32 v{vBC[0]}, v{vCR}
v_mov_b32 v{vBC[1]}, v{vCR2}
v_lshrrev_b32 v{vT0}, 4, v{vL}              ; kq
v_bfe_u32 v{vT1}, v{vL}, 2, 2               ; r
v_lshl_add_u32 v{vT2}, v{vT0}, 2, v{vT1}    ; kq*4+r
v_and_b32 v{vT0}, 3, v{vL}
v_lshlrev_b32 v{vT0}, 3, v{vT0}
v_add_u32 v{vT0}, 16384, v{vT0}             ; c4*8 + W part
v_lshl_add_u32 v{vZ}, v{vT2}, 8, v{vT0}
v_and_b32 v{vT1}, 7, v{vT2}
s_lshl_b32 s{sT0}, s{sCH}, 2
v_xor_b32 v{vT1}, s{sT0}, v{vT1}
""")
    for mt in range(4):
        a(f"v_xor_b32 v{vO}, {mt}, v{vT1}")
        a(f"v_lshl_add_u32 v{vWR[mt]}, v{vO}, 5, v{vZ}")
        a(f"v_add_u32 v{vWR2[mt]}, 0x10000, v{vWR[mt]}")
    a(f"""
v_lshl_add_u32 v{vZ}, v{vT2}, 7, v{vT0}
v_bfe_u32 v{vT1}, v{vT2}, 1, 2
s_lshl_b32 s{sT0}, s{sCH}, 1
v_xor_b32 v{vT1}, s{sT0}, v{vT1}
v_lshl_add_u32 v{vBW[0]}, v{vT1}, 5, v{vZ}
v_xor_b32 v{vT1}, 1, v{vT1}
v_lshl_add_u32 v{vBW[1]}, v{vT1}, 5, v{vZ}
v_add_u32 v{vBW[2]}, 0x10000, v{vBW[0]}
v_add_u32 v{vBW[3]}, 0x10000, v{vBW[1]}
v_lshrrev_b32 v{vT0}, 3, v{vL}
v_lshlrev_b32 v{vT0}, 10, v{vT0}
v_and_b32 v{vT1}, 7, v{vL}
v_lshrrev_b32 v{vT2}, 4, v{vL}
v_lshlrev_b32 v{vT2}, 1, v{vT2}
v_xor_b32 v{vT1}, v{vT1}, v{vT2}
v_lshl_add_u32 v{vBD[0]}, v{vT1}, 4, v{vT0}
v_add_u32 v{vBD[1]}, {7*1024}, v{vBD[0]}
v_add_u32 v{vBD[2]}, {14*1024}, v{vBD[0]}
v_add_u32 v{vBD[3]}, {21*1024}, v{vBD[0]}
v_and_b32 v{vT0}, 15, v{vL}
v_lshlrev_b32 v{vT0}, 11, v{vT0}
v_lshrrev_b32 v{vT1}, 4, v{vL}
v_lshl_add_u32 v{vO}, v{vT1}, 3, v{vT0}
v_mov_b32 v{vZ}, 0
s_lshl_b32 s{sOB}, s{sRB}, 18
s_lshl_b32 s{sT0}, s{sCB}, 8
s_add_u32 s{sOB}, s{sOB}, s{sT0}
s_mov_b32 s{sOBB}, s{sOB}
s_lshl_b32 s{sT0}, s{sRH}, 17
s_add_u32 s{sOB}, s{sOB}, s{sT0}
s_lshl_b32 s{sT0}, s{sKQ}, 15
s_add_u32 s{sOB}, s{sOB}, s{sT0}
s_lshl_b32 s{sT0}, s{sCH}, 7
s_add_u32 s{sOB}, s{sOB}, s{sT0}
s_lshr_b32 s{sT0}, s{sKQ}, 1
s_lshl_b32 s{sT0}, s{sT0}, 17
s_add_u32 s{sOBB}, s{sOBB}, s{sT0}
s_lshl_b32 s{sT0}, s{sRH}, 16
s_add_u32 s{sOBB}, s{sOBB}, s{sT0}
s_and_b32 s{sT0}, s{sKQ}, 1
s_lshl_b32 s{sT0}, s{sT0}, 7
s_add_u32 s{sOBB}, s{sOBB}, s{sT0}
s_lshl_b32 s{sT0}, s{sCH}, 6
s_add_u32 s{sOBB}, s{sOBB}, s{sT0}
s_lshl_b32 s{sPSRC}, s{sGRP}, 18
s_add_u32 s{sPSRC}, s{sPSRC}, s{sW4}
s_lshl_b32 s{sT0}, s{sKQ}, 14
s_add_u32 s{sPDST}, s{sPSRC}, s{sT0}
s_lshl_b32 s{sT0}, s{sKQ}, 16
s_add_u32 s{sPSRC}, s{sPSRC}, s{sT0}
""")
    for r in range(80): a(f"v_mov_b32 v{r}, 0")
    for it in a_dma(1) + a_dma(2): it.fn()
    def a_reads(slot, k, st):
        c = vCR if slot < 2 else vCR2; w = vWR if slot < 2 else vWR2
        so = (slot & 1) * 32768
        fb = FR + st * 32
        its = []
        for x in range(4):
            its.append(mk.LG(f"ds_read_b128 v[{fb+x*4}:{fb+x*4+3}], v{c} offset:{so + x*2048 + k*1024}", ("fc", st)))
        for x in range(4):
            for jj in range(2):
                b = fb + 16 + x * 4 + jj * 2
                its.append(mk.LG(f"ds_read_b64_tr_b16 v[{b}:{b+1}], v{w[x]} offset:{so + k*8192 + jj*4096}", ("fw", st, x)))
        return its
    def a_stage(slot, refill, nxt=True):
        B = Body(32)
        for k in range(2):
            fb = FR + k * 32
            for mt in range(4):
                for qt in range(4):
                    d = ACC + (qt * 4 + mt) * 4
                    s = f"{MF} v[{d}:{d+3}], v[{fb+16+mt*4}:{fb+19+mt*4}], v[{fb+qt*4}:{fb+qt*4+3}], v[{d}:{d+3}]"
                    B.mfma[k * 16 + mt * 4 + qt] = (lambda s=s: a(s))
                if mt % 2 == 0: B.put_pre(k * 16 + mt * 4, mk.WL(("fw", k, mt + 1)))
        r1 = a_reads(slot, 1, 1)
        for j, it in enumerate(r1): B.put(2 * (j >> 1), it)
        if nxt:
            n = (slot + 1) % 4
            B.put(16, mk.WV(("st", n), lg0=True), 3); B.put(16, I("s_barrier"), 3)
            for j, it in enumerate(a_reads(n, 0, 0)): B.put(18 + 2 * (j >> 1), it)
        if refill: B.stream(refill, 0, 32)
        B.emit(a)
    a.wait_vm(("st", 0)); a("s_barrier")
    for it in a_reads(0, 0, 0): it.fn()
    L = a.newlabel("K3_loop")
    a(f"s_mov_b32 s{sCNT}, 3")
    a.stamp(2)
    a.label(L)
    def it_():
        for s in range(4): a_stage(s, a_dma((s + 3) % 4))
    loop_emit(a, it_)
    a(f"""
s_sub_u32 s{sCNT}, s{sCNT}, 1
s_cmp_lg_u32 s{sCNT}, 0
s_cbranch_scc1 {L}
""")
    a_stage(0, a_dma(3))
    a(f"""
s_lshl_b32 s{sT0}, s{sRB}, 3
s_and_b32 s{sT1}, s{sKQ}, 2
s_lshl_b32 s{sT1}, s{sT1}, 1
s_add_u32 s{sT0}, s{sT0}, s{sT1}
s_add_u32 s{sT0}, s{sT0}, s{sWAVE}
s_mul_i32 s{sCSRC}, s{sT0}, {144*1024}
s_add_u32 s{sCSRC}, s{sCSRC}, {CTX + 128*1024}
s_lshl_b32 s{sWSRC}, s{sWAVE}, 15
s_lshl_b32 s{sT0}, s{sCB}, 8
s_add_u32 s{sWSRC}, s{sWSRC}, s{sT0}
s_and_b32 s{sT0}, s{sKQ}, 1
s_lshl_b32 s{sT0}, s{sT0}, 7
s_add_u32 s{sWSRC}, s{sWSRC}, s{sT0}
""")
    a_stage(1, b_dma(0)); a_stage(2, b_dma(1)); a_stage(3, b_dma(2), nxt=False)
    a.stamp(3)
    OWN = RX + 32
    a("s_nop 7")
    for dst in range(4):
        LS = a.newlabel("K3_own"); LN = a.newlabel("K3_nx")
        a(f"s_cmp_eq_u32 s{sKQ}, {dst}")
        a(f"s_cbranch_scc1 {LS}")
        a(f"s_add_u32 s{sT0}, s{sPSRC}, {dst * 16384}")
        d = ACC + dst * 16
        for j in range(8): a(f"v_cvt_pk_bf16_f32 v{d+j}, v{d+2*j}, v{d+2*j+1}")
        for hf in range(2):
            a(f"buffer_store_dwordx4 v[{d+hf*4}:{d+hf*4+3}], v{vL16}, s[{sWS}:{sWS+3}], s{sT0} offen offset:{hf*1024} sc1")
        a(f"s_branch {LN}")
        a.label(LS)
        for r in range(0, 16, 2): a(f"v_pk_mov_b32 v[{OWN+r}:{OWN+r+1}], v[{d+r}:{d+r+1}], v[{d+r}:{d+r+1}] op_sel:[0,1]")
        a.label(LN)
    a.vmq += ["pub"] * 6
    def b_stage(slot, after_bar=None):
        a.wait_vm(("st", slot), always=True)
        a("s_barrier")
        if after_bar: after_bar()
        c = vBC[slot >> 1]; w = vBW[(slot >> 1) * 2:(slot >> 1) * 2 + 2]
        so = (slot & 1) * 32768
        def reads(k):
            fb = FR + k * 16
            for qt in range(2):
                a.lg(f"ds_read_b128 v[{fb+qt*4}:{fb+qt*4+3}], v{c} offset:{so + qt*4096 + k*1024}", ("f", k))
            for mt in range(2):
                for jj in range(2):
                    b = fb + 8 + mt * 4 + jj * 2
                    a.lg(f"ds_read_b64_tr_b16 v[{b}:{b+1}], v{w[mt]} offset:{so + k*4096 + jj*2048}", ("f", k))
        def mf(k):
            fb = FR + k * 16
            a.wait_lg(("f", k), always=True)
            for mt in range(2):
                for qt in range(2):
                    d = ACB + (mt * 2 + qt) * 4
                    a(f"{MF} v[{d}:{d+3}], v[{fb+8+mt*4}:{fb+8+mt*4+3}], v[{fb+qt*4}:{fb+qt*4+3}], v[{d}:{d+3}]")
        reads(0); reads(1); mf(0); reads(2); mf(1); reads(3); mf(2); mf(3)
    def refill3():
        for it in b_dma(3): it.fn()
    def signal():
        LS = a.newlabel("K3_sig")
        a(f"""
s_cmp_lg_u32 s{sWAVE}, 0
s_cbranch_scc1 {LS}
s_lshl_b32 s{sT0}, s{sGRP}, 2
v_mov_b32 v{vT0}, 1
s_mov_b64 exec, 1
buffer_atomic_add v{vT0}, v{vZ}, s[{sDBG}:{sDBG+3}], s{sT0} offen sc1
s_mov_b64 exec, -1
{LS}:
""")
    b_stage(0, refill3); b_stage(1); b_stage(2); b_stage(3, signal)
    a.stamp(4)
    LP = a.newlabel("K3_poll"); LPD = a.newlabel("K3_polled")
    a(f"""
s_cmp_lg_u32 s{sWAVE}, 0
s_cbranch_scc1 {LPD}
s_lshl_b32 s{sT0}, s{sGRP}, 2
s_mov_b32 s{sCNT}, 0x40000
{LP}:
buffer_load_dword v{vT0}, v{vZ}, s[{sDBG}:{sDBG+3}], s{sT0} offen sc1
s_waitcnt vmcnt(0)
v_readfirstlane_b32 s{sT1}, v{vT0}
s_nop 0
s_cmp_ge_u32 s{sT1}, 4
s_cbranch_scc1 {LPD}
s_sleep 1
s_sub_u32 s{sCNT}, s{sCNT}, 1
s_cmp_lg_u32 s{sCNT}, 0
s_cbranch_scc1 {LP}
{LPD}:
s_barrier
""")
    a.stamp(5)
    a.vmq = []
    for j in range(3):
        a(f"s_add_u32 s{sT0}, s{sKQ}, {j+1}")
        a(f"s_and_b32 s{sT0}, s{sT0}, 3")
        a(f"s_lshl_b32 s{sT0}, s{sT0}, 16")
        a(f"s_add_u32 s{sT0}, s{sT0}, s{sPDST}")
        for hf in range(2):
            d = j * 8 + hf * 4
            a.vm(f"buffer_load_dwordx4 v[{d}:{d+3}], v{vL16}, s[{sWS}:{sWS+3}], s{sT0} offen offset:{hf*1024} sc1", ("rx", j))
    for mt in range(2):
        for qt in range(2):
            d = ACB + (mt * 2 + qt) * 4
            if mt == 0 and qt == 0: a("s_nop 7")
            a(f"v_cvt_pk_bf16_f32 v{d}, v{d}, v{d+1}")
            a(f"v_cvt_pk_bf16_f32 v{d+1}, v{d+2}, v{d+3}")
    a(f"s_add_u32 s{sT0}, s{sOBB}, 32768")
    for mt in range(2):
        for qt in range(2):
            d = ACB + (mt * 2 + qt) * 4
            a.vm(f"buffer_store_dwordx2 v[{d}:{d+1}], v{vO}, s[{sOUT}:{sOUT+3}], s{sOBB if qt == 0 else sT0} offen offset:{1024 + mt*32}", "o")
    for j in range(3):
        a.wait_vm(("rx", j))
        for r in range(8):
            a(f"v_lshlrev_b32 v{32+2*r}, 16, v{j*8+r}")
            a(f"v_and_b32 v{33+2*r}, 0xffff0000, v{j*8+r}")
        for r in range(0, 16, 2):
            a(f"v_pk_add_f32 v[{OWN+r}:{OWN+r+1}], v[{OWN+r}:{OWN+r+1}], v[{32+r}:{33+r}]")
    for mt in range(4):
        d = OWN + mt * 4
        a(f"v_cvt_pk_bf16_f32 v{d}, v{d}, v{d+1}")
        a(f"v_cvt_pk_bf16_f32 v{d+1}, v{d+2}, v{d+3}")
        a(f"buffer_store_dwordx2 v[{d}:{d+1}], v{vO}, s[{sOUT}:{sOUT+3}], s{sOB} offen offset:{mt*32}")
    a.stamp(9)
    if a.diag: a("s_waitcnt vmcnt(0)")
    a.stamp(23); a.stamp(10, real=True)
    a.stamp_flush(sWS, sWAVE, 24, DIAG, vt=(195, 196), kidx=2)
    a.label(END)
    a("s_endpgm")
```

```python
from asmlib import Asm
from sched import *
from common import *
from phasea import PhaseA, WR, FR, AR
from hedge import *

BIG = f2u(-1.0e30)
THR = f2u(2.0 ** 60)
OFFS = f2u(40.0)
RQ = 0x20000
MX = 0xC000
MF32 = "v_mfma_f32_32x32x16_bf16"

def gen_k2(a, name="k2_kernel", CPF=0, ROT=0, fused=False, PLEAD=50, PSLEEP=12):
    if not fused: a.kernel(name, (256,1,1), (256,1,1), 163840, vgpr=256, agpr=256)
    SC = " sc1" if fused else ""
    sX, sW, sWS = 4, 8, 12
    (sWAVE, sH, sI, sROW1, sA0, sA1, sT0, sT1, sT2, sCNT, sLA, sLW, sWSRC, sROW4, sROWH,
     sKSRC, sVSRC, sKD, sVD, sKAP, sDGA, sDGB, sDMIN, sTHR, sCTXA, sCTXB, sP, sW4) = range(16, 44)
    sRET = 44
    sM = [46, 48, 50, 52]
    sB0, sB1 = 54, 55
    sEVA, sEVB = 98, 99
    sCO, sWB, sA0c, sA1c = 46, 47, 48, 49
    sOFF = sTHR
    Q = 0; S = 64; P = 128; NM = 160; TE = 192; LC = 200; M = 208
    vK, vV, vL16, vL, vT0, vT1, vTHR, vQX = 212, 213, 214, 215, 216, 217, 218, 219
    vX16, vX32, vBIG, vDG = 220, 221, 222, 223
    D = 224; F = 228; vST = [232, 233]; vMX = 234; vT2 = 235
    ZERO = 236
    PKR = 240
    pACC, pWF = 64, 0
    vWA = list(range(192, 200)); vXA = [200, 201]; vAE, vAO, vWE, vWO = 202, 203, 204, 205
    O = 0; KF = 128; VF = 160; LA = 192; ONES = 208
    END = a.newlabel("K2_end")
    def q(u, dk): return Q + (u * 4 + dk) * 4
    def s_(buf, u, kt): return S + ((buf * 4 + u) * 2 + kt) * 4
    def p_(buf, u): return P + (buf * 4 + u) * 4
    def nm(u, kt): return NM + (u * 2 + kt) * 4
    def o_(u, dt): return O + (u * 8 + dt) * 4
    def lc(par, u): return LC + par * 4 + u
    mk = Mk(a)
    I = lambda s, c=None: mk.I(s)
    if fused:
        a.label("K2_fused_entry")
        a.vmq = []; a.lgq = []
        a(f"v_mov_b32 v{vL}, v240")
    else:
        a(f"""
s_cmp_ge_u32 s2, 256
s_cbranch_scc1 {END}
v_lshrrev_b32 v{vT0}, 6, v0
v_and_b32 v{vL}, 63, v0
v_readfirstlane_b32 s{sWAVE}, v{vT0}
""")
    a.stamp(14)
    a(f"""
s_load_dwordx2 s[56:57], s[0:1], 0      ; x
s_load_dwordx2 s[58:59], s[0:1], 16     ; w_q
s_load_dwordx2 s[60:61], s[0:1], 96     ; ws
s_load_dwordx2 s[62:63], s[0:1], 64     ; w_phi
s_load_dwordx2 s[88:89], s[0:1], 40     ; w_o
s_load_dwordx2 s[92:93], s[0:1], 72     ; wo
s_load_dwordx2 s[52:53], s[0:1], 88
s_lshr_b32 s{sT1}, s2, 3
s_and_b32 s{sI}, s{sT1}, 7
s_lshr_b32 s{sT1}, s{sT1}, 3
s_and_b32 s{sH}, s2, 7
s_lshl_b32 s{sH}, s{sH}, 2
s_add_u32 s{sH}, s{sH}, s{sT1}
s_mov_b32 s{sROW1}, 8192
s_mov_b32 s{sROW4}, 32768
s_mov_b32 s{sROWH}, 4096
s_lshl_b32 s{sCO}, s{sT1}, 1
s_add_u32 s{sCO}, s{sCO}, s{sI}
s_and_b32 s{sCO}, s{sCO}, {7 if ROT else 0}
s_lshl_b32 s{sCO}, s{sCO}, 7
s_sub_u32 s{sCO}, s{sCO}, 128
s_sub_u32 s{sT0}, 15, s{sI}             ; L
s_lshl_b32 s{sDGA}, s{sT0}, 2
s_add_u32 s{sDGA}, s{sDGA}, s{sWAVE}
s_lshl_b32 s{sDGB}, s{sI}, 2
s_add_u32 s{sDGB}, s{sDGB}, s{sWAVE}
s_lshl_b32 s{sA0}, s{sDGA}, 15
s_lshl_b32 s{sA1}, s{sDGB}, 15
s_lshl_b32 s{sLA}, s{sWAVE}, 14
s_add_u32 s{sLA}, s{sLA}, {AR}
s_lshl_b32 s{sW4}, s{sWAVE}, 12
s_add_u32 s{sLW}, s{sW4}, {WR}
s_lshl_b32 s{sWB}, s{sWAVE}, 17       ; 16 rows * 8192
s_lshl_b32 s{sT0}, s{sH}, 8
s_add_u32 s{sWB}, s{sWB}, s{sT0}
s_lshl_b32 s{sKSRC}, s{sH}, 19
s_add_u32 s{sKSRC}, s{sKSRC}, s{sW4}
s_add_u32 s{sVSRC}, s{sKSRC}, {VWS}
s_mov_b32 s{sX+2}, 0x200000
s_mov_b32 s{sX+3}, 0x20000
s_mov_b32 s{sW+2}, 0x400000
s_mov_b32 s{sW+3}, 0x20000
s_mov_b32 s{sWS+2}, {WS_USED}
s_mov_b32 s{sWS+3}, 0x20000
""")
    pa = PhaseA(a, pACC, pWF, vWA, vXA, vAE, vAO, vWE, vWO, sX, sW, sA0, sA1, sWSRC, sROW4, sROWH, sLA, sLW, sT2, "K" * 8, sCO, sWB, sA0c, sA1c)
    pa.ring = 128
    pa.setup_dma(vL, vT0, vT1, vT2, sROW1)
    a(f"""
s_waitcnt lgkmcnt(0)
s_mov_b32 s{sX}, s56
s_mov_b32 s{sX+1}, s57
s_mov_b32 s{sW}, s58
s_mov_b32 s{sW+1}, s59
s_mov_b32 s{sWS}, s60
s_mov_b32 s{sWS+1}, s61
s_mov_b32 s54, 256
s_mov_b32 s55, 0x20000
""")
    if fused: a("s_barrier")
    a.stamp(0); a.stamp(1, real=True)
    for it in pa.chunk_dmas(0): it.fn()
    a.stamp(11)
    pa.setup_read(vL, vT0, vT1, vT2)
    a(f"""
v_lshlrev_b32 v{vL16}, 4, v{vL}
v_xor_b32 v{vT0}, 16, v{vL}
v_lshlrev_b32 v{vX16}, 2, v{vT0}
v_xor_b32 v{vT0}, 32, v{vL}
v_lshlrev_b32 v{vX32}, 2, v{vT0}
v_mov_b32 v{vBIG}, {hex(BIG)}
v_mov_b32 v{vTHR}, {hex(THR)}
v_and_b32 v{vT0}, 15, v{vL}
v_lshrrev_b32 v{vT1}, 4, v{vL}
v_lshlrev_b32 v{vT1}, 2, v{vT1}
v_sub_u32 v{vDG}, v{vT0}, v{vT1}
v_mov_b32 v{vST[0]}, v{vL16}
v_add_u32 v{vST[1]}, {144*1024}, v{vL16}
v_mov_b32 v{ZERO}, 0
v_mov_b32 v{ZERO+1}, 0
v_mov_b32 v{ZERO+2}, 0
v_mov_b32 v{ZERO+3}, 0
v_mov_b32 v{vT0}, 0x3f803f80
s_and_b32 s{sP}, s{sWAVE}, 1
s_mul_i32 s{sCTXA}, s{sDGA}, {2*144*1024}
s_mul_i32 s{sCTXB}, s{sDGB}, {2*144*1024}
s_lshl_b32 s{sT0}, s{sH}, 12
s_add_u32 s{sT0}, s{sT0}, {CTX}
s_add_u32 s{sCTXA}, s{sCTXA}, s{sT0}
s_add_u32 s{sCTXB}, s{sCTXB}, s{sT0}
v_add_u32 v{vK}, 0x10000, v{vL16}
v_add_u32 v{vV}, 0x10000, v{vL16}
s_lshl_b32 s{sT0}, s{sWAVE}, 13
s_add_u32 s{sT0}, s{sT0}, {RQ}
v_add_u32 v{vQX}, s{sT0}, v{vL16}
s_lshl_b32 s{sT0}, s{sWAVE}, 9
s_add_u32 s{sT0}, s{sT0}, {MX}
v_lshlrev_b32 v{vMX}, 3, v{vL}
v_add_u32 v{vMX}, s{sT0}, v{vMX}
s_add_u32 s{sKD}, s{sW4}, 0x10000         ; K(2) -> parity 0
s_add_u32 s{sVD}, s{sW4}, 0x4000          ; V(1) -> parity 1
s_mov_b32 s{sKAP}, -1
s_min_u32 s{sDMIN}, s{sDGA}, s{sDGB}
s_mov_b32 s{sEVA}, s{sDGA}
s_mov_b32 s{sEVB}, s{sDGB}
s_mov_b32 s90, 0x400000
s_mov_b32 s91, 0x20000
s_mov_b32 s94, 0x80000
s_mov_b32 s95, 0x20000
""")
    for r in range(4): a(f"v_accvgpr_write_b32 a{ONES+r}, v{vT0}")
    def zero16(reg):
        return f"{MF32} {reg}, v[{ZERO}:{ZERO+3}], v[{ZERO}:{ZERO+3}], 0"
    for k in range(8): a(zero16(f"a[{O+k*16}:{O+k*16+15}]"))
    a(zero16(f"a[{LA}:{LA+15}]"))
    for it in pa.chunk_dmas(1): it.fn()
    if CPF:
        LPC = a.newlabel("K2_pc")
        a(f"""
s_getpc_b64 s[96:97]
{LPC}:
v_lshlrev_b32 v{vT1}, 7, v{vL}
s_lshl_b32 s{sT0}, s{sWAVE}, 13
v_add_u32 v{vT1}, s{sT0}, v{vT1}
v_min_u32 v{vT1}, K2_code_end - {LPC} - 4, v{vT1}
""")
        a.vm(f"global_load_dword v{vT2}, v{vT1}, s[96:97]", "cpf")
    def tile_dma(src, ldsexpr, tag, srcadd=None, post=()):
        its = [I(f"s_add_u32 m0, s{ldsexpr[0]}, {ldsexpr[1]}"), I(f"s_add_u32 s{sT1}, s{src}, {srcadd}" if srcadd is not None else "s_nop 0")]
        for i in range(4):
            its.append(mk.VM(f"buffer_load_dwordx4 v{vL16}, s[{sWS}:{sWS+3}], s{sT1 if srcadd is not None else src} offen offset:{i*1024}{SC} lds", tag))
        return its + [I(t) for t in post]
    B = pa.build(stamp=2)
    g6 = pa.bar_gap(6) + 6
    if fused:
        def sig():
            L = a.newlabel("K2_sig")
            a(f"""
s_cmp_lg_u32 s{sWAVE}, 0
s_cbranch_scc1 {L}
v_mov_b32 v{vT0}, 1
s_mov_b64 exec, 1
buffer_atomic_add v{vT0}, v{ZERO}, s[52:55], 0 offen sc1
s_mov_b64 exec, -1
{L}:
""")
        sig()
        a(f"s_cmp_eq_u32 s{sWAVE}, 0")
        a(f"s_cselect_b32 s50, 256, 0")
        B.put(pa.bar_gap(6) - PLEAD, mk.VM(f"buffer_load_dword v{vT2}, v{ZERO}, s[52:55], s{sW4} offen sc1", "poll"))
        def chk():
            L = a.newlabel("K2_spin"); R = a.newlabel("K2_spun"); LP = a.newlabel("K2_spl")
            a.wait_vm("poll", always=True)
            a(f"v_readfirstlane_b32 s{sT0}, v{vT2}")
            a("s_nop 0")
            a(f"s_cmp_lt_u32 s{sT0}, s50")
            a(f"s_cbranch_scc1 {L}")
            a.label(R)
            a.stubs.append(f"""{L}:
s_mov_b32 s{sT1}, 0x40000
{LP}:
s_sleep {PSLEEP}
buffer_load_dword v{vT2}, v{ZERO}, s[52:55], 0 offen sc1
s_waitcnt vmcnt(0)
v_readfirstlane_b32 s{sT0}, v{vT2}
s_sub_u32 s{sT1}, s{sT1}, 1
s_cmp_eq_u32 s{sT1}, 0
s_cbranch_scc1 {R}
s_cmp_lt_u32 s{sT0}, 256
s_cbranch_scc1 {LP}
s_branch {R}""")
        B.put(pa.bar_gap(6) - 1, Item(chk, 20, "X"), 3)
    B.spread(tile_dma(sKSRC, (sW4, 0x10000), "kv") + tile_dma(sVSRC, (sW4, 0x14000), "kv") + tile_dma(sKSRC, (sW4, 0), "kv", 16384), g6, g6 + 56)
    def qcvt(u, dk, j):
        r = pa.acc(2 * dk + (j >> 1), u) + (j & 1) * 2
        return f"v_cvt_pk_bf16_f32 v{q(u, dk) + j}, v{r}, v{r+1}"
    qearly = []
    for dk in range(2):
        its = [I(qcvt(u, dk, j), 5) for u in range(2) for j in range(4)]
        B.spread(its, 480 + dk * 8 + 14, 480 + dk * 8 + 22)
        qearly += [(u, dk) for u in range(2)]
    B.emit(a)
    a.stamp(3); a.stamp(21, real=True)
    a.wait_vm("kv"); a("s_barrier")

    LMASK = a.newlabel("K2_mask"); LADJ = [a.newlabel("K2_adj0"), a.newlabel("K2_adj1")]
    def kread(hs, f):
        b = KF + f * 4
        return mk.LG(f"ds_read_b128 a[{b}:{b+3}], v{vK} offset:{hs*8192 + f*1024}", ("kf", f))
    def vread(hs, f):
        b = VF + f * 4
        return mk.LG(f"ds_read_b128 a[{b}:{b+3}], v{vV} offset:{0x4000 + hs*8192 + f*1024}", ("vf", f))
    def qk_mfma(B, base, buf, wait=2, late=False):
        for f in range(8):
            kt, dk = f >> 2, f & 3
            for u in range(4):
                d = s_(buf, u, kt); c = nm(u, kt) if dk == 0 else d
                st = f"{MF} v[{d}:{d+3}], a[{KF+f*4}:{KF+f*4+3}], v[{q(u,dk)}:{q(u,dk)+3}], v[{c}:{c+3}]"
                B.mfma[base + f * 4 + u] = (lambda st=st: a(st))
            if f % wait == 0: B.put_pre(base + f * 4, mk.WL(("kf", f + wait - 1)))
    def pv_mfma(B, base, buf, wait=2, order="d"):
        for f in range(8):
            for u in range(4):
                o = o_(u, f); p = p_(buf, u)
                st = f"{MF} a[{o}:{o+3}], a[{VF+f*4}:{VF+f*4+3}], v[{p}:{p+3}], a[{o}:{o+3}]"
                m = {"d": f * 4 + u, "b": (0 if u >= 2 else 16) + f * 2 + (u & 1), "u": u * 8 + f}[order]
                B.mfma[base + m] = (lambda st=st: a(st))
            if f % wait == 0:
                B.put_pre(base + {"d": f * 4, "b": f * 2, "u": f}[order], mk.WL(("vf", f + wait - 1)))
    def lmfma(par, u):
        t = f"{MF} a[{LA+u*4}:{LA+u*4+3}], a[{ONES}:{ONES+3}], v[{p_(par,u)}:{p_(par,u)+3}], a[{LA+u*4}:{LA+u*4+3}]"
        return Item(lambda: a(t), 8, "v")
    def lread(par, u): return I(f"v_accvgpr_read_b32 v{lc(par,u)}, a{LA+u*4}")
    def ex(par, i): return I(f"v_exp_f32 v{TE+i%8}, v{S+par*32+i}")
    def cv(par, c): return I(f"v_cvt_pk_bf16_f32 v{P+par*16+c}, v{TE+(2*c)%8}, v{TE+(2*c+1)%8}")
    def early(par):
        return [ex(par, 0), ex(par, 1), ex(par, 2), cv(par, 0), ex(par, 3), ex(par, 4), cv(par, 1), ex(par, 5)]
    def softmax_items(par, skip_early=False):
        its = [] if skip_early else early(par)
        for i in range(6, 34):
            if i < 32: its.append(ex(par, i))
            if i == 32: its.append(I("v_nop"))
            if i % 2 == 0 and i // 2 - 1 < 16: its.append(cv(par, i // 2 - 1))
            if i in (10, 18, 26): its.append(lmfma(par, (i >> 3) - 1))
            if i in (20, 28): its.append(lread(par, (i >> 3) - 2))
        return its
    def softmax_tail(B, g, par, check=True):
        B.put(g, I("v_nop")); B.put(g, lmfma(par, 3))
        B.put(g + 2, lread(par, 2))
        if check: B.put(g + 3, I(f"v_max3_f32 v{vT0}, v{lc(par,0)}, v{lc(par,1)}, v{lc(par,2)}"))
        B.put(g + 7, lread(par, 3))
        if check:
            B.put(g + 8, I(f"v_max_f32 v{vT0}, v{vT0}, v{lc(par,3)}"))
            B.put(g + 8, I(f"v_cmp_nle_f32 vcc, v{vT0}, v{vTHR}"))
            B.put(g + 10, check_item(par), 3)
    def call_stub(branch, target):
        def f():
            L = a.newlabel("K2_st"); R = a.newlabel("K2_rt")
            a(f"{branch} {L}")
            a.label(R)
            a.stubs.append(f"{L}:\ns_call_b64 s[{sRET}:{sRET+1}], {target}\ns_branch {R}")
        return Item(f, 4, "s")
    def check_item(par): return call_stub("s_cbranch_vccnz", LADJ[par])
    def mask_items():
        return [I(f"s_add_u32 s{sKAP}, s{sKAP}, 1"), I(f"s_cmp_ge_u32 s{sKAP}, s{sDMIN}"),
                Item(lambda: a(f"s_getpc_b64 s[{sRET}:{sRET+1}]\ns_cbranch_scc1 {LMASK}"), 8, "X")]
    def put_mask(B, g):
        m = mask_items()
        B.put(g - 1, m[0])
        assert not B.gap[g].c[0] and not B.gap[g].c[3]
        B.put(g, m[1], 0); B.put(g, m[2], 3)
    def put_bar(B, g):
        B.put(g, mk.WV("kv", lg0=True), 3); B.put(g, I("s_barrier"), 3)
    def togK(): return I(f"v_xor_b32 v{vK}, 0x10000, v{vK}")
    def togV(): return I(f"v_xor_b32 v{vV}, 0x10000, v{vV}")
    def kv_dmas(src, dst, two):
        adv = (f"s_add_u32 s{src}, s{src}, 16384", f"s_xor_b32 s{dst}, s{dst}, 0x10000")
        if not two: return tile_dma(src, (dst, 0), "kv", post=adv)
        return tile_dma(src, (dst, 0), "kv") + tile_dma(src, (dst, 0x8000), "kv", f"s{sOFF}", post=adv)
    NPRE = 6
    def body_emit(two):
        B = Body(128)
        qk_mfma(B, 0, 0, 4); pv_mfma(B, 32, 0, 4, "u"); qk_mfma(B, 64, 1, 4); pv_mfma(B, 96, 1, 8, "u")
        ins = []
        for par, G0 in ((1, -12), (0, 52), (1, 116)):
            for i in range(32):
                g = G0 + 2 * i
                if 0 <= g < 128: B.put(g, ex(par, i))
            for c in range(16):
                g = G0 + 4 * c + 5
                if 0 <= g < 128: B.put(g, cv(par, c))
            if G0 < 100:
                for u in range(4):
                    ins.append((G0 + 16 * u + 19, lmfma(par, u).fn))
                    B.put(G0 + 16 * u + 23, lread(par, u))
                B.put(G0 + 55, I(f"v_max3_f32 v{vT0}, v{lc(par,0)}, v{lc(par,1)}, v{lc(par,2)}"))
                B.put(G0 + 71, I(f"v_max_f32 v{vT0}, v{vT0}, v{lc(par,3)}"))
                B.put(G0 + 73, I(f"v_cmp_nle_f32 vcc, v{vT0}, v{vTHR}"))
                B.put(G0 + 75, check_item(par), 3)
        B.put(1, kread(0, 6)); B.put(5, kread(0, 7))
        for f, g in enumerate((9, 11, 13, 17, 21, 25, 27, 29)): B.put(g, vread(0, f))
        for f, g in enumerate((33, 37, 41, 45, 47, 49, 53, 57)): B.put(g, kread(1, f))
        B.put(63, togK())
        for f, g in enumerate((65, 69, 73, 75, 77, 81, 85, 89)): B.put(g, vread(1, f))
        B.put(91, togV())
        put_bar(B, 95)
        for f, g in enumerate((101, 105, 109, 113, 117, 121)): B.put(g, kread(0, f))
        put_mask(B, 51)
        put_mask(B, 87)
        B.put(84, I(f"s_sub_u32 s{sCNT}, s{sCNT}, 1"))
        for after, fn in sorted(ins, reverse=True): B.insert_mfma(after, fn)
        r = lambda v: v + sum(1 for x, _ in ins if x < v)
        B.stream(kv_dmas(sVSRC, sVD, two), 0, r(50), even=False)
        B.stream(kv_dmas(sKSRC, sKD, two), r(95) + 1, r(127), even=False)
        print("body est", two, B.est())
        B.emit(a)
    def quad_max(regs, tmp):
        for sw in ("v_permlane16_swap_b32", "v_permlane32_swap_b32"):
            for i, r in enumerate(regs): a(f"v_mov_b32 v{tmp+i}, v{r}")
            for i, r in enumerate(regs): a(f"{sw} v{r}, v{tmp+i}")
            for i, r in enumerate(regs): a(f"v_max_f32 v{r}, v{r}, v{tmp+i}")
    def row_max(par, dst):
        for u in range(4):
            b = s_(par, u, 0)
            a(f"v_max3_f32 v{dst[u]}, v{b}, v{b+1}, v{b+2}")
            a(f"v_max3_f32 v{TE+u}, v{b+3}, v{b+4}, v{b+5}")
        for u in range(4):
            b = s_(par, u, 0)
            a(f"v_max3_f32 v{dst[u]}, v{dst[u]}, v{b+6}, v{b+7}")
        for u in range(4): a(f"v_max_f32 v{dst[u]}, v{dst[u]}, v{TE+u}")
        quad_max(dst, TE)
        for u in range(4): a(f"v_add_f32 v{dst[u]}, {hex(OFFS)}, v{dst[u]}")
    def fin_items(us, sCTX, scale, T):
        its = []; n = 0
        for ui, u in enumerate(us):
            for dk in range(4):
                pk = PKR + (n % 4) * 4
                for j in range(4):
                    r = o_(u, 2 * dk + (j >> 1)) + (j & 1) * 2
                    t = T + (j % 4) * 2
                    its.append(I(f"v_accvgpr_read_b32 v{t}, a{r}", 5))
                    its.append(I(f"v_accvgpr_read_b32 v{t+1}, a{r+1}", 5))
                    its.append(I(f"v_mul_f32 v{t}, v{t}, v{scale[ui]}"))
                    its.append(I(f"v_mul_f32 v{t+1}, v{t+1}, v{scale[ui]}"))
                    its.append(I(f"v_cvt_pk_bf16_f32 v{pk+j}, v{t}, v{t+1}", 5))
                its.append(mk.VM(f"buffer_store_dwordx4 v[{pk}:{pk+3}], v{vST[ui]}, s[{sWS}:{sWS+3}], s{sCTX} offen offset:{dk*1024} sc1", "st"))
                n += 1
        return its

    for f in range(NPRE): kread(0, f).fn()
    for u in range(4):
        for dk in range(4):
            if (u, dk) in qearly: continue
            for j in range(4): a(qcvt(u, dk, j))
    a(zero16(f"v[{NM}:{NM+15}]")); a(zero16(f"v[{NM+16}:{NM+31}]"))
    for r in range(4): a(f"v_cmp_gt_i32 s[{sM[r]}:{sM[r]+1}], {r}, v{vDG}")
    a(f"""
s_add_u32 s{sKSRC}, s{sKSRC}, 32768
s_add_u32 s{sVSRC}, s{sVSRC}, 16384
s_lshl_b32 s{sOFF}, s{sI}, 15
s_sub_u32 s{sOFF}, {15*16384}, s{sOFF}    ; T tiles
s_add_u32 s{sT0}, s{sKSRC}, {15*16384}    ; tile D+T = 17
""")
    for u in range(2):
        for dk in range(4):
            a.lg(f"ds_write_b128 v{vQX}, v[{q(u,dk)}:{q(u,dk)+3}] offset:{(u*4+dk)*1024}", "qx")
    a.stamp(4)
    for it in mask_items(): it.fn()
    B = Body(32)
    qk_mfma(B, 0, 0)
    for f in range(NPRE, 8): B.put(4 * (f - NPRE), kread(0, f))
    for f in range(NPRE): B.put(8 + 4 * f, kread(1, f))
    B.spread(tile_dma(sT0, (sW4, 0x18000), "kd") + tile_dma(sT0, (sW4, 0x8000), "kd", 16384), 1, 25)
    put_mask(B, 26)
    B.emit(a)
    for f in range(NPRE, 8): kread(1, f).fn()
    togK().fn()
    a("s_nop 4")
    DE = [D, D + 2, F, F + 2]
    row_max(0, DE)
    for u in range(4):
        a(f"v_mov_b32 v{M+u}, v{DE[u]}")
        for r in range(0, 8, 2):
            a(f"v_pk_add_f32 v[{nm(u,0)+r}:{nm(u,0)+r+1}], v[{nm(u,0)+r}:{nm(u,0)+r+1}], v[{DE[u]}:{DE[u]+1}] op_sel_hi:[1,0] neg_lo:[0,1] neg_hi:[0,1]")
    for k in range(0, 32, 2):
        a(f"v_pk_add_f32 v[{S+k}:{S+k+1}], v[{S+k}:{S+k+1}], v[{DE[k>>3]}:{DE[k>>3]+1}] op_sel_hi:[1,0] neg_lo:[0,1] neg_hi:[0,1]")
    B = Body(32)
    qk_mfma(B, 0, 1, 8)
    put_bar(B, 1)
    for f in range(NPRE): B.put(8 + 4 * f, kread(0, f))
    softmax_tail(B, 23, 0, check=False)
    B.spread(softmax_items(0), 0, 23)
    put_mask(B, 25)
    B.stream(kv_dmas(sKSRC, sKD, False), 23, 32)
    B.emit(a)
    a("s_nop 3")
    for it in early(1): it.fn()
    a.stamp(5); a.stamp(16, real=True)
    LD = a.newlabel("K2_dual")
    a(f"""
s_lshl_b32 s{sCNT}, s{sI}, 1
s_add_u32 s{sCNT}, s{sCNT}, 1
""")
    a(".p2align 3")
    a.label(LD)
    loop_emit(a, lambda: body_emit(False))
    a(f"""
s_cmp_lg_u32 s{sCNT}, 0
s_cbranch_scc1 {LD}
""")
    a.stamp(6); a.stamp(17, real=True)
    B = Body(128)
    pv_mfma(B, 0, 0); pv_mfma(B, 32, 1, 2, "b"); qk_mfma(B, 64, 0, 4); qk_mfma(B, 96, 1, 4)
    for f in range(NPRE): vread(0, f).fn()
    for f in range(NPRE, 8): B.put(3 * (f - NPRE), vread(0, f))
    for f in range(7): B.put(4 * f + 4, vread(1, f))
    B.put(31, vread(1, 7))
    softmax_tail(B, 21, 1)
    B.spread(softmax_items(1, True), 0, 21)
    def sw1():
        a.lg(f"ds_write_b64 v{vMX}, v[{M}:{M+1}]", "mx")
        a(f"v_xor_b32 v{vMX}, 512, v{vMX}")
        a(f"v_xor_b32 v{vQX}, 0x2000, v{vQX}")
        a(f"v_rcp_f32 v{F}, v{lc(1,2)}")
        a(f"v_rcp_f32 v{F+1}, v{lc(1,3)}")
    B.put(32, Item(sw1, 28))
    B.put(33, togV())
    def sw2():
        a(f"""
s_xor_b32 s{sDGB}, s{sDGA}, 1
s_mov_b32 s{sEVB}, s{sDGB}
s_min_u32 s{sDMIN}, s{sEVA}, s{sEVB}
s_sub_u32 s{sKAP}, s{sKAP}, 1
s_cmp_eq_u32 s{sP}, 1
s_cselect_b32 s{sKAP}, 33, s{sKAP}
s_lshl_b32 s{sT0}, s{sP}, 15
v_add_u32 v{vK}, s{sT0}, v{vK}
v_add_u32 v{vV}, s{sT0}, v{vV}
""")
    B.put(34, Item(sw2, 28))
    def sw3():
        a("s_waitcnt lgkmcnt(0)"); a.lgq = []
        a("s_barrier")
        a.lg(f"ds_read_b64 v[{M+2}:{M+3}], v{vMX}", "mx")
    B.put(36, Item(sw3, 12))
    for k in range(8):
        u, dk = k >> 2, k & 3
        B.put(37 + k, mk.LG(f"ds_read_b128 v[{q(2+u,dk)}:{q(2+u,dk)+3}], v{vQX} offset:{(u*4+dk)*1024}", "qx"))
    for f in range(8): B.put(46 + 2 * f, kread(0, f))
    B.put(45, mk.WL("mx"), 3)
    nmi = []
    for u in (2, 3):
        for r in range(8): nmi.append(I(f"v_sub_f32 v{nm(u,0)+r}, 0, v{M+u}"))
        nmi.append(I(f"v_mov_b32 v{lc(1,u)}, 0"))
        nmi.append(I(f"v_accvgpr_write_b32 a{LA+4*u}, 0", 5))
    B.spread(nmi, 46, 56)
    put_mask(B, 60)
    put_mask(B, 92)
    for f in range(8): B.put(68 + 4 * f, kread(1, f))
    B.put(97, togK())
    put_bar(B, 104)
    for f in range(NPRE): B.put(106 + 4 * f, kread(0, f)) if 106 + 4 * f < 128 else None
    B.spread(kv_dmas(sVSRC, sVD, True), 22, 56)
    B.spread(fin_items([2, 3], sCTXB, [F, F + 1], S + 32), 56, 95)
    zs = [Item(lambda k=k: a(zero16(f"a[{o_(2,0)+k*16}:{o_(2,0)+k*16+15}]")), 32, "X") for k in range(4)]
    for k in range(4): B.put(96 + k, zs[k])
    softmax_tail(B, 117, 0)
    B.spread(softmax_items(0), 100, 117)
    put_mask(B, 121)
    B.stream(kv_dmas(sKSRC, sKD, True), 108, 127)
    B.emit(a)
    a("s_nop 2")
    for it in early(1): it.fn()
    a.stamp(7); a.stamp(18, real=True)
    LS1 = a.newlabel("K2_single"); LS2 = a.newlabel("K2_sdone")
    a(f"""
s_lshl_b32 s{sT0}, s2, 2
s_add_u32 s{sT0}, s{sT0}, s{sWAVE}
v_and_b32 v{vT1}, 31, v{vL}
v_lshlrev_b32 v{vT1}, 7, v{vT1}
s_lshl_b32 s{sT1}, s{sT0}, 12
""")
    a.vm(f"buffer_load_dword v{vT2}, v{vT1}, s[88:91], s{sT1} offen", "warm")
    a(f"v_and_b32 v{vT1}, 0x180, v{vT1}")
    a(f"s_lshl_b32 s{sT1}, s{sT0}, 9")
    a.vm(f"buffer_load_dword v{vT2}, v{vT1}, s[92:95], s{sT1} offen", "warm")
    a(f"""
s_lshl_b32 s{sCNT}, s{sI}, 1
s_sub_u32 s{sCNT}, 14, s{sCNT}
s_cmp_eq_u32 s{sCNT}, 0
s_cbranch_scc1 {LS2}
""")
    st = (list(a.vmq), list(a.lgq))
    a(".p2align 3")
    a.label(LS1)
    loop_emit(a, lambda: body_emit(True))
    a(f"""
s_cmp_lg_u32 s{sCNT}, 0
s_cbranch_scc1 {LS1}
""")
    a.label(LS2)
    assert a.diag or st[1] == a.lgq, (st[1], a.lgq)
    a.vmq = ["kv"]
    a.stamp(8); a.stamp(20, real=True)
    sPHI = sX
    BQ, BZ = 152, 212
    BW = NM
    a(f"""
s_mov_b32 s{sPHI}, s62
s_mov_b32 s{sPHI+1}, s63
s_mov_b32 s{sPHI+2}, 16384
s_mul_i32 s{sB0}, s{sH}, {8 * BKV_P}
s_add_u32 s{sB0}, s{sB0}, {BKV}
s_lshr_b32 s{sB1}, s{sH}, 3
s_add_u32 s{sB1}, s{sB1}, 32
s_lshl_b32 s{sB1}, s{sB1}, 19
s_lshl_b32 s{sT2}, s{sI}, 16
s_add_u32 s{sB1}, s{sB1}, s{sT2}
s_lshl_b32 s{sT2}, s{sWAVE}, 14
s_add_u32 s{sB1}, s{sB1}, s{sT2}
s_and_b32 s{sT2}, s{sH}, 6
s_lshl_b32 s{sT2}, s{sT2}, 9
s_add_u32 s{sB1}, s{sB1}, s{sT2}
s_and_b32 s{sT2}, s{sH}, 1
s_lshl_b32 s{sT2}, s{sT2}, 3
s_add_u32 s{sB1}, s{sB1}, s{sT2}
s_lshl_b32 s{sKAP}, s{sH}, 9
s_lshl_b32 s{sT0}, s{sWAVE}, 15
v_add_u32 v{vK}, s{sT0}, v{vL16}
v_lshrrev_b32 v{vT1}, 4, v{vL}
v_and_b32 v{vDG}, 15, v{vL}
v_lshlrev_b32 v{vDG}, 1, v{vDG}
v_lshl_add_u32 v{vDG}, v{vT1}, 7, v{vDG}
v_and_b32 v{vMX}, 7, v{vL}
v_mul_u32_u24 v{vMX}, {BKV_P}, v{vMX}
v_lshl_add_u32 v{vMX}, v{vT1}, 4, v{vMX}
v_xor_b32 v{vQX}, 0x2000, v{vQX}
""")
    B = Body(64)
    pv_mfma(B, 0, 0); pv_mfma(B, 32, 1, 2, "b")
    for f in range(NPRE): vread(0, f).fn()
    for f in range(NPRE, 8): B.put(3 * (f - NPRE), vread(0, f))
    for f in range(7): B.put(4 * f + 4, vread(1, f))
    B.put(31, vread(1, 7))
    softmax_tail(B, 21, 1)
    bl = []
    for ft in range(2):
        bl.append(Item(lambda ft=ft: a.vm(f"buffer_load_dwordx4 a[{BZ+ft*4}:{BZ+ft*4+3}], v{vMX}, s[{sWS}:{sWS+3}], s{sB0} offen offset:{2048+ft*64}{SC}", "bl"), 8))
    for t in range(4):
        bl.append(Item(lambda t=t: (a.vm(f"buffer_load_dwordx2 a[{BQ+2*t}:{BQ+2*t+1}], v{vL16}, s[{sWS}:{sWS+3}], s{sB1} offen{SC}", "bl"), a(f"s_add_u32 s{sB1}, s{sB1}, 4096")), 12))
    for pp in range(8):
        for ft in range(2):
            def f(pp=pp, ft=ft):
                a.vm(f"buffer_load_dwordx4 v[{Q+pp*8+ft*4}:{Q+pp*8+ft*4+3}], v{vL16}, s[{sWS}:{sWS+3}], s{sB0} offen offset:{ft*1024}{SC}", "bl")
                if ft: a(f"s_add_u32 s{sB0}, s{sB0}, {BKV_P}")
            bl.append(Item(f, 8 + 4 * ft))
    B.spread(bl, 0, 31)
    B.spread(softmax_items(1, True), 0, 21)
    def st1():
        a(f"v_mov_b32 v{D}, v{M+2}")
        a(f"v_mov_b32 v{D+1}, v{M+3}")
        a(f"v_mov_b32 v{D+2}, v{lc(1,2)}")
        a(f"v_mov_b32 v{D+3}, v{lc(1,3)}")
        a.lg(f"ds_write_b128 v{vQX}, v[{D}:{D+3}]", "sx")
        a(f"v_xor_b32 v{vQX}, 0x2000, v{vQX}")
    B.put(32, Item(st1, 24))
    for j in range(4):
        B.put(33 + j, Item(lambda j=j: a.vm(f"buffer_load_ushort v{BW+j}, v{vDG}, s[{sPHI}:{sPHI+3}], s{sKAP} offen offset:{j*32}", "bl"), 8))
    def st2():
        a.wait_vm("kv", always=True)
        a("s_waitcnt lgkmcnt(0)"); a.lgq = []
        a("s_barrier")
        a.lg(f"ds_read_b128 v[{D}:{D+3}], v{vQX}", "sx")
    B.put(38, Item(st2, 12))
    for f in range(8):
        for ub in range(2):
            o = o_(2 + ub, f)
            B.put(min(32 + 2 * f + ub + 10, 63), Item(lambda o=o, f=f, ub=ub: a.lg(f"ds_write_b128 v{vK}, a[{o}:{o+3}] offset:{(ub*8+f)*1024}", "ox"), 8))
    FA = [F, F + 2]; FB = [TE, TE + 2]
    def st3():
        a.wait_lg("sx", always=True)
        for u in range(2):
            a(f"v_max_f32 v{vT1}, v{M+u}, v{D+u}")
            a(f"v_sub_f32 v{FA[u]}, v{M+u}, v{vT1}")
            a(f"v_sub_f32 v{FB[u]}, v{D+u}, v{vT1}")
        for u in range(2):
            a(f"v_exp_f32 v{FA[u]}, v{FA[u]}")
            a(f"v_exp_f32 v{FB[u]}, v{FB[u]}")
    def st4():
        for u in range(2):
            a(f"v_mul_f32 v{lc(1,u)}, v{lc(1,u)}, v{FA[u]}")
            a(f"v_fmac_f32 v{lc(1,u)}, v{D+2+u}, v{FB[u]}")
        for u in range(2): a(f"v_rcp_f32 v{lc(1,u)}, v{lc(1,u)}")
    def st5():
        for u in range(2):
            a(f"v_mul_f32 v{FA[u]}, v{FA[u]}, v{lc(1,u)}")
            a(f"v_mul_f32 v{FB[u]}, v{FB[u]}, v{lc(1,u)}")
    B.put(46, Item(st3, 60)); B.put(50, Item(st4, 32)); B.put(53, Item(st5, 16))
    B.emit(a)
    a(f"""
v_xor_b32 v{vK}, 0x8000, v{vK}
s_waitcnt lgkmcnt(0)
s_barrier
""")
    a.lgq = []
    OB = S
    for r in range(15): a.lg(f"ds_read_b128 v[{OB+r*4}:{OB+r*4+3}], v{vK} offset:{r*1024}", ("ob", r))
    T = P
    n = 0
    for u in range(2):
        for r in range(32): a(f"v_accvgpr_read_b32 v{T+r}, a{o_(u,0)+r}")
        if u == 0: a.lg(f"ds_read_b128 v[{OB+60}:{OB+63}], v{vK} offset:{15*1024}", ("ob", 15))
        for r in range(0, 32, 2):
            a(f"v_pk_mul_f32 v[{T+r}:{T+r+1}], v[{T+r}:{T+r+1}], v[{FA[u]}:{FA[u]+1}] op_sel_hi:[1,0]")
        a.wait_lg(("ob", u * 8 + 7))
        for dk in range(4):
            pk = PKR + (n % 4) * 4
            for j in range(4):
                r = dk * 8 + j * 2
                a(f"v_pk_fma_f32 v[{T+r}:{T+r+1}], v[{OB+u*32+r}:{OB+u*32+r+1}], v[{FB[u]}:{FB[u]+1}], v[{T+r}:{T+r+1}] op_sel_hi:[1,0,1]")
            for j in range(4):
                r = dk * 8 + j * 2
                a(f"v_cvt_pk_bf16_f32 v{pk+j}, v{T+r}, v{T+r+1}")
            a.vm(f"buffer_store_dwordx4 v[{pk}:{pk+3}], v{vST[u]}, s[{sWS}:{sWS+3}], s{sCTXA} offen offset:{dk*1024} sc1", "st")
            n += 1
    a.stamp(9)
    a.wait_vm("bl")
    X, EP, EM, MXR, TB, PH = S, S + 16, S + 32, S + 48, S + 56, P
    ZS = P + 16
    a(f"v_lshl_or_b32 v{BW}, v{BW+1}, 16, v{BW}")
    a(f"v_lshl_or_b32 v{BW+1}, v{BW+3}, 16, v{BW+2}")
    a(f"s_mov_b32 s{sKAP}, {hex(f2u(LOG2E))}")
    for r in range(8): a(f"v_accvgpr_read_b32 v{ZS+r}, a{BZ+r}")
    for t in range(4):
        a(f"{MF16} v[{X+t*4}:{X+t*4+3}], v[{BW}:{BW+1}], a[{BQ+2*t}:{BQ+2*t+1}], 0")
    for step in (32, 16, 8):
        for r in range(0, step, 2): a(f"v_pk_add_f32 v[{Q+r}:{Q+r+1}], v[{Q+r}:{Q+r+1}], v[{Q+step+r}:{Q+step+r+1}]")
    for dpp in ("quad_perm:[1,0,3,2]", "quad_perm:[2,3,0,1]", "row_half_mirror"):
        for r in range(8): a(f"v_add_f32_dpp v{ZS+r}, v{ZS+r}, v{ZS+r} {dpp} row_mask:0xf bank_mask:0xf")
    KVF, ZF = Q + 8, Q + 12
    for j in range(4):
        a(f"v_cvt_pk_bf16_f32 v{KVF+j}, v{Q+2*j}, v{Q+2*j+1}")
        a(f"v_cvt_pk_bf16_f32 v{ZF+j}, v{ZS+2*j}, v{ZS+2*j+1}")
    hedge_softmax(a, X, EP, EM, MXR, TB, PH, vX16, vX32, sKAP)
    a("s_nop 1")
    NUM, DEN = Q + 16, Q + 32
    for t in range(4):
        a(f"{MF} v[{NUM+t*4}:{NUM+t*4+3}], v[{KVF}:{KVF+3}], v[{PH+t*4}:{PH+t*4+3}], 0")
        a(f"{MF} v[{DEN+t*4}:{DEN+t*4+3}], v[{ZF}:{ZF+3}], v[{PH+t*4}:{PH+t*4+3}], 0")
    a(f"""
s_lshl_b32 s{sT0}, s{sI}, 2
s_add_u32 s{sT0}, s{sT0}, s{sWAVE}
s_mul_i32 s{sT0}, s{sT0}, {4*144*1024}
s_lshr_b32 s{sT1}, s{sH}, 1
s_lshl_b32 s{sT1}, s{sT1}, 10
s_add_u32 s{sT0}, s{sT0}, s{sT1}
s_add_u32 s{sT0}, s{sT0}, s{sT2}
s_add_u32 s{sT0}, s{sT0}, {CTX + 128*1024}
""")
    for t in range(4): a(f"v_add_f32 v{TE+t}, {hex(f2u(1e-6))}, v{DEN+t*4}")
    for t in range(4): a(f"v_rcp_f32 v{TE+t}, v{TE+t}")
    for t in range(4):
        for r in range(4): a(f"v_mul_f32 v{NUM+t*4+r}, v{NUM+t*4+r}, v{TE+t}")
        a(f"v_cvt_pk_bf16_f32 v{NUM+t*4}, v{NUM+t*4}, v{NUM+t*4+1}")
        a(f"v_cvt_pk_bf16_f32 v{NUM+t*4+1}, v{NUM+t*4+2}, v{NUM+t*4+3}")
        a.vm(f"buffer_store_dwordx2 v[{NUM+t*4}:{NUM+t*4+1}], v{vL16}, s[{sWS}:{sWS+3}], s{sT0} offen sc1", "st")
        a(f"s_add_u32 s{sT0}, s{sT0}, {144*1024}")
    a.stamp(12)
    if a.diag: a("s_waitcnt vmcnt(0)")
    a.stamp(23); a.stamp(10, real=True)
    a.stamp_flush(sWS, sWAVE, 24, DIAG, kidx=1)
    a.label(END)
    a("s_endpgm")
    a.flush_stubs()

    a.label(LMASK)
    a(f"s_add_u32 s{sRET}, s{sRET}, 4")
    a(f"s_addc_u32 s{sRET+1}, s{sRET+1}, 0")
    for g, sD, sE in ((0, sDGA, sEVA), (1, sDGB, sEVB)):
        L1 = a.newlabel("K2_m1"); L2 = a.newlabel("K2_m2")
        a(f"""
s_cmp_lt_u32 s{sKAP}, s{sE}
s_cbranch_scc1 {L2}
s_cmp_eq_u32 s{sKAP}, s{sD}
s_cbranch_scc1 {L1}
s_mov_b32 s{sE}, 0x7fffffff
""")
        for r in range(0, 16, 2): a(f"v_pk_mov_b32 v[{nm(2*g,0)+r}:{nm(2*g,0)+r+1}], v[{vBIG}:{vBIG+1}], v[{vBIG}:{vBIG+1}] op_sel:[0,0]")
        a(f"s_branch {L2}")
        a.label(L1)
        a(f"s_add_u32 s{sE}, s{sD}, 1")
        for r in range(0, 4, 2): a(f"v_pk_mov_b32 v[{nm(2*g,1)+r}:{nm(2*g,1)+r+1}], v[{vBIG}:{vBIG+1}], v[{vBIG}:{vBIG+1}] op_sel:[0,0]")
        for r in range(4):
            a(f"v_cndmask_b32 v{nm(2*g,0)+r}, v{nm(2*g,0)+r}, v{vBIG}, s[{sM[r]}:{sM[r]+1}]")
            a(f"v_cndmask_b32 v{nm(2*g+1,1)+r}, v{nm(2*g+1,1)+r}, v{vBIG}, s[{sM[r]}:{sM[r]+1}]")
        a.label(L2)
    a(f"s_min_u32 s{sDMIN}, s{sEVA}, s{sEVB}")
    a(f"s_setpc_b64 s[{sRET}:{sRET+1}]")
    def adjust(par):
        a("s_nop 15")
        DD = [D + u for u in range(4)]
        row_max(par, DD)
        for u in range(4): a(f"v_max_f32 v{D+u}, 0, v{D+u}")
        for u in range(4): a(f"v_exp_f32 v{F+u}, -v{D+u}")
        a("s_nop 0")
        for u in range(4):
            a(f"v_mul_f32 v{lc(par^1,u)}, v{lc(par^1,u)}, v{F+u}")
            a(f"v_accvgpr_write_b32 a{LA+4*u}, v{lc(par^1,u)}")
            for r in range(32):
                t = TE + r % 8
                a(f"v_accvgpr_read_b32 v{t}, a{o_(u,0)+r}")
                a(f"v_mul_f32 v{t}, v{t}, v{F+u}")
                a(f"v_accvgpr_write_b32 a{o_(u,0)+r}, v{t}")
        for u in range(4):
            a(f"v_add_f32 v{M+u}, v{M+u}, v{D+u}")
            for r in range(8):
                a(f"v_sub_f32 v{s_(0,u,0)+r}, v{s_(0,u,0)+r}, v{D+u}")
                a(f"v_sub_f32 v{s_(1,u,0)+r}, v{s_(1,u,0)+r}, v{D+u}")
                a(f"v_sub_f32 v{nm(u,0)+r}, v{nm(u,0)+r}, v{D+u}")
        for it in softmax_items(par): it.fn()
        a("s_nop 1"); lmfma(par, 3).fn(); a("s_nop 7")
        lread(par, 2).fn(); lread(par, 3).fn()
        for it in early(par ^ 1): it.fn()
        a("s_nop 1")
        a(f"s_setpc_b64 s[{sRET}:{sRET+1}]")
    for par in range(2):
        a.label(LADJ[par]); adjust(par)
    a.label("K2_code_end")
    a("s_endpgm")
```

```python
from asmlib import Asm
from sched import *
from common import *

PART = 0

def gen_k3(a, name="k3_kernel", K4=True, PST="sc1"):
    a.kernel(name, (256,1,1), (256,1,1), 131072, vgpr=208)
    sWO, sWB, sWS, sOUT, sDBG = 4, 8, 12, 16, 20
    (sWAVE, sRB, sCB, sKQ, sT0, sT1, sCNT, sCSRC, sWSRC, sW4, sOB, sGRP, sPSRC, sPDST, sOBB, sRH, sCH) = range(24, 41)
    ACC = 0
    ACB = 64
    FR = 80
    RX = 144
    vL16, vC2, vL, vT0, vT1, vT2, vO, vCR, vCR2 = 192, 193, 194, 195, 196, 197, 198, 199, 200
    vWD = [201, 202, 203, 204]
    vZ = 205
    vWR = [144, 145, 146, 147]; vWR2 = [148, 149, 150, 151]
    vBD = [152, 153, 154, 155]; vBC = [156, 157]; vBW = [158, 159, 160, 161]
    END = a.newlabel("K3_end")
    a(f"""
s_cmp_ge_u32 s2, 256
s_cbranch_scc1 {END}
""")
    a.stamp(14)
    a(f"""
s_load_dwordx2 s[44:45], s[0:1], 40     ; w_o
s_load_dwordx4 s[48:51], s[0:1], 72
s_load_dwordx4 s[52:55], s[0:1], 88
v_lshrrev_b32 v{vT0}, 6, v0
v_and_b32 v{vL}, 63, v0
v_readfirstlane_b32 s{sWAVE}, v{vT0}
s_lshr_b32 s{sT1}, s2, 3                ; q
s_and_b32 s{sCB}, s{sT1}, 3
s_lshr_b32 s{sRB}, s{sT1}, 2
s_and_b32 s{sT0}, s2, 1
s_lshl_b32 s{sT0}, s{sT0}, 3
s_add_u32 s{sRB}, s{sRB}, s{sT0}
s_bfe_u32 s{sKQ}, s2, 0x20001           ; K quarter
s_lshl_b32 s{sGRP}, s{sRB}, 2
s_add_u32 s{sGRP}, s{sGRP}, s{sCB}
s_lshl_b32 s{sT0}, s{sRB}, 2
s_add_u32 s{sT0}, s{sT0}, s{sWAVE}
s_mul_i32 s{sCSRC}, s{sT0}, {2*144*1024}
s_lshl_b32 s{sT0}, s{sKQ}, 15
s_add_u32 s{sCSRC}, s{sCSRC}, s{sT0}
s_add_u32 s{sCSRC}, s{sCSRC}, {CTX}
s_lshl_b32 s{sWSRC}, s{sKQ}, 20
s_lshl_b32 s{sT0}, s{sWAVE}, 14
s_add_u32 s{sWSRC}, s{sWSRC}, s{sT0}
s_lshl_b32 s{sT0}, s{sCB}, 8
s_add_u32 s{sWSRC}, s{sWSRC}, s{sT0}
s_lshl_b32 s{sW4}, s{sWAVE}, 12
s_mov_b32 s{sWO+2}, 0x400000
s_mov_b32 s{sWO+3}, 0x20000
s_mov_b32 s{sWB+2}, 0x80000
s_mov_b32 s{sWB+3}, 0x20000
s_mov_b32 s{sWS+2}, {WS_USED}
s_mov_b32 s{sWS+3}, 0x20000
s_mov_b32 s{sOUT+2}, 0x400000
s_mov_b32 s{sOUT+3}, 0x20000
s_mov_b32 s{sDBG+2}, 256
s_mov_b32 s{sDBG+3}, 0x20000
v_lshlrev_b32 v{vL16}, 4, v{vL}
v_add_u32 v{vC2}, {144*1024 - 2048}, v{vL16}
v_lshrrev_b32 v{vT2}, 4, v{vL}
v_lshlrev_b32 v{vT0}, 10, v{vT2}
v_and_b32 v{vT1}, 15, v{vL}
v_lshlrev_b32 v{vT2}, 1, v{vT2}
v_xor_b32 v{vT1}, v{vT1}, v{vT2}
v_lshl_add_u32 v{vWD[0]}, v{vT1}, 4, v{vT0}
v_xor_b32 v{vT1}, 8, v{vT1}
v_lshl_add_u32 v{vWD[1]}, v{vT1}, 4, v{vT0}
v_add_u32 v{vWD[1]}, 3072, v{vWD[1]}
v_add_u32 v{vWD[2]}, 6144, v{vWD[0]}
v_add_u32 v{vWD[3]}, 6144, v{vWD[1]}
s_waitcnt lgkmcnt(0)
s_mov_b32 s{sWO}, s44
s_mov_b32 s{sWO+1}, s45
s_mov_b32 s{sWB}, s48
s_mov_b32 s{sWB+1}, s49
s_mov_b32 s{sOUT}, s50
s_mov_b32 s{sOUT+1}, s51
s_mov_b32 s{sDBG}, s52
s_mov_b32 s{sDBG+1}, s53
s_mov_b32 s{sWS}, s54
s_mov_b32 s{sWS+1}, s55
""")
    a.stamp(0); a.stamp(1, real=True)
    mk = Mk(a); I = mk.I
    def a_dma(slot):
        its = [I(f"s_add_u32 m0, s{sW4}, {slot * 32768}"), I("s_nop 0")]
        for i in range(4):
            its.append(mk.VM(f"buffer_load_dwordx4 v{vL16 if i < 2 else vC2}, s[{sWS}:{sWS+3}], s{sCSRC} offen offset:{i*1024} lds", ("st", slot)))
        its += [I(f"s_add_u32 m0, s{sW4}, {slot * 32768 + 16384}"), I(f"s_add_u32 s{sCSRC}, s{sCSRC}, 2048")]
        for i in range(4):
            its.append(mk.VM(f"buffer_load_dwordx4 v{vWD[i]}, s[{sWO}:{sWO+3}], s{sWSRC} offen offset:{i*1024} lds", ("st", slot)))
        its.append(I(f"s_add_u32 s{sWSRC}, s{sWSRC}, 0x10000"))
        return its
    def b_dma(slot):
        its = [I(f"s_add_u32 m0, s{sW4}, {slot * 32768}"), I("s_nop 0")]
        for i in range(4):
            its.append(mk.VM(f"buffer_load_dwordx4 v{vL16}, s[{sWS}:{sWS+3}], s{sCSRC} offen offset:{i*1024} lds", ("st", slot)))
        its += [I(f"s_add_u32 m0, s{sW4}, {slot * 32768 + 16384}"), I(f"s_add_u32 s{sCSRC}, s{sCSRC}, 4096")]
        for i in range(4):
            its.append(mk.VM(f"buffer_load_dwordx4 v{vBD[i]}, s[{sWB}:{sWB+3}], s{sWSRC} offen offset:{i*1024} lds", ("st", slot)))
        its.append(I(f"s_add_u32 s{sWSRC}, s{sWSRC}, 0x20000"))
        return its
    for it in a_dma(0): it.fn()
    a(f"""
s_lshr_b32 s{sRH}, s{sWAVE}, 1
s_and_b32 s{sCH}, s{sWAVE}, 1
s_lshl_b32 s{sT0}, s{sRH}, 13
v_add_u32 v{vCR}, s{sT0}, v{vL16}
v_add_u32 v{vCR2}, 0x10000, v{vCR}
v_mov_b32 v{vBC[0]}, v{vCR}
v_mov_b32 v{vBC[1]}, v{vCR2}
v_lshrrev_b32 v{vT0}, 4, v{vL}              ; kq
v_bfe_u32 v{vT1}, v{vL}, 2, 2               ; r
v_lshl_add_u32 v{vT2}, v{vT0}, 2, v{vT1}    ; kq*4+r
v_and_b32 v{vT0}, 3, v{vL}
v_lshlrev_b32 v{vT0}, 3, v{vT0}
v_add_u32 v{vT0}, 16384, v{vT0}             ; c4*8 + W part
v_lshl_add_u32 v{vZ}, v{vT2}, 8, v{vT0}
v_and_b32 v{vT1}, 7, v{vT2}
s_lshl_b32 s{sT0}, s{sCH}, 2
v_xor_b32 v{vT1}, s{sT0}, v{vT1}
""")
    for mt in range(4):
        a(f"v_xor_b32 v{vO}, {mt}, v{vT1}")
        a(f"v_lshl_add_u32 v{vWR[mt]}, v{vO}, 5, v{vZ}")
        a(f"v_add_u32 v{vWR2[mt]}, 0x10000, v{vWR[mt]}")
    a(f"""
v_lshl_add_u32 v{vZ}, v{vT2}, 7, v{vT0}
v_bfe_u32 v{vT1}, v{vT2}, 1, 2
s_lshl_b32 s{sT0}, s{sCH}, 1
v_xor_b32 v{vT1}, s{sT0}, v{vT1}
v_lshl_add_u32 v{vBW[0]}, v{vT1}, 5, v{vZ}
v_xor_b32 v{vT1}, 1, v{vT1}
v_lshl_add_u32 v{vBW[1]}, v{vT1}, 5, v{vZ}
v_add_u32 v{vBW[2]}, 0x10000, v{vBW[0]}
v_add_u32 v{vBW[3]}, 0x10000, v{vBW[1]}
v_lshrrev_b32 v{vT0}, 3, v{vL}
v_lshlrev_b32 v{vT0}, 10, v{vT0}
v_and_b32 v{vT1}, 7, v{vL}
v_lshrrev_b32 v{vT2}, 4, v{vL}
v_lshlrev_b32 v{vT2}, 1, v{vT2}
v_xor_b32 v{vT1}, v{vT1}, v{vT2}
v_lshl_add_u32 v{vBD[0]}, v{vT1}, 4, v{vT0}
v_add_u32 v{vBD[1]}, {7*1024}, v{vBD[0]}
v_add_u32 v{vBD[2]}, {14*1024}, v{vBD[0]}
v_add_u32 v{vBD[3]}, {21*1024}, v{vBD[0]}
v_and_b32 v{vT0}, 15, v{vL}
v_lshlrev_b32 v{vT0}, 11, v{vT0}
v_lshrrev_b32 v{vT1}, 4, v{vL}
v_lshl_add_u32 v{vO}, v{vT1}, 3, v{vT0}
v_mov_b32 v{vZ}, 0
s_lshl_b32 s{sOB}, s{sRB}, 18
s_lshl_b32 s{sT0}, s{sCB}, 8
s_add_u32 s{sOB}, s{sOB}, s{sT0}
s_mov_b32 s{sOBB}, s{sOB}
s_lshl_b32 s{sT0}, s{sRH}, 17
s_add_u32 s{sOB}, s{sOB}, s{sT0}
s_lshl_b32 s{sT0}, s{sKQ}, 15
s_add_u32 s{sOB}, s{sOB}, s{sT0}
s_lshl_b32 s{sT0}, s{sCH}, 7
s_add_u32 s{sOB}, s{sOB}, s{sT0}
s_lshr_b32 s{sT0}, s{sKQ}, 1
s_lshl_b32 s{sT0}, s{sT0}, 17
s_add_u32 s{sOBB}, s{sOBB}, s{sT0}
s_lshl_b32 s{sT0}, s{sRH}, 16
s_add_u32 s{sOBB}, s{sOBB}, s{sT0}
s_and_b32 s{sT0}, s{sKQ}, 1
s_lshl_b32 s{sT0}, s{sT0}, 7
s_add_u32 s{sOBB}, s{sOBB}, s{sT0}
s_lshl_b32 s{sT0}, s{sCH}, 6
s_add_u32 s{sOBB}, s{sOBB}, s{sT0}
s_lshl_b32 s{sPSRC}, s{sGRP}, 18
s_add_u32 s{sPSRC}, s{sPSRC}, s{sW4}
s_lshl_b32 s{sT0}, s{sKQ}, 14
s_add_u32 s{sPDST}, s{sPSRC}, s{sT0}
s_lshl_b32 s{sT0}, s{sKQ}, 16
s_add_u32 s{sPSRC}, s{sPSRC}, s{sT0}
""")
    for r in range(80): a(f"v_mov_b32 v{r}, 0")
    for it in a_dma(1) + a_dma(2): it.fn()
    def a_reads(slot, k, st):
        c = vCR if slot < 2 else vCR2; w = vWR if slot < 2 else vWR2
        so = (slot & 1) * 32768
        fb = FR + st * 32
        its = []
        for x in range(4):
            its.append(mk.LG(f"ds_read_b128 v[{fb+x*4}:{fb+x*4+3}], v{c} offset:{so + x*2048 + k*1024}", ("fc", st)))
        for x in range(4):
            for jj in range(2):
                b = fb + 16 + x * 4 + jj * 2
                its.append(mk.LG(f"ds_read_b64_tr_b16 v[{b}:{b+1}], v{w[x]} offset:{so + k*8192 + jj*4096}", ("fw", st, x)))
        return its
    def a_stage(slot, refill, nxt=True):
        B = Body(32)
        for k in range(2):
            fb = FR + k * 32
            for mt in range(4):
                for qt in range(4):
                    d = ACC + (qt * 4 + mt) * 4
                    s = f"{MF} v[{d}:{d+3}], v[{fb+16+mt*4}:{fb+19+mt*4}], v[{fb+qt*4}:{fb+qt*4+3}], v[{d}:{d+3}]"
                    B.mfma[k * 16 + mt * 4 + qt] = (lambda s=s: a(s))
                if mt % 2 == 0: B.put_pre(k * 16 + mt * 4, mk.WL(("fw", k, mt + 1)))
        r1 = a_reads(slot, 1, 1)
        for j, it in enumerate(r1): B.put(2 * (j >> 1), it)
        if nxt:
            n = (slot + 1) % 4
            B.put(16, mk.WV(("st", n), lg0=True), 3); B.put(16, I("s_barrier"), 3)
            for j, it in enumerate(a_reads(n, 0, 0)): B.put(18 + 2 * (j >> 1), it)
        if refill: B.stream(refill, 0, 32)
        B.emit(a)
    a.wait_vm(("st", 0)); a("s_barrier")
    for it in a_reads(0, 0, 0): it.fn()
    L = a.newlabel("K3_loop")
    a(f"s_mov_b32 s{sCNT}, 3")
    a.stamp(2)
    a.label(L)
    def it_():
        for s in range(4): a_stage(s, a_dma((s + 3) % 4))
    loop_emit(a, it_)
    a(f"""
s_sub_u32 s{sCNT}, s{sCNT}, 1
s_cmp_lg_u32 s{sCNT}, 0
s_cbranch_scc1 {L}
""")
    a_stage(0, a_dma(3))
    a(f"""
s_lshl_b32 s{sT0}, s{sRB}, 3
s_and_b32 s{sT1}, s{sKQ}, 2
s_lshl_b32 s{sT1}, s{sT1}, 1
s_add_u32 s{sT0}, s{sT0}, s{sT1}
s_add_u32 s{sT0}, s{sT0}, s{sWAVE}
s_mul_i32 s{sCSRC}, s{sT0}, {144*1024}
s_add_u32 s{sCSRC}, s{sCSRC}, {CTX + 128*1024}
s_lshl_b32 s{sWSRC}, s{sWAVE}, 15
s_lshl_b32 s{sT0}, s{sCB}, 8
s_add_u32 s{sWSRC}, s{sWSRC}, s{sT0}
s_and_b32 s{sT0}, s{sKQ}, 1
s_lshl_b32 s{sT0}, s{sT0}, 7
s_add_u32 s{sWSRC}, s{sWSRC}, s{sT0}
""")
    a_stage(1, b_dma(0)); a_stage(2, b_dma(1)); a_stage(3, b_dma(2), nxt=False)
    a.stamp(3)
    if K4:
        a("s_barrier")
        for it in b_dma(3): it.fn()
    if K4:
        a("s_nop 7")
        for dst in range(4):
            a(f"s_add_u32 s{sT0}, s{sPSRC}, {dst * 16384}")
            d = ACC + dst * 16
            for j in range(8): a(f"v_cvt_pk_bf16_f32 v{d+j}, v{d+2*j}, v{d+2*j+1}")
            for hf in range(2):
                a.vm(f"buffer_store_dwordx4 v[{d+hf*4}:{d+hf*4+3}], v{vL16}, s[{sWS}:{sWS+3}], s{sT0} offen offset:{hf*1024} {PST}", "pub")
    else:
        OWN = RX + 32
        a("s_nop 7")
        for dst in range(4):
            LS = a.newlabel("K3_own"); LN = a.newlabel("K3_nx")
            a(f"s_cmp_eq_u32 s{sKQ}, {dst}")
            a(f"s_cbranch_scc1 {LS}")
            a(f"s_add_u32 s{sT0}, s{sPSRC}, {dst * 16384}")
            d = ACC + dst * 16
            for j in range(8): a(f"v_cvt_pk_bf16_f32 v{d+j}, v{d+2*j}, v{d+2*j+1}")
            for hf in range(2):
                a(f"buffer_store_dwordx4 v[{d+hf*4}:{d+hf*4+3}], v{vL16}, s[{sWS}:{sWS+3}], s{sT0} offen offset:{hf*1024} sc1")
            a(f"s_branch {LN}")
            a.label(LS)
            for r in range(0, 16, 2): a(f"v_pk_mov_b32 v[{OWN+r}:{OWN+r+1}], v[{d+r}:{d+r+1}], v[{d+r}:{d+r+1}] op_sel:[0,1]")
            a.label(LN)
        a.vmq += ["pub"] * 6
    def b_stage(slot, after_bar=None):
        a.wait_vm(("st", slot), always=True)
        a("s_barrier")
        if after_bar: after_bar()
        c = vBC[slot >> 1]; w = vBW[(slot >> 1) * 2:(slot >> 1) * 2 + 2]
        so = (slot & 1) * 32768
        def reads(k):
            fb = FR + k * 16
            for qt in range(2):
                a.lg(f"ds_read_b128 v[{fb+qt*4}:{fb+qt*4+3}], v{c} offset:{so + qt*4096 + k*1024}", ("f", k))
            for mt in range(2):
                for jj in range(2):
                    b = fb + 8 + mt * 4 + jj * 2
                    a.lg(f"ds_read_b64_tr_b16 v[{b}:{b+1}], v{w[mt]} offset:{so + k*4096 + jj*2048}", ("f", k))
        def mf(k):
            fb = FR + k * 16
            a.wait_lg(("f", k), always=True)
            for mt in range(2):
                for qt in range(2):
                    d = ACB + (mt * 2 + qt) * 4
                    a(f"{MF} v[{d}:{d+3}], v[{fb+8+mt*4}:{fb+8+mt*4+3}], v[{fb+qt*4}:{fb+qt*4+3}], v[{d}:{d+3}]")
        reads(0); reads(1); mf(0); reads(2); mf(1); reads(3); mf(2); mf(3)
    def refill3():
        for it in b_dma(3): it.fn()
    def signal():
        LS = a.newlabel("K3_sig")
        a(f"""
s_cmp_lg_u32 s{sWAVE}, 0
s_cbranch_scc1 {LS}
s_lshl_b32 s{sT0}, s{sGRP}, 2
v_mov_b32 v{vT0}, 1
s_mov_b64 exec, 1
buffer_atomic_add v{vT0}, v{vZ}, s[{sDBG}:{sDBG+3}], s{sT0} offen sc1
s_mov_b64 exec, -1
{LS}:
""")
    if K4:
        b_stage(0); b_stage(1); b_stage(2); b_stage(3)
        a.stamp(4)
        for mt in range(2):
            for qt in range(2):
                d = ACB + (mt * 2 + qt) * 4
                if mt == 0 and qt == 0: a("s_nop 7")
                a(f"v_cvt_pk_bf16_f32 v{d}, v{d}, v{d+1}")
                a(f"v_cvt_pk_bf16_f32 v{d+1}, v{d+2}, v{d+3}")
        a(f"s_add_u32 s{sT0}, s{sOBB}, 32768")
        for mt in range(2):
            for qt in range(2):
                d = ACB + (mt * 2 + qt) * 4
                a(f"buffer_store_dwordx2 v[{d}:{d+1}], v{vO}, s[{sOUT}:{sOUT+3}], s{sOBB if qt == 0 else sT0} offen offset:{1024 + mt*32}")
        a.stamp(5); a.stamp(9)
        if a.diag: a("s_waitcnt vmcnt(0)")
        a.stamp(23); a.stamp(10, real=True)
        a.stamp_flush(sWS, sWAVE, 24, DIAG, vt=(195, 196), kidx=2)
        a.label(END)
        a("s_endpgm")
        gen_k4(a)
        return
    b_stage(0, refill3); b_stage(1); b_stage(2); b_stage(3, signal)
    a.stamp(4)
    LP = a.newlabel("K3_poll"); LPD = a.newlabel("K3_polled")
    a(f"""
s_cmp_lg_u32 s{sWAVE}, 0
s_cbranch_scc1 {LPD}
s_lshl_b32 s{sT0}, s{sGRP}, 2
s_mov_b32 s{sCNT}, 0x40000
{LP}:
buffer_load_dword v{vT0}, v{vZ}, s[{sDBG}:{sDBG+3}], s{sT0} offen sc1
s_waitcnt vmcnt(0)
v_readfirstlane_b32 s{sT1}, v{vT0}
s_nop 0
s_cmp_ge_u32 s{sT1}, 4
s_cbranch_scc1 {LPD}
s_sleep 1
s_sub_u32 s{sCNT}, s{sCNT}, 1
s_cmp_lg_u32 s{sCNT}, 0
s_cbranch_scc1 {LP}
{LPD}:
s_barrier
""")
    a.stamp(5)
    a.vmq = []
    for j in range(3):
        a(f"s_add_u32 s{sT0}, s{sKQ}, {j+1}")
        a(f"s_and_b32 s{sT0}, s{sT0}, 3")
        a(f"s_lshl_b32 s{sT0}, s{sT0}, 16")
        a(f"s_add_u32 s{sT0}, s{sT0}, s{sPDST}")
        for hf in range(2):
            d = j * 8 + hf * 4
            a.vm(f"buffer_load_dwordx4 v[{d}:{d+3}], v{vL16}, s[{sWS}:{sWS+3}], s{sT0} offen offset:{hf*1024} sc1", ("rx", j))
    for mt in range(2):
        for qt in range(2):
            d = ACB + (mt * 2 + qt) * 4
            if mt == 0 and qt == 0: a("s_nop 7")
            a(f"v_cvt_pk_bf16_f32 v{d}, v{d}, v{d+1}")
            a(f"v_cvt_pk_bf16_f32 v{d+1}, v{d+2}, v{d+3}")
    a(f"s_add_u32 s{sT0}, s{sOBB}, 32768")
    for mt in range(2):
        for qt in range(2):
            d = ACB + (mt * 2 + qt) * 4
            a.vm(f"buffer_store_dwordx2 v[{d}:{d+1}], v{vO}, s[{sOUT}:{sOUT+3}], s{sOBB if qt == 0 else sT0} offen offset:{1024 + mt*32}", "o")
    for j in range(3):
        a.wait_vm(("rx", j))
        for r in range(8):
            a(f"v_lshlrev_b32 v{32+2*r}, 16, v{j*8+r}")
            a(f"v_and_b32 v{33+2*r}, 0xffff0000, v{j*8+r}")
        for r in range(0, 16, 2):
            a(f"v_pk_add_f32 v[{OWN+r}:{OWN+r+1}], v[{OWN+r}:{OWN+r+1}], v[{32+r}:{33+r}]")
    for mt in range(4):
        d = OWN + mt * 4
        a(f"v_cvt_pk_bf16_f32 v{d}, v{d}, v{d+1}")
        a(f"v_cvt_pk_bf16_f32 v{d+1}, v{d+2}, v{d+3}")
        a(f"buffer_store_dwordx2 v[{d}:{d+1}], v{vO}, s[{sOUT}:{sOUT+3}], s{sOB} offen offset:{mt*32}")
    a.stamp(9)
    if a.diag: a("s_waitcnt vmcnt(0)")
    a.stamp(23); a.stamp(10, real=True)
    a.stamp_flush(sWS, sWAVE, 24, DIAG, vt=(195, 196), kidx=2)
    a.label(END)
    a("s_endpgm")


def gen_k4(a, name="k4_kernel"):
    a.kernel(name, (256,1,1), (256,1,1), 0, vgpr=56)
    END = a.newlabel("K4_end")
    a(f"""
s_cmp_ge_u32 s2, 256
s_cbranch_scc1 {END}
s_load_dwordx2 s[20:21], s[0:1], 80     ; out
s_load_dwordx2 s[22:23], s[0:1], 96     ; ws
v_lshrrev_b32 v1, 6, v0
v_and_b32 v2, 63, v0
v_readfirstlane_b32 s16, v1
s_lshr_b32 s17, s2, 2                   ; group
s_and_b32 s18, s2, 3
s_lshl_b32 s24, s17, 18
s_lshl_b32 s25, s18, 14
s_add_u32 s24, s24, s25
s_lshl_b32 s25, s16, 12
s_add_u32 s24, s24, s25
v_lshlrev_b32 v3, 4, v2
s_mov_b32 s6, {WS_USED}
s_mov_b32 s7, 0x20000
s_mov_b32 s10, 0x400000
s_mov_b32 s11, 0x20000
s_waitcnt lgkmcnt(0)
s_mov_b32 s4, s22
s_mov_b32 s5, s23
s_mov_b32 s8, s20
s_mov_b32 s9, s21
""")
    for src in range(4):
        for hf in range(2):
            d = 8 + src * 8 + hf * 4
            a(f"buffer_load_dwordx4 v[{d}:{d+3}], v3, s[4:7], s24 offen offset:{hf*1024}")
        if src < 3: a("s_add_u32 s24, s24, 0x10000")
    a(f"""
v_and_b32 v4, 15, v2
v_lshlrev_b32 v4, 11, v4
v_lshrrev_b32 v5, 4, v2
v_lshl_add_u32 v4, v5, 3, v4
s_lshr_b32 s26, s17, 2
s_lshl_b32 s26, s26, 18
s_and_b32 s27, s17, 3
s_lshl_b32 s27, s27, 8
s_add_u32 s26, s26, s27
s_lshr_b32 s27, s16, 1
s_lshl_b32 s27, s27, 17
s_add_u32 s26, s26, s27
s_lshl_b32 s27, s18, 15
s_add_u32 s26, s26, s27
s_and_b32 s27, s16, 1
s_lshl_b32 s27, s27, 7
s_add_u32 s26, s26, s27
""")
    for src in range(4):
        a(f"s_waitcnt vmcnt({6 - 2*src})")
        for r in range(8):
            x = 8 + src * 8 + r
            if src == 0:
                a(f"v_lshlrev_b32 v{40+2*r}, 16, v{x}")
                a(f"v_and_b32 v{41+2*r}, 0xffff0000, v{x}")
            else:
                a(f"v_lshlrev_b32 v6, 16, v{x}")
                a(f"v_and_b32 v7, 0xffff0000, v{x}")
                a(f"v_pk_add_f32 v[{40+2*r}:{41+2*r}], v[{40+2*r}:{41+2*r}], v[6:7]")
    for mt in range(4):
        d = 40 + mt * 4
        a(f"v_cvt_pk_bf16_f32 v{d}, v{d}, v{d+1}")
        a(f"v_cvt_pk_bf16_f32 v{d+1}, v{d+2}, v{d+3}")
        a(f"buffer_store_dwordx2 v[{d}:{d+1}], v4, s[8:11], s26 offen offset:{mt*32}")
    a.label(END)
    a("s_endpgm")
```

```python
KWS = 0
VWS = 0x1200000
CTX = 0x2200000
BKV = 0x3400000
BKV_P = 2304
PHIQ = 0x3500000
FLAGS = 0x3980000
DIAG = 0x3A00000
PART = 0x4000000
WS_USED = 0x5000000
CSCALE = (128 ** -0.5) * 1.4426950408889634
LOG2E = 1.4426950408889634
import struct
def f2u(f): return struct.unpack("<I", struct.pack("<f", f))[0]
MF = "v_mfma_f32_16x16x32_bf16"
VEXP = 56
```

```python
from asmlib import Asm
from sched import *
from common import *
from phasea import PhaseA, WR, FR, AR
from hedge import *

def gen_k1(a, name="k1_kernel", W0=0, ST="sc1", STL="sc1", MAP=1, WB=0, PT=0, ROT=7, fused=False):
    a.kernel(name, (256,1,1), (256,1,1), 163840, vgpr=256, agpr=256)
    sACT, sW, sWS = 4, 8, 12
    (sWAVE, sRB, sJOB, sSUB, sSCALE, sROW1, sSTB, sWOFF, sA0, sA1, sT0, sT1, sT2, sCNT, sLA, sLW, sSTFIX,
     sWSRC, sROW4, sROWH, sROW8, sWL, sLC, sSPLIT) = range(16, 40)
    sCO, sWB, sA0c, sA1c, sWH, sHU = 92, 93, 94, 95, 96, 97
    ACC = 0; WF = 128
    PK = 160
    TM = 192
    vWA = list(range(208, 216)); vXA = [216, 217]
    vAD = [218, 219, 252, 253]; vWD = [220, 221, 254, 255]
    vS = list(range(222, 230))
    vST = [234, 235, 236, 237]
    vDE, vDO = 238, 239
    vL, vT0, vT1, vT2 = 240, 241, 242, 243
    PK2 = 244
    END = a.newlabel("K1_end"); LV = a.newlabel("K1_vtype"); LBKV = a.newlabel("K1_bkv")
    LK = a.newlabel("K1_ktype"); LJ1 = a.newlabel("K1_j1"); LJ2 = a.newlabel("K1_j2"); LJ3 = a.newlabel("K1_j3"); LJD = a.newlabel("K1_jd")
    a(f"""
s_cmp_ge_u32 s2, 256
s_cbranch_scc1 {END}
""")
    a.stamp(14)
    a(f"""
s_load_dwordx4 s[44:47], s[0:1], 8      ; c_kv (44:45)  w_q (46:47)
s_load_dwordx4 s[48:51], s[0:1], 24
s_load_dwordx4 s[52:55], s[0:1], 48     ; B_x (52:53) wqkv (54:55)
s_load_dwordx2 s[56:57], s[0:1], 96     ; ws
s_load_dwordx2 s[58:59], s[0:1], 64     ; w_phi
v_lshrrev_b32 v{vT0}, 6, v0
v_and_b32 v{vL}, 63, v0
v_readfirstlane_b32 s{sWAVE}, v{vT0}
s_lshr_b32 s{sT1}, s2, 3                ; q
s_and_b32 s{sRB}, s2, 1
s_lshl_b32 s{sRB}, s{sRB}, 2
s_and_b32 s{sT0}, s{sT1}, 3
s_add_u32 s{sRB}, s{sRB}, s{sT0}
s_lshr_b32 s{sT1}, s{sT1}, 2
""")
    if MAP == 0:
        a(f"""
s_and_b32 s{sJOB}, s2, 6
s_lshl_b32 s{sJOB}, s{sJOB}, 2
s_add_u32 s{sJOB}, s{sJOB}, s{sT1}
""")
    else:
        a(f"""
s_and_b32 s{sT0}, s2, 6
s_mul_i32 s{sJOB}, s{sT0}, 3
s_add_u32 s{sJOB}, s{sJOB}, s{sT1}
s_add_u32 s{sT0}, s{sT0}, s{sT1}
s_add_u32 s{sT0}, s{sT0}, 18
s_cmp_ge_u32 s{sT1}, 6
s_cselect_b32 s{sJOB}, s{sT0}, s{sJOB}
""")
    a(f"""
s_lshl_b32 s{sSTFIX}, s{sRB}, 16
s_lshl_b32 s{sT0}, s{sWAVE}, 14
s_add_u32 s{sSTFIX}, s{sSTFIX}, s{sT0}
s_mov_b32 s{sSPLIT}, 0
s_mov_b32 s{sWS+2}, {WS_USED}
s_mov_b32 s{sWS+3}, 0x20000
s_mov_b32 s{sACT+2}, 0x200000
s_mov_b32 s{sACT+3}, 0x20000
s_mov_b32 s{sW+3}, 0x20000
s_waitcnt lgkmcnt(0)
s_mov_b32 s{sWS}, s56
s_mov_b32 s{sWS+1}, s57
s_cmp_ge_u32 s{sJOB}, 24
s_cbranch_scc1 {LJ2}
s_mov_b32 s{sACT}, s44
s_mov_b32 s{sACT+1}, s45
s_mov_b32 s{sW+2}, 0x400000
s_mov_b32 s{sROW1}, 8192
s_mov_b32 s{sSCALE}, {hex(f2u(CSCALE))}
s_mov_b32 s{sW}, s48
s_mov_b32 s{sW+1}, s49
s_mov_b32 s{sSUB}, s{sJOB}
s_cmp_lt_u32 s{sJOB}, 12
s_cbranch_scc1 {LJ1}
s_mov_b32 s{sW}, s50
s_mov_b32 s{sW+1}, s51
s_sub_u32 s{sSUB}, s{sJOB}, 12
s_add_u32 s{sSTFIX}, s{sSTFIX}, {VWS}
{LJ1}:
s_mul_i32 s{sT0}, s{sSUB}, 43
s_lshr_b32 s{sT0}, s{sT0}, 7             ; j/3
s_mul_i32 s{sT2}, s{sT0}, 3
s_sub_u32 s{sT2}, s{sSUB}, s{sT2}        ; j%3
s_lshl_b32 s{sT0}, s{sT0}, 5
s_lshl_b32 s{sT2}, s{sT2}, 3
s_lshr_b32 s{sSUB}, 0x160c00, s{sT2}
s_and_b32 s{sSUB}, s{sSUB}, 0xff
s_add_u32 s{sSUB}, s{sSUB}, s{sT0}
s_lshr_b32 s{sHU}, 0x1f0b0a, s{sT2}
s_and_b32 s{sHU}, s{sHU}, 0xff
s_add_u32 s{sHU}, s{sHU}, s{sT0}
s_lshl_b32 s{sWOFF}, s{sSUB}, 6
s_branch {LJD}
{LJ2}:
s_mov_b32 s{sACT}, s52
s_mov_b32 s{sACT+1}, s53
s_mov_b32 s{sW}, s54
s_mov_b32 s{sW+1}, s55
s_mov_b32 s{sW+2}, 0x180000
s_mov_b32 s{sROW1}, 3072
s_mov_b32 s{sSCALE}, 1.0
s_sub_u32 s{sSUB}, s{sJOB}, 24
s_lshl_b32 s{sWOFF}, s{sSUB}, 7
s_add_u32 s{sWOFF}, s{sWOFF}, 1024      ; k section
s_mov_b32 s{sSPLIT}, 896
{LJD}:
s_lshl_b32 s{sROW4}, s{sROW1}, 2
s_lshr_b32 s{sROWH}, s{sROW1}, 1
s_lshl_b32 s{sROW8}, s{sROW1}, 3
s_lshl_b32 s{sCO}, s{sRB}, 1
s_add_u32 s{sCO}, s{sCO}, s{sT1}
s_and_b32 s{sCO}, s{sCO}, {ROT}      ; rotation
s_add_u32 s{sT0}, s{sCO}, s{sWAVE}
s_and_b32 s{sT0}, s{sT0}, 7
s_lshl_b32 s{sT0}, s{sT0}, 6
s_mul_i32 s{sWL}, s{sT0}, s{sROW1}
s_xor_b32 s{sT0}, s{sT0}, 256
s_mul_i32 s{sWH}, s{sT0}, s{sROW1}
s_lshl_b32 s{sCO}, s{sCO}, 7
s_sub_u32 s{sCO}, s{sCO}, 128
s_lshl_b32 s{sA0}, s{sRB}, 18
s_lshl_b32 s{sT0}, s{sWAVE}, 16
s_add_u32 s{sA0}, s{sA0}, s{sT0}
s_add_u32 s{sA1}, s{sA0}, 32768
s_lshl_b32 s{sLA}, s{sWAVE}, 14
s_add_u32 s{sLA}, s{sLA}, {AR}
s_lshl_b32 s{sLW}, s{sWAVE}, 12
s_add_u32 s{sLW}, s{sLW}, {WR}
s_lshl_b32 s{sLC}, s{sWAVE}, 13
s_lshl_b32 s{sT0}, s{sWAVE}, 4
s_mul_i32 s{sWB}, s{sT0}, s{sROW1}
s_add_u32 s{sWB}, s{sWB}, s{sWOFF}
""")
    def mkpa(types):
        return PhaseA(a, ACC, WF, vWA, vXA, vAD, vWD, sACT, sW, sA0, sA1, sWSRC, sROW4, sROWH, sLA, sLW, sT2, types, sCO, sWB, sA0c, sA1c)
    pa = mkpa("K" * 8)
    mk = Mk(a)
    pa.setup_dma(vL, vT0, vT1, vT2, sROW1, split=sSPLIT)
    a.stamp(0); a.stamp(1, real=True)
    for it in pa.chunk_dmas(0): it.fn()
    a.stamp(11)
    pa.setup_read(vL, vT0, vT1, vT2)
    a(f"""
v_lshrrev_b32 v{vT0}, 3, v{vL}
v_mul_lo_u32 v{vT0}, v{vT0}, s{sROW1}
v_and_b32 v{vT1}, 7, v{vL}
v_bfe_u32 v{vT2}, v{vL}, 4, 1
v_lshlrev_b32 v{vT2}, 1, v{vT2}
v_xor_b32 v{vT1}, v{vT1}, v{vT2}
v_lshl_add_u32 v{vDE}, v{vT1}, 4, v{vT0}
v_xor_b32 v{vT1}, 4, v{vT1}
v_lshl_add_u32 v{vDO}, v{vT1}, 4, v{vT0}
v_lshrrev_b32 v{vT0}, 4, v{vL}              ; kq
v_bfe_u32 v{vT1}, v{vL}, 2, 2               ; r
v_lshl_add_u32 v{vT2}, v{vT0}, 3, v{vT1}
v_lshlrev_b32 v{vT2}, 7, v{vT2}             ; (kq*8+r)*128
v_and_b32 v{vT0}, 1, v{vT0}
v_lshrrev_b32 v{vT1}, 1, v{vT1}
v_lshl_add_u32 v{vT1}, v{vT0}, 1, v{vT1}    ; f
v_and_b32 v{vT0}, 3, v{vL}
v_lshl_add_u32 v{vT2}, v{vT0}, 3, v{vT2}
""")
    for nt in range(4):
        a(f"v_xor_b32 v{vT0}, {nt}, v{vT1}")
        a(f"v_lshl_add_u32 v{vS[nt]}, v{vT0}, 5, v{vT2}")
        a(f"v_add_u32 v{vS[4+nt]}, 0x10000, v{vS[nt]}")
    a(f"v_lshlrev_b32 v{vST[0]}, 4, v{vL}")
    for k in range(1, 4):
        a(f"v_add_u32 v{vST[k]}, {4096*k}, v{vST[0]}")
    a(f"""
s_add_u32 s{sWOFF}, s{sWOFF}, 256
s_lshl_b32 s{sT0}, s2, 7
s_add_u32 s{sT0}, s{sT0}, {FLAGS}
v_mov_b32 v{vT0}, 0
""")
    a.vm(f"buffer_store_dword v{vT0}, v{vT0}, s[{sWS}:{sWS+3}], s{sT0} offen sc1", "flag")
    def touch(bufs, tag):
        a(f"""
s_lshl_b32 s{sT0}, s2, 2
s_add_u32 s{sT0}, s{sT0}, s{sWAVE}
s_mov_b32 s91, 0x20000
""")
        for ptr, size in bufs:
            lg = (size - 1).bit_length() - 10
            a(f"v_and_b32 v{vT0}, {(1 << (lg - 7)) - 1}, v{vL}")
            a(f"v_lshlrev_b32 v{vT0}, 7, v{vT0}")
            a(f"s_lshl_b32 s{sT2}, s{sT0}, {lg}")
            a(f"s_mov_b32 s88, s{ptr}")
            a(f"s_mov_b32 s89, s{ptr+1}")
            a(f"s_mov_b32 s90, {size}")
            a.vm(f"buffer_load_dword v245, v{vT0}, s[88:91], s{sT2} offen", tag)
    def warm0():
        touch(((44, 0x200000), (48, 0x400000), (50, 0x400000), (52, 0x200000), (54, 0x180000)), "warm")
    if W0 == 2: warm0()
    if W0 == 1: warm0()
    a(f"""
s_cmp_ge_u32 s{sJOB}, 24
s_cbranch_scc1 {LBKV}
s_cmp_ge_u32 s{sJOB}, 12
s_cbranch_scc1 {LV}
""")
    state0 = (list(a.vmq), list(a.lgq))
    vTW = 244
    a.stamp0 = 12
    def acc(buf, nt, st): return ACC + (buf * 16 + nt * 4 + st) * 4
    def wf(ks, nt): return WF + ((ks % 2) * 4 + nt) * 4
    SLOT = [65536, 0, 32768, 98304]
    def tr_item(pair, ks, nt, jj, SL=SLOT):
        hi, k8 = ks >> 3, ks & 7
        sb = SL[2 * pair + hi]
        reg = vS[(sb >> 16) * 4 + nt]; off = (sb & 0xffff) + k8 * 4096 + jj * 512
        b = wf(ks, nt) + jj * 2
        return mk.LG(f"ds_read_b64_tr_b16 v[{b}:{b+1}], v{reg} offset:{off}", ("wf", ks % 2, nt))
    def slot_dma(slot, SL=SLOT):
        hi = slot & 1
        its = []
        for i in range(8):
            its.append(mk.I(f"s_add_u32 m0, s{sLC}, {SL[slot] + i * 1024}"))
            if i == 0: its.append(mk.I(f"s_add_u32 s{sT1}, s{sWOFF}, s{sWH if hi else sWL}"))
            else: its.append(mk.I(f"s_add_u32 s{sT1}, s{sT1}, s{sROW8}"))
            its.append(mk.VM(f"buffer_load_dwordx4 v{vDE if i % 2 == 0 else vDO}, s[{sW}:{sW+3}], s{sT1} offen lds", ("w", slot)))
        if hi: its.append(mk.I(f"s_add_u32 s{sWOFF}, s{sWOFF}, 128"))
        return its
    def epi_items(typ, buf, units=(0, 1), packed=False, st=None):
        items = []
        d = 10 if typ == "K" else 11
        for u in units:
            items += [mk.I(t) for t in (f"s_lshr_b32 s{sSTB}, s{sSUB}, 2", f"s_lshl_b32 s{sSTB}, s{sSTB}, 19", f"s_and_b32 s{sT0}, s{sSUB}, 3",
                                       f"s_lshl_b32 s{sT0}, s{sT0}, {d}", f"s_add_u32 s{sSTB}, s{sSTB}, s{sT0}",
                                       f"s_add_u32 s{sSTB}, s{sSTB}, s{sSTFIX}", f"s_add_u32 s{sSUB}, s{sSUB}, 1")]
            for x in range(4):
                n = u * 4 + x
                pk = PK + n * 4
                for j in range(4):
                    if typ == "K": r = acc(buf, 2 * u + (j >> 1), x) + (j & 1) * 2
                    else: r = acc(buf, 2 * u + (x & 1), (x >> 1) * 2 + (j >> 1)) + (j & 1) * 2
                    if typ == "K":
                        t = TM + ((n * 4 + j) % 8) * 2
                        if packed: items.append(mk.I(f"v_pk_mul_f32 v[{t}:{t+1}], v[{r}:{r+1}], s[{sSCALE}:{sSCALE+1}] op_sel_hi:[1,0]"))
                        else:
                            items.append(mk.I(f"v_mul_f32 v{t}, s{sSCALE}, v{r}"))
                            items.append(mk.I(f"v_mul_f32 v{t+1}, s{sSCALE}, v{r+1}"))
                        items.append(mk.I(f"v_cvt_pk_bf16_f32 v{pk+j}, v{t}, v{t+1}"))
                    else:
                        items.append(mk.I(f"v_cvt_pk_bf16_f32 v{pk+j}, v{r}, v{r+1}"))
                if typ == "K": vo, off = vST[x], 0
                else: vo, off = vST[(x >> 1) * 2], (x & 1) * 1024
                items.append(mk.VM(f"buffer_store_dwordx4 v[{pk}:{pk+3}], v{vo}, s[{sWS}:{sWS+3}], s{sSTB} offen offset:{off} {ST if st is None else st}", "st"))
        return items
    def put_bar(B, g, tag):
        B.put(g, mk.WV(tag)); B.put(g, mk.I("s_barrier"), 3)
    LEAD = 12
    def mf(typ, d, w, ks, st):
        c = "0" if ks == 0 else f"v[{d}:{d+3}]"
        if typ == "K": s = f"{MF} v[{d}:{d+3}], v[{w}:{w+3}], {pa.act(ks, st)}, {c}"
        else: s = f"{MF} v[{d}:{d+3}], {pa.act(ks, st)}, v[{w}:{w+3}], {c}"
        return lambda: a(s)
    def body(typ, buf, SL=SLOT, epi=True, dma=True, nxt=True, extra=None):
        B = Body(256)
        for m in range(256):
            ks, nt, st = m >> 4, (m >> 2) & 3, m & 3
            B.mfma[m] = mf(typ, acc(buf, nt, st), wf(ks, nt), ks, st)
            if st == 0 and nt % 2 == 0: B.put_pre(m, mk.WL(("wf", ks % 2, nt + 1)))
        for idx in range(LEAD // 4, 64 + (LEAD // 4 if nxt else 0)):
            ks, nt = idx >> 2, idx & 3
            g = idx * 4 - LEAD
            if idx == 32: put_bar(B, g - 2, ("w", 2 * buf + 1))
            if idx == 64: put_bar(B, g - 2, ("w", 2 * (1 - buf)))
            for jj in range(2):
                B.put(g, tr_item(buf, ks, nt, jj, SL) if ks < 16 else tr_item(1 - buf, ks - 16, nt, jj, SL))
        if dma:
            B.stream(slot_dma(2 * (1 - buf), SL), 0, 26)
            B.stream(slot_dma(2 * (1 - buf) + 1, SL), 128 - LEAD, 154 - LEAD)
        if epi:
            B.stream(epi_items(typ, 1 - buf, (0,)), 14, 110)
            B.stream(epi_items(typ, 1 - buf, (1,)), 132, 236)
        if extra: B.stream(extra, 4, 200)
        B.emit(a)
    def half_body(typ, buf):
        B = Body(128)
        for m in range(128):
            ks, nt, st = m >> 3, (m >> 2) & 1, m & 3
            B.mfma[m] = mf(typ, acc(buf, nt, st), wf(ks, nt), ks, st)
            if st == 0: B.put_pre(m, mk.WL(("wf", ks % 2, nt)))
        for jj in range(2): tr_item(buf, 1, 0, jj).fn()
        for idx in range(3, 32):
            ks, nt = idx >> 1, idx & 1
            g = idx * 4 - 12
            if idx == 16: put_bar(B, g - 2, ("w", 2 * buf + 1))
            for jj in range(2): B.put(g, tr_item(buf, ks, nt, jj))
        B.stream(epi_items(typ, 1 - buf, st=STL), 8, 124)
        B.emit(a)
    vWX = 244
    def warm():
        a(f"""
s_load_dwordx2 s[44:45], s[0:1], 0
s_sub_u32 s{sT0}, s{sJOB}, 24
s_lshl_b32 s{sT0}, s{sT0}, 3
s_add_u32 s{sT0}, s{sT0}, s{sRB}
s_lshl_b32 s{sT0}, s{sT0}, 2
s_add_u32 s{sT0}, s{sT0}, s{sWAVE}
v_lshlrev_b32 v{vWX}, 7, v{vL}
s_mov_b32 s88, s46
s_mov_b32 s89, s47
s_mov_b32 s90, 0x400000
s_mov_b32 s91, 0x20000
s_lshl_b32 s{sA1}, s{sT0}, 14
s_lshl_b32 s{sA0}, s{sT0}, 13
s_waitcnt lgkmcnt(0)
s_mov_b32 s{sACT}, s44
s_mov_b32 s{sACT+1}, s45
""")
        def tq():
            a.vm(f"buffer_load_dword v245, v{vWX}, s[88:91], s{sA1} offen", "warm")
            a(f"s_add_u32 s{sA1}, s{sA1}, 8192")
        def tx():
            a.vm(f"buffer_load_dword v245, v{vWX}, s[{sACT}:{sACT+3}], s{sA0} offen", "warm")
        no = lambda: None
        return [tx, tq, tq, no]
    def path(typ):
        a.vmq, a.lgq = list(state0[0]), list(state0[1])
        p = mkpa(typ * 8)
        if PT:
            a(f"""
s_sub_u32 s{sT0}, s{sJOB}, {0 if typ == "K" else 12}
s_lshl_b32 s{sT0}, s{sT0}, 3
s_add_u32 s{sT0}, s{sT0}, s{sRB}
s_lshl_b32 s{sT0}, s{sT0}, 2
s_add_u32 s{sT0}, s{sT0}, s{sWAVE}
s_mul_i32 s{sT0}, s{sT0}, {11*128}
v_min_u32 v{vTW}, 10, v{vL}
v_lshlrev_b32 v{vTW}, 7, v{vTW}
v_add_u32 v{vTW}, s{sT0}, v{vTW}
""")
        B = p.build(stamp=2)
        if PT:
            for c in range(8):
                B.stream([mk.I(f"s_mov_b32 s{sT0}, {((c + PT + 2) & 7) * 0x80000}"),
                          mk.VM(f"buffer_load_dword v245, v{vTW}, s[{sW}:{sW+3}], s{sT0} offen", "pt")], 64 * c + 43, 64 * c + 47)
        B.stream(slot_dma(0), p.bar_gap(6) + 3, p.bar_gap(6) + 50)
        B.stream(slot_dma(1), p.bar_gap(7) + 3, p.bar_gap(7) + 50)
        B.emit(a)
        a.stamp(3)
        a("s_nop 3")
        for it in epi_items(typ, 0, packed=True): it.fn()
        a.wait_vm(("w", 0)); a("s_barrier")
        for idx in range(LEAD // 4):
            for jj in range(2): tr_item(0, idx >> 2, idx & 3, jj).fn()
        a.stamp(4)
        LOOP = a.newlabel("K1_loop"); DONE = a.newlabel("K1_done")
        a(f"s_mov_b32 s{sCNT}, 0")
        a.label(LOOP)
        mid = []
        def it():
            body(typ, 0)
            a.stamp(7)
            a(f"s_cmp_eq_u32 s{sCNT}, 1")
            a(f"s_cbranch_scc1 {DONE}")
            mid[:] = [list(a.vmq), list(a.lgq)]
            if a.diag: a("s_mov_b32 s69, s71")
            body(typ, 1)
            a.stamp(6)
            a(f"s_mov_b32 s{sCNT}, 1")
            a(f"s_lshl_b32 s{sWOFF}, s{sHU}, 6")
            a(f"v_and_b32 v{vDE}, 0xffffffbf, v{vDE}")
            a(f"v_and_b32 v{vDO}, 0xffffffbf, v{vDO}")
        loop_emit(a, it)
        a(f"s_branch {LOOP}")
        a.label(DONE)
        a.vmq, a.lgq = mid
        half_body(typ, 1)
        a.stamp(12)
        a(f"s_mov_b32 s{sSUB}, s{sHU}")
        a("s_nop 3")
        for itm in epi_items(typ, 1, (0,), packed=True, st=STL): itm.fn()
        a.stamp(8)
        if a.diag and not fused: a("s_waitcnt vmcnt(0)")
        a.stamp(9); a.stamp(10, real=True)
        a.stamp_flush(sWS, sWAVE, 24, DIAG)
        a("s_branch K2_fused_entry" if fused else "s_endpgm")
    a.label(LK)
    path("K")
    a.label(LV)
    path("V")
    a.label(LBKV)
    a.vmq, a.lgq = list(state0[0]), list(state0[1])
    sPHI = 40; sLOG2E = 60; sRET = 62
    sHM = [48, 50, 52, 54]
    WPH = 192
    vPH, vPW, vPR, vVW, vZ, vONE = 246, 247, 248, 249, 250, 252
    vPW2, vPR2, vVR = 230, 231, 232
    BSL = [0, 32768, 65536, 98304]
    a(f"""
s_mov_b32 s{sPHI}, s58
s_mov_b32 s{sPHI+1}, s59
s_mov_b32 s{sPHI+2}, 16384
s_mov_b32 s{sPHI+3}, 0x20000
s_mov_b32 s{sLOG2E}, {hex(f2u(LOG2E))}
s_sub_u32 s{sWOFF}, s{sWOFF}, 1280
v_and_b32 v{vT0}, 15, v{vL}
v_lshrrev_b32 v{vT1}, 4, v{vL}
v_bfe_u32 v{vT2}, v{vL}, 2, 2                  ; hq
v_cmp_eq_u32 s[{sHM[0]}:{sHM[0]+1}], 0, v{vT2}
v_cmp_eq_u32 s[{sHM[1]}:{sHM[1]+1}], 1, v{vT2}
v_cmp_eq_u32 s[{sHM[2]}:{sHM[2]+1}], 2, v{vT2}
v_cmp_eq_u32 s[{sHM[3]}:{sHM[3]+1}], 3, v{vT2}
v_and_b32 v{vPH}, 3, v{vL}
v_lshlrev_b32 v{vPH}, 1, v{vPH}
v_lshl_add_u32 v{vPH}, v{vT1}, 7, v{vPH}
v_lshl_add_u32 v{vPH}, v{vT2}, 9, v{vPH}
v_lshlrev_b32 v{vPW}, 6, v{vT0}
v_lshl_add_u32 v{vPW}, v{vT1}, 14, v{vPW}
s_lshl_b32 s{sT0}, s{sWAVE}, 12
s_add_u32 s{sT0}, s{sT0}, {AR}
v_add_u32 v{vPW}, s{sT0}, v{vPW}
v_lshlrev_b32 v{vPW2}, 4, v{vT0}
v_lshl_add_u32 v{vPW2}, v{vT1}, 17, v{vPW2}
v_lshl_add_u32 v{vT2}, v{vT1}, 2, v{vT2}
v_lshlrev_b32 v{vPR}, 6, v{vT2}
v_and_b32 v{vT2}, 3, v{vL}
v_lshl_add_u32 v{vPR}, v{vT2}, 4, v{vPR}
v_add_u32 v{vPR}, s{sLA}, v{vPR}
v_lshlrev_b32 v{vZ}, 4, v{vT1}
s_add_u32 s{sT0}, s{sLC}, {FR}
v_add_u32 v{vVW}, s{sT0}, v{vST[0]}
s_lshl_b32 s{sT0}, s{sWAVE}, 10
s_add_u32 s{sT0}, s{sT0}, {FR}
v_add_u32 v{vVR}, s{sT0}, v{vST[0]}
""")
    VFR, AW = 128, 160
    X, EP, EM, PHO, MX, NF = 64, 80, 96, 112, 128, 136
    LSM = a.newlabel("K1_sm16")
    def pack_nf(st):
        for kp in range(2):
            for j in range(4):
                r = acc(0, 2 * kp + (j >> 1), st) + (j & 1) * 2
                a(f"v_cvt_pk_bf16_f32 v{NF+kp*4+j}, v{r}, v{r+1}")
    def pk_mfma():
        for kp in range(2):
            for i in range(4):
                c = "0" if kp == 0 else f"v[{X+i*4}:{X+i*4+3}]"
                a(f"{MF} v[{X+i*4}:{X+i*4+3}], v[{AW+i*8+kp*4}:{AW+i*8+kp*4+3}], v[{NF+kp*4}:{NF+kp*4+3}], {c}")
    def feature_map(out, ts):
        pack_nf(0); a("s_nop 1"); pk_mfma()
        for st in range(4):
            ts.pop(0)()
            pack_nf(min(st + 1, 3))
            a(f"s_call_b64 s[{sRET}:{sRET+1}], {LSM}")
            out(st)
    def sm16():
        a.label(LSM)
        x = X
        a(f"v_max3_f32 v{MX}, v{x}, v{x+1}, v{x+2}")
        a(f"v_min3_f32 v{MX+1}, v{x}, v{x+1}, v{x+2}")
        for k in range(3, 15, 2):
            a(f"v_max3_f32 v{MX}, v{MX}, v{x+k}, v{x+k+1}")
            a(f"v_min3_f32 v{MX+1}, v{MX+1}, v{x+k}, v{x+k+1}")
        a(f"v_max_f32 v{MX}, v{MX}, v{x+15}")
        a(f"v_min_f32 v{MX+1}, v{MX+1}, v{x+15}")
        a(f"v_pk_mul_f32 v[{MX}:{MX+1}], v[{MX}:{MX+1}], s[{sLOG2E}:{sLOG2E+1}] op_sel_hi:[1,0]")
        for k in range(0, 16, 2):
            a(f"v_pk_fma_f32 v[{EP+k}:{EP+k+1}], v[{x+k}:{x+k+1}], s[{sLOG2E}:{sLOG2E+1}], v[{MX}:{MX+1}] op_sel_hi:[1,0,0] neg_lo:[0,0,1] neg_hi:[0,0,1]")
            a(f"v_pk_fma_f32 v[{EM+k}:{EM+k+1}], v[{x+k}:{x+k+1}], s[{sLOG2E}:{sLOG2E+1}], v[{MX}:{MX+1}] op_sel:[0,0,1] op_sel_hi:[1,0,1] neg_lo:[1,0,0] neg_hi:[1,0,0]")
        n = 0
        for k in range(16):
            if k % 2 == 0:
                kp, i = n >> 2, n & 3; n += 1
                c = "0" if kp == 0 else f"v[{X+i*4}:{X+i*4+3}]"
                a(f"{MF} v[{X+i*4}:{X+i*4+3}], v[{AW+i*8+kp*4}:{AW+i*8+kp*4+3}], v[{NF+kp*4}:{NF+kp*4+3}], {c}")
            a(f"v_exp_f32 v{EP+k}, v{EP+k}")
            a(f"v_exp_f32 v{EM+k}, v{EM+k}")
        SP, SM = MX + 2, MX + 4
        a(f"v_pk_add_f32 v[{SP}:{SP+1}], v[{EP}:{EP+1}], v[{EP+2}:{EP+3}]")
        a(f"v_pk_add_f32 v[{SM}:{SM+1}], v[{EM}:{EM+1}], v[{EM+2}:{EM+3}]")
        for k in range(4, 16, 2):
            a(f"v_pk_add_f32 v[{SP}:{SP+1}], v[{SP}:{SP+1}], v[{EP+k}:{EP+k+1}]")
            a(f"v_pk_add_f32 v[{SM}:{SM+1}], v[{SM}:{SM+1}], v[{EM+k}:{EM+k+1}]")
        a(f"v_add_f32 v{SP}, v{SP}, v{SP+1}")
        a(f"v_add_f32 v{SM}, v{SM}, v{SM+1}")
        a(f"v_rcp_f32 v{SP}, v{SP}")
        a(f"v_rcp_f32 v{SM}, v{SM}")
        a("s_nop 0")
        for k in range(0, 16, 2):
            a(f"v_pk_mul_f32 v[{EP+k}:{EP+k+1}], v[{EP+k}:{EP+k+1}], v[{SP}:{SP+1}] op_sel_hi:[1,0]")
            a(f"v_pk_mul_f32 v[{EM+k}:{EM+k+1}], v[{EM+k}:{EM+k+1}], v[{SM}:{SM+1}] op_sel_hi:[1,0]")
        for k in range(8):
            a(f"v_cvt_pk_bf16_f32 v{PHO+(k>>1)*4+(k&1)}, v{EP+2*k}, v{EP+2*k+1}")
            a(f"v_cvt_pk_bf16_f32 v{PHO+(k>>1)*4+2+(k&1)}, v{EM+2*k}, v{EM+2*k+1}")
        a(f"s_setpc_b64 s[{sRET}:{sRET+1}]")
    def post(ts):
        a.lgq = []
        for u in range(2):
            for hd in range(4):
                f = VFR + (u * 4 + hd) * 4
                for j in range(4):
                    r = acc(1, hd, 2 * u + (j >> 1)) + (j & 1) * 2
                    a(f"v_cvt_pk_bf16_f32 v{f+j}, v{r}, v{r+1}")
                a(f"ds_write_b128 v{vVW}, v[{f}:{f+3}] offset:{(u*4+hd)*1024}")
        for i in range(4):
            a(f"v_lshl_or_b32 v{WPH+i*4}, v{WPH+i*4+1}, 16, v{WPH+i*4}")
            a(f"v_lshl_or_b32 v{WPH+i*4+1}, v{WPH+i*4+3}, 16, v{WPH+i*4+2}")
        for i in range(4):
            for hq in range(4):
                for e in range(2):
                    a(f"v_cndmask_b32 v{AW+i*8+hq*2+e}, 0, v{WPH+i*4+e}, s[{sHM[hq]}:{sHM[hq]+1}]")
        a("s_waitcnt lgkmcnt(0)")
        def out_k(st):
            for kq in range(4):
                a(f"ds_write_b128 v{vPW}, v[{PHO+kq*4}:{PHO+kq*4+3}] offset:{st*1024 + kq*16}")
        feature_map(out_k, ts)
        a("s_waitcnt lgkmcnt(0)")
        a("s_barrier")
        KV = 0
        def mfs(k):
            fb = 16 + k * 12
            a.wait_lg(("b", k), always=True)
            for ft in range(2):
                d = KV + ft * 4; c = "0" if k == 0 else f"v[{d}:{d+3}]"
                a(f"{MF} v[{d}:{d+3}], v[{fb+4+ft*4}:{fb+7+ft*4}], v[{fb}:{fb+3}], {c}")
            for ft in range(2):
                d = KV + 8 + ft * 4; c = "0" if k == 0 else f"v[{d}:{d+3}]"
                a(f"{MF} v[{d}:{d+3}], v[{fb+4+ft*4}:{fb+7+ft*4}], v[{vONE}:{vONE+3}], {c}")
        for k in range(8):
            fb = 16 + k * 12
            a.lg(f"ds_read_b128 v[{fb}:{fb+3}], v{vVR} offset:{k*4096}", ("b", k))
            for ft in range(2):
                for jj in range(2):
                    b = fb + 4 + ft * 4 + jj * 2
                    a.lg(f"ds_read_b64_tr_b16 v[{b}:{b+1}], v{vPR} offset:{k*2048 + jj*1024 + ft*8}", ("b", k))
            if k >= 2: mfs(k - 2)
        mfs(6); mfs(7)
        a(f"""
s_lshl_b32 s{sT0}, s{sSUB}, 2
s_add_u32 s{sT0}, s{sT0}, s{sWAVE}
s_lshl_b32 s{sT0}, s{sT0}, 3
s_add_u32 s{sT0}, s{sT0}, s{sRB}
s_mul_i32 s{sT0}, s{sT0}, {BKV_P}
s_add_u32 s{sT0}, s{sT0}, {BKV}
v_and_b32 v{vT0}, 15, v{vL}
v_cmp_eq_u32 vcc, 0, v{vT0}
buffer_store_dwordx4 v[{KV}:{KV+3}], v{vST[0]}, s[{sWS}:{sWS+3}], s{sT0} offen sc1
buffer_store_dwordx4 v[{KV+4}:{KV+7}], v{vST[0]}, s[{sWS}:{sWS+3}], s{sT0} offen offset:1024 sc1
s_mov_b64 exec, vcc
buffer_store_dwordx4 v[{KV+8}:{KV+11}], v{vZ}, s[{sWS}:{sWS+3}], s{sT0} offen offset:2048 sc1
buffer_store_dwordx4 v[{KV+12}:{KV+15}], v{vZ}, s[{sWS}:{sWS+3}], s{sT0} offen offset:2112 sc1
s_mov_b64 exec, -1
""")
        a.vmq += ["st"] * 4
    def wphi_loads():
        a(f"s_lshl_b32 s{sT0}, s{sSUB}, 11")
        for i in range(4):
            for j in range(4):
                a.vm(f"buffer_load_ushort v{WPH+i*4+j}, v{vPH}, s[{sPHI}:{sPHI+3}], s{sT0} offen offset:{j*32 + i*8}", "wphi")
    wphi_loads()
    p = mkpa("KKKKVVVV")
    B = p.build()
    B.stream(slot_dma(0, BSL), p.bar_gap(7) + 3, p.bar_gap(7) + 50)
    B.emit(a)
    a.stamp(3)
    a("s_barrier")
    for it in slot_dma(1, BSL): it.fn()
    for r in range(4): a(f"v_mov_b32 v{vONE+r}, 0x3f803f80")
    post(warm())
    a.stamp(4)
    a.wait_vm(("w", 0)); a("s_barrier")
    for idx in range(LEAD // 4):
        for jj in range(2): tr_item(0, idx >> 2, idx & 3, jj, BSL).fn()
    body("K", 0, BSL, epi=False, dma=False, nxt=False)
    a.stamp(5)
    a(f"""
s_lshl_b32 s{sT0}, s{sSUB}, 19
s_lshr_b32 s{sT1}, s{sSTFIX}, 2
s_add_u32 s{sT0}, s{sT0}, s{sT1}
s_add_u32 s{sT0}, s{sT0}, {PHIQ}
s_nop 3
""")
    def out_q(st):
        for kq in range(4):
            a(f"buffer_store_dwordx4 v[{PHO+kq*4}:{PHO+kq*4+3}], v{vPW2}, s[{sWS}:{sWS+3}], s{sT0} offen offset:{st*1024 + kq*256} sc1")
    feature_map(out_q, [lambda: None] * 4)
    a.stamp(6)
    if WB:
        LW = a.newlabel("K1_nowb")
        a(f"s_cmp_lg_u32 s{sWAVE}, 0")
        a(f"s_cbranch_scc1 {LW}")
        for i in range(WB):
            a("buffer_wbl2 sc1")
            a("s_waitcnt vmcnt(0)")
        a.label(LW)
    a.stamp(8)
    if a.diag and not fused: a("s_waitcnt vmcnt(0)")
    a.stamp(9); a.stamp(10, real=True)
    a.stamp_flush(sWS, sWAVE, 24, DIAG, vt=(241, 242))
    if fused: a("s_branch K2_fused_entry")
    a.label(END)
    a("s_endpgm")
    sm16()

if __name__ == "__main__":
    import sys
    a = Asm()
    a.diag = len(sys.argv) > 1
    gen_k1(a)
    for p in a.check(): print(p)
    open("k1.s", "w").write(a.text())
    print(len(a.lines), "lines")
```

```python
from asmlib import Asm
from sched import *
from common import *
from phasea import PhaseA, WR, FR, AR
from hedge import *

BIG = f2u(-1.0e30)
THR = f2u(2.0 ** 60)
OFFS = f2u(40.0)
RQ = 0x20000
MX = 0xC000
MF32 = "v_mfma_f32_32x32x16_bf16"

def gen_k2(a, name="k2_kernel", CPF=0, ROT=0, fused=False, PLEAD=50, PSLEEP=12, NLATE=0, FST="", OST="", L2W=1):
    if not fused: a.kernel(name, (256,1,1), (256,1,1), 163840, vgpr=256, agpr=256)
    SC = " sc1" if fused else ""
    sX, sW, sWS = 4, 8, 12
    (sWAVE, sH, sI, sROW1, sA0, sA1, sT0, sT1, sT2, sCNT, sLA, sLW, sWSRC, sROW4, sROWH,
     sKSRC, sVSRC, sKD, sVD, sKAP, sDGA, sDGB, sDMIN, sTHR, sCTXA, sCTXB, sP, sW4) = range(16, 44)
    sRET = 44
    sM = [46, 48, 50, 52]
    sB0, sB1 = 54, 55
    sEVA, sEVB = 98, 99
    sCO, sWB, sA0c, sA1c = 46, 47, 48, 49
    sOFF = sTHR
    Q = 0; S = 64; P = 128; NM = 160; TE = 192; LC = 200; M = 208
    vK, vV, vL16, vL, vT0, vT1, vTHR, vQX = 212, 213, 214, 215, 216, 217, 218, 219
    vX16, vX32, vBIG, vDG = 220, 221, 222, 223
    D = 224; F = 228; vST = [232, 233]; vMX = 234; vT2 = 235
    ZERO = 236
    PKR = 240
    pACC, pWF = 64, 0
    vWA = list(range(192, 200)); vXA = [200, 201]; vAD = [202, 203, 204, 205]; vWD = [206, 207, 208, 209]
    O = 0; KF = 128; VF = 160; LA = 192; ONES = 208
    END = a.newlabel("K2_end")
    def q(u, dk): return Q + (u * 4 + dk) * 4
    def s_(buf, u, kt): return S + ((buf * 4 + u) * 2 + kt) * 4
    def p_(buf, u): return P + (buf * 4 + u) * 4
    def nm(u, kt): return NM + (u * 2 + kt) * 4
    def o_(u, dt): return O + (u * 8 + dt) * 4
    def lc(par, u): return LC + par * 4 + u
    mk = Mk(a)
    I = lambda s, c=None: mk.I(s)
    if fused:
        a.label("K2_fused_entry")
        a.vmq = []; a.lgq = []
        a(f"v_mov_b32 v{vL}, v240")
    else:
        a(f"""
s_cmp_ge_u32 s2, 256
s_cbranch_scc1 {END}
v_lshrrev_b32 v{vT0}, 6, v0
v_and_b32 v{vL}, 63, v0
v_readfirstlane_b32 s{sWAVE}, v{vT0}
""")
    a.stamp(14)
    a(f"""
s_load_dwordx2 s[56:57], s[0:1], 0      ; x
s_load_dwordx2 s[58:59], s[0:1], 16     ; w_q
s_load_dwordx2 s[60:61], s[0:1], 96     ; ws
s_load_dwordx2 s[88:89], s[0:1], 40     ; w_o
s_load_dwordx2 s[92:93], s[0:1], 72     ; wo
s_load_dwordx2 s[52:53], s[0:1], 88
s_lshr_b32 s{sT1}, s2, 3
s_and_b32 s{sI}, s{sT1}, 7
s_lshr_b32 s{sT1}, s{sT1}, 3
s_and_b32 s{sH}, s2, 7
s_lshl_b32 s{sH}, s{sH}, 2
s_add_u32 s{sH}, s{sH}, s{sT1}
s_mov_b32 s{sROW1}, 8192
s_mov_b32 s{sROW4}, 32768
s_mov_b32 s{sROWH}, 4096
s_lshl_b32 s{sCO}, s{sT1}, 1
s_add_u32 s{sCO}, s{sCO}, s{sI}
s_and_b32 s{sCO}, s{sCO}, {7 if ROT else 0}
s_lshl_b32 s{sCO}, s{sCO}, 7
s_sub_u32 s{sCO}, s{sCO}, 128
s_sub_u32 s{sT0}, 15, s{sI}             ; L
s_lshl_b32 s{sDGA}, s{sT0}, 2
s_add_u32 s{sDGA}, s{sDGA}, s{sWAVE}
s_lshl_b32 s{sDGB}, s{sI}, 2
s_add_u32 s{sDGB}, s{sDGB}, s{sWAVE}
s_lshl_b32 s{sA0}, s{sDGA}, 15
s_lshl_b32 s{sA1}, s{sDGB}, 15
s_lshl_b32 s{sLA}, s{sWAVE}, 14
s_add_u32 s{sLA}, s{sLA}, {AR}
s_lshl_b32 s{sW4}, s{sWAVE}, 12
s_add_u32 s{sLW}, s{sW4}, {WR}
s_lshl_b32 s{sWB}, s{sWAVE}, 17       ; 16 rows * 8192
s_lshl_b32 s{sT0}, s{sH}, 8
s_add_u32 s{sWB}, s{sWB}, s{sT0}
s_lshl_b32 s{sKSRC}, s{sH}, 19
s_add_u32 s{sKSRC}, s{sKSRC}, s{sW4}
s_add_u32 s{sVSRC}, s{sKSRC}, {VWS}
s_mov_b32 s{sX+2}, 0x200000
s_mov_b32 s{sX+3}, 0x20000
s_mov_b32 s{sW+2}, 0x400000
s_mov_b32 s{sW+3}, 0x20000
s_mov_b32 s{sWS+2}, {WS_USED}
s_mov_b32 s{sWS+3}, 0x20000
""")
    pa = PhaseA(a, pACC, pWF, vWA, vXA, vAD, vWD, sX, sW, sA0, sA1, sWSRC, sROW4, sROWH, sLA, sLW, sT2, "K" * 8, sCO, sWB, sA0c, sA1c)
    pa.ring = 128
    pa.setup_dma(vL, vT0, vT1, vT2, sROW1)
    a(f"""
s_waitcnt lgkmcnt(0)
s_mov_b32 s{sX}, s56
s_mov_b32 s{sX+1}, s57
s_mov_b32 s{sW}, s58
s_mov_b32 s{sW+1}, s59
s_mov_b32 s{sWS}, s60
s_mov_b32 s{sWS+1}, s61
s_mov_b32 s54, 256
s_mov_b32 s55, 0x20000
""")
    if fused: a("s_barrier")
    a.stamp(0); a.stamp(1, real=True)
    for it in pa.chunk_dmas(0): it.fn()
    a.stamp(11)
    pa.setup_read(vL, vT0, vT1, vT2)
    setup2 = f"""
v_lshlrev_b32 v{vL16}, 4, v{vL}
v_mov_b32 v{vBIG}, {hex(BIG)}
v_mov_b32 v{vTHR}, {hex(THR)}
v_and_b32 v{vT0}, 15, v{vL}
v_lshrrev_b32 v{vT1}, 4, v{vL}
v_lshlrev_b32 v{vT1}, 2, v{vT1}
v_sub_u32 v{vDG}, v{vT0}, v{vT1}
v_mov_b32 v{vST[0]}, v{vL16}
v_add_u32 v{vST[1]}, {144*1024}, v{vL16}
v_mov_b32 v{vT0}, 0x3f803f80
s_and_b32 s{sP}, s{sWAVE}, 1
s_mul_i32 s{sCTXA}, s{sDGA}, {2*144*1024}
s_mul_i32 s{sCTXB}, s{sDGB}, {2*144*1024}
s_lshl_b32 s{sT0}, s{sH}, 12
s_add_u32 s{sT0}, s{sT0}, {CTX}
s_add_u32 s{sCTXA}, s{sCTXA}, s{sT0}
s_add_u32 s{sCTXB}, s{sCTXB}, s{sT0}
v_add_u32 v{vK}, 0x10000, v{vL16}
v_add_u32 v{vV}, 0x10000, v{vL16}
s_lshl_b32 s{sT0}, s{sWAVE}, 13
s_add_u32 s{sT0}, s{sT0}, {RQ}
v_add_u32 v{vQX}, s{sT0}, v{vL16}
s_lshl_b32 s{sT0}, s{sWAVE}, 9
s_add_u32 s{sT0}, s{sT0}, {MX}
v_lshlrev_b32 v{vMX}, 3, v{vL}
v_add_u32 v{vMX}, s{sT0}, v{vMX}
s_add_u32 s{sKD}, s{sW4}, 0x10000         ; K(2) -> parity 0
s_add_u32 s{sVD}, s{sW4}, 0x4000          ; V(1) -> parity 1
s_mov_b32 s{sKAP}, -1
s_min_u32 s{sDMIN}, s{sDGA}, s{sDGB}
s_mov_b32 s{sEVA}, s{sDGA}
s_mov_b32 s{sEVB}, s{sDGB}
s_mov_b32 s90, 0x400000
s_mov_b32 s91, 0x20000
s_mov_b32 s94, 0x80000
s_mov_b32 s95, 0x20000
"""
    def zero16(reg):
        return f"{MF32} {reg}, v[{ZERO}:{ZERO+3}], v[{ZERO}:{ZERO+3}], 0"
    late = [I(l.split(";")[0].strip()) for l in setup2.strip().split("\n")]
    late += [I(f"v_accvgpr_write_b32 a{ONES+r}, v{vT0}") for r in range(4)]
    for r in range(4): a(f"v_mov_b32 v{ZERO+r}, 0")
    a("s_nop 1")
    for k in range(8): a(zero16(f"a[{O+k*16}:{O+k*16+15}]"))
    a(zero16(f"a[{LA}:{LA+15}]"))
    if CPF:
        LPC = a.newlabel("K2_pc")
        a(f"""
s_getpc_b64 s[96:97]
{LPC}:
v_lshlrev_b32 v{vT1}, 7, v{vL}
s_lshl_b32 s{sT0}, s{sWAVE}, 13
v_add_u32 v{vT1}, s{sT0}, v{vT1}
v_min_u32 v{vT1}, K2_code_end - {LPC} - 4, v{vT1}
""")
        a.vm(f"global_load_dword v{vT2}, v{vT1}, s[96:97]", "cpf")
    def tile_dma(src, ldsexpr, tag, srcadd=None, post=()):
        its = [I(f"s_add_u32 m0, s{ldsexpr[0]}, {ldsexpr[1]}"), I(f"s_add_u32 s{sT1}, s{src}, {srcadd}" if srcadd is not None else "s_nop 0")]
        for i in range(4):
            its.append(mk.VM(f"buffer_load_dwordx4 v{vL16}, s[{sWS}:{sWS+3}], s{sT1 if srcadd is not None else src} offen offset:{i*1024}{SC} lds", tag))
        return its + [I(t) for t in post]
    B = pa.build(stamp=2)
    g6 = pa.bar_gap(6) + 6
    B.stream(late[NLATE:], 50, 300)
    if fused:
        def sig():
            L = a.newlabel("K2_sig")
            a(f"""
s_cmp_lg_u32 s{sWAVE}, 0
s_cbranch_scc1 {L}
v_mov_b32 v{vT0}, 1
s_mov_b64 exec, 1
buffer_atomic_add v{vT0}, v{ZERO}, s[52:55], 0 offen sc1
s_mov_b64 exec, -1
{L}:
""")
        sig()
        a(f"s_cmp_eq_u32 s{sWAVE}, 0")
        a(f"s_cselect_b32 s50, 256, 0")
        B.put(pa.bar_gap(6) - PLEAD, mk.VM(f"buffer_load_dword v{vT2}, v{ZERO}, s[52:55], s{sW4} offen sc1", "poll"))
        def chk():
            L = a.newlabel("K2_spin"); R = a.newlabel("K2_spun"); LP = a.newlabel("K2_spl")
            a.wait_vm("poll", always=True)
            a(f"v_readfirstlane_b32 s{sT0}, v{vT2}")
            a("s_nop 0")
            a(f"s_cmp_lt_u32 s{sT0}, s50")
            a(f"s_cbranch_scc1 {L}")
            a.label(R)
            a.stubs.append(f"""{L}:
s_mov_b32 s{sT1}, 0x40000
{LP}:
s_sleep {PSLEEP}
buffer_load_dword v{vT2}, v{ZERO}, s[52:55], 0 offen sc1
s_waitcnt vmcnt(0)
v_readfirstlane_b32 s{sT0}, v{vT2}
s_sub_u32 s{sT1}, s{sT1}, 1
s_cmp_eq_u32 s{sT1}, 0
s_cbranch_scc1 {R}
s_cmp_lt_u32 s{sT0}, 256
s_cbranch_scc1 {LP}
s_branch {R}""")
        B.put(pa.bar_gap(6) - 1, Item(chk, 20, "X"), 3)
    B.spread(tile_dma(sKSRC, (sW4, 0x10000), "kv") + tile_dma(sVSRC, (sW4, 0x14000), "kv") + tile_dma(sKSRC, (sW4, 0), "kv", 16384), g6, g6 + 56)
    def qcvt(u, dk, j):
        r = pa.acc(2 * dk + (j >> 1), u) + (j & 1) * 2
        return f"v_cvt_pk_bf16_f32 v{q(u, dk) + j}, v{r}, v{r+1}"
    qearly = []
    for dk in range(2):
        its = [I(qcvt(u, dk, j), 5) for u in range(2) for j in range(4)]
        B.spread(its, 480 + dk * 8 + 14, 480 + dk * 8 + 22)
        qearly += [(u, dk) for u in range(2)]
    B.emit(a)
    a.stamp(3); a.stamp(21, real=True)
    a.wait_vm("kv"); a("s_barrier")

    LMASK = a.newlabel("K2_mask"); LADJ = [a.newlabel("K2_adj0"), a.newlabel("K2_adj1")]
    def kread(hs, f):
        b = KF + f * 4
        return mk.LG(f"ds_read_b128 a[{b}:{b+3}], v{vK} offset:{hs*8192 + f*1024}", ("kf", f))
    def vread(hs, f):
        b = VF + f * 4
        return mk.LG(f"ds_read_b128 a[{b}:{b+3}], v{vV} offset:{0x4000 + hs*8192 + f*1024}", ("vf", f))
    def qk_mfma(B, base, buf, wait=2, late=False):
        for f in range(8):
            kt, dk = f >> 2, f & 3
            for u in range(4):
                d = s_(buf, u, kt); c = nm(u, kt) if dk == 0 else d
                st = f"{MF} v[{d}:{d+3}], a[{KF+f*4}:{KF+f*4+3}], v[{q(u,dk)}:{q(u,dk)+3}], v[{c}:{c+3}]"
                B.mfma[base + f * 4 + u] = (lambda st=st: a(st))
            if f % wait == 0: B.put_pre(base + f * 4, mk.WL(("kf", f + wait - 1)))
    def pv_mfma(B, base, buf, wait=2, order="d"):
        for f in range(8):
            for u in range(4):
                o = o_(u, f); p = p_(buf, u)
                st = f"{MF} a[{o}:{o+3}], a[{VF+f*4}:{VF+f*4+3}], v[{p}:{p+3}], a[{o}:{o+3}]"
                m = {"d": f * 4 + u, "b": (0 if u >= 2 else 16) + f * 2 + (u & 1), "u": u * 8 + f}[order]
                B.mfma[base + m] = (lambda st=st: a(st))
            if f % wait == 0:
                B.put_pre(base + {"d": f * 4, "b": f * 2, "u": f}[order], mk.WL(("vf", f + wait - 1)))
    def lmfma(par, u):
        t = f"{MF} a[{LA+u*4}:{LA+u*4+3}], a[{ONES}:{ONES+3}], v[{p_(par,u)}:{p_(par,u)+3}], a[{LA+u*4}:{LA+u*4+3}]"
        return Item(lambda: a(t), 8, "v")
    def lread(par, u): return I(f"v_accvgpr_read_b32 v{lc(par,u)}, a{LA+u*4}")
    def ex(par, i): return I(f"v_exp_f32 v{TE+i%8}, v{S+par*32+i}")
    def cv(par, c): return I(f"v_cvt_pk_bf16_f32 v{P+par*16+c}, v{TE+(2*c)%8}, v{TE+(2*c+1)%8}")
    def early(par):
        return [ex(par, 0), ex(par, 1), ex(par, 2), cv(par, 0), ex(par, 3), ex(par, 4), cv(par, 1), ex(par, 5)]
    def softmax_items(par, skip_early=False):
        its = [] if skip_early else early(par)
        for i in range(6, 34):
            if i < 32: its.append(ex(par, i))
            if i == 32: its.append(I("v_nop"))
            if i % 2 == 0 and i // 2 - 1 < 16: its.append(cv(par, i // 2 - 1))
            if i in (10, 18, 26): its.append(lmfma(par, (i >> 3) - 1))
            if i in (20, 28): its.append(lread(par, (i >> 3) - 2))
        return its
    def softmax_tail(B, g, par, check=True):
        B.put(g, I("v_nop")); B.put(g, lmfma(par, 3))
        B.put(g + 2, lread(par, 2))
        if check: B.put(g + 3, I(f"v_max3_f32 v{vT0}, v{lc(par,0)}, v{lc(par,1)}, v{lc(par,2)}"))
        B.put(g + 7, lread(par, 3))
        if check:
            B.put(g + 8, I(f"v_max_f32 v{vT0}, v{vT0}, v{lc(par,3)}"))
            B.put(g + 8, I(f"v_cmp_nle_f32 vcc, v{vT0}, v{vTHR}"))
            B.put(g + 10, check_item(par), 3)
    def call_stub(branch, target):
        def f():
            L = a.newlabel("K2_st"); R = a.newlabel("K2_rt")
            a(f"{branch} {L}")
            a.label(R)
            a.stubs.append(f"{L}:\ns_call_b64 s[{sRET}:{sRET+1}], {target}\ns_branch {R}")
        return Item(f, 4, "s")
    def check_item(par): return call_stub("s_cbranch_vccnz", LADJ[par])
    def mask_items():
        return [I(f"s_add_u32 s{sKAP}, s{sKAP}, 1"), I(f"s_cmp_ge_u32 s{sKAP}, s{sDMIN}"),
                Item(lambda: a(f"s_getpc_b64 s[{sRET}:{sRET+1}]\ns_cbranch_scc1 {LMASK}"), 8, "X")]
    def put_mask(B, g):
        m = mask_items()
        B.put(g - 1, m[0])
        assert not B.gap[g].c[0] and not B.gap[g].c[3]
        B.put(g, m[1], 0); B.put(g, m[2], 3)
    def put_bar(B, g):
        B.put(g, mk.WV("kv", lg0=True), 3); B.put(g, I("s_barrier"), 3)
    def togK(): return I(f"v_xor_b32 v{vK}, 0x10000, v{vK}")
    def togV(): return I(f"v_xor_b32 v{vV}, 0x10000, v{vV}")
    def kv_dmas(src, dst, two):
        adv = (f"s_add_u32 s{src}, s{src}, 16384", f"s_xor_b32 s{dst}, s{dst}, 0x10000")
        if not two: return tile_dma(src, (dst, 0), "kv", post=adv)
        return tile_dma(src, (dst, 0), "kv") + tile_dma(src, (dst, 0x8000), "kv", f"s{sOFF}", post=adv)
    NPRE = 6
    def body_emit(two):
        B = Body(128)
        qk_mfma(B, 0, 0, 4); pv_mfma(B, 32, 0, 4, "u"); qk_mfma(B, 64, 1, 4); pv_mfma(B, 96, 1, 8, "u")
        ins = []
        for par, G0 in ((1, -12), (0, 52), (1, 116)):
            for i in range(32):
                g = G0 + 2 * i
                if 0 <= g < 128: B.put(g, ex(par, i))
            for c in range(16):
                g = G0 + 4 * c + 5
                if 0 <= g < 128: B.put(g, cv(par, c))
            if G0 < 100:
                for u in range(4):
                    ins.append((G0 + 16 * u + 19, lmfma(par, u).fn))
                    B.put(G0 + 16 * u + 23, lread(par, u))
                B.put(G0 + 55, I(f"v_max3_f32 v{vT0}, v{lc(par,0)}, v{lc(par,1)}, v{lc(par,2)}"))
                B.put(G0 + 71, I(f"v_max_f32 v{vT0}, v{vT0}, v{lc(par,3)}"))
                B.put(G0 + 73, I(f"v_cmp_nle_f32 vcc, v{vT0}, v{vTHR}"))
                B.put(G0 + 75, check_item(par), 3)
        B.put(1, kread(0, 6)); B.put(5, kread(0, 7))
        for f, g in enumerate((9, 11, 13, 17, 21, 25, 27, 29)): B.put(g, vread(0, f))
        for f, g in enumerate((33, 37, 41, 45, 47, 49, 53, 57)): B.put(g, kread(1, f))
        B.put(63, togK())
        for f, g in enumerate((65, 69, 73, 75, 77, 81, 85, 89)): B.put(g, vread(1, f))
        B.put(91, togV())
        put_bar(B, 95)
        for f, g in enumerate((101, 105, 109, 113, 117, 121)): B.put(g, kread(0, f))
        put_mask(B, 51)
        put_mask(B, 87)
        B.put(84, I(f"s_sub_u32 s{sCNT}, s{sCNT}, 1"))
        for after, fn in sorted(ins, reverse=True): B.insert_mfma(after, fn)
        r = lambda v: v + sum(1 for x, _ in ins if x < v)
        B.stream(kv_dmas(sVSRC, sVD, two), 0, r(50), even=False)
        B.stream(kv_dmas(sKSRC, sKD, two), r(95) + 1, r(127), even=False)
        print("body est", two, B.est())
        B.emit(a)
    def quad_max(regs, tmp):
        for sw in ("v_permlane16_swap_b32", "v_permlane32_swap_b32"):
            for i, r in enumerate(regs): a(f"v_mov_b32 v{tmp+i}, v{r}")
            for i, r in enumerate(regs): a(f"{sw} v{r}, v{tmp+i}")
            for i, r in enumerate(regs): a(f"v_max_f32 v{r}, v{r}, v{tmp+i}")
    def row_max(par, dst):
        for u in range(4):
            b = s_(par, u, 0)
            a(f"v_max3_f32 v{dst[u]}, v{b}, v{b+1}, v{b+2}")
            a(f"v_max3_f32 v{TE+u}, v{b+3}, v{b+4}, v{b+5}")
        for u in range(4):
            b = s_(par, u, 0)
            a(f"v_max3_f32 v{dst[u]}, v{dst[u]}, v{b+6}, v{b+7}")
        for u in range(4): a(f"v_max_f32 v{dst[u]}, v{dst[u]}, v{TE+u}")
        quad_max(dst, TE)
        for u in range(4): a(f"v_add_f32 v{dst[u]}, {hex(OFFS)}, v{dst[u]}")
    def fin_items(us, sCTX, scale, T):
        its = []; n = 0
        for ui, u in enumerate(us):
            for dk in range(4):
                pk = PKR + (n % 4) * 4
                for j in range(4):
                    r = o_(u, 2 * dk + (j >> 1)) + (j & 1) * 2
                    t = T + (j % 4) * 2
                    its.append(I(f"v_accvgpr_read_b32 v{t}, a{r}", 5))
                    its.append(I(f"v_accvgpr_read_b32 v{t+1}, a{r+1}", 5))
                    its.append(I(f"v_mul_f32 v{t}, v{t}, v{scale[ui]}"))
                    its.append(I(f"v_mul_f32 v{t+1}, v{t+1}, v{scale[ui]}"))
                    its.append(I(f"v_cvt_pk_bf16_f32 v{pk+j}, v{t}, v{t+1}", 5))
                its.append(mk.VM(f"buffer_store_dwordx4 v[{pk}:{pk+3}], v{vST[ui]}, s[{sWS}:{sWS+3}], s{sCTX} offen offset:{dk*1024} sc1", "st"))
                n += 1
        return its

    for f in range(NPRE): kread(0, f).fn()
    for u in range(4):
        for dk in range(4):
            if (u, dk) in qearly: continue
            for j in range(4): a(qcvt(u, dk, j))
    a(zero16(f"v[{NM}:{NM+15}]")); a(zero16(f"v[{NM+16}:{NM+31}]"))
    for r in range(4): a(f"v_cmp_gt_i32 s[{sM[r]}:{sM[r]+1}], {r}, v{vDG}")
    a(f"""
s_add_u32 s{sKSRC}, s{sKSRC}, 32768
s_add_u32 s{sVSRC}, s{sVSRC}, 16384
s_lshl_b32 s{sOFF}, s{sI}, 15
s_sub_u32 s{sOFF}, {15*16384}, s{sOFF}    ; T tiles
s_add_u32 s{sT0}, s{sKSRC}, {15*16384}    ; tile D+T = 17
""")
    for u in range(2):
        for dk in range(4):
            a.lg(f"ds_write_b128 v{vQX}, v[{q(u,dk)}:{q(u,dk)+3}] offset:{(u*4+dk)*1024}", "qx")
    a.stamp(4)
    for it in mask_items(): it.fn()
    B = Body(32)
    qk_mfma(B, 0, 0)
    for f in range(NPRE, 8): B.put(4 * (f - NPRE), kread(0, f))
    for f in range(NPRE): B.put(8 + 4 * f, kread(1, f))
    B.spread(tile_dma(sT0, (sW4, 0x18000), "kd") + tile_dma(sT0, (sW4, 0x8000), "kd", 16384), 1, 25)
    put_mask(B, 26)
    B.emit(a)
    for f in range(NPRE, 8): kread(1, f).fn()
    togK().fn()
    a("s_nop 4")
    DE = [D, D + 2, F, F + 2]
    row_max(0, DE)
    for u in range(4):
        a(f"v_mov_b32 v{M+u}, v{DE[u]}")
        for r in range(0, 8, 2):
            a(f"v_pk_add_f32 v[{nm(u,0)+r}:{nm(u,0)+r+1}], v[{nm(u,0)+r}:{nm(u,0)+r+1}], v[{DE[u]}:{DE[u]+1}] op_sel_hi:[1,0] neg_lo:[0,1] neg_hi:[0,1]")
    for k in range(0, 32, 2):
        a(f"v_pk_add_f32 v[{S+k}:{S+k+1}], v[{S+k}:{S+k+1}], v[{DE[k>>3]}:{DE[k>>3]+1}] op_sel_hi:[1,0] neg_lo:[0,1] neg_hi:[0,1]")
    B = Body(32)
    qk_mfma(B, 0, 1, 8)
    put_bar(B, 1)
    for f in range(NPRE): B.put(8 + 4 * f, kread(0, f))
    softmax_tail(B, 23, 0, check=False)
    B.spread(softmax_items(0), 0, 23)
    put_mask(B, 25)
    B.stream(kv_dmas(sKSRC, sKD, False), 23, 32)
    B.emit(a)
    a("s_nop 3")
    for it in early(1): it.fn()
    a.stamp(5); a.stamp(16, real=True)
    LD = a.newlabel("K2_dual")
    a(f"""
s_lshl_b32 s{sCNT}, s{sI}, 1
s_add_u32 s{sCNT}, s{sCNT}, 1
""")
    a(".p2align 3")
    a.label(LD)
    loop_emit(a, lambda: body_emit(False))
    a(f"""
s_cmp_lg_u32 s{sCNT}, 0
s_cbranch_scc1 {LD}
""")
    a.stamp(6); a.stamp(17, real=True)
    B = Body(128)
    pv_mfma(B, 0, 0); pv_mfma(B, 32, 1, 2, "b"); qk_mfma(B, 64, 0, 4); qk_mfma(B, 96, 1, 4)
    for f in range(NPRE): vread(0, f).fn()
    for f in range(NPRE, 8): B.put(3 * (f - NPRE), vread(0, f))
    for f in range(7): B.put(4 * f + 4, vread(1, f))
    B.put(31, vread(1, 7))
    softmax_tail(B, 21, 1)
    B.spread(softmax_items(1, True), 0, 21)
    def sw1():
        a.lg(f"ds_write_b64 v{vMX}, v[{M}:{M+1}]", "mx")
        a(f"v_xor_b32 v{vMX}, 512, v{vMX}")
        a(f"v_xor_b32 v{vQX}, 0x2000, v{vQX}")
        a(f"v_rcp_f32 v{F}, v{lc(1,2)}")
        a(f"v_rcp_f32 v{F+1}, v{lc(1,3)}")
    B.put(32, Item(sw1, 28))
    B.put(33, togV())
    def sw2():
        a(f"""
s_xor_b32 s{sDGB}, s{sDGA}, 1
s_mov_b32 s{sEVB}, s{sDGB}
s_min_u32 s{sDMIN}, s{sEVA}, s{sEVB}
s_sub_u32 s{sKAP}, s{sKAP}, 1
s_cmp_eq_u32 s{sP}, 1
s_cselect_b32 s{sKAP}, 33, s{sKAP}
s_lshl_b32 s{sT0}, s{sP}, 15
v_add_u32 v{vK}, s{sT0}, v{vK}
v_add_u32 v{vV}, s{sT0}, v{vV}
""")
    B.put(34, Item(sw2, 28))
    def sw3():
        a("s_waitcnt lgkmcnt(0)"); a.lgq = []
        a("s_barrier")
        a.lg(f"ds_read_b64 v[{M+2}:{M+3}], v{vMX}", "mx")
    B.put(36, Item(sw3, 12))
    for k in range(8):
        u, dk = k >> 2, k & 3
        B.put(37 + k, mk.LG(f"ds_read_b128 v[{q(2+u,dk)}:{q(2+u,dk)+3}], v{vQX} offset:{(u*4+dk)*1024}", "qx"))
    for f in range(8): B.put(46 + 2 * f, kread(0, f))
    B.put(45, mk.WL("mx"), 3)
    nmi = []
    for u in (2, 3):
        for r in range(8): nmi.append(I(f"v_sub_f32 v{nm(u,0)+r}, 0, v{M+u}"))
        nmi.append(I(f"v_mov_b32 v{lc(1,u)}, 0"))
        nmi.append(I(f"v_accvgpr_write_b32 a{LA+4*u}, 0", 5))
    B.spread(nmi, 46, 56)
    put_mask(B, 60)
    put_mask(B, 92)
    for f in range(8): B.put(68 + 4 * f, kread(1, f))
    B.put(97, togK())
    put_bar(B, 104)
    for f in range(NPRE): B.put(106 + 4 * f, kread(0, f)) if 106 + 4 * f < 128 else None
    B.spread(kv_dmas(sVSRC, sVD, True), 22, 56)
    B.spread(fin_items([2, 3], sCTXB, [F, F + 1], S + 32), 56, 95)
    zs = [Item(lambda k=k: a(zero16(f"a[{o_(2,0)+k*16}:{o_(2,0)+k*16+15}]")), 32, "X") for k in range(4)]
    for k in range(4): B.put(96 + k, zs[k])
    softmax_tail(B, 117, 0)
    B.spread(softmax_items(0), 100, 117)
    put_mask(B, 121)
    B.stream(kv_dmas(sKSRC, sKD, True), 108, 127)
    B.emit(a)
    a("s_nop 2")
    for it in early(1): it.fn()
    a.stamp(7); a.stamp(18, real=True)
    LS1 = a.newlabel("K2_single"); LS2 = a.newlabel("K2_sdone")
    a(f"""
s_lshl_b32 s{sT0}, s2, 2
s_add_u32 s{sT0}, s{sT0}, s{sWAVE}
v_and_b32 v{vT1}, 31, v{vL}
v_lshlrev_b32 v{vT1}, 7, v{vT1}
s_lshl_b32 s{sT1}, s{sT0}, 12
""")
    a.vm(f"buffer_load_dword v{vT2}, v{vT1}, s[88:91], s{sT1} offen", "warm")
    a(f"v_and_b32 v{vT1}, 0x180, v{vT1}")
    a(f"s_lshl_b32 s{sT1}, s{sT0}, 9")
    a.vm(f"buffer_load_dword v{vT2}, v{vT1}, s[92:95], s{sT1} offen", "warm")
    a(f"""
s_lshl_b32 s{sCNT}, s{sI}, 1
s_sub_u32 s{sCNT}, 14, s{sCNT}
s_cmp_eq_u32 s{sCNT}, 0
s_cbranch_scc1 {LS2}
""")
    st = (list(a.vmq), list(a.lgq))
    a(".p2align 3")
    a.label(LS1)
    loop_emit(a, lambda: body_emit(True))
    a(f"""
s_cmp_lg_u32 s{sCNT}, 0
s_cbranch_scc1 {LS1}
""")
    a.label(LS2)
    assert a.diag or st[1] == a.lgq, (st[1], a.lgq)
    a.vmq = ["kv"]
    a.stamp(8); a.stamp(20, real=True)
    BQ, BZ = 220, 212
    a(f"""
s_mul_i32 s{sB0}, s{sH}, {8 * BKV_P}
s_add_u32 s{sB0}, s{sB0}, {BKV}
s_lshl_b32 s{sB1}, s{sH}, 17
s_lshl_b32 s{sT2}, s{sI}, 14
s_add_u32 s{sB1}, s{sB1}, s{sT2}
s_add_u32 s{sB1}, s{sB1}, s{sW4}
s_add_u32 s{sB1}, s{sB1}, {PHIQ}
s_lshl_b32 s{sT0}, s{sWAVE}, 15
v_add_u32 v{vK}, s{sT0}, v{vL16}
v_lshrrev_b32 v{vT1}, 4, v{vL}
v_and_b32 v{vMX}, 7, v{vL}
v_mul_u32_u24 v{vMX}, {BKV_P}, v{vMX}
v_lshl_add_u32 v{vMX}, v{vT1}, 4, v{vMX}
v_xor_b32 v{vQX}, 0x2000, v{vQX}
""")
    B = Body(64)
    pv_mfma(B, 0, 0); pv_mfma(B, 32, 1, 2, "b")
    for f in range(NPRE): vread(0, f).fn()
    for f in range(NPRE, 8): B.put(3 * (f - NPRE), vread(0, f))
    for f in range(7): B.put(4 * f + 4, vread(1, f))
    B.put(31, vread(1, 7))
    softmax_tail(B, 21, 1)
    bl = []
    if L2W:
        a(f"""
s_lshr_b32 s{sT0}, s2, 3
s_lshl_b32 s{sT0}, s{sT0}, 2
s_add_u32 s{sT0}, s{sT0}, s{sWAVE}        ; 0..127
s_lshl_b32 s{sKSRC}, s{sT0}, 13
s_and_b32 s{sT1}, s2, 6
s_lshl_b32 s{sT1}, s{sT1}, 19
s_add_u32 s{sKSRC}, s{sKSRC}, s{sT1}
s_lshl_b32 s{sVSRC}, s{sT0}, 12
v_lshlrev_b32 v{vDG}, 7, v{vL}
v_and_b32 v{vBIG}, 0xfff, v{vDG}
""")
        bl.append(mk.VM(f"buffer_load_dword v{vT2}, v{vDG}, s[88:91], s{sKSRC} offen", "l2w"))
        bl.append(mk.VM(f"buffer_load_dword v{vT2}, v{vBIG}, s[92:95], s{sVSRC} offen", "l2w"))
    for ft in range(2):
        bl.append(mk.VM(f"buffer_load_dwordx4 a[{BZ+ft*4}:{BZ+ft*4+3}], v{vMX}, s[{sWS}:{sWS+3}], s{sB0} offen offset:{2048+ft*64}{SC}", "bl"))
    for t in range(4):
        bl.append(mk.VM(f"buffer_load_dwordx4 a[{BQ+4*t}:{BQ+4*t+3}], v{vL16}, s[{sWS}:{sWS+3}], s{sB1} offen offset:{t*1024}{SC}", "bl"))
    for pp in range(8):
        for ft in range(2):
            bl.append(mk.VM(f"buffer_load_dwordx4 v[{Q+pp*8+ft*4}:{Q+pp*8+ft*4+3}], v{vL16}, s[{sWS}:{sWS+3}], s{sB0} offen offset:{ft*1024}{SC}", "bl"))
        bl.append(I(f"s_add_u32 s{sB0}, s{sB0}, {BKV_P}"))
    B.spread(bl, 0, 60)
    B.spread(softmax_items(1, True), 0, 21)
    def st1():
        a(f"v_mov_b32 v{D}, v{M+2}")
        a(f"v_mov_b32 v{D+1}, v{M+3}")
        a(f"v_mov_b32 v{D+2}, v{lc(1,2)}")
        a(f"v_mov_b32 v{D+3}, v{lc(1,3)}")
        a.lg(f"ds_write_b128 v{vQX}, v[{D}:{D+3}]", "sx")
        a(f"v_xor_b32 v{vQX}, 0x2000, v{vQX}")
    B.put(32, Item(st1, 24))
    def st2():
        a.wait_vm("kv", always=True)
        a("s_waitcnt lgkmcnt(0)"); a.lgq = []
        a("s_barrier")
        a.lg(f"ds_read_b128 v[{D}:{D+3}], v{vQX}", "sx")
    B.put(38, Item(st2, 12))
    for f in range(8):
        for ub in range(2):
            o = o_(2 + ub, f)
            B.put(min(32 + 2 * f + ub + 10, 63), Item(lambda o=o, f=f, ub=ub: a.lg(f"ds_write_b128 v{vK}, a[{o}:{o+3}] offset:{(ub*8+f)*1024}", "ox"), 8))
    FA = [F, F + 2]; FB = [TE, TE + 2]
    def st3():
        a.wait_lg("sx", always=True)
        for u in range(2):
            a(f"v_max_f32 v{vT1}, v{M+u}, v{D+u}")
            a(f"v_sub_f32 v{FA[u]}, v{M+u}, v{vT1}")
            a(f"v_sub_f32 v{FB[u]}, v{D+u}, v{vT1}")
        for u in range(2):
            a(f"v_exp_f32 v{FA[u]}, v{FA[u]}")
            a(f"v_exp_f32 v{FB[u]}, v{FB[u]}")
    def st4():
        for u in range(2):
            a(f"v_mul_f32 v{lc(1,u)}, v{lc(1,u)}, v{FA[u]}")
            a(f"v_fmac_f32 v{lc(1,u)}, v{D+2+u}, v{FB[u]}")
        for u in range(2): a(f"v_rcp_f32 v{lc(1,u)}, v{lc(1,u)}")
    def st5():
        for u in range(2):
            a(f"v_mul_f32 v{FA[u]}, v{FA[u]}, v{lc(1,u)}")
            a(f"v_mul_f32 v{FB[u]}, v{FB[u]}, v{lc(1,u)}")
    B.put(46, Item(st3, 60)); B.put(50, Item(st4, 32)); B.put(53, Item(st5, 16))
    B.emit(a)
    a(f"""
v_xor_b32 v{vK}, 0x8000, v{vK}
s_waitcnt lgkmcnt(0)
s_barrier
""")
    a.lgq = []
    OB = S
    for r in range(15): a.lg(f"ds_read_b128 v[{OB+r*4}:{OB+r*4+3}], v{vK} offset:{r*1024}", ("ob", r))
    T = P
    n = 0
    for u in range(2):
        for r in range(32): a(f"v_accvgpr_read_b32 v{T+r}, a{o_(u,0)+r}")
        if u == 0: a.lg(f"ds_read_b128 v[{OB+60}:{OB+63}], v{vK} offset:{15*1024}", ("ob", 15))
        for r in range(0, 32, 2):
            a(f"v_pk_mul_f32 v[{T+r}:{T+r+1}], v[{T+r}:{T+r+1}], v[{FA[u]}:{FA[u]+1}] op_sel_hi:[1,0]")
        a.wait_lg(("ob", u * 8 + 7))
        for dk in range(4):
            pk = PKR + (n % 4) * 4
            for j in range(4):
                r = dk * 8 + j * 2
                a(f"v_pk_fma_f32 v[{T+r}:{T+r+1}], v[{OB+u*32+r}:{OB+u*32+r+1}], v[{FB[u]}:{FB[u]+1}], v[{T+r}:{T+r+1}] op_sel_hi:[1,0,1]")
            for j in range(4):
                r = dk * 8 + j * 2
                a(f"v_cvt_pk_bf16_f32 v{pk+j}, v{T+r}, v{T+r+1}")
            a.vm(f"buffer_store_dwordx4 v[{pk}:{pk+3}], v{vST[u]}, s[{sWS}:{sWS+3}], s{sCTXA} offen offset:{dk*1024} {FST}", "st")
            n += 1
    a.stamp(9)
    a.wait_vm("bl")
    ZS = P + 16
    for r in range(8): a(f"v_accvgpr_read_b32 v{ZS+r}, a{BZ+r}")
    for step in (32, 16, 8):
        for r in range(0, step, 2): a(f"v_pk_add_f32 v[{Q+r}:{Q+r+1}], v[{Q+r}:{Q+r+1}], v[{Q+step+r}:{Q+step+r+1}]")
    for dpp in ("quad_perm:[1,0,3,2]", "quad_perm:[2,3,0,1]", "row_half_mirror"):
        for r in range(8): a(f"v_add_f32_dpp v{ZS+r}, v{ZS+r}, v{ZS+r} {dpp} row_mask:0xf bank_mask:0xf")
    KVF, ZF = Q + 8, Q + 12
    for j in range(4):
        a(f"v_cvt_pk_bf16_f32 v{KVF+j}, v{Q+2*j}, v{Q+2*j+1}")
        a(f"v_cvt_pk_bf16_f32 v{ZF+j}, v{ZS+2*j}, v{ZS+2*j+1}")
    a("s_nop 1")
    NUM, DEN = Q + 16, Q + 32
    for t in range(4):
        a(f"{MF} v[{NUM+t*4}:{NUM+t*4+3}], v[{KVF}:{KVF+3}], a[{BQ+t*4}:{BQ+t*4+3}], 0")
        a(f"{MF} v[{DEN+t*4}:{DEN+t*4+3}], v[{ZF}:{ZF+3}], a[{BQ+t*4}:{BQ+t*4+3}], 0")
    a(f"""
s_lshl_b32 s{sT0}, s{sI}, 2
s_add_u32 s{sT0}, s{sT0}, s{sWAVE}
s_mul_i32 s{sT0}, s{sT0}, {4*144*1024}
s_lshr_b32 s{sT1}, s{sH}, 1
s_lshl_b32 s{sT1}, s{sT1}, 10
s_add_u32 s{sT0}, s{sT0}, s{sT1}
s_and_b32 s{sT2}, s{sH}, 1
s_lshl_b32 s{sT2}, s{sT2}, 3
s_add_u32 s{sT0}, s{sT0}, s{sT2}
s_add_u32 s{sT0}, s{sT0}, {CTX + 128*1024}
""")
    for t in range(4): a(f"v_add_f32 v{TE+t}, {hex(f2u(1e-6))}, v{DEN+t*4}")
    for t in range(4): a(f"v_rcp_f32 v{TE+t}, v{TE+t}")
    for t in range(4):
        for r in range(4): a(f"v_mul_f32 v{NUM+t*4+r}, v{NUM+t*4+r}, v{TE+t}")
        a(f"v_cvt_pk_bf16_f32 v{NUM+t*4}, v{NUM+t*4}, v{NUM+t*4+1}")
        a(f"v_cvt_pk_bf16_f32 v{NUM+t*4+1}, v{NUM+t*4+2}, v{NUM+t*4+3}")
        a.vm(f"buffer_store_dwordx2 v[{NUM+t*4}:{NUM+t*4+1}], v{vL16}, s[{sWS}:{sWS+3}], s{sT0} offen {OST}", "st")
        a(f"s_add_u32 s{sT0}, s{sT0}, {144*1024}")
    a.stamp(12)
    if a.diag: a("s_waitcnt vmcnt(0)")
    a.stamp(23); a.stamp(10, real=True)
    a.stamp_flush(sWS, sWAVE, 24, DIAG, kidx=1)
    a.label(END)
    a("s_endpgm")
    a.flush_stubs()

    a.label(LMASK)
    a(f"s_add_u32 s{sRET}, s{sRET}, 4")
    a(f"s_addc_u32 s{sRET+1}, s{sRET+1}, 0")
    for g, sD, sE in ((0, sDGA, sEVA), (1, sDGB, sEVB)):
        L1 = a.newlabel("K2_m1"); L2 = a.newlabel("K2_m2")
        a(f"""
s_cmp_lt_u32 s{sKAP}, s{sE}
s_cbranch_scc1 {L2}
s_cmp_eq_u32 s{sKAP}, s{sD}
s_cbranch_scc1 {L1}
s_mov_b32 s{sE}, 0x7fffffff
""")
        for r in range(0, 16, 2): a(f"v_pk_mov_b32 v[{nm(2*g,0)+r}:{nm(2*g,0)+r+1}], v[{vBIG}:{vBIG+1}], v[{vBIG}:{vBIG+1}] op_sel:[0,0]")
        a(f"s_branch {L2}")
        a.label(L1)
        a(f"s_add_u32 s{sE}, s{sD}, 1")
        for r in range(0, 4, 2): a(f"v_pk_mov_b32 v[{nm(2*g,1)+r}:{nm(2*g,1)+r+1}], v[{vBIG}:{vBIG+1}], v[{vBIG}:{vBIG+1}] op_sel:[0,0]")
        for r in range(4):
            a(f"v_cndmask_b32 v{nm(2*g,0)+r}, v{nm(2*g,0)+r}, v{vBIG}, s[{sM[r]}:{sM[r]+1}]")
            a(f"v_cndmask_b32 v{nm(2*g+1,1)+r}, v{nm(2*g+1,1)+r}, v{vBIG}, s[{sM[r]}:{sM[r]+1}]")
        a.label(L2)
    a(f"s_min_u32 s{sDMIN}, s{sEVA}, s{sEVB}")
    a(f"s_setpc_b64 s[{sRET}:{sRET+1}]")
    def adjust(par):
        a("s_nop 15")
        DD = [D + u for u in range(4)]
        row_max(par, DD)
        for u in range(4): a(f"v_max_f32 v{D+u}, 0, v{D+u}")
        for u in range(4): a(f"v_exp_f32 v{F+u}, -v{D+u}")
        a("s_nop 0")
        for u in range(4):
            a(f"v_mul_f32 v{lc(par^1,u)}, v{lc(par^1,u)}, v{F+u}")
            a(f"v_accvgpr_write_b32 a{LA+4*u}, v{lc(par^1,u)}")
            for r in range(32):
                t = TE + r % 8
                a(f"v_accvgpr_read_b32 v{t}, a{o_(u,0)+r}")
                a(f"v_mul_f32 v{t}, v{t}, v{F+u}")
                a(f"v_accvgpr_write_b32 a{o_(u,0)+r}, v{t}")
        for u in range(4):
            a(f"v_add_f32 v{M+u}, v{M+u}, v{D+u}")
            for r in range(8):
                a(f"v_sub_f32 v{s_(0,u,0)+r}, v{s_(0,u,0)+r}, v{D+u}")
                a(f"v_sub_f32 v{s_(1,u,0)+r}, v{s_(1,u,0)+r}, v{D+u}")
                a(f"v_sub_f32 v{nm(u,0)+r}, v{nm(u,0)+r}, v{D+u}")
        for it in softmax_items(par): it.fn()
        a("s_nop 1"); lmfma(par, 3).fn(); a("s_nop 7")
        lread(par, 2).fn(); lread(par, 3).fn()
        for it in early(par ^ 1): it.fn()
        a("s_nop 1")
        a(f"s_setpc_b64 s[{sRET}:{sRET+1}]")
    for par in range(2):
        a.label(LADJ[par]); adjust(par)
    a.label("K2_code_end")
    a("s_endpgm")
```

```python
from asmlib import Asm
from sched import *
from common import *

PART = 0

def gen_k3(a, name="k3_kernel", K4=False, PST="sc1", PART=0, CPF=1):
    a.kernel(name, (256,1,1), (256,1,1), 131072, vgpr=208)
    sWO, sWB, sWS, sOUT, sDBG = 4, 8, 12, 16, 20
    (sWAVE, sRB, sCB, sKQ, sT0, sT1, sCNT, sCSRC, sWSRC, sW4, sOB, sGRP, sPSRC, sPDST, sOBB, sRH, sCH) = range(24, 41)
    ACC = 0
    ACB = 64
    FR = 80
    RX = 144
    vL16, vC2, vL, vT0, vT1, vT2, vO, vCR, vCR2 = 192, 193, 194, 195, 196, 197, 198, 199, 200
    vWD = [201, 202, 203, 204]
    vZ = 205
    vWR = [144, 145, 146, 147]; vWR2 = [148, 149, 150, 151]
    vBD = [152, 153, 154, 155]; vBC = [156, 157]; vBW = [158, 159, 160, 161]
    END = a.newlabel("K3_end")
    a(f"""
s_cmp_ge_u32 s2, 256
s_cbranch_scc1 {END}
""")
    a.stamp(14)
    a(f"""
s_load_dwordx2 s[44:45], s[0:1], 40     ; w_o
s_load_dwordx4 s[48:51], s[0:1], 72
s_load_dwordx4 s[52:55], s[0:1], 88
v_lshrrev_b32 v{vT0}, 6, v0
v_and_b32 v{vL}, 63, v0
v_readfirstlane_b32 s{sWAVE}, v{vT0}
s_lshr_b32 s{sT1}, s2, 3                ; q
s_and_b32 s{sCB}, s{sT1}, 3
s_lshr_b32 s{sRB}, s{sT1}, 2
s_and_b32 s{sT0}, s2, 1
s_lshl_b32 s{sT0}, s{sT0}, 3
s_add_u32 s{sRB}, s{sRB}, s{sT0}
s_bfe_u32 s{sKQ}, s2, 0x20001           ; K quarter
s_lshl_b32 s{sGRP}, s{sRB}, 2
s_add_u32 s{sGRP}, s{sGRP}, s{sCB}
s_lshl_b32 s{sT0}, s{sRB}, 2
s_add_u32 s{sT0}, s{sT0}, s{sWAVE}
s_mul_i32 s{sCSRC}, s{sT0}, {2*144*1024}
s_lshl_b32 s{sT0}, s{sKQ}, 15
s_add_u32 s{sCSRC}, s{sCSRC}, s{sT0}
s_add_u32 s{sCSRC}, s{sCSRC}, {CTX}
s_lshl_b32 s{sWSRC}, s{sKQ}, 20
s_lshl_b32 s{sT0}, s{sWAVE}, 14
s_add_u32 s{sWSRC}, s{sWSRC}, s{sT0}
s_lshl_b32 s{sT0}, s{sCB}, 8
s_add_u32 s{sWSRC}, s{sWSRC}, s{sT0}
s_lshl_b32 s{sW4}, s{sWAVE}, 12
s_mov_b32 s{sWO+2}, 0x400000
s_mov_b32 s{sWO+3}, 0x20000
s_mov_b32 s{sWB+2}, 0x80000
s_mov_b32 s{sWB+3}, 0x20000
s_mov_b32 s{sWS+2}, {WS_USED}
s_mov_b32 s{sWS+3}, 0x20000
s_mov_b32 s{sOUT+2}, 0x400000
s_mov_b32 s{sOUT+3}, 0x20000
s_mov_b32 s{sDBG+2}, 256
s_mov_b32 s{sDBG+3}, 0x20000
v_lshlrev_b32 v{vL16}, 4, v{vL}
v_add_u32 v{vC2}, {144*1024 - 2048}, v{vL16}
v_lshrrev_b32 v{vT2}, 4, v{vL}
v_lshlrev_b32 v{vT0}, 10, v{vT2}
v_and_b32 v{vT1}, 15, v{vL}
v_lshlrev_b32 v{vT2}, 1, v{vT2}
v_xor_b32 v{vT1}, v{vT1}, v{vT2}
v_lshl_add_u32 v{vWD[0]}, v{vT1}, 4, v{vT0}
v_xor_b32 v{vT1}, 8, v{vT1}
v_lshl_add_u32 v{vWD[1]}, v{vT1}, 4, v{vT0}
v_add_u32 v{vWD[1]}, 3072, v{vWD[1]}
v_add_u32 v{vWD[2]}, 6144, v{vWD[0]}
v_add_u32 v{vWD[3]}, 6144, v{vWD[1]}
s_waitcnt lgkmcnt(0)
s_mov_b32 s{sWO}, s44
s_mov_b32 s{sWO+1}, s45
s_mov_b32 s{sWB}, s48
s_mov_b32 s{sWB+1}, s49
s_mov_b32 s{sOUT}, s50
s_mov_b32 s{sOUT+1}, s51
s_mov_b32 s{sDBG}, s52
s_mov_b32 s{sDBG+1}, s53
s_mov_b32 s{sWS}, s54
s_mov_b32 s{sWS+1}, s55
""")
    a.stamp(0); a.stamp(1, real=True)
    mk = Mk(a); I = mk.I
    def a_dma(slot):
        its = [I(f"s_add_u32 m0, s{sW4}, {slot * 32768}"), I("s_nop 0")]
        for i in range(4):
            its.append(mk.VM(f"buffer_load_dwordx4 v{vL16 if i < 2 else vC2}, s[{sWS}:{sWS+3}], s{sCSRC} offen offset:{i*1024} lds", ("st", slot)))
        its += [I(f"s_add_u32 m0, s{sW4}, {slot * 32768 + 16384}"), I(f"s_add_u32 s{sCSRC}, s{sCSRC}, 2048")]
        for i in range(4):
            its.append(mk.VM(f"buffer_load_dwordx4 v{vWD[i]}, s[{sWO}:{sWO+3}], s{sWSRC} offen offset:{i*1024} lds", ("st", slot)))
        its.append(I(f"s_add_u32 s{sWSRC}, s{sWSRC}, 0x10000"))
        return its
    def b_dma(slot):
        its = [I(f"s_add_u32 m0, s{sW4}, {slot * 32768}"), I("s_nop 0")]
        for i in range(4):
            its.append(mk.VM(f"buffer_load_dwordx4 v{vL16}, s[{sWS}:{sWS+3}], s{sCSRC} offen offset:{i*1024} lds", ("st", slot)))
        its += [I(f"s_add_u32 m0, s{sW4}, {slot * 32768 + 16384}"), I(f"s_add_u32 s{sCSRC}, s{sCSRC}, 4096")]
        for i in range(4):
            its.append(mk.VM(f"buffer_load_dwordx4 v{vBD[i]}, s[{sWB}:{sWB+3}], s{sWSRC} offen offset:{i*1024} lds", ("st", slot)))
        its.append(I(f"s_add_u32 s{sWSRC}, s{sWSRC}, 0x20000"))
        return its
    for it in a_dma(0): it.fn()
    a(f"""
s_lshr_b32 s{sRH}, s{sWAVE}, 1
s_and_b32 s{sCH}, s{sWAVE}, 1
s_lshl_b32 s{sT0}, s{sRH}, 13
v_add_u32 v{vCR}, s{sT0}, v{vL16}
v_add_u32 v{vCR2}, 0x10000, v{vCR}
v_mov_b32 v{vBC[0]}, v{vCR}
v_mov_b32 v{vBC[1]}, v{vCR2}
v_lshrrev_b32 v{vT0}, 4, v{vL}              ; kq
v_bfe_u32 v{vT1}, v{vL}, 2, 2               ; r
v_lshl_add_u32 v{vT2}, v{vT0}, 2, v{vT1}    ; kq*4+r
v_and_b32 v{vT0}, 3, v{vL}
v_lshlrev_b32 v{vT0}, 3, v{vT0}
v_add_u32 v{vT0}, 16384, v{vT0}             ; c4*8 + W part
v_lshl_add_u32 v{vZ}, v{vT2}, 8, v{vT0}
v_and_b32 v{vT1}, 7, v{vT2}
s_lshl_b32 s{sT0}, s{sCH}, 2
v_xor_b32 v{vT1}, s{sT0}, v{vT1}
""")
    for mt in range(4):
        a(f"v_xor_b32 v{vO}, {mt}, v{vT1}")
        a(f"v_lshl_add_u32 v{vWR[mt]}, v{vO}, 5, v{vZ}")
        a(f"v_add_u32 v{vWR2[mt]}, 0x10000, v{vWR[mt]}")
    a(f"""
v_lshl_add_u32 v{vZ}, v{vT2}, 7, v{vT0}
v_bfe_u32 v{vT1}, v{vT2}, 1, 2
s_lshl_b32 s{sT0}, s{sCH}, 1
v_xor_b32 v{vT1}, s{sT0}, v{vT1}
v_lshl_add_u32 v{vBW[0]}, v{vT1}, 5, v{vZ}
v_xor_b32 v{vT1}, 1, v{vT1}
v_lshl_add_u32 v{vBW[1]}, v{vT1}, 5, v{vZ}
v_add_u32 v{vBW[2]}, 0x10000, v{vBW[0]}
v_add_u32 v{vBW[3]}, 0x10000, v{vBW[1]}
v_lshrrev_b32 v{vT0}, 3, v{vL}
v_lshlrev_b32 v{vT0}, 10, v{vT0}
v_and_b32 v{vT1}, 7, v{vL}
v_lshrrev_b32 v{vT2}, 4, v{vL}
v_lshlrev_b32 v{vT2}, 1, v{vT2}
v_xor_b32 v{vT1}, v{vT1}, v{vT2}
v_lshl_add_u32 v{vBD[0]}, v{vT1}, 4, v{vT0}
v_add_u32 v{vBD[1]}, {7*1024}, v{vBD[0]}
v_add_u32 v{vBD[2]}, {14*1024}, v{vBD[0]}
v_add_u32 v{vBD[3]}, {21*1024}, v{vBD[0]}
v_and_b32 v{vT0}, 15, v{vL}
v_lshlrev_b32 v{vT0}, 11, v{vT0}
v_lshrrev_b32 v{vT1}, 4, v{vL}
v_lshl_add_u32 v{vO}, v{vT1}, 3, v{vT0}
v_mov_b32 v{vZ}, 0
s_lshl_b32 s{sOB}, s{sRB}, 18
s_lshl_b32 s{sT0}, s{sCB}, 8
s_add_u32 s{sOB}, s{sOB}, s{sT0}
s_mov_b32 s{sOBB}, s{sOB}
s_lshl_b32 s{sT0}, s{sRH}, 17
s_add_u32 s{sOB}, s{sOB}, s{sT0}
s_lshl_b32 s{sT0}, s{sKQ}, 15
s_add_u32 s{sOB}, s{sOB}, s{sT0}
s_lshl_b32 s{sT0}, s{sCH}, 7
s_add_u32 s{sOB}, s{sOB}, s{sT0}
s_lshr_b32 s{sT0}, s{sKQ}, 1
s_lshl_b32 s{sT0}, s{sT0}, 17
s_add_u32 s{sOBB}, s{sOBB}, s{sT0}
s_lshl_b32 s{sT0}, s{sRH}, 16
s_add_u32 s{sOBB}, s{sOBB}, s{sT0}
s_and_b32 s{sT0}, s{sKQ}, 1
s_lshl_b32 s{sT0}, s{sT0}, 7
s_add_u32 s{sOBB}, s{sOBB}, s{sT0}
s_lshl_b32 s{sT0}, s{sCH}, 6
s_add_u32 s{sOBB}, s{sOBB}, s{sT0}
s_lshl_b32 s{sPSRC}, s{sGRP}, 18
s_add_u32 s{sPSRC}, s{sPSRC}, {PART}
s_add_u32 s{sPSRC}, s{sPSRC}, s{sW4}
s_lshl_b32 s{sT0}, s{sKQ}, 14
s_add_u32 s{sPDST}, s{sPSRC}, s{sT0}
s_lshl_b32 s{sT0}, s{sKQ}, 16
s_add_u32 s{sPSRC}, s{sPSRC}, s{sT0}
""")
    for r in range(80): a(f"v_mov_b32 v{r}, 0")
    for it in a_dma(1) + a_dma(2): it.fn()
    if CPF:
        LPC = a.newlabel("K3_pc")
        a(f"""
s_getpc_b64 s[56:57]
{LPC}:
v_lshlrev_b32 v{vT1}, 6, v{vL}
v_add_u32 v{vT1}, s{sW4}, v{vT1}
v_min_u32 v{vT1}, {END} - {LPC}, v{vT1}
""")
        a.vm(f"global_load_dword v206, v{vT1}, s[56:57]", "cpf")
    def a_reads(slot, k, st):
        c = vCR if slot < 2 else vCR2; w = vWR if slot < 2 else vWR2
        so = (slot & 1) * 32768
        fb = FR + st * 32
        its = []
        for x in range(4):
            its.append(mk.LG(f"ds_read_b128 v[{fb+x*4}:{fb+x*4+3}], v{c} offset:{so + x*2048 + k*1024}", ("fc", st)))
        for x in range(4):
            for jj in range(2):
                b = fb + 16 + x * 4 + jj * 2
                its.append(mk.LG(f"ds_read_b64_tr_b16 v[{b}:{b+1}], v{w[x]} offset:{so + k*8192 + jj*4096}", ("fw", st, x)))
        return its
    def a_stage(slot, refill, nxt=True):
        B = Body(32)
        for k in range(2):
            fb = FR + k * 32
            for mt in range(4):
                for qt in range(4):
                    d = ACC + (qt * 4 + mt) * 4
                    s = f"{MF} v[{d}:{d+3}], v[{fb+16+mt*4}:{fb+19+mt*4}], v[{fb+qt*4}:{fb+qt*4+3}], v[{d}:{d+3}]"
                    B.mfma[k * 16 + mt * 4 + qt] = (lambda s=s: a(s))
                if mt % 2 == 0: B.put_pre(k * 16 + mt * 4, mk.WL(("fw", k, mt + 1)))
        r1 = a_reads(slot, 1, 1)
        for j, it in enumerate(r1): B.put(2 * (j >> 1), it)
        if nxt:
            n = (slot + 1) % 4
            B.put(16, mk.WV(("st", n), lg0=True), 3); B.put(16, I("s_barrier"), 3)
            for j, it in enumerate(a_reads(n, 0, 0)): B.put(18 + 2 * (j >> 1), it)
        if refill: B.stream(refill, 0, 32)
        B.emit(a)
    a.wait_vm(("st", 0)); a("s_barrier")
    for it in a_reads(0, 0, 0): it.fn()
    L = a.newlabel("K3_loop")
    a(f"s_mov_b32 s{sCNT}, 3")
    a.stamp(2)
    a.label(L)
    def it_():
        for s in range(4): a_stage(s, a_dma((s + 3) % 4))
    loop_emit(a, it_)
    a(f"""
s_sub_u32 s{sCNT}, s{sCNT}, 1
s_cmp_lg_u32 s{sCNT}, 0
s_cbranch_scc1 {L}
""")
    a_stage(0, a_dma(3))
    a(f"""
s_lshl_b32 s{sT0}, s{sRB}, 3
s_and_b32 s{sT1}, s{sKQ}, 2
s_lshl_b32 s{sT1}, s{sT1}, 1
s_add_u32 s{sT0}, s{sT0}, s{sT1}
s_add_u32 s{sT0}, s{sT0}, s{sWAVE}
s_mul_i32 s{sCSRC}, s{sT0}, {144*1024}
s_add_u32 s{sCSRC}, s{sCSRC}, {CTX + 128*1024}
s_lshl_b32 s{sWSRC}, s{sWAVE}, 15
s_lshl_b32 s{sT0}, s{sCB}, 8
s_add_u32 s{sWSRC}, s{sWSRC}, s{sT0}
s_and_b32 s{sT0}, s{sKQ}, 1
s_lshl_b32 s{sT0}, s{sT0}, 7
s_add_u32 s{sWSRC}, s{sWSRC}, s{sT0}
""")
    a_stage(1, b_dma(0)); a_stage(2, b_dma(1)); a_stage(3, b_dma(2), nxt=False)
    a.stamp(3)
    if K4:
        a("s_barrier")
        for it in b_dma(3): it.fn()
    if K4:
        a("s_nop 7")
        for dst in range(4):
            a(f"s_add_u32 s{sT0}, s{sPSRC}, {dst * 16384}")
            d = ACC + dst * 16
            for j in range(8): a(f"v_cvt_pk_bf16_f32 v{d+j}, v{d+2*j}, v{d+2*j+1}")
            for hf in range(2):
                a.vm(f"buffer_store_dwordx4 v[{d+hf*4}:{d+hf*4+3}], v{vL16}, s[{sWS}:{sWS+3}], s{sT0} offen offset:{hf*1024} {PST}", "pub")
    else:
        OWN = RX + 32
        a("s_nop 7")
        for dst in range(4):
            LS = a.newlabel("K3_own"); LN = a.newlabel("K3_nx")
            a(f"s_cmp_eq_u32 s{sKQ}, {dst}")
            a(f"s_cbranch_scc1 {LS}")
            a(f"s_add_u32 s{sT0}, s{sPSRC}, {dst * 16384}")
            d = ACC + dst * 16
            for j in range(8): a(f"v_cvt_pk_bf16_f32 v{d+j}, v{d+2*j}, v{d+2*j+1}")
            for hf in range(2):
                a(f"buffer_store_dwordx4 v[{d+hf*4}:{d+hf*4+3}], v{vL16}, s[{sWS}:{sWS+3}], s{sT0} offen offset:{hf*1024} {PST}")
            a(f"s_branch {LN}")
            a.label(LS)
            for r in range(0, 16, 2): a(f"v_pk_mov_b32 v[{OWN+r}:{OWN+r+1}], v[{d+r}:{d+r+1}], v[{d+r}:{d+r+1}] op_sel:[0,1]")
            a.label(LN)
        a.vmq += ["pub"] * 6
    def b_stage(slot, after_bar=None):
        if slot == 0: a.stamp(6)
        a.wait_vm(("st", slot), always=True)
        a("s_barrier")
        a.stamp(15 + slot)
        if after_bar: after_bar()
        c = vBC[slot >> 1]; w = vBW[(slot >> 1) * 2:(slot >> 1) * 2 + 2]
        so = (slot & 1) * 32768
        def reads(k):
            fb = FR + k * 16
            for qt in range(2):
                a.lg(f"ds_read_b128 v[{fb+qt*4}:{fb+qt*4+3}], v{c} offset:{so + qt*4096 + k*1024}", ("f", k))
            for mt in range(2):
                for jj in range(2):
                    b = fb + 8 + mt * 4 + jj * 2
                    a.lg(f"ds_read_b64_tr_b16 v[{b}:{b+1}], v{w[mt]} offset:{so + k*4096 + jj*2048}", ("f", k))
        def mf(k):
            fb = FR + k * 16
            a.wait_lg(("f", k), always=True)
            for mt in range(2):
                for qt in range(2):
                    d = ACB + (mt * 2 + qt) * 4
                    a(f"{MF} v[{d}:{d+3}], v[{fb+8+mt*4}:{fb+8+mt*4+3}], v[{fb+qt*4}:{fb+qt*4+3}], v[{d}:{d+3}]")
        reads(0); reads(1); mf(0); reads(2); mf(1); reads(3); mf(2); mf(3)
    def refill3():
        for it in b_dma(3): it.fn()
    def signal():
        LS = a.newlabel("K3_sig")
        a(f"""
s_cmp_lg_u32 s{sWAVE}, 0
s_cbranch_scc1 {LS}
s_lshl_b32 s{sT0}, s{sGRP}, 2
s_add_u32 s{sT0}, s{sT0}, s{sKQ}
s_lshl_b32 s{sT0}, s{sT0}, 7
s_add_u32 s{sT0}, s{sT0}, {FLAGS}
v_mov_b32 v{vT0}, 1
s_mov_b64 exec, 1
buffer_store_dword v{vT0}, v{vZ}, s[{sWS}:{sWS+3}], s{sT0} offen sc1
s_mov_b64 exec, -1
{LS}:
""")
    if K4:
        b_stage(0); b_stage(1); b_stage(2); b_stage(3)
        a.stamp(4)
        for mt in range(2):
            for qt in range(2):
                d = ACB + (mt * 2 + qt) * 4
                if mt == 0 and qt == 0: a("s_nop 7")
                a(f"v_cvt_pk_bf16_f32 v{d}, v{d}, v{d+1}")
                a(f"v_cvt_pk_bf16_f32 v{d+1}, v{d+2}, v{d+3}")
        a(f"s_add_u32 s{sT0}, s{sOBB}, 32768")
        for mt in range(2):
            for qt in range(2):
                d = ACB + (mt * 2 + qt) * 4
                a(f"buffer_store_dwordx2 v[{d}:{d+1}], v{vO}, s[{sOUT}:{sOUT+3}], s{sOBB if qt == 0 else sT0} offen offset:{1024 + mt*32}")
        a.stamp(5); a.stamp(9)
        if a.diag: a("s_waitcnt vmcnt(0)")
        a.stamp(23); a.stamp(10, real=True)
        a.stamp_flush(sWS, sWAVE, 24, DIAG, vt=(195, 196), kidx=2)
        a.label(END)
        a("s_endpgm")
        gen_k4(a)
        return
    b_stage(0, refill3); b_stage(1); b_stage(2); b_stage(3, signal)
    a.stamp(4)
    LP = a.newlabel("K3_poll"); LPD = a.newlabel("K3_polled")
    a(f"""
s_cmp_lg_u32 s{sWAVE}, 0
s_cbranch_scc1 {LPD}
s_lshl_b32 s{sT0}, s{sGRP}, 9
s_add_u32 s{sT0}, s{sT0}, {FLAGS}
v_and_b32 v{vT1}, 3, v{vL}
v_lshlrev_b32 v{vT1}, 7, v{vT1}
s_mov_b32 s{sCNT}, 0x40000
{LP}:
buffer_load_dword v{vT0}, v{vT1}, s[{sWS}:{sWS+3}], s{sT0} offen sc1
s_waitcnt vmcnt(0)
v_cmp_ne_u32 vcc, 1, v{vT0}
s_nop 1
s_cbranch_vccz {LPD}
s_sleep 1
s_sub_u32 s{sCNT}, s{sCNT}, 1
s_cmp_lg_u32 s{sCNT}, 0
s_cbranch_scc1 {LP}
{LPD}:
s_barrier
""")
    a.stamp(5)
    a.vmq = []
    for j in range(3):
        a(f"s_add_u32 s{sT0}, s{sKQ}, {j+1}")
        a(f"s_and_b32 s{sT0}, s{sT0}, 3")
        a(f"s_lshl_b32 s{sT0}, s{sT0}, 16")
        a(f"s_add_u32 s{sT0}, s{sT0}, s{sPDST}")
        for hf in range(2):
            d = j * 8 + hf * 4
            a.vm(f"buffer_load_dwordx4 v[{d}:{d+3}], v{vL16}, s[{sWS}:{sWS+3}], s{sT0} offen offset:{hf*1024} sc1", ("rx", j))
    for mt in range(2):
        for qt in range(2):
            d = ACB + (mt * 2 + qt) * 4
            if mt == 0 and qt == 0: a("s_nop 7")
            a(f"v_cvt_pk_bf16_f32 v{d}, v{d}, v{d+1}")
            a(f"v_cvt_pk_bf16_f32 v{d+1}, v{d+2}, v{d+3}")
    a(f"s_add_u32 s{sT0}, s{sOBB}, 32768")
    for mt in range(2):
        for qt in range(2):
            d = ACB + (mt * 2 + qt) * 4
            a.vm(f"buffer_store_dwordx2 v[{d}:{d+1}], v{vO}, s[{sOUT}:{sOUT+3}], s{sOBB if qt == 0 else sT0} offen offset:{1024 + mt*32}", "o")
    for j in range(3):
        a.wait_vm(("rx", j))
        for r in range(8):
            a(f"v_lshlrev_b32 v{32+2*r}, 16, v{j*8+r}")
            a(f"v_and_b32 v{33+2*r}, 0xffff0000, v{j*8+r}")
        for r in range(0, 16, 2):
            a(f"v_pk_add_f32 v[{OWN+r}:{OWN+r+1}], v[{OWN+r}:{OWN+r+1}], v[{32+r}:{33+r}]")
    for mt in range(4):
        d = OWN + mt * 4
        a(f"v_cvt_pk_bf16_f32 v{d}, v{d}, v{d+1}")
        a(f"v_cvt_pk_bf16_f32 v{d+1}, v{d+2}, v{d+3}")
        a(f"buffer_store_dwordx2 v[{d}:{d+1}], v{vO}, s[{sOUT}:{sOUT+3}], s{sOB} offen offset:{mt*32}")
    a.stamp(9)
    if a.diag: a("s_waitcnt vmcnt(0)")
    a.stamp(23); a.stamp(10, real=True)
    a.stamp_flush(sWS, sWAVE, 24, DIAG, vt=(195, 196), kidx=2)
    a.label(END)
    a("s_endpgm")


def gen_k4(a, name="k4_kernel"):
    a.kernel(name, (256,1,1), (256,1,1), 0, vgpr=56)
    END = a.newlabel("K4_end")
    a(f"""
s_cmp_ge_u32 s2, 256
s_cbranch_scc1 {END}
s_load_dwordx2 s[20:21], s[0:1], 80     ; out
s_load_dwordx2 s[22:23], s[0:1], 96     ; ws
v_lshrrev_b32 v1, 6, v0
v_and_b32 v2, 63, v0
v_readfirstlane_b32 s16, v1
s_lshr_b32 s17, s2, 2                   ; group
s_and_b32 s18, s2, 3
s_lshl_b32 s24, s17, 18
s_lshl_b32 s25, s18, 14
s_add_u32 s24, s24, s25
s_lshl_b32 s25, s16, 12
s_add_u32 s24, s24, s25
v_lshlrev_b32 v3, 4, v2
s_mov_b32 s6, {WS_USED}
s_mov_b32 s7, 0x20000
s_mov_b32 s10, 0x400000
s_mov_b32 s11, 0x20000
s_waitcnt lgkmcnt(0)
s_mov_b32 s4, s22
s_mov_b32 s5, s23
s_mov_b32 s8, s20
s_mov_b32 s9, s21
""")
    for src in range(4):
        for hf in range(2):
            d = 8 + src * 8 + hf * 4
            a(f"buffer_load_dwordx4 v[{d}:{d+3}], v3, s[4:7], s24 offen offset:{hf*1024}")
        if src < 3: a("s_add_u32 s24, s24, 0x10000")
    a(f"""
v_and_b32 v4, 15, v2
v_lshlrev_b32 v4, 11, v4
v_lshrrev_b32 v5, 4, v2
v_lshl_add_u32 v4, v5, 3, v4
s_lshr_b32 s26, s17, 2
s_lshl_b32 s26, s26, 18
s_and_b32 s27, s17, 3
s_lshl_b32 s27, s27, 8
s_add_u32 s26, s26, s27
s_lshr_b32 s27, s16, 1
s_lshl_b32 s27, s27, 17
s_add_u32 s26, s26, s27
s_lshl_b32 s27, s18, 15
s_add_u32 s26, s26, s27
s_and_b32 s27, s16, 1
s_lshl_b32 s27, s27, 7
s_add_u32 s26, s26, s27
""")
    for src in range(4):
        a(f"s_waitcnt vmcnt({6 - 2*src})")
        for r in range(8):
            x = 8 + src * 8 + r
            if src == 0:
                a(f"v_lshlrev_b32 v{40+2*r}, 16, v{x}")
                a(f"v_and_b32 v{41+2*r}, 0xffff0000, v{x}")
            else:
                a(f"v_lshlrev_b32 v6, 16, v{x}")
                a(f"v_and_b32 v7, 0xffff0000, v{x}")
                a(f"v_pk_add_f32 v[{40+2*r}:{41+2*r}], v[{40+2*r}:{41+2*r}], v[6:7]")
    for mt in range(4):
        d = 40 + mt * 4
        a(f"v_cvt_pk_bf16_f32 v{d}, v{d}, v{d+1}")
        a(f"v_cvt_pk_bf16_f32 v{d+1}, v{d+2}, v{d+3}")
        a(f"buffer_store_dwordx2 v[{d}:{d+1}], v4, s[8:11], s26 offen offset:{mt*32}")
    a.label(END)
    a("s_endpgm")
```

```python
from sched import *
from common import *
WR, FR, AR = 0, 65536, 98304

class PhaseA:
    LEAD = 16
    N1 = 9
    def __init__(self, a, ACC, WF, vWA, vXA, vAD, vWD, sACT, sW, sA0, sA1, sWSRC, sROW4, sROWH, sLA, sLW, sT, types, sCO, sWB, sA0c, sA1c):
        self.__dict__.update(locals())
    def acc(self, nt, st): return self.ACC + ((nt >> 2) * 16 + (nt & 3) * 4 + st) * 4
    ring = None
    def act(self, ks, st):
        b = (ks * 4 + st) * 4 if self.ring is None else self.ring + ((ks % 4) * 4 + st) * 4
        return f"a[{b}:{b+3}]"
    def wf(self, ks, nt): return self.WF + ((ks % 2) * 8 + nt) * 4
    def setup_dma(self, vL, vT0, vT1, vT2, sROW1, split=None):
        a = self.a; A = self.vAD; W = self.vWD
        a(f"""
v_lshrrev_b32 v{vT0}, 3, v{vL}
v_lshlrev_b32 v{vT0}, 10, v{vT0}
v_and_b32 v{vT1}, 7, v{vL}
v_lshrrev_b32 v{vT2}, 4, v{vL}
v_xor_b32 v{vT1}, v{vT1}, v{vT2}
v_lshl_add_u32 v{A[0]}, v{vT1}, 4, v{vT0}
v_xor_b32 v{A[1]}, 64, v{A[0]}
v_add_u32 v{A[1]}, {7*1024}, v{A[1]}
v_add_u32 v{A[2]}, {14*1024}, v{A[0]}
v_add_u32 v{A[3]}, {14*1024}, v{A[1]}
v_mul_lo_u32 v{vT0}, v{vT2}, s{sROW1}
v_and_b32 v{vT1}, 15, v{vL}
v_lshlrev_b32 v{vT2}, 1, v{vT2}
v_xor_b32 v{vT1}, v{vT1}, v{vT2}
v_lshl_add_u32 v{W[0]}, v{vT1}, 4, v{vT0}
v_xor_b32 v{vT2}, 8, v{vT1}
v_lshl_add_u32 v{W[2]}, v{vT2}, 4, v{vT0}
""")
        if split is not None:
            a(f"""
v_lshrrev_b32 v{vT1}, 3, v{vT1}
v_mul_lo_u32 v{vT1}, v{vT1}, s{split}
v_add_u32 v{W[0]}, v{W[0]}, v{vT1}
v_lshrrev_b32 v{vT2}, 3, v{vT2}
v_mul_lo_u32 v{vT2}, v{vT2}, s{split}
v_add_u32 v{W[2]}, v{W[2]}, v{vT2}
""")
        a(f"""
s_sub_u32 s{self.sT}, s{self.sROW4}, 1024
v_add_u32 v{W[1]}, s{self.sT}, v{W[0]}
v_add_u32 v{W[2]}, s{self.sT}, v{W[2]}
v_add_u32 v{W[2]}, s{self.sT}, v{W[2]}
v_add_u32 v{W[3]}, s{self.sT}, v{W[2]}
""")
    def setup_read(self, vL, vT0, vT1, vT2):
        a = self.a
        a(f"""
v_lshrrev_b32 v{vT0}, 4, v{vL}              ; kq
v_bfe_u32 v{vT1}, v{vL}, 2, 2               ; r
v_lshl_add_u32 v{vT2}, v{vT0}, 3, v{vT1}    ; kq*8+r
v_lshlrev_b32 v{vT2}, 8, v{vT2}
v_and_b32 v{vT0}, 1, v{vT0}
v_lshl_add_u32 v{vT1}, v{vT0}, 2, v{vT1}    ; f = r | (kq&1)<<2
v_and_b32 v{vT0}, 3, v{vL}
v_lshl_add_u32 v{vT2}, v{vT0}, 3, v{vT2}    ; + c4*8
""")
        for nt in range(8):
            a(f"v_xor_b32 v{vT0}, {nt}, v{vT1}")
            a(f"v_lshl_add_u32 v{self.vWA[nt]}, v{vT0}, 5, v{vT2}")
        a(f"""
v_and_b32 v{vT0}, 15, v{vL}
v_lshlrev_b32 v{vT0}, 7, v{vT0}
v_add_u32 v{vT0}, s{self.sLA}, v{vT0}
v_bfe_u32 v{vT1}, v{vL}, 1, 3
v_lshrrev_b32 v{vT2}, 4, v{vL}
v_xor_b32 v{vT1}, v{vT1}, v{vT2}
v_lshl_add_u32 v{self.vXA[0]}, v{vT1}, 4, v{vT0}
v_xor_b32 v{vT1}, 4, v{vT1}
v_lshl_add_u32 v{self.vXA[1]}, v{vT1}, 4, v{vT0}
""")
    def act_dma(self, c):
        k = Mk(self.a)
        its = []
        for g in range(2):
            its += [k.I(f"s_add_u32 m0, s{self.sLA}, {(c % 2) * 8192 + g * 4096}"),
                    k.I(f"s_add_u32 s{self.sT}, s{self.sA1 if g else self.sA0}, s{self.sCO}")]
            for i in range(4):
                its.append(k.VM(f"buffer_load_dwordx4 v{self.vAD[i]}, s[{self.sACT}:{self.sACT+3}], s{self.sT} offen offset:{i*1024} lds", ("pa", c)))
        return its
    def w_dma(self, c):
        k = Mk(self.a)
        its = [k.I(f"s_add_u32 s{self.sCO}, s{self.sCO}, 128"), k.I(f"s_and_b32 s{self.sCO}, s{self.sCO}, 0x3ff"),
               k.I(f"s_mul_i32 s{self.sWSRC}, s{self.sCO}, s{self.sROWH}"),
               k.I(f"s_add_u32 m0, s{self.sLW}, {(c % 4) * 16384}"),
               k.I(f"s_add_u32 s{self.sWSRC}, s{self.sWSRC}, s{self.sWB}")]
        for i in range(4):
            its.append(k.VM(f"buffer_load_dwordx4 v{self.vWD[i]}, s[{self.sW}:{self.sW+3}], s{self.sWSRC} offen offset:{i*1024} lds", ("pa", c)))
        return its
    def chunk_dmas(self, c):
        return self.w_dma(c) + self.act_dma(c)
    def ar(self, ks, st):
        c = ks >> 1
        return Mk(self.a).LG(f"ds_read_b128 {self.act(ks, st)}, v{self.vXA[ks & 1]} offset:{(c % 2) * 8192 + st * 2048}", ("par", ks, st))
    def wr(self, ks, nt, jj):
        c = ks >> 1
        b = self.wf(ks, nt) + jj * 2
        return Mk(self.a).LG(f"ds_read_b64_tr_b16 v[{b}:{b+1}], v{self.vWA[nt]} offset:{WR + (c % 4) * 16384 + (ks & 1) * 8192 + jj * 1024}", ("pwr", ks, nt))
    def bar_gap(self, c): return 64 * c - self.LEAD - 4
    def build(self, stamp=None):
        a = self.a; k = Mk(a)
        LEAD = self.LEAD
        B = Body(512)
        for m in range(512):
            ks, nt, st = m >> 5, (m >> 2) & 7, m & 3
            d = self.acc(nt, st); w = self.wf(ks, nt)
            c = "0" if ks == 0 else f"v[{d}:{d+3}]"
            if self.types[nt] == "K": s = f"{MF} v[{d}:{d+3}], v[{w}:{w+3}], {self.act(ks, st)}, {c}"
            else: s = f"{MF} v[{d}:{d+3}], {self.act(ks, st)}, v[{w}:{w+3}], {c}"
            B.mfma[m] = (lambda s=s: a(s))
            if st == 0 and nt % 2 == 0: B.put_pre(m, k.WL(("pwr", ks, nt + 1)))
        if stamp is not None: a.stamp(12)
        c1 = self.chunk_dmas(1)
        for it in c1[:self.N1]: it.fn()
        a.wait_vm(("pa", 0))
        if stamp is not None: a.stamp(13)
        a("s_barrier")
        if stamp is not None: a.stamp(stamp)
        for st in range(4): self.ar(0, st).fn()
        for nt in range(4):
            for jj in range(2): self.wr(0, nt, jj).fn()
        for c in range(8):
            if c > 0:
                g = self.bar_gap(c)
                B.put(g, k.WV(("pa", c)), 0 if not B.gap[g].c[0] else 3)
                B.put(g, k.I("s_barrier"), 3)
                if stamp is not None: B.put(g, Item(lambda c=c: a.stamp(15 + c), 0), 3)
                for st in range(4): B.put(g + 1 + (st >> 1), self.ar(2 * c, st))
            for st in range(4): B.put(max(64 * c - LEAD + 2 + 4 * (st >> 1), st >> 1), self.ar(2 * c + 1, st))
            for ks in (2 * c, 2 * c + 1):
                for nt in range(8):
                    if ks == 0 and nt < 4: continue
                    for jj in range(2):
                        B.put(ks * 32 + nt * 4 - LEAD, self.wr(ks, nt, jj))
        B.stream(c1[self.N1:], 0, 16, even=False)
        for c in range(6):
            g = self.bar_gap(c) + 3 if c else 16
            s0 = 64 * c + 9 if c else 26
            B.stream(self.w_dma(c + 2), g, s0)
            B.stream(self.act_dma(c + 2), s0, 64 * c + 43)
        return B
```

```python
from asmlib import Asm
from sched import *
from common import *
from phasea import PhaseA, WR, FR, AR
from hedge import *

def gen_k1(a, name="k1_kernel", W0=0, ST="sc1", STL="sc1", MAP=1, WB=0, PT=0, ROT=7, fused=False, CPF=1, EARLY=0, SKIPH=0, SWP=0):
    a.kernel(name, (256,1,1), (256,1,1), 163840, vgpr=256, agpr=256)
    sACT, sW, sWS = 4, 8, 12
    (sWAVE, sRB, sJOB, sSUB, sSCALE, sROW1, sSTB, sWOFF, sA0, sA1, sT0, sT1, sT2, sCNT, sLA, sLW, sSTFIX,
     sWSRC, sROW4, sROWH, sROW8, sWL, sLC, sSPLIT) = range(16, 40)
    sCO, sWB, sA0c, sA1c, sWH, sHU = 92, 93, 94, 95, 96, 97
    sLC3 = sA0c
    a.k1_exit = []
    ACC = 0; WF = 128
    PK = 160
    TM = 192
    vWA = list(range(208, 216)); vXA = [216, 217]
    vAD = [218, 219, 252, 253]; vWD = [220, 221, 254, 255]
    vS = list(range(222, 230))
    vST = [234, 235, 236, 237]
    vDE, vDO = 238, 239
    vL, vT0, vT1, vT2 = 240, 241, 242, 243
    PK2 = 244
    END = a.newlabel("K1_end"); LV = a.newlabel("K1_vtype"); LBKV = a.newlabel("K1_bkv")
    LK = a.newlabel("K1_ktype"); LJ1 = a.newlabel("K1_j1"); LJ2 = a.newlabel("K1_j2"); LJ3 = a.newlabel("K1_j3"); LJD = a.newlabel("K1_jd")
    a(f"""
s_cmp_ge_u32 s2, 256
s_cbranch_scc1 {END}
""")
    a.stamp(14)
    a(f"""
s_load_dwordx4 s[44:47], s[0:1], 8      ; c_kv (44:45)  w_q (46:47)
s_load_dwordx4 s[48:51], s[0:1], 24
s_load_dwordx4 s[52:55], s[0:1], 48     ; B_x (52:53) wqkv (54:55)
s_load_dwordx2 s[56:57], s[0:1], 96     ; ws
s_load_dwordx2 s[58:59], s[0:1], 64     ; w_phi
v_lshrrev_b32 v{vT0}, 6, v0
v_and_b32 v{vL}, 63, v0
v_readfirstlane_b32 s{sWAVE}, v{vT0}
s_lshr_b32 s{sT1}, s2, 3                ; q
s_and_b32 s{sRB}, s2, 1
s_lshl_b32 s{sRB}, s{sRB}, 2
s_and_b32 s{sT0}, s{sT1}, 3
s_add_u32 s{sRB}, s{sRB}, s{sT0}
s_lshr_b32 s{sT1}, s{sT1}, 2
""")
    if MAP == 0:
        a(f"""
s_and_b32 s{sJOB}, s2, 6
s_lshl_b32 s{sJOB}, s{sJOB}, 2
s_add_u32 s{sJOB}, s{sJOB}, s{sT1}
""")
    else:
        if SWP: a(f"""
s_cmp_lt_u32 s{sT1}, 2
s_cselect_b32 s{sT0}, 1, 0
s_xor_b32 s{sT1}, s{sT1}, s{sT0}
""")
        a(f"""
s_and_b32 s{sT0}, s2, 6
s_mul_i32 s{sJOB}, s{sT0}, 3
s_add_u32 s{sJOB}, s{sJOB}, s{sT1}
s_add_u32 s{sT0}, s{sT0}, s{sT1}
s_add_u32 s{sT0}, s{sT0}, 18
s_cmp_ge_u32 s{sT1}, 6
s_cselect_b32 s{sJOB}, s{sT0}, s{sJOB}
""")
    a(f"""
s_lshl_b32 s63, s{sJOB}, 3
s_add_u32 s63, s63, s{sRB}
s_lshl_b32 s99, s63, 7
s_lshl_b32 s{sSTFIX}, s{sRB}, 16
s_lshl_b32 s{sT0}, s{sWAVE}, 14
s_add_u32 s{sSTFIX}, s{sSTFIX}, s{sT0}
s_mov_b32 s{sSPLIT}, 0
s_mov_b32 s{sWS+2}, {WS_USED}
s_mov_b32 s{sWS+3}, 0x20000
s_mov_b32 s{sACT+2}, 0x200000
s_mov_b32 s{sACT+3}, 0x20000
s_mov_b32 s{sW+3}, 0x20000
s_waitcnt lgkmcnt(0)
s_mov_b32 s{sWS}, s56
s_mov_b32 s{sWS+1}, s57
s_cmp_ge_u32 s{sJOB}, 24
s_cbranch_scc1 {LJ2}
s_mov_b32 s{sACT}, s44
s_mov_b32 s{sACT+1}, s45
s_mov_b32 s{sW+2}, 0x400000
s_mov_b32 s{sROW1}, 8192
s_mov_b32 s{sSCALE}, {hex(f2u(CSCALE))}
s_mov_b32 s{sW}, s48
s_mov_b32 s{sW+1}, s49
s_mov_b32 s{sSUB}, s{sJOB}
s_cmp_lt_u32 s{sJOB}, 12
s_cbranch_scc1 {LJ1}
s_mov_b32 s{sW}, s50
s_mov_b32 s{sW+1}, s51
s_sub_u32 s{sSUB}, s{sJOB}, 12
s_add_u32 s{sSTFIX}, s{sSTFIX}, {VWS}
{LJ1}:
s_mul_i32 s{sT0}, s{sSUB}, 43
s_lshr_b32 s{sT0}, s{sT0}, 7             ; j/3
s_mul_i32 s{sT2}, s{sT0}, 3
s_sub_u32 s{sT2}, s{sSUB}, s{sT2}        ; j%3
s_lshl_b32 s{sT0}, s{sT0}, 5
s_lshl_b32 s{sT2}, s{sT2}, 3
s_lshr_b32 s{sSUB}, 0x160c00, s{sT2}
s_and_b32 s{sSUB}, s{sSUB}, 0xff
s_add_u32 s{sSUB}, s{sSUB}, s{sT0}
s_lshr_b32 s{sHU}, 0x1f0b0a, s{sT2}
s_and_b32 s{sHU}, s{sHU}, 0xff
s_add_u32 s{sHU}, s{sHU}, s{sT0}
s_lshl_b32 s{sWOFF}, s{sSUB}, 6
s_branch {LJD}
{LJ2}:
s_mov_b32 s{sACT}, s52
s_mov_b32 s{sACT+1}, s53
s_mov_b32 s{sW}, s54
s_mov_b32 s{sW+1}, s55
s_mov_b32 s{sW+2}, 0x180000
s_mov_b32 s{sROW1}, 3072
s_mov_b32 s{sSCALE}, 1.0
s_sub_u32 s{sSUB}, s{sJOB}, 24
s_lshl_b32 s{sWOFF}, s{sSUB}, 7
s_add_u32 s{sWOFF}, s{sWOFF}, 1024      ; k section
s_mov_b32 s{sSPLIT}, 896
{LJD}:
s_lshl_b32 s{sROW4}, s{sROW1}, 2
s_lshr_b32 s{sROWH}, s{sROW1}, 1
s_lshl_b32 s{sROW8}, s{sROW1}, 3
s_lshl_b32 s{sCO}, s{sRB}, 1
s_add_u32 s{sCO}, s{sCO}, s{sT1}
s_and_b32 s{sCO}, s{sCO}, {ROT}      ; rotation
s_add_u32 s{sT0}, s{sCO}, s{sWAVE}
s_and_b32 s{sT0}, s{sT0}, 7
s_lshl_b32 s{sT0}, s{sT0}, 6
s_mul_i32 s{sWL}, s{sT0}, s{sROW1}
s_xor_b32 s{sT0}, s{sT0}, 256
s_mul_i32 s{sWH}, s{sT0}, s{sROW1}
s_lshl_b32 s{sCO}, s{sCO}, 7
s_sub_u32 s{sCO}, s{sCO}, 128
s_lshl_b32 s{sA0}, s{sRB}, 18
s_lshl_b32 s{sT0}, s{sWAVE}, 16
s_add_u32 s{sA0}, s{sA0}, s{sT0}
s_add_u32 s{sA1}, s{sA0}, 32768
s_lshl_b32 s{sLA}, s{sWAVE}, 14
s_add_u32 s{sLA}, s{sLA}, {AR}
s_lshl_b32 s{sLW}, s{sWAVE}, 12
s_add_u32 s{sLW}, s{sLW}, {WR}
s_lshl_b32 s{sLC}, s{sWAVE}, 13
s_mov_b32 s{sLC3}, s{sLC}
s_load_dwordx2 s[44:45], s[0:1], 0
s_lshl_b32 s{sT0}, s{sWAVE}, 4
s_mul_i32 s{sWB}, s{sT0}, s{sROW1}
s_add_u32 s{sWB}, s{sWB}, s{sWOFF}
""")
    def mkpa(types):
        return PhaseA(a, ACC, WF, vWA, vXA, vAD, vWD, sACT, sW, sA0, sA1, sWSRC, sROW4, sROWH, sLA, sLW, sT2, types, sCO, sWB, sA0c, sA1c)
    pa = mkpa("K" * 8)
    mk = Mk(a)
    pa.setup_dma(vL, vT0, vT1, vT2, sROW1, split=sSPLIT)
    a.stamp(0); a.stamp(1, real=True)
    for it in pa.chunk_dmas(0): it.fn()
    a.stamp(11)
    pa.setup_read(vL, vT0, vT1, vT2)
    a(f"""
v_lshrrev_b32 v{vT0}, 3, v{vL}
v_mul_lo_u32 v{vT0}, v{vT0}, s{sROW1}
v_and_b32 v{vT1}, 7, v{vL}
v_bfe_u32 v{vT2}, v{vL}, 4, 1
v_lshlrev_b32 v{vT2}, 1, v{vT2}
v_xor_b32 v{vT1}, v{vT1}, v{vT2}
v_lshl_add_u32 v{vDE}, v{vT1}, 4, v{vT0}
v_xor_b32 v{vT1}, 4, v{vT1}
v_lshl_add_u32 v{vDO}, v{vT1}, 4, v{vT0}
v_lshrrev_b32 v{vT0}, 4, v{vL}              ; kq
v_bfe_u32 v{vT1}, v{vL}, 2, 2               ; r
v_lshl_add_u32 v{vT2}, v{vT0}, 3, v{vT1}
v_lshlrev_b32 v{vT2}, 7, v{vT2}             ; (kq*8+r)*128
v_and_b32 v{vT0}, 1, v{vT0}
v_lshrrev_b32 v{vT1}, 1, v{vT1}
v_lshl_add_u32 v{vT1}, v{vT0}, 1, v{vT1}    ; f
v_and_b32 v{vT0}, 3, v{vL}
v_lshl_add_u32 v{vT2}, v{vT0}, 3, v{vT2}
""")
    for nt in range(4):
        a(f"v_xor_b32 v{vT0}, {nt}, v{vT1}")
        a(f"v_lshl_add_u32 v{vS[nt]}, v{vT0}, 5, v{vT2}")
        a(f"v_add_u32 v{vS[4+nt]}, 0x10000, v{vS[nt]}")
    a(f"v_lshlrev_b32 v{vST[0]}, 4, v{vL}")
    for k in range(1, 4):
        a(f"v_add_u32 v{vST[k]}, {4096*k}, v{vST[0]}")
    a(f"""
s_add_u32 s{sWOFF}, s{sWOFF}, 256
s_cmp_lg_u32 s{sWAVE}, 0
s_cbranch_scc1 K1_noclear
s_lshl_b32 s{sT0}, s2, 7
s_add_u32 s{sT0}, s{sT0}, {FLAGS}
v_mov_b32 v{vT0}, 0
v_lshlrev_b32 v{vT1}, 15, v{vL}
s_mov_b64 exec, 7
buffer_store_dword v{vT0}, v{vT1}, s[{sWS}:{sWS+3}], s{sT0} offen sc1
s_mov_b64 exec, -1
K1_noclear:
""")
    if CPF:
        for it in code_prefetch(a, LK, "K2_after" if fused else "K1_code_end", 62, sT0, sWAVE, vL, vT0, 245): it.fn()
    if CPF > 1:
        for it in code_prefetch(a, "K1_code_end", "K3_code_end", 62, sT0, sWAVE, vL, vT0, 245): it.fn()
    def cleared():
        if not fused: return
        L = a.newlabel("K1_cnt")
        a(f"""
s_cmp_lg_u32 s{sWAVE}, 0
s_cbranch_scc1 {L}
s_load_dwordx2 s[88:89], s[0:1], 88
s_mov_b32 s90, 256
s_mov_b32 s91, 0x20000
v_mov_b32 v{vT0}, 1
v_mov_b32 v{vT1}, 0
s_waitcnt lgkmcnt(0)
s_mov_b64 exec, 1
buffer_atomic_add v{vT0}, v{vT1}, s[88:91], 0 offen sc1
s_mov_b64 exec, -1
{L}:
""")
    def touch(bufs, tag):
        a(f"""
s_lshl_b32 s{sT0}, s2, 2
s_add_u32 s{sT0}, s{sT0}, s{sWAVE}
s_mov_b32 s91, 0x20000
""")
        for ptr, size in bufs:
            lg = (size - 1).bit_length() - 10
            a(f"v_and_b32 v{vT0}, {(1 << (lg - 7)) - 1}, v{vL}")
            a(f"v_lshlrev_b32 v{vT0}, 7, v{vT0}")
            a(f"s_lshl_b32 s{sT2}, s{sT0}, {lg}")
            a(f"s_mov_b32 s88, s{ptr}")
            a(f"s_mov_b32 s89, s{ptr+1}")
            a(f"s_mov_b32 s90, {size}")
            a.vm(f"buffer_load_dword v245, v{vT0}, s[88:91], s{sT2} offen", tag)
    def warm0():
        touch(((44, 0x200000), (48, 0x400000), (50, 0x400000), (52, 0x200000), (54, 0x180000)), "warm")
    if W0 == 2: warm0()
    if W0 == 1: warm0()
    a(f"""
s_cmp_ge_u32 s{sJOB}, 24
s_cbranch_scc1 {LBKV}
s_cmp_ge_u32 s{sJOB}, 12
s_cbranch_scc1 {LV}
""")
    state0 = (list(a.vmq), list(a.lgq))
    vTW = 244
    a.stamp0 = 12
    def acc(buf, nt, st): return ACC + (buf * 16 + nt * 4 + st) * 4
    def wf(ks, nt): return WF + ((ks % 2) * 4 + nt) * 4
    SLOT = [65536, 0, 32768, 98304]
    def tr_item(pair, ks, nt, jj, SL=SLOT):
        hi, k8 = ks >> 3, ks & 7
        sb = SL[2 * pair + hi]
        reg = vS[(sb >> 16) * 4 + nt]; off = (sb & 0xffff) + k8 * 4096 + jj * 512
        b = wf(ks, nt) + jj * 2
        return mk.LG(f"ds_read_b64_tr_b16 v[{b}:{b+1}], v{reg} offset:{off}", ("wf", ks % 2, nt))
    def slot_dma(slot, SL=SLOT):
        hi = slot & 1
        its = []
        for i in range(8):
            its.append(mk.I(f"s_add_u32 m0, s{sLC3 if slot == 3 else sLC}, {SL[slot] + i * 1024}"))
            if i == 0: its.append(mk.I(f"s_add_u32 s{sT1}, s{sWOFF}, s{sWH if hi else sWL}"))
            else: its.append(mk.I(f"s_add_u32 s{sT1}, s{sT1}, s{sROW8}"))
            its.append(mk.VM(f"buffer_load_dwordx4 v{vDE if i % 2 == 0 else vDO}, s[{sW}:{sW+3}], s{sT1} offen lds", ("w", slot)))
        if hi: its.append(mk.I(f"s_add_u32 s{sWOFF}, s{sWOFF}, 128"))
        return its
    def epi_items(typ, buf, units=(0, 1), packed=False, st=None):
        items = []
        d = 12
        for u in units:
            items += [mk.I(t) for t in (f"s_lshr_b32 s{sSTB}, s{sSUB}, 2", f"s_lshl_b32 s{sSTB}, s{sSTB}, 19", f"s_and_b32 s{sT0}, s{sSUB}, 3",
                                       f"s_lshl_b32 s{sT0}, s{sT0}, {d}", f"s_add_u32 s{sSTB}, s{sSTB}, s{sT0}",
                                       f"s_add_u32 s{sSTB}, s{sSTB}, s{sSTFIX}", f"s_add_u32 s{sSUB}, s{sSUB}, 1")]
            for x in range(4):
                n = u * 4 + x
                pk = PK + n * 4
                for j in range(4):
                    if typ == "K": r = acc(buf, 2 * u + (j >> 1), x) + (j & 1) * 2
                    else: r = acc(buf, 2 * u + (x & 1), (x >> 1) * 2 + (j >> 1)) + (j & 1) * 2
                    if typ == "K":
                        t = TM + ((n * 4 + j) % 8) * 2
                        if packed: items.append(mk.I(f"v_pk_mul_f32 v[{t}:{t+1}], v[{r}:{r+1}], s[{sSCALE}:{sSCALE+1}] op_sel_hi:[1,0]"))
                        else:
                            items.append(mk.I(f"v_mul_f32 v{t}, s{sSCALE}, v{r}"))
                            items.append(mk.I(f"v_mul_f32 v{t+1}, s{sSCALE}, v{r+1}"))
                        items.append(mk.I(f"v_cvt_pk_bf16_f32 v{pk+j}, v{t}, v{t+1}"))
                    else:
                        items.append(mk.I(f"v_cvt_pk_bf16_f32 v{pk+j}, v{r}, v{r+1}"))
                vo, off = vST[0], x * 1024
                items.append(mk.VM(f"buffer_store_dwordx4 v[{pk}:{pk+3}], v{vo}, s[{sWS}:{sWS+3}], s{sSTB} offen offset:{off} {ST if st is None else st}", "st"))
        return items
    def put_bar(B, g, tag, lg0=False):
        B.put(g, mk.WV(tag, lg0=lg0)); B.put(g, mk.I("s_barrier"), 3)
    def next_phase():
        its = [mk.I(t) for t in f"""s_mov_b32 s{sACT}, s44
s_mov_b32 s{sACT+1}, s45
s_mov_b32 s{sW}, s46
s_mov_b32 s{sW+1}, s47
s_mov_b32 s{sW+2}, 0x400000
s_bfe_u32 s{sT1}, s2, 0x30003
s_lshl_b32 s{sA1}, s{sT1}, 2
s_add_u32 s{sA1}, s{sA1}, s{sWAVE}
s_lshl_b32 s{sA1}, s{sA1}, 15
s_sub_u32 s{sT1}, 15, s{sT1}
s_lshl_b32 s{sA0}, s{sT1}, 2
s_add_u32 s{sA0}, s{sA0}, s{sWAVE}
s_lshl_b32 s{sA0}, s{sA0}, 15
s_and_b32 s{sWB}, s2, 7
s_lshl_b32 s{sWB}, s{sWB}, 2
s_lshr_b32 s{sT1}, s2, 6
s_add_u32 s{sWB}, s{sWB}, s{sT1}
s_lshl_b32 s{sWB}, s{sWB}, 8
s_lshl_b32 s{sT1}, s{sWAVE}, 17
s_add_u32 s{sWB}, s{sWB}, s{sT1}
s_mov_b32 s{sROWH}, 4096
s_mov_b32 s{sCO}, -128""".split("\n")]
        return its, pa.chunk_dmas(0) + pa.chunk_dmas(1)
    def ptr_loads():
        a("""
s_load_dwordx2 s[88:89], s[0:1], 40     ; w_o
s_load_dwordx2 s[92:93], s[0:1], 72     ; wo
s_load_dwordx2 s[52:53], s[0:1], 88     ; debug
""")
    LEAD = 12
    def mf(typ, d, w, ks, st):
        c = "0" if ks == 0 else f"v[{d}:{d+3}]"
        if typ == "K": s = f"{MF} v[{d}:{d+3}], v[{w}:{w+3}], {pa.act(ks, st)}, {c}"
        else: s = f"{MF} v[{d}:{d+3}], {pa.act(ks, st)}, v[{w}:{w+3}], {c}"
        return lambda: a(s)
    def body(typ, buf, SL=SLOT, epi=True, dma=True, nxt=True, extra=None):
        B = Body(256)
        for m in range(256):
            ks, nt, st = m >> 4, (m >> 2) & 3, m & 3
            B.mfma[m] = mf(typ, acc(buf, nt, st), wf(ks, nt), ks, st)
            if st == 0 and nt % 2 == 0: B.put_pre(m, mk.WL(("wf", ks % 2, nt + 1)))
        for idx in range(LEAD // 4, 64 + (LEAD // 4 if nxt else 0)):
            ks, nt = idx >> 2, idx & 3
            g = idx * 4 - LEAD
            if idx == 32: put_bar(B, g - 2, ("w", 2 * buf + 1), lg0=(EARLY and buf == 0 and dma))
            if idx == 64: put_bar(B, g - 2, ("w", 2 * (1 - buf)))
            for jj in range(2):
                B.put(g, tr_item(buf, ks, nt, jj, SL) if ks < 16 else tr_item(1 - buf, ks - 16, nt, jj, SL))
        if dma:
            B.stream(slot_dma(2 * (1 - buf), SL), 0, 26)
            B.stream(slot_dma(2 * (1 - buf) + 1, SL), 128 - LEAD, 154 - LEAD)
        if epi:
            B.stream(epi_items(typ, 1 - buf, (0,)), 14, 110)
            B.stream(epi_items(typ, 1 - buf, (1,)), 132, 236)
        if extra: B.stream(extra, 28, 236)
        B.emit(a)
    def kv_warm():
        its = [mk.WL(("none",))] + [mk.I(t) for t in f"""s_lshl_b32 s{sA0}, s2, 2
s_add_u32 s{sA0}, s{sA0}, s{sWAVE}
s_lshl_b32 s{sA0}, s{sA0}, 11
s_lshl_b32 s{sA1}, s{sA0}, 1
s_mov_b32 s{sACT}, s44
s_mov_b32 s{sACT+1}, s45
s_mov_b32 s56, s46
s_mov_b32 s57, s47
s_mov_b32 s58, 0x400000
s_mov_b32 s59, 0x20000
v_and_b32 v244, 31, v{vL}
v_lshlrev_b32 v244, 7, v244""".split("\n")]
        its[0] = Item(lambda: (a("s_waitcnt lgkmcnt(0)"), a.lgq.clear()), 4, "s")
        its.append(mk.VM(f"buffer_load_dword v245, v244, s[56:59], s{sA1} offen", "warm"))
        its.append(mk.I(f"v_and_b32 v244, 0x7ff, v244"))
        its.append(mk.VM(f"buffer_load_dword v245, v244, s[{sACT}:{sACT+3}], s{sA0} offen", "warm"))
        return its
    def half_body(typ, buf):
        B = Body(128)
        for m in range(128):
            ks, nt, st = m >> 3, (m >> 2) & 1, m & 3
            B.mfma[m] = mf(typ, acc(buf, nt, st), wf(ks, nt), ks, st)
            if st == 0: B.put_pre(m, mk.WL(("wf", ks % 2, nt)))
        HSL = SLOT[:3] + [SLOT[0] if EARLY else SLOT[3]]
        for jj in range(2): tr_item(buf, 1, 0, jj).fn()
        for idx in range(3, 32):
            ks, nt = idx >> 1, idx & 1
            g = idx * 4 - 12
            if idx == 16: put_bar(B, g - 2, ("w", 2 * buf + 1))
            for jj in range(2): B.put(g, tr_item(buf, ks, nt, jj, HSL))
        if EARLY:
            su, dm = next_phase()
            B.stream(su, 4, 50); B.stream(dm, 51, 126)
        B.stream(epi_items(typ, 1 - buf, st=STL), 8, 124)
        B.emit(a)
    vWX = 244
    def warm():
        a(f"""
s_sub_u32 s{sT0}, s{sJOB}, 24
s_lshl_b32 s{sT0}, s{sT0}, 3
s_add_u32 s{sT0}, s{sT0}, s{sRB}
s_lshl_b32 s{sT0}, s{sT0}, 2
s_add_u32 s{sT0}, s{sT0}, s{sWAVE}
v_lshlrev_b32 v{vWX}, 7, v{vL}
s_mov_b32 s88, s46
s_mov_b32 s89, s47
s_mov_b32 s90, 0x400000
s_mov_b32 s91, 0x20000
s_lshl_b32 s{sA1}, s{sT0}, 14
s_lshl_b32 s{sA0}, s{sT0}, 13
s_waitcnt lgkmcnt(0)
s_mov_b32 s{sACT}, s44
s_mov_b32 s{sACT+1}, s45
""")
        def tq():
            a.vm(f"buffer_load_dword v245, v{vWX}, s[88:91], s{sA1} offen", "warm")
            a(f"s_add_u32 s{sA1}, s{sA1}, 8192")
        def tx():
            a.vm(f"buffer_load_dword v245, v{vWX}, s[{sACT}:{sACT+3}], s{sA0} offen", "warm")
        no = lambda: None
        return [tx, tq, tq, no]
    def path(typ):
        a.vmq, a.lgq = list(state0[0]), list(state0[1])
        p = mkpa(typ * 8)
        if PT:
            a(f"""
s_sub_u32 s{sT0}, s{sJOB}, {0 if typ == "K" else 12}
s_lshl_b32 s{sT0}, s{sT0}, 3
s_add_u32 s{sT0}, s{sT0}, s{sRB}
s_lshl_b32 s{sT0}, s{sT0}, 2
s_add_u32 s{sT0}, s{sT0}, s{sWAVE}
s_mul_i32 s{sT0}, s{sT0}, {11*128}
v_min_u32 v{vTW}, 10, v{vL}
v_lshlrev_b32 v{vTW}, 7, v{vTW}
v_add_u32 v{vTW}, s{sT0}, v{vTW}
""")
        B = p.build(stamp=2)
        if PT:
            for c in range(8):
                B.stream([mk.I(f"s_mov_b32 s{sT0}, {((c + PT + 2) & 7) * 0x80000}"),
                          mk.VM(f"buffer_load_dword v245, v{vTW}, s[{sW}:{sW+3}], s{sT0} offen", "pt")], 64 * c + 43, 64 * c + 47)
        B.stream(slot_dma(0), p.bar_gap(6) + 3, p.bar_gap(6) + 50)
        B.stream(slot_dma(1), p.bar_gap(7) + 3, p.bar_gap(7) + 50)
        if SKIPH: B.stream(kv_warm(), p.bar_gap(7) + 50, 511)
        B.emit(a)
        a.stamp(3)
        cleared()
        a("s_nop 3")
        for it in epi_items(typ, 0, packed=True): it.fn()
        a.wait_vm(("w", 0)); a("s_barrier")
        for idx in range(LEAD // 4):
            for jj in range(2): tr_item(0, idx >> 2, idx & 3, jj).fn()
        a.stamp(4)
        LOOP = a.newlabel("K1_loop"); DONE = a.newlabel("K1_done")
        a(f"s_mov_b32 s{sCNT}, 0")
        a.label(LOOP)
        mid = []
        def it():
            body(typ, 0)
            a.stamp(7)
            a(f"s_cmp_eq_u32 s{sCNT}, 1")
            a(f"s_cbranch_scc1 {DONE}")
            mid[:] = [list(a.vmq), list(a.lgq)]
            if a.diag: a("s_mov_b32 s69, s71")
            body(typ, 1)
            a.stamp(6)
            a(f"s_mov_b32 s{sCNT}, 1")
            a(f"s_lshl_b32 s{sWOFF}, s{sHU}, 6")
            if EARLY: a(f"s_sub_u32 s{sLC3}, s{sLC}, {SLOT[3] - SLOT[0]}")
            if SKIPH:
                a(f"s_and_b32 s{sT0}, s{sHU}, 31")
                a(f"s_cmp_eq_u32 s{sT0}, 31")
                a(f"s_cselect_b32 s{sW+2}, 0, s{sW+2}")
            a(f"v_and_b32 v{vDE}, 0xffffffbf, v{vDE}")
            a(f"v_and_b32 v{vDO}, 0xffffffbf, v{vDO}")
        loop_emit(a, it)
        a(f"s_branch {LOOP}")
        a.label(DONE)
        a.vmq, a.lgq = list(mid[0]), list(mid[1])
        if SKIPH:
            LH = a.newlabel("K1_h")
            a(f"s_and_b32 s{sT0}, s{sHU}, 31")
            a(f"s_cmp_lg_u32 s{sT0}, 31")
            a(f"s_cbranch_scc1 {LH}")
            su, dm = next_phase()
            for it in su: it.fn()
            a("s_waitcnt lgkmcnt(0)"); a("s_barrier")
            for it in dm: it.fn()
            ptr_loads()
            for itm in epi_items(typ, 0, packed=True, st=STL): itm.fn()
            a.stamp(12); a.stamp(8); a.stamp(9); a.stamp(10, real=True)
            a.stamp_flush(sWS, sWAVE, 24, DIAG)
            a.k1_exit.append(list(a.vmq))
            a("s_branch K2_fused_entry")
            a.label(LH)
            a.vmq, a.lgq = list(mid[0]), list(mid[1])
        half_body(typ, 1)
        a.stamp(12)
        a(f"s_mov_b32 s{sSUB}, s{sHU}")
        if EARLY: ptr_loads()
        a("s_nop 3")
        for itm in epi_items(typ, 1, (0,), packed=True, st=STL): itm.fn()
        a.stamp(8)
        if a.diag and not fused: a("s_waitcnt vmcnt(0)")
        a.stamp(9); a.stamp(10, real=True)
        a.stamp_flush(sWS, sWAVE, 24, DIAG)
        a.k1_exit.append(list(a.vmq))
        a("s_branch K2_fused_entry" if fused else "s_endpgm")
    a.label(LK)
    path("K")
    a.label(LV)
    path("V")
    a.label(LBKV)
    a.vmq, a.lgq = list(state0[0]), list(state0[1])
    sPHI = 40; sLOG2E = 60; sRET = 62
    sHM = [48, 50, 52, 54]
    WPH = 192
    vPH, vPW, vPR, vVW, vZ, vONE = 246, 247, 248, 249, 250, 252
    vPW2, vPR2, vVR = 230, 231, 232
    BSL = [0, 32768, 65536, 98304]
    a(f"""
s_mov_b32 s{sPHI}, s58
s_mov_b32 s{sPHI+1}, s59
s_mov_b32 s{sPHI+2}, 16384
s_mov_b32 s{sPHI+3}, 0x20000
s_mov_b32 s{sLOG2E}, {hex(f2u(LOG2E))}
s_sub_u32 s{sWOFF}, s{sWOFF}, 1280
v_and_b32 v{vT0}, 15, v{vL}
v_lshrrev_b32 v{vT1}, 4, v{vL}
v_bfe_u32 v{vT2}, v{vL}, 2, 2                  ; hq
v_cmp_eq_u32 s[{sHM[0]}:{sHM[0]+1}], 0, v{vT2}
v_cmp_eq_u32 s[{sHM[1]}:{sHM[1]+1}], 1, v{vT2}
v_cmp_eq_u32 s[{sHM[2]}:{sHM[2]+1}], 2, v{vT2}
v_cmp_eq_u32 s[{sHM[3]}:{sHM[3]+1}], 3, v{vT2}
v_and_b32 v{vPH}, 3, v{vL}
v_lshlrev_b32 v{vPH}, 1, v{vPH}
v_lshl_add_u32 v{vPH}, v{vT1}, 7, v{vPH}
v_lshl_add_u32 v{vPH}, v{vT2}, 9, v{vPH}
v_lshlrev_b32 v{vPW}, 6, v{vT0}
v_lshl_add_u32 v{vPW}, v{vT1}, 14, v{vPW}
s_lshl_b32 s{sT0}, s{sWAVE}, 12
s_add_u32 s{sT0}, s{sT0}, {AR}
v_add_u32 v{vPW}, s{sT0}, v{vPW}
v_lshlrev_b32 v{vPW2}, 4, v{vT0}
v_lshl_add_u32 v{vPW2}, v{vT1}, 17, v{vPW2}
v_lshl_add_u32 v{vT2}, v{vT1}, 2, v{vT2}
v_lshlrev_b32 v{vPR}, 6, v{vT2}
v_and_b32 v{vT2}, 3, v{vL}
v_lshl_add_u32 v{vPR}, v{vT2}, 4, v{vPR}
v_add_u32 v{vPR}, s{sLA}, v{vPR}
v_lshlrev_b32 v{vZ}, 4, v{vT1}
s_add_u32 s{sT0}, s{sLC}, {FR}
v_add_u32 v{vVW}, s{sT0}, v{vST[0]}
s_lshl_b32 s{sT0}, s{sWAVE}, 10
s_add_u32 s{sT0}, s{sT0}, {FR}
v_add_u32 v{vVR}, s{sT0}, v{vST[0]}
""")
    VFR, AW = 128, 160
    X, EP, EM, PHO, MX, NF = 64, 80, 96, 112, 128, 136
    LSM = a.newlabel("K1_sm16")
    def pack_nf(st):
        for kp in range(2):
            for j in range(4):
                r = acc(0, 2 * kp + (j >> 1), st) + (j & 1) * 2
                a(f"v_cvt_pk_bf16_f32 v{NF+kp*4+j}, v{r}, v{r+1}")
    def pk_mfma():
        for kp in range(2):
            for i in range(4):
                c = "0" if kp == 0 else f"v[{X+i*4}:{X+i*4+3}]"
                a(f"{MF} v[{X+i*4}:{X+i*4+3}], v[{AW+i*8+kp*4}:{AW+i*8+kp*4+3}], v[{NF+kp*4}:{NF+kp*4+3}], {c}")
    def feature_map(out, ts):
        pack_nf(0); a("s_nop 1"); pk_mfma()
        for st in range(4):
            ts.pop(0)()
            pack_nf(min(st + 1, 3))
            a(f"s_call_b64 s[{sRET}:{sRET+1}], {LSM}")
            out(st)
    def sm16():
        a.label(LSM)
        x = X
        a(f"v_max3_f32 v{MX}, v{x}, v{x+1}, v{x+2}")
        a(f"v_min3_f32 v{MX+1}, v{x}, v{x+1}, v{x+2}")
        for k in range(3, 15, 2):
            a(f"v_max3_f32 v{MX}, v{MX}, v{x+k}, v{x+k+1}")
            a(f"v_min3_f32 v{MX+1}, v{MX+1}, v{x+k}, v{x+k+1}")
        a(f"v_max_f32 v{MX}, v{MX}, v{x+15}")
        a(f"v_min_f32 v{MX+1}, v{MX+1}, v{x+15}")
        a(f"v_pk_mul_f32 v[{MX}:{MX+1}], v[{MX}:{MX+1}], s[{sLOG2E}:{sLOG2E+1}] op_sel_hi:[1,0]")
        for k in range(0, 16, 2):
            a(f"v_pk_fma_f32 v[{EP+k}:{EP+k+1}], v[{x+k}:{x+k+1}], s[{sLOG2E}:{sLOG2E+1}], v[{MX}:{MX+1}] op_sel_hi:[1,0,0] neg_lo:[0,0,1] neg_hi:[0,0,1]")
            a(f"v_pk_fma_f32 v[{EM+k}:{EM+k+1}], v[{x+k}:{x+k+1}], s[{sLOG2E}:{sLOG2E+1}], v[{MX}:{MX+1}] op_sel:[0,0,1] op_sel_hi:[1,0,1] neg_lo:[1,0,0] neg_hi:[1,0,0]")
        n = 0
        for k in range(16):
            if k % 2 == 0:
                kp, i = n >> 2, n & 3; n += 1
                c = "0" if kp == 0 else f"v[{X+i*4}:{X+i*4+3}]"
                a(f"{MF} v[{X+i*4}:{X+i*4+3}], v[{AW+i*8+kp*4}:{AW+i*8+kp*4+3}], v[{NF+kp*4}:{NF+kp*4+3}], {c}")
            a(f"v_exp_f32 v{EP+k}, v{EP+k}")
            a(f"v_exp_f32 v{EM+k}, v{EM+k}")
        SP, SM = MX + 2, MX + 4
        a(f"v_pk_add_f32 v[{SP}:{SP+1}], v[{EP}:{EP+1}], v[{EP+2}:{EP+3}]")
        a(f"v_pk_add_f32 v[{SM}:{SM+1}], v[{EM}:{EM+1}], v[{EM+2}:{EM+3}]")
        for k in range(4, 16, 2):
            a(f"v_pk_add_f32 v[{SP}:{SP+1}], v[{SP}:{SP+1}], v[{EP+k}:{EP+k+1}]")
            a(f"v_pk_add_f32 v[{SM}:{SM+1}], v[{SM}:{SM+1}], v[{EM+k}:{EM+k+1}]")
        a(f"v_add_f32 v{SP}, v{SP}, v{SP+1}")
        a(f"v_add_f32 v{SM}, v{SM}, v{SM+1}")
        a(f"v_rcp_f32 v{SP}, v{SP}")
        a(f"v_rcp_f32 v{SM}, v{SM}")
        a("s_nop 0")
        for k in range(0, 16, 2):
            a(f"v_pk_mul_f32 v[{EP+k}:{EP+k+1}], v[{EP+k}:{EP+k+1}], v[{SP}:{SP+1}] op_sel_hi:[1,0]")
            a(f"v_pk_mul_f32 v[{EM+k}:{EM+k+1}], v[{EM+k}:{EM+k+1}], v[{SM}:{SM+1}] op_sel_hi:[1,0]")
        for k in range(8):
            a(f"v_cvt_pk_bf16_f32 v{PHO+(k>>1)*4+(k&1)}, v{EP+2*k}, v{EP+2*k+1}")
            a(f"v_cvt_pk_bf16_f32 v{PHO+(k>>1)*4+2+(k&1)}, v{EM+2*k}, v{EM+2*k+1}")
        a(f"s_setpc_b64 s[{sRET}:{sRET+1}]")
    def post(ts):
        a.lgq = []
        for u in range(2):
            for hd in range(4):
                f = VFR + (u * 4 + hd) * 4
                for j in range(4):
                    r = acc(1, hd, 2 * u + (j >> 1)) + (j & 1) * 2
                    a(f"v_cvt_pk_bf16_f32 v{f+j}, v{r}, v{r+1}")
                a(f"ds_write_b128 v{vVW}, v[{f}:{f+3}] offset:{(u*4+hd)*1024}")
        for i in range(4):
            a(f"v_lshl_or_b32 v{WPH+i*4}, v{WPH+i*4+1}, 16, v{WPH+i*4}")
            a(f"v_lshl_or_b32 v{WPH+i*4+1}, v{WPH+i*4+3}, 16, v{WPH+i*4+2}")
        for i in range(4):
            for hq in range(4):
                for e in range(2):
                    a(f"v_cndmask_b32 v{AW+i*8+hq*2+e}, 0, v{WPH+i*4+e}, s[{sHM[hq]}:{sHM[hq]+1}]")
        a("s_waitcnt lgkmcnt(0)")
        def out_k(st):
            for kq in range(4):
                a(f"ds_write_b128 v{vPW}, v[{PHO+kq*4}:{PHO+kq*4+3}] offset:{st*1024 + kq*16}")
        feature_map(out_k, ts)
        a("s_waitcnt lgkmcnt(0)")
        a("s_barrier")
        KV = 0
        def mfs(k):
            fb = 16 + k * 12
            a.wait_lg(("b", k), always=True)
            for ft in range(2):
                d = KV + ft * 4; c = "0" if k == 0 else f"v[{d}:{d+3}]"
                a(f"{MF} v[{d}:{d+3}], v[{fb+4+ft*4}:{fb+7+ft*4}], v[{fb}:{fb+3}], {c}")
            for ft in range(2):
                d = KV + 8 + ft * 4; c = "0" if k == 0 else f"v[{d}:{d+3}]"
                a(f"{MF} v[{d}:{d+3}], v[{fb+4+ft*4}:{fb+7+ft*4}], v[{vONE}:{vONE+3}], {c}")
        for k in range(8):
            fb = 16 + k * 12
            a.lg(f"ds_read_b128 v[{fb}:{fb+3}], v{vVR} offset:{k*4096}", ("b", k))
            for ft in range(2):
                for jj in range(2):
                    b = fb + 4 + ft * 4 + jj * 2
                    a.lg(f"ds_read_b64_tr_b16 v[{b}:{b+1}], v{vPR} offset:{k*2048 + jj*1024 + ft*8}", ("b", k))
            if k >= 2: mfs(k - 2)
        mfs(6); mfs(7)
        a(f"""
s_lshl_b32 s{sT0}, s{sSUB}, 2
s_add_u32 s{sT0}, s{sT0}, s{sWAVE}
s_lshl_b32 s{sT0}, s{sT0}, 3
s_add_u32 s{sT0}, s{sT0}, s{sRB}
s_mul_i32 s{sT0}, s{sT0}, {BKV_P}
s_add_u32 s{sT0}, s{sT0}, {BKV}
v_and_b32 v{vT0}, 15, v{vL}
v_cmp_eq_u32 vcc, 0, v{vT0}
buffer_store_dwordx4 v[{KV}:{KV+3}], v{vST[0]}, s[{sWS}:{sWS+3}], s{sT0} offen sc1
buffer_store_dwordx4 v[{KV+4}:{KV+7}], v{vST[0]}, s[{sWS}:{sWS+3}], s{sT0} offen offset:1024 sc1
s_mov_b64 exec, vcc
buffer_store_dwordx4 v[{KV+8}:{KV+11}], v{vZ}, s[{sWS}:{sWS+3}], s{sT0} offen offset:2048 sc1
buffer_store_dwordx4 v[{KV+12}:{KV+15}], v{vZ}, s[{sWS}:{sWS+3}], s{sT0} offen offset:2112 sc1
s_mov_b64 exec, -1
""")
        a.vmq += ["st"] * 4
    def wphi_loads():
        a(f"s_lshl_b32 s{sT0}, s{sSUB}, 11")
        for i in range(4):
            for j in range(4):
                a.vm(f"buffer_load_ushort v{WPH+i*4+j}, v{vPH}, s[{sPHI}:{sPHI+3}], s{sT0} offen offset:{j*32 + i*8}", "wphi")
    wphi_loads()
    p = mkpa("KKKKVVVV")
    B = p.build()
    B.stream(slot_dma(0, BSL), p.bar_gap(7) + 3, p.bar_gap(7) + 50)
    if SKIPH: B.stream(kv_warm(), p.bar_gap(7) + 50, 511)
    B.emit(a)
    a.stamp(3)
    a("s_barrier")
    for it in slot_dma(1, BSL): it.fn()
    cleared()
    for r in range(4): a(f"v_mov_b32 v{vONE+r}, 0x3f803f80")
    post(warm() if not SKIPH else [lambda: None] * 4)
    a.stamp(4)
    a.wait_vm(("w", 0)); a("s_barrier")
    for idx in range(LEAD // 4):
        for jj in range(2): tr_item(0, idx >> 2, idx & 3, jj, BSL).fn()
    body("K", 0, BSL, epi=False, dma=False, nxt=False)
    a.stamp(5)
    a(f"""
s_lshl_b32 s{sT0}, s{sSUB}, 19
s_lshr_b32 s{sT1}, s{sSTFIX}, 2
s_add_u32 s{sT0}, s{sT0}, s{sT1}
s_add_u32 s{sT0}, s{sT0}, {PHIQ}
s_nop 3
""")
    if EARLY:
        su, dm = next_phase()
        for it in su: it.fn()
        a(f"s_mov_b32 s{sROW1}, 8192")
        a(f"s_mov_b32 s{sROW4}, 32768")
        pa.setup_dma(vL, vT0, vT1, vT2, sROW1)
        a("s_barrier")
        for it in dm: it.fn()
        ptr_loads()
    def out_q(st):
        for kq in range(4):
            a.vm(f"buffer_store_dwordx4 v[{PHO+kq*4}:{PHO+kq*4+3}], v{vPW2}, s[{sWS}:{sWS+3}], s{sT0} offen offset:{st*1024 + kq*256} sc1", "st")
    feature_map(out_q, [lambda: None] * 4)
    a.stamp(6)
    if WB:
        LW = a.newlabel("K1_nowb")
        a(f"s_cmp_lg_u32 s{sWAVE}, 0")
        a(f"s_cbranch_scc1 {LW}")
        for i in range(WB):
            a("buffer_wbl2 sc1")
            a("s_waitcnt vmcnt(0)")
        a.label(LW)
    a.stamp(8)
    if a.diag and not fused: a("s_waitcnt vmcnt(0)")
    a.stamp(9); a.stamp(10, real=True)
    a.stamp_flush(sWS, sWAVE, 24, DIAG, vt=(241, 242))
    a.k1_exit.append(list(a.vmq))
    if fused: a("s_branch K2_fused_entry")
    a.label(END)
    a("s_endpgm")
    sm16()
    a.label("K1_code_end")

if __name__ == "__main__":
    import sys
    a = Asm()
    a.diag = len(sys.argv) > 1
    gen_k1(a)
    for p in a.check(): print(p)
    open("k1.s", "w").write(a.text())
    print(len(a.lines), "lines")
```

```python
from asmlib import Asm
from sched import *
from common import *
from phasea import PhaseA, WR, FR, AR
from hedge import *

BIG = f2u(-1.0e30)
THR = f2u(2.0 ** 60)
OFFS = f2u(40.0)
RQ = 0x20000
MX = 0xC000
MF32 = "v_mfma_f32_32x32x16_bf16"

def gen_k2(a, name="k2_kernel", CPF=1, ROT=0, fused=False, PLEAD=50, PSLEEP=12, NLATE=0, FST="", OST="", L2W=1, fused3=False, CH=0, WARM=0, EARLY=0, PROG=0):
    if fused3: FST = OST = "sc1"
    if not fused: a.kernel(name, (256,1,1), (256,1,1), 163840, vgpr=256, agpr=256)
    SC = " sc1" if fused else ""
    sX, sW, sWS = 4, 8, 12
    (sWAVE, sH, sI, sROW1, sA0, sA1, sT0, sT1, sT2, sCNT, sLA, sLW, sWSRC, sROW4, sROWH,
     sKSRC, sVSRC, sKD, sVD, sKAP, sDGA, sDGB, sDMIN, sTHR, sCTXA, sCTXB, sP, sW4) = range(16, 44)
    sRET = 44
    sM = [46, 48, 50, 52]
    sB0, sB1 = 54, 55
    sEVA, sEVB = 98, 99
    sCO, sWB, sA0c, sA1c = 46, 47, 48, 49
    sOFF = sTHR
    Q = 0; S = 64; P = 128; NM = 160; TE = 192; LC = 200; M = 208
    vK, vV, vL16, vL, vT0, vT1, vTHR, vQX = 212, 213, 214, 215, 216, 217, 218, 219
    vX16, vX32, vBIG, vDG = 220, 221, 222, 223
    D = 224; F = 228; vST = [232, 233]; vMX = 234; vT2 = 235
    ZERO = 236
    PKR = 240
    pACC, pWF = 64, 0
    vWA = list(range(192, 200)); vXA = [200, 201]; vAD = [202, 203, 204, 205]; vWD = [206, 207, 208, 209]
    O = 0; KF = 128; VF = 160; LA = 192; ONES = 208
    END = a.newlabel("K2_end")
    def q(u, dk): return Q + (u * 4 + dk) * 4
    def s_(buf, u, kt): return S + ((buf * 4 + u) * 2 + kt) * 4
    def p_(buf, u): return P + (buf * 4 + u) * 4
    def nm(u, kt): return NM + (u * 2 + kt) * 4
    def o_(u, dt): return O + (u * 8 + dt) * 4
    def lc(par, u): return LC + par * 4 + u
    mk = Mk(a)
    I = lambda s, c=None: mk.I(s)
    if fused:
        a.label("K2_fused_entry")
        a.vmq = []; a.lgq = []
        if EARLY:
            def behind(qq, tag): return len(qq) - 1 - max(i for i, t in enumerate(qq) if t == tag)
            n0 = min(behind(qq, ("pa", 0)) for qq in a.k1_exit); n1 = min(behind(qq, ("pa", 1)) for qq in a.k1_exit)
            a.vmq = [("pa", 0)] + ["x"] * (n0 - n1 - 1) + [("pa", 1)] + ["x"] * n1
            src = list(range(208, 216)) + [216, 217] + [218, 219, 252, 253] + [220, 221, 254, 255]
            for d_, s0 in zip(vWA + vXA + vAD + vWD, src): a(f"v_mov_b32 v{d_}, v{s0}")
        a(f"v_mov_b32 v{vL}, v240")
    else:
        a(f"""
s_cmp_ge_u32 s2, 256
s_cbranch_scc1 {END}
v_lshrrev_b32 v{vT0}, 6, v0
v_and_b32 v{vL}, 63, v0
v_readfirstlane_b32 s{sWAVE}, v{vT0}
""")
    a.stamp(14)
    if not EARLY: a(f"""
s_load_dwordx2 s[56:57], s[0:1], 0      ; x
s_load_dwordx2 s[58:59], s[0:1], 16     ; w_q
s_load_dwordx2 s[60:61], s[0:1], 96     ; ws
s_load_dwordx2 s[88:89], s[0:1], 40     ; w_o
s_load_dwordx2 s[92:93], s[0:1], 72     ; wo
s_load_dwordx2 s[52:53], s[0:1], 88
""")
    a(f"""
s_lshr_b32 s{sT1}, s2, 3
s_and_b32 s{sI}, s{sT1}, 7
s_lshr_b32 s{sT1}, s{sT1}, 3
s_and_b32 s{sH}, s2, 7
s_lshl_b32 s{sH}, s{sH}, 2
s_add_u32 s{sH}, s{sH}, s{sT1}
s_mov_b32 s{sROW1}, 8192
s_mov_b32 s{sROW4}, 32768
s_mov_b32 s{sROWH}, 4096
s_lshl_b32 s{sCO}, s{sT1}, 1
s_add_u32 s{sCO}, s{sCO}, s{sI}
s_and_b32 s{sCO}, s{sCO}, {7 if ROT else 0}
s_lshl_b32 s{sCO}, s{sCO}, 7
s_sub_u32 s{sCO}, s{sCO}, {-128 if EARLY else 128}
s_sub_u32 s{sT0}, 15, s{sI}             ; L
s_lshl_b32 s{sDGA}, s{sT0}, 2
s_add_u32 s{sDGA}, s{sDGA}, s{sWAVE}
s_lshl_b32 s{sDGB}, s{sI}, 2
s_add_u32 s{sDGB}, s{sDGB}, s{sWAVE}
s_lshl_b32 s{sA0}, s{sDGA}, 15
s_lshl_b32 s{sA1}, s{sDGB}, 15
s_lshl_b32 s{sLA}, s{sWAVE}, 14
s_add_u32 s{sLA}, s{sLA}, {AR}
s_lshl_b32 s{sW4}, s{sWAVE}, 12
s_add_u32 s{sLW}, s{sW4}, {WR}
s_lshl_b32 s{sWB}, s{sWAVE}, 17       ; 16 rows * 8192
s_lshl_b32 s{sT0}, s{sH}, 8
s_add_u32 s{sWB}, s{sWB}, s{sT0}
s_lshl_b32 s{sKSRC}, s{sH}, 19
s_add_u32 s{sKSRC}, s{sKSRC}, s{sW4}
s_add_u32 s{sVSRC}, s{sKSRC}, {VWS}
s_mov_b32 s{sX+2}, 0x200000
s_mov_b32 s{sX+3}, 0x20000
s_mov_b32 s{sW+2}, 0x400000
s_mov_b32 s{sW+3}, 0x20000
s_mov_b32 s{sWS+2}, {WS_USED}
s_mov_b32 s{sWS+3}, 0x20000
""")
    pa = PhaseA(a, pACC, pWF, vWA, vXA, vAD, vWD, sX, sW, sA0, sA1, sWSRC, sROW4, sROWH, sLA, sLW, sT2, "K" * 8, sCO, sWB, sA0c, sA1c)
    pa.ring = 128
    if not EARLY: pa.setup_dma(vL, vT0, vT1, vT2, sROW1)
    pa.pre1 = bool(EARLY)
    a("s_waitcnt lgkmcnt(0)")
    if not EARLY: a(f"""
s_mov_b32 s{sX}, s56
s_mov_b32 s{sX+1}, s57
s_mov_b32 s{sW}, s58
s_mov_b32 s{sW+1}, s59
s_mov_b32 s{sWS}, s60
s_mov_b32 s{sWS+1}, s61
""")
    a(f"""
s_mov_b32 s54, 256
s_mov_b32 s55, 0x20000
""")
    if fused:
        a(f"""
s_add_u32 s51, s99, {FLAGS + 32768}
s_cmp_eq_u32 s{sWAVE}, 0
s_cselect_b32 s62, 256, 0
s_cselect_b32 s50, {FLAGS + 32768}, s{sWS+2}
s_cselect_b32 s{sT0}, 1, 0
v_mov_b32 v{vX32}, s{sT0}
v_mov_b32 v{vT0}, 0
""")
        a.vm(f"buffer_load_dword v{vT2}, v{vT0}, s[52:55], s{sW4} offen sc1", "cnt")
        if not EARLY: a("s_barrier")
    a.stamp(0); a.stamp(1, real=True)
    if not EARLY:
        for it in pa.chunk_dmas(0): it.fn()
    a.stamp(11)
    if not EARLY: pa.setup_read(vL, vT0, vT1, vBIG)
    if fused:
        a(f"""
s_lshr_b32 s{sT0}, s{sH}, 3
s_mul_i32 s{sT0}, s{sT0}, 24
v_min_u32 v{vT0}, 55, v{vL}
v_add_u32 v{vX16}, s{sT0}, v{vT0}         ; K producers
v_add_u32 v{vT1}, 72, v{vX16}             ; V producers
v_cmp_le_u32 vcc, 24, v{vT0}
s_lshr_b32 s{sT0}, s{sH}, 2
s_lshl_b32 s{sT0}, s{sT0}, 3
s_add_u32 s{sT0}, s{sT0}, 144
v_cndmask_b32 v{vX16}, v{vX16}, v{vT1}, vcc
v_add_u32 v{vT1}, s{sT0}, v{vT0}          ; B producers
v_cmp_le_u32 vcc, 48, v{vT0}
s_nop 1
v_cndmask_b32 v{vX16}, v{vX16}, v{vT1}, vcc
v_lshlrev_b32 v{vX16}, 7, v{vX16}
""")
    setup2 = f"""
v_lshlrev_b32 v{vL16}, 4, v{vL}
v_mov_b32 v{vBIG}, {hex(BIG)}
v_mov_b32 v{vTHR}, {hex(THR)}
v_and_b32 v{vT0}, 15, v{vL}
v_lshrrev_b32 v{vT1}, 4, v{vL}
v_lshlrev_b32 v{vT1}, 2, v{vT1}
v_sub_u32 v{vDG}, v{vT0}, v{vT1}
v_mov_b32 v{vST[0]}, v{vL16}
v_add_u32 v{vST[1]}, {144*1024}, v{vL16}
v_mov_b32 v{vT0}, 0x3f803f80
s_and_b32 s{sP}, s{sWAVE}, 1
s_mul_i32 s{sCTXA}, s{sDGA}, {2*144*1024}
s_mul_i32 s{sCTXB}, s{sDGB}, {2*144*1024}
s_lshl_b32 s{sT0}, s{sH}, 12
s_add_u32 s{sT0}, s{sT0}, {CTX}
s_add_u32 s{sCTXA}, s{sCTXA}, s{sT0}
s_add_u32 s{sCTXB}, s{sCTXB}, s{sT0}
v_add_u32 v{vK}, 0x10000, v{vL16}
v_add_u32 v{vV}, 0x10000, v{vL16}
s_lshl_b32 s{sT0}, s{sWAVE}, 13
s_add_u32 s{sT0}, s{sT0}, {RQ}
v_add_u32 v{vQX}, s{sT0}, v{vL16}
s_lshl_b32 s{sT0}, s{sWAVE}, 9
s_add_u32 s{sT0}, s{sT0}, {MX}
v_lshlrev_b32 v{vMX}, 3, v{vL}
v_add_u32 v{vMX}, s{sT0}, v{vMX}
s_add_u32 s{sKD}, s{sW4}, 0x10000         ; K(2) -> parity 0
s_add_u32 s{sVD}, s{sW4}, 0x4000          ; V(1) -> parity 1
s_mov_b32 s{sKAP}, -1
s_min_u32 s{sDMIN}, s{sDGA}, s{sDGB}
s_mov_b32 s{sEVA}, s{sDGA}
s_mov_b32 s{sEVB}, s{sDGB}
s_mov_b32 s90, 0x400000
s_mov_b32 s91, 0x20000
s_mov_b32 s94, 0x80000
s_mov_b32 s95, 0x20000
"""
    def zero16(reg):
        return f"{MF32} {reg}, v[{ZERO}:{ZERO+3}], v[{ZERO}:{ZERO+3}], 0"
    late = [I(l.split(";")[0].strip()) for l in setup2.strip().split("\n")]
    late += [I(f"v_accvgpr_write_b32 a{ONES+r}, v{vT0}") for r in range(4)]
    for r in range(4): a(f"v_mov_b32 v{ZERO+r}, 0")
    if EARLY:
        late += [I(f"v_accvgpr_write_b32 a{r}, 0") for r in list(range(O, O + 128)) + [LA, LA + 4, LA + 8, LA + 12]]
        late += [I(f"v_accvgpr_write_b32 a{r}, 0") for r in range(LA, LA + 16) if r % 4]
    else:
        a("s_nop 1")
        for k in range(8): a(zero16(f"a[{O+k*16}:{O+k*16+15}]"))
        a(zero16(f"a[{LA}:{LA+15}]"))
    def tile_dma(src, ldsexpr, tag, srcadd=None, post=()):
        its = [I(f"s_add_u32 m0, s{ldsexpr[0]}, {ldsexpr[1]}"), I(f"s_add_u32 s{sT1}, s{src}, {srcadd}" if srcadd is not None else "s_nop 0")]
        for i in range(4):
            its.append(mk.VM(f"buffer_load_dwordx4 v{vL16}, s[{sWS}:{sWS+3}], s{sT1 if srcadd is not None else src} offen offset:{i*1024}{SC} lds", tag))
        return its + [I(t) for t in post]
    def chores():
        its = [I(f"s_lshl_b32 s{sB0}, s2, 2"), I(f"s_add_u32 s{sB0}, s{sB0}, s{sWAVE}")]
        if WARM:
            its += [I(f"v_and_b32 v{vT1}, 31, v{vL}"), I(f"v_lshlrev_b32 v{vT1}, 7, v{vT1}"), I(f"s_lshl_b32 s{sB1}, s{sB0}, 12"),
                    mk.VM(f"buffer_load_dword v245, v{vT1}, s[88:91], s{sB1} offen", "warm"),
                    I(f"v_and_b32 v{vT1}, 0x180, v{vT1}"), I(f"s_lshl_b32 s{sB1}, s{sB0}, 9"),
                    mk.VM(f"buffer_load_dword v245, v{vT1}, s[92:95], s{sB1} offen", "warm")]
        if fused3 == 2:
            its += [I(f"s_mul_i32 s{sB1}, s{sB0}, 6144"), I(f"s_add_u32 s{sB1}, s{sB1}, {PART}")]
            its += [I(f"v_mov_b32 v{PKR+8+r}, -1") for r in range(4)]
            for k in range(6):
                if k == 4: its.append(I(f"s_add_u32 s{sB1}, s{sB1}, 4096"))
                its.append(mk.VM(f"buffer_store_dwordx4 v[{PKR+8}:{PKR+11}], v{vL16}, s[{sWS}:{sWS+3}], s{sB1} offen offset:{(k % 4)*1024} sc1", "clr"))
        return its
    B = pa.build(stamp=2)
    g6 = pa.bar_gap(6) + 6
    LAFTER = "K2_after"
    if CPF: late = code_prefetch(a, LAFTER, "K3_code_end" if fused3 else "K2_code_end", 96, sT0, sWAVE, vL, vT0, 245) + late
    B.stream(late[NLATE:], 50 if not EARLY else 4, 300 if not EARLY else 340)
    if fused:
        def sig():
            L = a.newlabel("K2_sig")
            a(f"""
s_cmp_lg_u32 s{sWAVE}, 0
s_cbranch_scc1 {L}
s_mov_b64 exec, 1
buffer_store_dword v{vX32}, v{ZERO}, s[{sWS}:{sWS+3}], s51 offen sc1
s_mov_b64 exec, -1
{L}:
v_readfirstlane_b32 s51, v{vT2}
""")
        if EARLY: B.put(pa.bar_gap(2) + 3, Item(sig, 16, "X"), 3)
        else: sig()
        B.put(pa.bar_gap(6) - PLEAD, mk.VM(f"buffer_load_dword v{vT2}, v{vX16}, s[{sWS}:{sWS+3}], s50 offen sc1", "poll"))
        def chk():
            L = a.newlabel("K2_spin"); R = a.newlabel("K2_spun"); LP = a.newlabel("K2_spl"); LQ = a.newlabel("K2_spq")
            a.wait_vm("poll", always=True)
            a(f"v_cmp_ne_u32 vcc, v{vX32}, v{vT2}")
            a(f"s_cmp_lt_u32 s51, s62")
            a(f"s_cbranch_scc1 {L}")
            a(f"s_cbranch_vccnz {L}")
            a.label(R)
            a.stubs.append(f"""{L}:
s_mov_b32 s{sT1}, 0x40000
{LP}:
s_cmp_ge_u32 s51, 256
s_cbranch_scc1 {LQ}
s_sleep {PSLEEP}
buffer_load_dword v{vT2}, v{ZERO}, s[52:55], 0 offen sc1
s_waitcnt vmcnt(0)
v_readfirstlane_b32 s51, v{vT2}
s_sub_u32 s{sT1}, s{sT1}, 1
s_cmp_lg_u32 s{sT1}, 0
s_cbranch_scc1 {LP}
s_branch {R}
{LQ}:
buffer_load_dword v{vT2}, v{vX16}, s[{sWS}:{sWS+3}], s50 offen sc1
s_waitcnt vmcnt(0)
v_cmp_ne_u32 vcc, 1, v{vT2}
s_sub_u32 s{sT1}, s{sT1}, 1
s_cmp_eq_u32 s{sT1}, 0
s_cbranch_scc1 {R}
s_cbranch_vccz {R}
s_sleep 2
s_branch {LQ}""")
        B.put(pa.bar_gap(6) - 1, Item(chk, 20, "X"), 3)
    B.spread(tile_dma(sKSRC, (sW4, 0x10000), "kv") + tile_dma(sVSRC, (sW4, 0x14000), "kv") + tile_dma(sKSRC, (sW4, 0), "kv", 16384), g6, g6 + 56)
    if CH == 1: B.stream(chores(), g6 + 60, 492)
    def qcvt(u, dk, j):
        r = pa.acc(2 * dk + (j >> 1), u) + (j & 1) * 2
        return f"v_cvt_pk_bf16_f32 v{q(u, dk) + j}, v{r}, v{r+1}"
    qearly = []
    for dk in range(2):
        its = [I(qcvt(u, dk, j), 5) for u in range(2) for j in range(4)]
        B.spread(its, 480 + dk * 8 + 14, 480 + dk * 8 + 22)
        qearly += [(u, dk) for u in range(2)]
    B.emit(a)
    a.label(LAFTER)
    a.stamp(3); a.stamp(21, real=True)
    a.wait_vm("kv"); a("s_barrier")

    LMASK = a.newlabel("K2_mask"); LADJ = [a.newlabel("K2_adj0"), a.newlabel("K2_adj1")]
    def kread(hs, f):
        b = KF + f * 4
        return mk.LG(f"ds_read_b128 a[{b}:{b+3}], v{vK} offset:{(f & 3)*4096 + (hs*2 + (f >> 2))*1024}", ("kf", f))
    def vread(hs, f):
        b = VF + f * 4
        return mk.LG(f"ds_read_b128 a[{b}:{b+3}], v{vV} offset:{0x4000 + (f >> 1)*4096 + (hs*2 + (f & 1))*1024}", ("vf", f))
    def qk_mfma(B, base, buf, wait=2, late=False):
        for f in range(8):
            kt, dk = f >> 2, f & 3
            for u in range(4):
                d = s_(buf, u, kt); c = nm(u, kt) if dk == 0 else d
                st = f"{MF} v[{d}:{d+3}], a[{KF+f*4}:{KF+f*4+3}], v[{q(u,dk)}:{q(u,dk)+3}], v[{c}:{c+3}]"
                B.mfma[base + f * 4 + u] = (lambda st=st: a(st))
            if f % wait == 0: B.put_pre(base + f * 4, mk.WL(("kf", f + wait - 1)))
    def pv_mfma(B, base, buf, wait=2, order="d"):
        for f in range(8):
            for u in range(4):
                o = o_(u, f); p = p_(buf, u)
                st = f"{MF} a[{o}:{o+3}], a[{VF+f*4}:{VF+f*4+3}], v[{p}:{p+3}], a[{o}:{o+3}]"
                m = {"d": f * 4 + u, "b": (0 if u >= 2 else 16) + f * 2 + (u & 1), "u": u * 8 + f}[order]
                B.mfma[base + m] = (lambda st=st: a(st))
            if f % wait == 0:
                B.put_pre(base + {"d": f * 4, "b": f * 2, "u": f}[order], mk.WL(("vf", f + wait - 1)))
    def lmfma(par, u):
        t = f"{MF} a[{LA+u*4}:{LA+u*4+3}], a[{ONES}:{ONES+3}], v[{p_(par,u)}:{p_(par,u)+3}], a[{LA+u*4}:{LA+u*4+3}]"
        return Item(lambda: a(t), 8, "v")
    def lread(par, u): return I(f"v_accvgpr_read_b32 v{lc(par,u)}, a{LA+u*4}")
    def ex(par, i): return I(f"v_exp_f32 v{TE+i%8}, v{S+par*32+i}")
    def cv(par, c): return I(f"v_cvt_pk_bf16_f32 v{P+par*16+c}, v{TE+(2*c)%8}, v{TE+(2*c+1)%8}")
    def early(par):
        return [ex(par, 0), ex(par, 1), ex(par, 2), cv(par, 0), ex(par, 3), ex(par, 4), cv(par, 1), ex(par, 5)]
    def softmax_items(par, skip_early=False):
        its = [] if skip_early else early(par)
        for i in range(6, 34):
            if i < 32: its.append(ex(par, i))
            if i == 32: its.append(I("v_nop"))
            if i % 2 == 0 and i // 2 - 1 < 16: its.append(cv(par, i // 2 - 1))
            if i in (10, 18, 26): its.append(lmfma(par, (i >> 3) - 1))
            if i in (20, 28): its.append(lread(par, (i >> 3) - 2))
        return its
    def softmax_tail(B, g, par, check=True):
        B.put(g, I("v_nop")); B.put(g, lmfma(par, 3))
        B.put(g + 2, lread(par, 2))
        if check: B.put(g + 3, I(f"v_max3_f32 v{vT0}, v{lc(par,0)}, v{lc(par,1)}, v{lc(par,2)}"))
        B.put(g + 7, lread(par, 3))
        if check:
            B.put(g + 8, I(f"v_max_f32 v{vT0}, v{vT0}, v{lc(par,3)}"))
            B.put(g + 8, I(f"v_cmp_nle_f32 vcc, v{vT0}, v{vTHR}"))
            B.put(g + 10, check_item(par), 3)
    def call_stub(branch, target):
        def f():
            L = a.newlabel("K2_st"); R = a.newlabel("K2_rt")
            a(f"{branch} {L}")
            a.label(R)
            a.stubs.append(f"{L}:\ns_call_b64 s[{sRET}:{sRET+1}], {target}\ns_branch {R}")
        return Item(f, 4, "s")
    def check_item(par): return call_stub("s_cbranch_vccnz", LADJ[par])
    def mask_items():
        return [I(f"s_add_u32 s{sKAP}, s{sKAP}, 1"), I(f"s_cmp_ge_u32 s{sKAP}, s{sDMIN}"),
                Item(lambda: a(f"s_getpc_b64 s[{sRET}:{sRET+1}]\ns_cbranch_scc1 {LMASK}"), 8, "X")]
    def put_mask(B, g):
        m = mask_items()
        B.put(g - 1, m[0])
        assert not B.gap[g].c[0] and not B.gap[g].c[3]
        B.put(g, m[1], 0); B.put(g, m[2], 3)
    def put_bar(B, g):
        B.put(g, mk.WV("kv", lg0=True), 3); B.put(g, I("s_barrier"), 3)
    def togK(): return I(f"v_xor_b32 v{vK}, 0x10000, v{vK}")
    def togV(): return I(f"v_xor_b32 v{vV}, 0x10000, v{vV}")
    def kv_dmas(src, dst, two):
        adv = (f"s_add_u32 s{src}, s{src}, 16384", f"s_xor_b32 s{dst}, s{dst}, 0x10000")
        if not two: return tile_dma(src, (dst, 0), "kv", post=adv)
        return tile_dma(src, (dst, 0), "kv") + tile_dma(src, (dst, 0x8000), "kv", f"s{sOFF}", post=adv)
    NPRE = 6
    sF3 = 63
    def f3_item():
        return mk.VM(f"buffer_store_dword v{vX32}, v{ZERO}, s[{sWS}:{sWS+3}], s{sF3} offen sc1", "f3")
    def body_emit(two):
        B = Body(128)
        qk_mfma(B, 0, 0, 4); pv_mfma(B, 32, 0, 4, "u"); qk_mfma(B, 64, 1, 4); pv_mfma(B, 96, 1, 8, "u")
        ins = []
        for par, G0 in ((1, -12), (0, 52), (1, 116)):
            for i in range(32):
                g = G0 + 2 * i
                if 0 <= g < 128: B.put(g, ex(par, i))
            for c in range(16):
                g = G0 + 4 * c + 5
                if 0 <= g < 128: B.put(g, cv(par, c))
            if G0 < 100:
                for u in range(4):
                    ins.append((G0 + 16 * u + 19, lmfma(par, u).fn))
                    B.put(G0 + 16 * u + 23, lread(par, u))
                B.put(G0 + 55, I(f"v_max3_f32 v{vT0}, v{lc(par,0)}, v{lc(par,1)}, v{lc(par,2)}"))
                B.put(G0 + 71, I(f"v_max_f32 v{vT0}, v{vT0}, v{lc(par,3)}"))
                B.put(G0 + 73, I(f"v_cmp_nle_f32 vcc, v{vT0}, v{vTHR}"))
                B.put(G0 + 75, check_item(par), 3)
        B.put(1, kread(0, 6)); B.put(5, kread(0, 7))
        for f, g in enumerate((9, 11, 13, 17, 21, 25, 27, 29)): B.put(g, vread(0, f))
        for f, g in enumerate((33, 37, 41, 45, 47, 49, 53, 57)): B.put(g, kread(1, f))
        B.put(63, togK())
        for f, g in enumerate((65, 69, 73, 75, 77, 81, 85, 89)): B.put(g, vread(1, f))
        B.put(91, togV())
        put_bar(B, 95)
        for f, g in enumerate((101, 105, 109, 113, 117, 121)): B.put(g, kread(0, f))
        put_mask(B, 51)
        put_mask(B, 87)
        B.put(84, I(f"s_sub_u32 s{sCNT}, s{sCNT}, 1"))
        for after, fn in sorted(ins, reverse=True): B.insert_mfma(after, fn)
        r = lambda v: v + sum(1 for x, _ in ins if x < v)
        B.stream(kv_dmas(sVSRC, sVD, two), 0, r(50), even=False)
        kd = kv_dmas(sKSRC, sKD, two)
        if two and PROG: kd = [f3_item()] + kd
        B.stream(kd, r(95) + 1, r(127), even=False)
        print("body est", two, B.est())
        B.emit(a)
    def quad_max(regs, tmp):
        for sw in ("v_permlane16_swap_b32", "v_permlane32_swap_b32"):
            for i, r in enumerate(regs): a(f"v_mov_b32 v{tmp+i}, v{r}")
            for i, r in enumerate(regs): a(f"{sw} v{r}, v{tmp+i}")
            for i, r in enumerate(regs): a(f"v_max_f32 v{r}, v{r}, v{tmp+i}")
    def row_max(par, dst):
        for u in range(4):
            b = s_(par, u, 0)
            a(f"v_max3_f32 v{dst[u]}, v{b}, v{b+1}, v{b+2}")
            a(f"v_max3_f32 v{TE+u}, v{b+3}, v{b+4}, v{b+5}")
        for u in range(4):
            b = s_(par, u, 0)
            a(f"v_max3_f32 v{dst[u]}, v{dst[u]}, v{b+6}, v{b+7}")
        for u in range(4): a(f"v_max_f32 v{dst[u]}, v{dst[u]}, v{TE+u}")
        quad_max(dst, TE)
        for u in range(4): a(f"v_add_f32 v{dst[u]}, {hex(OFFS)}, v{dst[u]}")
    def fin_items(us, sCTX, scale, T):
        its = []; n = 0
        for ui, u in enumerate(us):
            for dk in range(4):
                pk = PKR + (n % 4) * 4
                for j in range(4):
                    r = o_(u, 2 * dk + (j >> 1)) + (j & 1) * 2
                    t = T + (j % 4) * 2
                    its.append(I(f"v_accvgpr_read_b32 v{t}, a{r}", 5))
                    its.append(I(f"v_accvgpr_read_b32 v{t+1}, a{r+1}", 5))
                    its.append(I(f"v_mul_f32 v{t}, v{t}, v{scale[ui]}"))
                    its.append(I(f"v_mul_f32 v{t+1}, v{t+1}, v{scale[ui]}"))
                    its.append(I(f"v_cvt_pk_bf16_f32 v{pk+j}, v{t}, v{t+1}", 5))
                its.append(mk.VM(f"buffer_store_dwordx4 v[{pk}:{pk+3}], v{vST[ui]}, s[{sWS}:{sWS+3}], s{sCTX} offen offset:{dk*1024} sc1", "st"))
                n += 1
        return its

    for f in range(NPRE): kread(0, f).fn()
    for u in range(4):
        for dk in range(4):
            if (u, dk) in qearly: continue
            for j in range(4): a(qcvt(u, dk, j))
    a(zero16(f"v[{NM}:{NM+15}]")); a(zero16(f"v[{NM+16}:{NM+31}]"))
    for r in range(4): a(f"v_cmp_gt_i32 s[{sM[r]}:{sM[r]+1}], {r}, v{vDG}")
    a(f"""
s_add_u32 s{sKSRC}, s{sKSRC}, 32768
s_add_u32 s{sVSRC}, s{sVSRC}, 16384
s_lshl_b32 s{sOFF}, s{sI}, 15
s_sub_u32 s{sOFF}, {15*16384}, s{sOFF}    ; T tiles
s_add_u32 s{sT0}, s{sKSRC}, {15*16384}    ; tile D+T = 17
""")
    for u in range(2):
        for dk in range(4):
            a.lg(f"ds_write_b128 v{vQX}, v[{q(u,dk)}:{q(u,dk)+3}] offset:{(u*4+dk)*1024}", "qx")
    a.stamp(4)
    for it in mask_items(): it.fn()
    B = Body(32)
    qk_mfma(B, 0, 0)
    for f in range(NPRE, 8): B.put(4 * (f - NPRE), kread(0, f))
    for f in range(NPRE): B.put(8 + 4 * f, kread(1, f))
    B.spread(tile_dma(sT0, (sW4, 0x18000), "kd") + tile_dma(sT0, (sW4, 0x8000), "kd", 16384), 1, 25)
    put_mask(B, 26)
    B.emit(a)
    for f in range(NPRE, 8): kread(1, f).fn()
    togK().fn()
    a("s_nop 4")
    DE = [D, D + 2, F, F + 2]
    row_max(0, DE)
    for u in range(4):
        a(f"v_mov_b32 v{M+u}, v{DE[u]}")
        for r in range(0, 8, 2):
            a(f"v_pk_add_f32 v[{nm(u,0)+r}:{nm(u,0)+r+1}], v[{nm(u,0)+r}:{nm(u,0)+r+1}], v[{DE[u]}:{DE[u]+1}] op_sel_hi:[1,0] neg_lo:[0,1] neg_hi:[0,1]")
    for k in range(0, 32, 2):
        a(f"v_pk_add_f32 v[{S+k}:{S+k+1}], v[{S+k}:{S+k+1}], v[{DE[k>>3]}:{DE[k>>3]+1}] op_sel_hi:[1,0] neg_lo:[0,1] neg_hi:[0,1]")
    B = Body(32)
    qk_mfma(B, 0, 1, 8)
    put_bar(B, 1)
    for f in range(NPRE): B.put(8 + 4 * f, kread(0, f))
    softmax_tail(B, 23, 0, check=False)
    B.spread(softmax_items(0), 0, 23)
    put_mask(B, 25)
    B.stream(kv_dmas(sKSRC, sKD, False), 23, 32)
    B.emit(a)
    a("s_nop 3")
    for it in early(1): it.fn()
    a.stamp(5); a.stamp(16, real=True)
    LD = a.newlabel("K2_dual")
    a(f"""
s_lshl_b32 s{sCNT}, s{sI}, 1
s_add_u32 s{sCNT}, s{sCNT}, 1
""")
    a(".p2align 3")
    a.label(LD)
    loop_emit(a, lambda: body_emit(False))
    a(f"""
s_cmp_lg_u32 s{sCNT}, 0
s_cbranch_scc1 {LD}
""")
    a.stamp(6); a.stamp(17, real=True)
    B = Body(128)
    pv_mfma(B, 0, 0); pv_mfma(B, 32, 1, 2, "b"); qk_mfma(B, 64, 0, 4); qk_mfma(B, 96, 1, 4)
    for f in range(NPRE): vread(0, f).fn()
    for f in range(NPRE, 8): B.put(3 * (f - NPRE), vread(0, f))
    for f in range(7): B.put(4 * f + 4, vread(1, f))
    B.put(31, vread(1, 7))
    softmax_tail(B, 21, 1)
    B.spread(softmax_items(1, True), 0, 21)
    def sw1():
        a.lg(f"ds_write_b64 v{vMX}, v[{M}:{M+1}]", "mx")
        a(f"v_xor_b32 v{vMX}, 512, v{vMX}")
        a(f"v_xor_b32 v{vQX}, 0x2000, v{vQX}")
        a(f"v_rcp_f32 v{F}, v{lc(1,2)}")
        a(f"v_rcp_f32 v{F+1}, v{lc(1,3)}")
    B.put(32, Item(sw1, 28))
    B.put(33, togV())
    def sw2():
        a(f"""
s_xor_b32 s{sDGB}, s{sDGA}, 1
s_mov_b32 s{sEVB}, s{sDGB}
s_min_u32 s{sDMIN}, s{sEVA}, s{sEVB}
s_sub_u32 s{sKAP}, s{sKAP}, 1
s_cmp_eq_u32 s{sP}, 1
s_cselect_b32 s{sKAP}, 33, s{sKAP}
s_lshl_b32 s{sT0}, s{sP}, 15
v_add_u32 v{vK}, s{sT0}, v{vK}
v_add_u32 v{vV}, s{sT0}, v{vV}
""")
    B.put(34, Item(sw2, 28))
    def sw3():
        a("s_waitcnt lgkmcnt(0)"); a.lgq = []
        a("s_barrier")
        a.lg(f"ds_read_b64 v[{M+2}:{M+3}], v{vMX}", "mx")
    B.put(36, Item(sw3, 12))
    for k in range(8):
        u, dk = k >> 2, k & 3
        B.put(37 + k, mk.LG(f"ds_read_b128 v[{q(2+u,dk)}:{q(2+u,dk)+3}], v{vQX} offset:{(u*4+dk)*1024}", "qx"))
    for f in range(8): B.put(46 + 2 * f, kread(0, f))
    B.put(45, mk.WL("mx"), 3)
    nmi = []
    for u in (2, 3):
        for r in range(8): nmi.append(I(f"v_sub_f32 v{nm(u,0)+r}, 0, v{M+u}"))
        nmi.append(I(f"v_mov_b32 v{lc(1,u)}, 0"))
        nmi.append(I(f"v_accvgpr_write_b32 a{LA+4*u}, 0", 5))
    B.spread(nmi, 46, 56)
    put_mask(B, 60)
    put_mask(B, 92)
    for f in range(8): B.put(68 + 4 * f, kread(1, f))
    B.put(97, togK())
    put_bar(B, 104)
    for f in range(NPRE): B.put(106 + 4 * f, kread(0, f)) if 106 + 4 * f < 128 else None
    B.spread(kv_dmas(sVSRC, sVD, True), 22, 56)
    B.spread(fin_items([2, 3], sCTXB, [F, F + 1], S + 32), 56, 95)
    zs = [Item(lambda k=k: a(zero16(f"a[{o_(2,0)+k*16}:{o_(2,0)+k*16+15}]")), 32, "X") for k in range(4)]
    for k in range(4): B.put(96 + k, zs[k])
    softmax_tail(B, 117, 0)
    B.spread(softmax_items(0), 100, 117)
    put_mask(B, 121)
    B.stream(kv_dmas(sKSRC, sKD, True), 108, 127)
    B.emit(a)
    a("s_nop 2")
    for it in early(1): it.fn()
    a.stamp(7); a.stamp(18, real=True)
    LS1 = a.newlabel("K2_single"); LS2 = a.newlabel("K2_sdone")
    if CH == 0:
        for it in chores(): it.fn()
    if PROG:
        a(f"""
s_lshl_b32 s{sF3}, s2, 7
s_add_u32 s{sF3}, s{sF3}, {FLAGS}
s_cmp_eq_u32 s{sWAVE}, 0
s_cselect_b32 s{sF3}, s{sF3}, s{sWS+2}
""")
    a(f"""
s_lshl_b32 s{sCNT}, s{sI}, 1
s_sub_u32 s{sCNT}, 14, s{sCNT}
s_cmp_eq_u32 s{sCNT}, 0
s_cbranch_scc1 {LS2}
""")
    st = (list(a.vmq), list(a.lgq))
    a(".p2align 3")
    a.label(LS1)
    loop_emit(a, lambda: body_emit(True))
    a(f"""
s_cmp_lg_u32 s{sCNT}, 0
s_cbranch_scc1 {LS1}
""")
    a.label(LS2)
    assert a.diag or st[1] == a.lgq, (st[1], a.lgq)
    a.vmq = ["kv"]
    a.stamp(8); a.stamp(20, real=True)
    BQ, BZ = 220, 212
    a(f"""
s_mul_i32 s{sB0}, s{sH}, {8 * BKV_P}
s_add_u32 s{sB0}, s{sB0}, {BKV}
s_lshl_b32 s{sB1}, s{sH}, 17
s_lshl_b32 s{sT2}, s{sI}, 14
s_add_u32 s{sB1}, s{sB1}, s{sT2}
s_add_u32 s{sB1}, s{sB1}, s{sW4}
s_add_u32 s{sB1}, s{sB1}, {PHIQ}
s_lshl_b32 s{sT0}, s{sWAVE}, 15
v_add_u32 v{vK}, s{sT0}, v{vL16}
v_lshrrev_b32 v{vT1}, 4, v{vL}
v_and_b32 v{vMX}, 7, v{vL}
v_mul_u32_u24 v{vMX}, {BKV_P}, v{vMX}
v_lshl_add_u32 v{vMX}, v{vT1}, 4, v{vMX}
v_xor_b32 v{vQX}, 0x2000, v{vQX}
""")
    B = Body(64)
    pv_mfma(B, 0, 0); pv_mfma(B, 32, 1, 2, "b")
    for f in range(NPRE): vread(0, f).fn()
    for f in range(NPRE, 8): B.put(3 * (f - NPRE), vread(0, f))
    for f in range(7): B.put(4 * f + 4, vread(1, f))
    B.put(31, vread(1, 7))
    softmax_tail(B, 21, 1)
    bl = []
    if fused3 and L2W != 1: bl += code_prefetch(a, "K3_fused_entry", "K3_code_end", 96, sT0, sWAVE, vL, vX16, vT2)
    if L2W == 1:
        a(f"""
s_lshr_b32 s{sT0}, s2, 3
s_lshl_b32 s{sT0}, s{sT0}, 2
s_add_u32 s{sT0}, s{sT0}, s{sWAVE}        ; 0..127
s_lshl_b32 s{sKSRC}, s{sT0}, 13
s_and_b32 s{sT1}, s2, 6
s_lshl_b32 s{sT1}, s{sT1}, 19
s_add_u32 s{sKSRC}, s{sKSRC}, s{sT1}
s_lshl_b32 s{sVSRC}, s{sT0}, 12
v_lshlrev_b32 v{vDG}, 7, v{vL}
v_and_b32 v{vBIG}, 0xfff, v{vDG}
""")
        bl.append(mk.VM(f"buffer_load_dword v{vT2}, v{vDG}, s[88:91], s{sKSRC} offen", "l2w"))
        bl.append(mk.VM(f"buffer_load_dword v{vT2}, v{vBIG}, s[92:95], s{sVSRC} offen", "l2w"))
        if fused3: bl += code_prefetch(a, "K3_fused_entry", "K3_code_end", 96, sT0, sWAVE, vL, vX16, vT2)
    for ft in range(2):
        bl.append(mk.VM(f"buffer_load_dwordx4 a[{BZ+ft*4}:{BZ+ft*4+3}], v{vMX}, s[{sWS}:{sWS+3}], s{sB0} offen offset:{2048+ft*64}{SC}", "bl"))
    for t in range(4):
        bl.append(mk.VM(f"buffer_load_dwordx4 a[{BQ+4*t}:{BQ+4*t+3}], v{vL16}, s[{sWS}:{sWS+3}], s{sB1} offen offset:{t*1024}{SC}", "bl"))
    for pp in range(8):
        for ft in range(2):
            bl.append(mk.VM(f"buffer_load_dwordx4 v[{Q+pp*8+ft*4}:{Q+pp*8+ft*4+3}], v{vL16}, s[{sWS}:{sWS+3}], s{sB0} offen offset:{ft*1024}{SC}", "bl"))
        bl.append(I(f"s_add_u32 s{sB0}, s{sB0}, {BKV_P}"))
    B.spread(bl, 0, 60)
    B.spread(softmax_items(1, True), 0, 21)
    def st1():
        a(f"v_mov_b32 v{D}, v{M+2}")
        a(f"v_mov_b32 v{D+1}, v{M+3}")
        a(f"v_mov_b32 v{D+2}, v{lc(1,2)}")
        a(f"v_mov_b32 v{D+3}, v{lc(1,3)}")
        a.lg(f"ds_write_b128 v{vQX}, v[{D}:{D+3}]", "sx")
        a(f"v_xor_b32 v{vQX}, 0x2000, v{vQX}")
    B.put(32, Item(st1, 24))
    def st2():
        a.wait_vm("kv", always=True)
        a("s_waitcnt lgkmcnt(0)"); a.lgq = []
        a("s_barrier")
        a.lg(f"ds_read_b128 v[{D}:{D+3}], v{vQX}", "sx")
        if PROG: f3_item().fn()
    B.put(38, Item(st2, 12))
    for f in range(8):
        for ub in range(2):
            o = o_(2 + ub, f)
            B.put(min(32 + 2 * f + ub + 10, 63), Item(lambda o=o, f=f, ub=ub: a.lg(f"ds_write_b128 v{vK}, a[{o}:{o+3}] offset:{(ub*8+f)*1024}", "ox"), 8))
    FA = [F, F + 2]; FB = [TE, TE + 2]
    def st3():
        a.wait_lg("sx", always=True)
        for u in range(2):
            a(f"v_max_f32 v{vT1}, v{M+u}, v{D+u}")
            a(f"v_sub_f32 v{FA[u]}, v{M+u}, v{vT1}")
            a(f"v_sub_f32 v{FB[u]}, v{D+u}, v{vT1}")
        for u in range(2):
            a(f"v_exp_f32 v{FA[u]}, v{FA[u]}")
            a(f"v_exp_f32 v{FB[u]}, v{FB[u]}")
    def st4():
        for u in range(2):
            a(f"v_mul_f32 v{lc(1,u)}, v{lc(1,u)}, v{FA[u]}")
            a(f"v_fmac_f32 v{lc(1,u)}, v{D+2+u}, v{FB[u]}")
        for u in range(2): a(f"v_rcp_f32 v{lc(1,u)}, v{lc(1,u)}")
    def st5():
        for u in range(2):
            a(f"v_mul_f32 v{FA[u]}, v{FA[u]}, v{lc(1,u)}")
            a(f"v_mul_f32 v{FB[u]}, v{FB[u]}, v{lc(1,u)}")
    B.put(46, Item(st3, 60)); B.put(50, Item(st4, 32)); B.put(53, Item(st5, 16))
    B.emit(a)
    a(f"""
v_xor_b32 v{vK}, 0x8000, v{vK}
s_waitcnt lgkmcnt(0)
s_barrier
""")
    a.lgq = []
    OB = S
    for r in range(15): a.lg(f"ds_read_b128 v[{OB+r*4}:{OB+r*4+3}], v{vK} offset:{r*1024}", ("ob", r))
    T = P
    n = 0
    for u in range(2):
        for r in range(32): a(f"v_accvgpr_read_b32 v{T+r}, a{o_(u,0)+r}")
        if u == 0: a.lg(f"ds_read_b128 v[{OB+60}:{OB+63}], v{vK} offset:{15*1024}", ("ob", 15))
        for r in range(0, 32, 2):
            a(f"v_pk_mul_f32 v[{T+r}:{T+r+1}], v[{T+r}:{T+r+1}], v[{FA[u]}:{FA[u]+1}] op_sel_hi:[1,0]")
        a.wait_lg(("ob", u * 8 + 7))
        for dk in range(4):
            pk = PKR + (n % 4) * 4
            for j in range(4):
                r = dk * 8 + j * 2
                a(f"v_pk_fma_f32 v[{T+r}:{T+r+1}], v[{OB+u*32+r}:{OB+u*32+r+1}], v[{FB[u]}:{FB[u]+1}], v[{T+r}:{T+r+1}] op_sel_hi:[1,0,1]")
            for j in range(4):
                r = dk * 8 + j * 2
                a(f"v_cvt_pk_bf16_f32 v{pk+j}, v{T+r}, v{T+r+1}")
            a.vm(f"buffer_store_dwordx4 v[{pk}:{pk+3}], v{vST[u]}, s[{sWS}:{sWS+3}], s{sCTXA} offen offset:{dk*1024} {FST}", "st")
            n += 1
    a.stamp(9)
    a.wait_vm("bl")
    ZS = P + 16
    for r in range(8): a(f"v_accvgpr_read_b32 v{ZS+r}, a{BZ+r}")
    for step in (32, 16, 8):
        for r in range(0, step, 2): a(f"v_pk_add_f32 v[{Q+r}:{Q+r+1}], v[{Q+r}:{Q+r+1}], v[{Q+step+r}:{Q+step+r+1}]")
    for dpp in ("quad_perm:[1,0,3,2]", "quad_perm:[2,3,0,1]", "row_half_mirror"):
        for r in range(8): a(f"v_add_f32_dpp v{ZS+r}, v{ZS+r}, v{ZS+r} {dpp} row_mask:0xf bank_mask:0xf")
    KVF, ZF = Q + 8, Q + 12
    for j in range(4):
        a(f"v_cvt_pk_bf16_f32 v{KVF+j}, v{Q+2*j}, v{Q+2*j+1}")
        a(f"v_cvt_pk_bf16_f32 v{ZF+j}, v{ZS+2*j}, v{ZS+2*j+1}")
    a("s_nop 1")
    NUM, DEN = Q + 16, Q + 32
    for t in range(4):
        a(f"{MF} v[{NUM+t*4}:{NUM+t*4+3}], v[{KVF}:{KVF+3}], a[{BQ+t*4}:{BQ+t*4+3}], 0")
        a(f"{MF} v[{DEN+t*4}:{DEN+t*4+3}], v[{ZF}:{ZF+3}], a[{BQ+t*4}:{BQ+t*4+3}], 0")
    a(f"""
s_lshl_b32 s{sT0}, s{sI}, 2
s_add_u32 s{sT0}, s{sT0}, s{sWAVE}
s_mul_i32 s{sT0}, s{sT0}, {4*144*1024}
s_lshr_b32 s{sT1}, s{sH}, 1
s_lshl_b32 s{sT1}, s{sT1}, 10
s_add_u32 s{sT0}, s{sT0}, s{sT1}
s_and_b32 s{sT2}, s{sH}, 1
s_lshl_b32 s{sT2}, s{sT2}, 3
s_add_u32 s{sT0}, s{sT0}, s{sT2}
s_add_u32 s{sT0}, s{sT0}, {CTX + 128*1024}
""")
    for t in range(4): a(f"v_add_f32 v{TE+t}, {hex(f2u(1e-6))}, v{DEN+t*4}")
    for t in range(4): a(f"v_rcp_f32 v{TE+t}, v{TE+t}")
    for t in range(4):
        for r in range(4): a(f"v_mul_f32 v{NUM+t*4+r}, v{NUM+t*4+r}, v{TE+t}")
        a(f"v_cvt_pk_bf16_f32 v{NUM+t*4}, v{NUM+t*4}, v{NUM+t*4+1}")
        a(f"v_cvt_pk_bf16_f32 v{NUM+t*4+1}, v{NUM+t*4+2}, v{NUM+t*4+3}")
        a.vm(f"buffer_store_dwordx2 v[{NUM+t*4}:{NUM+t*4+1}], v{vL16}, s[{sWS}:{sWS+3}], s{sT0} offen {OST}", "st")
        a(f"s_add_u32 s{sT0}, s{sT0}, {144*1024}")
    a.stamp(12)
    if a.diag and not fused3: a("s_waitcnt vmcnt(0)")
    a.stamp(23); a.stamp(10, real=True)
    a.stamp_flush(sWS, sWAVE, 24, DIAG, kidx=1)
    if fused3:
        a(f"""
s_lshl_b32 s99, s{sH}, 3
s_add_u32 s99, s99, s{sI}
s_lshl_b32 s99, s99, 7
s_branch K3_fused_entry
""")
    a.label(END)
    a("s_endpgm")
    a.flush_stubs()

    a.label(LMASK)
    a(f"s_add_u32 s{sRET}, s{sRET}, 4")
    a(f"s_addc_u32 s{sRET+1}, s{sRET+1}, 0")
    for g, sD, sE in ((0, sDGA, sEVA), (1, sDGB, sEVB)):
        L1 = a.newlabel("K2_m1"); L2 = a.newlabel("K2_m2")
        a(f"""
s_cmp_lt_u32 s{sKAP}, s{sE}
s_cbranch_scc1 {L2}
s_cmp_eq_u32 s{sKAP}, s{sD}
s_cbranch_scc1 {L1}
s_mov_b32 s{sE}, 0x7fffffff
""")
        for r in range(0, 16, 2): a(f"v_pk_mov_b32 v[{nm(2*g,0)+r}:{nm(2*g,0)+r+1}], v[{vBIG}:{vBIG+1}], v[{vBIG}:{vBIG+1}] op_sel:[0,0]")
        a(f"s_branch {L2}")
        a.label(L1)
        a(f"s_add_u32 s{sE}, s{sD}, 1")
        for r in range(0, 4, 2): a(f"v_pk_mov_b32 v[{nm(2*g,1)+r}:{nm(2*g,1)+r+1}], v[{vBIG}:{vBIG+1}], v[{vBIG}:{vBIG+1}] op_sel:[0,0]")
        for r in range(4):
            a(f"v_cndmask_b32 v{nm(2*g,0)+r}, v{nm(2*g,0)+r}, v{vBIG}, s[{sM[r]}:{sM[r]+1}]")
            a(f"v_cndmask_b32 v{nm(2*g+1,1)+r}, v{nm(2*g+1,1)+r}, v{vBIG}, s[{sM[r]}:{sM[r]+1}]")
        a.label(L2)
    a(f"s_min_u32 s{sDMIN}, s{sEVA}, s{sEVB}")
    a(f"s_setpc_b64 s[{sRET}:{sRET+1}]")
    def adjust(par):
        a("s_nop 15")
        DD = [D + u for u in range(4)]
        row_max(par, DD)
        for u in range(4): a(f"v_max_f32 v{D+u}, 0, v{D+u}")
        for u in range(4): a(f"v_exp_f32 v{F+u}, -v{D+u}")
        a("s_nop 0")
        for u in range(4):
            a(f"v_mul_f32 v{lc(par^1,u)}, v{lc(par^1,u)}, v{F+u}")
            a(f"v_accvgpr_write_b32 a{LA+4*u}, v{lc(par^1,u)}")
            for r in range(32):
                t = TE + r % 8
                a(f"v_accvgpr_read_b32 v{t}, a{o_(u,0)+r}")
                a(f"v_mul_f32 v{t}, v{t}, v{F+u}")
                a(f"v_accvgpr_write_b32 a{o_(u,0)+r}, v{t}")
        for u in range(4):
            a(f"v_add_f32 v{M+u}, v{M+u}, v{D+u}")
            for r in range(8):
                a(f"v_sub_f32 v{s_(0,u,0)+r}, v{s_(0,u,0)+r}, v{D+u}")
                a(f"v_sub_f32 v{s_(1,u,0)+r}, v{s_(1,u,0)+r}, v{D+u}")
                a(f"v_sub_f32 v{nm(u,0)+r}, v{nm(u,0)+r}, v{D+u}")
        for it in softmax_items(par): it.fn()
        a("s_nop 1"); lmfma(par, 3).fn(); a("s_nop 7")
        lread(par, 2).fn(); lread(par, 3).fn()
        for it in early(par ^ 1): it.fn()
        a("s_nop 1")
        a(f"s_setpc_b64 s[{sRET}:{sRET+1}]")
    for par in range(2):
        a.label(LADJ[par]); adjust(par)
    a.label("K2_code_end")
    a("s_endpgm")
```

```python
from asmlib import Asm
from sched import *
from common import *

PART = 0

def gen_k3(a, name="k3_kernel", K4=False, PST="sc1", PART=0, CPF=1, fused=False):
    if not fused: a.kernel(name, (256,1,1), (256,1,1), 131072, vgpr=208)
    SC = " sc1" if fused else ""
    sWO, sWB, sWS, sOUT, sDBG = 4, 8, 12, 16, 20
    (sWAVE, sRB, sCB, sKQ, sT0, sT1, sCNT, sCSRC, sWSRC, sW4, sOB, sGRP, sPSRC, sPDST, sOBB, sRH, sCH) = range(24, 41)
    ACC = 0
    ACB = 64
    FR = 80
    RX = 144
    vL16, vC2, vL, vT0, vT1, vT2, vO, vCR, vCR2 = 192, 193, 194, 195, 196, 197, 198, 199, 200
    vWD = [201, 202, 203, 204]
    vZ = 205
    vWR = [144, 145, 146, 147]; vWR2 = [148, 149, 150, 151]
    vBD = [152, 153, 154, 155]; vBC = [156, 157]; vBW = [158, 159, 160, 161]
    END = a.newlabel("K3_end")
    if fused:
        a.label("K3_fused_entry")
        a.vmq = []; a.lgq = []
        a(f"v_mov_b32 v{vL}, v215")
        a(f"s_mov_b32 s{sWAVE}, s16")
    else:
        a(f"""
s_cmp_ge_u32 s2, 256
s_cbranch_scc1 {END}
v_lshrrev_b32 v{vT0}, 6, v0
v_and_b32 v{vL}, 63, v0
v_readfirstlane_b32 s{sWAVE}, v{vT0}
""")
    a.stamp(14)
    a(f"""
s_load_dwordx2 s[44:45], s[0:1], 40     ; w_o
s_load_dwordx4 s[48:51], s[0:1], 72
s_load_dwordx4 s[52:55], s[0:1], 88
s_lshr_b32 s{sT1}, s2, 3                ; q
s_and_b32 s{sCB}, s{sT1}, 3
s_lshr_b32 s{sRB}, s{sT1}, 2
s_and_b32 s{sT0}, s2, 1
s_lshl_b32 s{sT0}, s{sT0}, 3
s_add_u32 s{sRB}, s{sRB}, s{sT0}
s_bfe_u32 s{sKQ}, s2, 0x20001           ; K quarter
s_lshl_b32 s{sGRP}, s{sRB}, 2
s_add_u32 s{sGRP}, s{sGRP}, s{sCB}
s_lshl_b32 s{sT0}, s{sRB}, 2
s_add_u32 s{sT0}, s{sT0}, s{sWAVE}
s_mul_i32 s{sCSRC}, s{sT0}, {2*144*1024}
s_lshl_b32 s{sT0}, s{sKQ}, 15
s_add_u32 s{sCSRC}, s{sCSRC}, s{sT0}
s_add_u32 s{sCSRC}, s{sCSRC}, {CTX}
s_lshl_b32 s{sWSRC}, s{sKQ}, 20
s_lshl_b32 s{sT0}, s{sWAVE}, 14
s_add_u32 s{sWSRC}, s{sWSRC}, s{sT0}
s_lshl_b32 s{sT0}, s{sCB}, 8
s_add_u32 s{sWSRC}, s{sWSRC}, s{sT0}
s_lshl_b32 s{sW4}, s{sWAVE}, 12
s_mov_b32 s{sWO+2}, 0x400000
s_mov_b32 s{sWO+3}, 0x20000
s_mov_b32 s{sWB+2}, 0x80000
s_mov_b32 s{sWB+3}, 0x20000
s_mov_b32 s{sWS+2}, {WS_USED}
s_mov_b32 s{sWS+3}, 0x20000
s_mov_b32 s{sOUT+2}, 0x400000
s_mov_b32 s{sOUT+3}, 0x20000
s_mov_b32 s{sDBG+2}, 256
s_mov_b32 s{sDBG+3}, 0x20000
v_lshlrev_b32 v{vL16}, 4, v{vL}
v_add_u32 v{vC2}, {144*1024 - 2048}, v{vL16}
v_lshrrev_b32 v{vT2}, 4, v{vL}
v_lshlrev_b32 v{vT0}, 10, v{vT2}
v_and_b32 v{vT1}, 15, v{vL}
v_lshlrev_b32 v{vT2}, 1, v{vT2}
v_xor_b32 v{vT1}, v{vT1}, v{vT2}
v_lshl_add_u32 v{vWD[0]}, v{vT1}, 4, v{vT0}
v_xor_b32 v{vT1}, 8, v{vT1}
v_lshl_add_u32 v{vWD[1]}, v{vT1}, 4, v{vT0}
v_add_u32 v{vWD[1]}, 3072, v{vWD[1]}
v_add_u32 v{vWD[2]}, 6144, v{vWD[0]}
v_add_u32 v{vWD[3]}, 6144, v{vWD[1]}
s_waitcnt lgkmcnt(0)
s_mov_b32 s{sWO}, s44
s_mov_b32 s{sWO+1}, s45
s_mov_b32 s{sWB}, s48
s_mov_b32 s{sWB+1}, s49
s_mov_b32 s{sOUT}, s50
s_mov_b32 s{sOUT+1}, s51
s_mov_b32 s{sDBG}, s52
s_mov_b32 s{sDBG+1}, s53
s_mov_b32 s{sWS}, s54
s_mov_b32 s{sWS+1}, s55
""")
    a.stamp(0); a.stamp(1, real=True)
    mk = Mk(a); I = mk.I
    def a_dma_c(slot):
        its = [I(f"s_add_u32 m0, s{sW4}, {slot * 32768}"), I("s_nop 0")]
        for i in range(4):
            its.append(mk.VM(f"buffer_load_dwordx4 v{vL16 if i < 2 else vC2}, s[{sWS}:{sWS+3}], s{sCSRC} offen offset:{i*1024}{SC} lds", ("st", slot)))
        return its + [I(f"s_add_u32 s{sCSRC}, s{sCSRC}, 2048")]
    def a_dma_w(slot, tag=None):
        its = [I(f"s_add_u32 m0, s{sW4}, {slot * 32768 + 16384}"), I("s_nop 0")]
        for i in range(4):
            its.append(mk.VM(f"buffer_load_dwordx4 v{vWD[i]}, s[{sWO}:{sWO+3}], s{sWSRC} offen offset:{i*1024} lds", tag or ("st", slot)))
        return its + [I(f"s_add_u32 s{sWSRC}, s{sWSRC}, 0x10000")]
    def a_dma(slot):
        c = a_dma_c(slot); w = a_dma_w(slot)
        return c[:-1] + [w[0], c[-1]] + w[2:]
    def b_dma(slot):
        its = [I(f"s_add_u32 m0, s{sW4}, {slot * 32768}"), I("s_nop 0")]
        for i in range(4):
            its.append(mk.VM(f"buffer_load_dwordx4 v{vL16}, s[{sWS}:{sWS+3}], s{sCSRC} offen offset:{i*1024}{SC} lds", ("st", slot)))
        its += [I(f"s_add_u32 m0, s{sW4}, {slot * 32768 + 16384}"), I(f"s_add_u32 s{sCSRC}, s{sCSRC}, 4096")]
        for i in range(4):
            its.append(mk.VM(f"buffer_load_dwordx4 v{vBD[i]}, s[{sWB}:{sWB+3}], s{sWSRC} offen offset:{i*1024} lds", ("st", slot)))
        its.append(I(f"s_add_u32 s{sWSRC}, s{sWSRC}, 0x20000"))
        return its
    if fused:
        a("s_barrier")
        for it in a_dma_w(0, "w0") + a_dma_w(1) + a_dma_w(2): it.fn()
    else:
        for it in a_dma(0): it.fn()
    a(f"""
s_lshr_b32 s{sRH}, s{sWAVE}, 1
s_and_b32 s{sCH}, s{sWAVE}, 1
s_lshl_b32 s{sT0}, s{sRH}, 13
v_add_u32 v{vCR}, s{sT0}, v{vL16}
v_add_u32 v{vCR2}, 0x10000, v{vCR}
v_mov_b32 v{vBC[0]}, v{vCR}
v_mov_b32 v{vBC[1]}, v{vCR2}
v_lshrrev_b32 v{vT0}, 4, v{vL}              ; kq
v_bfe_u32 v{vT1}, v{vL}, 2, 2               ; r
v_lshl_add_u32 v{vT2}, v{vT0}, 2, v{vT1}    ; kq*4+r
v_and_b32 v{vT0}, 3, v{vL}
v_lshlrev_b32 v{vT0}, 3, v{vT0}
v_add_u32 v{vT0}, 16384, v{vT0}             ; c4*8 + W part
v_lshl_add_u32 v{vZ}, v{vT2}, 8, v{vT0}
v_and_b32 v{vT1}, 7, v{vT2}
s_lshl_b32 s{sT0}, s{sCH}, 2
v_xor_b32 v{vT1}, s{sT0}, v{vT1}
""")
    for mt in range(4):
        a(f"v_xor_b32 v{vO}, {mt}, v{vT1}")
        a(f"v_lshl_add_u32 v{vWR[mt]}, v{vO}, 5, v{vZ}")
        a(f"v_add_u32 v{vWR2[mt]}, 0x10000, v{vWR[mt]}")
    a(f"""
v_lshl_add_u32 v{vZ}, v{vT2}, 7, v{vT0}
v_bfe_u32 v{vT1}, v{vT2}, 1, 2
s_lshl_b32 s{sT0}, s{sCH}, 1
v_xor_b32 v{vT1}, s{sT0}, v{vT1}
v_lshl_add_u32 v{vBW[0]}, v{vT1}, 5, v{vZ}
v_xor_b32 v{vT1}, 1, v{vT1}
v_lshl_add_u32 v{vBW[1]}, v{vT1}, 5, v{vZ}
v_add_u32 v{vBW[2]}, 0x10000, v{vBW[0]}
v_add_u32 v{vBW[3]}, 0x10000, v{vBW[1]}
v_lshrrev_b32 v{vT0}, 3, v{vL}
v_lshlrev_b32 v{vT0}, 10, v{vT0}
v_and_b32 v{vT1}, 7, v{vL}
v_lshrrev_b32 v{vT2}, 4, v{vL}
v_lshlrev_b32 v{vT2}, 1, v{vT2}
v_xor_b32 v{vT1}, v{vT1}, v{vT2}
v_lshl_add_u32 v{vBD[0]}, v{vT1}, 4, v{vT0}
v_add_u32 v{vBD[1]}, {7*1024}, v{vBD[0]}
v_add_u32 v{vBD[2]}, {14*1024}, v{vBD[0]}
v_add_u32 v{vBD[3]}, {21*1024}, v{vBD[0]}
v_and_b32 v{vT0}, 15, v{vL}
v_lshlrev_b32 v{vT0}, 11, v{vT0}
v_lshrrev_b32 v{vT1}, 4, v{vL}
v_lshl_add_u32 v{vO}, v{vT1}, 3, v{vT0}
v_mov_b32 v{vZ}, 0
s_lshl_b32 s{sOB}, s{sRB}, 18
s_lshl_b32 s{sT0}, s{sCB}, 8
s_add_u32 s{sOB}, s{sOB}, s{sT0}
s_mov_b32 s{sOBB}, s{sOB}
s_lshl_b32 s{sT0}, s{sRH}, 17
s_add_u32 s{sOB}, s{sOB}, s{sT0}
s_lshl_b32 s{sT0}, s{sKQ}, 15
s_add_u32 s{sOB}, s{sOB}, s{sT0}
s_lshl_b32 s{sT0}, s{sCH}, 7
s_add_u32 s{sOB}, s{sOB}, s{sT0}
s_lshr_b32 s{sT0}, s{sKQ}, 1
s_lshl_b32 s{sT0}, s{sT0}, 17
s_add_u32 s{sOBB}, s{sOBB}, s{sT0}
s_lshl_b32 s{sT0}, s{sRH}, 16
s_add_u32 s{sOBB}, s{sOBB}, s{sT0}
s_and_b32 s{sT0}, s{sKQ}, 1
s_lshl_b32 s{sT0}, s{sT0}, 7
s_add_u32 s{sOBB}, s{sOBB}, s{sT0}
s_lshl_b32 s{sT0}, s{sCH}, 6
s_add_u32 s{sOBB}, s{sOBB}, s{sT0}
s_lshl_b32 s{sPSRC}, s{sGRP}, 18
s_add_u32 s{sPSRC}, s{sPSRC}, {PART}
s_add_u32 s{sPSRC}, s{sPSRC}, s{sW4}
s_lshl_b32 s{sT0}, s{sKQ}, 14
s_add_u32 s{sPDST}, s{sPSRC}, s{sT0}
s_lshl_b32 s{sT0}, s{sKQ}, 16
s_add_u32 s{sPSRC}, s{sPSRC}, s{sT0}
""")
    for r in range(80): a(f"v_mov_b32 v{r}, 0")
    if fused:
        LS = a.newlabel("K3_in"); LP0 = a.newlabel("K3_inp")
        a.wait_vm("w0")
        a(f"""
s_barrier
s_cmp_lg_u32 s{sWAVE}, 0
s_cbranch_scc1 {LS}
s_add_u32 s99, s99, {FLAGS + 65536}
v_mov_b32 v{vT0}, 1
s_mov_b64 exec, 1
buffer_store_dword v{vT0}, v{vZ}, s[{sWS}:{sWS+3}], s99 offen sc1
s_mov_b64 exec, -1
s_sub_u32 s{sT0}, 15, s{sRB}
s_min_u32 s{sT0}, s{sT0}, s{sRB}
s_lshl_b32 s{sT1}, s{sKQ}, 6
s_add_u32 s{sT0}, s{sT0}, s{sT1}
v_and_b32 v{vT0}, 7, v{vL}
v_lshlrev_b32 v{vT0}, 3, v{vT0}
v_add_u32 v{vT0}, s{sT0}, v{vT0}
s_lshr_b32 s{sT0}, s{sRB}, 1
v_lshlrev_b32 v{vT1}, 3, v{vL}
v_add_u32 v{vT1}, s{sT0}, v{vT1}
v_cmp_gt_u32 vcc, 32, v{vL}
s_mov_b32 s{sT0}, {FLAGS + 65536}
s_mov_b32 s{sCNT}, 0x40000
v_cndmask_b32 v{vT1}, v{vT0}, v{vT1}, vcc
v_lshlrev_b32 v{vT1}, 7, v{vT1}
{LP0}:
buffer_load_dword v{vT0}, v{vT1}, s[{sWS}:{sWS+3}], s{sT0} offen sc1
s_waitcnt vmcnt(0)
v_cmp_ne_u32 vcc, 1, v{vT0}
s_nop 1
s_cbranch_vccz {LS}
s_sleep 1
s_sub_u32 s{sCNT}, s{sCNT}, 1
s_cmp_lg_u32 s{sCNT}, 0
s_cbranch_scc1 {LP0}
{LS}:
s_barrier
""")
        a.stamp(7)
        for it in a_dma_c(0) + a_dma_c(1) + a_dma_c(2): it.fn()
    else:
        for it in a_dma(1) + a_dma(2): it.fn()
    if CPF:
        LPC = a.newlabel("K3_pc")
        a(f"""
s_getpc_b64 s[56:57]
{LPC}:
v_lshlrev_b32 v{vT1}, 6, v{vL}
v_add_u32 v{vT1}, s{sW4}, v{vT1}
v_min_u32 v{vT1}, {END} - {LPC}, v{vT1}
""")
        a.vm(f"global_load_dword v206, v{vT1}, s[56:57]", "cpf")
    def a_reads(slot, k, st):
        c = vCR if slot < 2 else vCR2; w = vWR if slot < 2 else vWR2
        so = (slot & 1) * 32768
        fb = FR + st * 32
        its = []
        for x in range(4):
            its.append(mk.LG(f"ds_read_b128 v[{fb+x*4}:{fb+x*4+3}], v{c} offset:{so + x*2048 + k*1024}", ("fc", st)))
        for x in range(4):
            for jj in range(2):
                b = fb + 16 + x * 4 + jj * 2
                its.append(mk.LG(f"ds_read_b64_tr_b16 v[{b}:{b+1}], v{w[x]} offset:{so + k*8192 + jj*4096}", ("fw", st, x)))
        return its
    def a_stage(slot, refill, nxt=True):
        B = Body(32)
        for k in range(2):
            fb = FR + k * 32
            for mt in range(4):
                for qt in range(4):
                    d = ACC + (qt * 4 + mt) * 4
                    s = f"{MF} v[{d}:{d+3}], v[{fb+16+mt*4}:{fb+19+mt*4}], v[{fb+qt*4}:{fb+qt*4+3}], v[{d}:{d+3}]"
                    B.mfma[k * 16 + mt * 4 + qt] = (lambda s=s: a(s))
                if mt % 2 == 0: B.put_pre(k * 16 + mt * 4, mk.WL(("fw", k, mt + 1)))
        r1 = a_reads(slot, 1, 1)
        for j, it in enumerate(r1): B.put(2 * (j >> 1), it)
        if nxt:
            n = (slot + 1) % 4
            B.put(16, mk.WV(("st", n), lg0=True), 3); B.put(16, I("s_barrier"), 3)
            for j, it in enumerate(a_reads(n, 0, 0)): B.put(18 + 2 * (j >> 1), it)
        if refill: B.stream(refill, 0, 32)
        B.emit(a)
    a.wait_vm(("st", 0)); a("s_barrier")
    for it in a_reads(0, 0, 0): it.fn()
    L = a.newlabel("K3_loop")
    a(f"s_mov_b32 s{sCNT}, 3")
    a.stamp(2)
    a.label(L)
    def it_():
        for s in range(4): a_stage(s, a_dma((s + 3) % 4))
    loop_emit(a, it_)
    a(f"""
s_sub_u32 s{sCNT}, s{sCNT}, 1
s_cmp_lg_u32 s{sCNT}, 0
s_cbranch_scc1 {L}
""")
    a_stage(0, a_dma(3))
    a(f"""
s_lshl_b32 s{sT0}, s{sRB}, 3
s_and_b32 s{sT1}, s{sKQ}, 2
s_lshl_b32 s{sT1}, s{sT1}, 1
s_add_u32 s{sT0}, s{sT0}, s{sT1}
s_add_u32 s{sT0}, s{sT0}, s{sWAVE}
s_mul_i32 s{sCSRC}, s{sT0}, {144*1024}
s_add_u32 s{sCSRC}, s{sCSRC}, {CTX + 128*1024}
s_lshl_b32 s{sWSRC}, s{sWAVE}, 15
s_lshl_b32 s{sT0}, s{sCB}, 8
s_add_u32 s{sWSRC}, s{sWSRC}, s{sT0}
s_and_b32 s{sT0}, s{sKQ}, 1
s_lshl_b32 s{sT0}, s{sT0}, 7
s_add_u32 s{sWSRC}, s{sWSRC}, s{sT0}
""")
    a_stage(1, b_dma(0)); a_stage(2, b_dma(1)); a_stage(3, b_dma(2), nxt=False)
    a.stamp(3)
    if K4:
        a("s_barrier")
        for it in b_dma(3): it.fn()
    if K4:
        a("s_nop 7")
        for dst in range(4):
            a(f"s_add_u32 s{sT0}, s{sPSRC}, {dst * 16384}")
            d = ACC + dst * 16
            for j in range(8): a(f"v_cvt_pk_bf16_f32 v{d+j}, v{d+2*j}, v{d+2*j+1}")
            for hf in range(2):
                a.vm(f"buffer_store_dwordx4 v[{d+hf*4}:{d+hf*4+3}], v{vL16}, s[{sWS}:{sWS+3}], s{sT0} offen offset:{hf*1024} {PST}", "pub")
    else:
        OWN = RX + 32
        a("s_nop 7")
        for dst in range(4):
            LS = a.newlabel("K3_own"); LN = a.newlabel("K3_nx")
            a(f"s_cmp_eq_u32 s{sKQ}, {dst}")
            a(f"s_cbranch_scc1 {LS}")
            a(f"s_add_u32 s{sT0}, s{sPSRC}, {dst * 16384}")
            d = ACC + dst * 16
            for j in range(8): a(f"v_cvt_pk_bf16_f32 v{d+j}, v{d+2*j}, v{d+2*j+1}")
            for hf in range(2):
                a(f"buffer_store_dwordx4 v[{d+hf*4}:{d+hf*4+3}], v{vL16}, s[{sWS}:{sWS+3}], s{sT0} offen offset:{hf*1024} {PST}")
            a(f"s_branch {LN}")
            a.label(LS)
            for r in range(0, 16, 2): a(f"v_pk_mov_b32 v[{OWN+r}:{OWN+r+1}], v[{d+r}:{d+r+1}], v[{d+r}:{d+r+1}] op_sel:[0,1]")
            a.label(LN)
        a.vmq += ["pub"] * 6
    def b_stage(slot, after_bar=None):
        if slot == 0: a.stamp(6)
        a.wait_vm(("st", slot), always=True)
        a("s_barrier")
        a.stamp(15 + slot)
        if after_bar: after_bar()
        c = vBC[slot >> 1]; w = vBW[(slot >> 1) * 2:(slot >> 1) * 2 + 2]
        so = (slot & 1) * 32768
        def reads(k):
            fb = FR + k * 16
            for qt in range(2):
                a.lg(f"ds_read_b128 v[{fb+qt*4}:{fb+qt*4+3}], v{c} offset:{so + qt*4096 + k*1024}", ("f", k))
            for mt in range(2):
                for jj in range(2):
                    b = fb + 8 + mt * 4 + jj * 2
                    a.lg(f"ds_read_b64_tr_b16 v[{b}:{b+1}], v{w[mt]} offset:{so + k*4096 + jj*2048}", ("f", k))
        def mf(k):
            fb = FR + k * 16
            a.wait_lg(("f", k), always=True)
            for mt in range(2):
                for qt in range(2):
                    d = ACB + (mt * 2 + qt) * 4
                    a(f"{MF} v[{d}:{d+3}], v[{fb+8+mt*4}:{fb+8+mt*4+3}], v[{fb+qt*4}:{fb+qt*4+3}], v[{d}:{d+3}]")
        reads(0); reads(1); mf(0); reads(2); mf(1); reads(3); mf(2); mf(3)
    def refill3():
        for it in b_dma(3): it.fn()
    def signal():
        LS = a.newlabel("K3_sig")
        a(f"""
s_cmp_lg_u32 s{sWAVE}, 0
s_cbranch_scc1 {LS}
s_lshl_b32 s{sT0}, s{sGRP}, 2
s_add_u32 s{sT0}, s{sT0}, s{sKQ}
s_lshl_b32 s{sT0}, s{sT0}, 7
s_add_u32 s{sT0}, s{sT0}, {FLAGS}
v_mov_b32 v{vT0}, 1
s_mov_b64 exec, 1
buffer_store_dword v{vT0}, v{vZ}, s[{sWS}:{sWS+3}], s{sT0} offen sc1
s_mov_b64 exec, -1
{LS}:
""")
    if K4:
        b_stage(0); b_stage(1); b_stage(2); b_stage(3)
        a.stamp(4)
        for mt in range(2):
            for qt in range(2):
                d = ACB + (mt * 2 + qt) * 4
                if mt == 0 and qt == 0: a("s_nop 7")
                a(f"v_cvt_pk_bf16_f32 v{d}, v{d}, v{d+1}")
                a(f"v_cvt_pk_bf16_f32 v{d+1}, v{d+2}, v{d+3}")
        a(f"s_add_u32 s{sT0}, s{sOBB}, 32768")
        for mt in range(2):
            for qt in range(2):
                d = ACB + (mt * 2 + qt) * 4
                a(f"buffer_store_dwordx2 v[{d}:{d+1}], v{vO}, s[{sOUT}:{sOUT+3}], s{sOBB if qt == 0 else sT0} offen offset:{1024 + mt*32}")
        a.stamp(5); a.stamp(9)
        if a.diag: a("s_waitcnt vmcnt(0)")
        a.stamp(23); a.stamp(10, real=True)
        a.stamp_flush(sWS, sWAVE, 24, DIAG, vt=(195, 196), kidx=2)
        a.label(END)
        a("s_endpgm")
        gen_k4(a)
        return
    b_stage(0, refill3); b_stage(1); b_stage(2); b_stage(3, signal)
    a.stamp(4)
    LP = a.newlabel("K3_poll"); LPD = a.newlabel("K3_polled")
    a(f"""
s_cmp_lg_u32 s{sWAVE}, 0
s_cbranch_scc1 {LPD}
s_lshl_b32 s{sT0}, s{sGRP}, 9
s_add_u32 s{sT0}, s{sT0}, {FLAGS}
v_and_b32 v{vT1}, 3, v{vL}
v_lshlrev_b32 v{vT1}, 7, v{vT1}
s_mov_b32 s{sCNT}, 0x40000
{LP}:
buffer_load_dword v{vT0}, v{vT1}, s[{sWS}:{sWS+3}], s{sT0} offen sc1
s_waitcnt vmcnt(0)
v_cmp_ne_u32 vcc, 1, v{vT0}
s_nop 1
s_cbranch_vccz {LPD}
s_sleep 1
s_sub_u32 s{sCNT}, s{sCNT}, 1
s_cmp_lg_u32 s{sCNT}, 0
s_cbranch_scc1 {LP}
{LPD}:
s_barrier
""")
    a.stamp(5)
    a.vmq = []
    for j in range(3):
        a(f"s_add_u32 s{sT0}, s{sKQ}, {j+1}")
        a(f"s_and_b32 s{sT0}, s{sT0}, 3")
        a(f"s_lshl_b32 s{sT0}, s{sT0}, 16")
        a(f"s_add_u32 s{sT0}, s{sT0}, s{sPDST}")
        for hf in range(2):
            d = j * 8 + hf * 4
            a.vm(f"buffer_load_dwordx4 v[{d}:{d+3}], v{vL16}, s[{sWS}:{sWS+3}], s{sT0} offen offset:{hf*1024} sc1", ("rx", j))
    for mt in range(2):
        for qt in range(2):
            d = ACB + (mt * 2 + qt) * 4
            if mt == 0 and qt == 0: a("s_nop 7")
            a(f"v_cvt_pk_bf16_f32 v{d}, v{d}, v{d+1}")
            a(f"v_cvt_pk_bf16_f32 v{d+1}, v{d+2}, v{d+3}")
    a(f"s_add_u32 s{sT0}, s{sOBB}, 32768")
    for mt in range(2):
        for qt in range(2):
            d = ACB + (mt * 2 + qt) * 4
            a.vm(f"buffer_store_dwordx2 v[{d}:{d+1}], v{vO}, s[{sOUT}:{sOUT+3}], s{sOBB if qt == 0 else sT0} offen offset:{1024 + mt*32}", "o")
    for j in range(3):
        a.wait_vm(("rx", j))
        for r in range(8):
            a(f"v_lshlrev_b32 v{32+2*r}, 16, v{j*8+r}")
            a(f"v_and_b32 v{33+2*r}, 0xffff0000, v{j*8+r}")
        for r in range(0, 16, 2):
            a(f"v_pk_add_f32 v[{OWN+r}:{OWN+r+1}], v[{OWN+r}:{OWN+r+1}], v[{32+r}:{33+r}]")
    for mt in range(4):
        d = OWN + mt * 4
        a(f"v_cvt_pk_bf16_f32 v{d}, v{d}, v{d+1}")
        a(f"v_cvt_pk_bf16_f32 v{d+1}, v{d+2}, v{d+3}")
        a(f"buffer_store_dwordx2 v[{d}:{d+1}], v{vO}, s[{sOUT}:{sOUT+3}], s{sOB} offen offset:{mt*32}")
    a.stamp(9)
    if a.diag: a("s_waitcnt vmcnt(0)")
    a.stamp(23); a.stamp(10, real=True)
    a.stamp_flush(sWS, sWAVE, 24, DIAG, vt=(195, 196), kidx=2)
    a.label(END)
    a("s_endpgm")
    a.label("K3_code_end")
    a("s_endpgm")


def gen_k4(a, name="k4_kernel"):
    a.kernel(name, (256,1,1), (256,1,1), 0, vgpr=56)
    END = a.newlabel("K4_end")
    a(f"""
s_cmp_ge_u32 s2, 256
s_cbranch_scc1 {END}
s_load_dwordx2 s[20:21], s[0:1], 80     ; out
s_load_dwordx2 s[22:23], s[0:1], 96     ; ws
v_lshrrev_b32 v1, 6, v0
v_and_b32 v2, 63, v0
v_readfirstlane_b32 s16, v1
s_lshr_b32 s17, s2, 2                   ; group
s_and_b32 s18, s2, 3
s_lshl_b32 s24, s17, 18
s_lshl_b32 s25, s18, 14
s_add_u32 s24, s24, s25
s_lshl_b32 s25, s16, 12
s_add_u32 s24, s24, s25
v_lshlrev_b32 v3, 4, v2
s_mov_b32 s6, {WS_USED}
s_mov_b32 s7, 0x20000
s_mov_b32 s10, 0x400000
s_mov_b32 s11, 0x20000
s_waitcnt lgkmcnt(0)
s_mov_b32 s4, s22
s_mov_b32 s5, s23
s_mov_b32 s8, s20
s_mov_b32 s9, s21
""")
    for src in range(4):
        for hf in range(2):
            d = 8 + src * 8 + hf * 4
            a(f"buffer_load_dwordx4 v[{d}:{d+3}], v3, s[4:7], s24 offen offset:{hf*1024}")
        if src < 3: a("s_add_u32 s24, s24, 0x10000")
    a(f"""
v_and_b32 v4, 15, v2
v_lshlrev_b32 v4, 11, v4
v_lshrrev_b32 v5, 4, v2
v_lshl_add_u32 v4, v5, 3, v4
s_lshr_b32 s26, s17, 2
s_lshl_b32 s26, s26, 18
s_and_b32 s27, s17, 3
s_lshl_b32 s27, s27, 8
s_add_u32 s26, s26, s27
s_lshr_b32 s27, s16, 1
s_lshl_b32 s27, s27, 17
s_add_u32 s26, s26, s27
s_lshl_b32 s27, s18, 15
s_add_u32 s26, s26, s27
s_and_b32 s27, s16, 1
s_lshl_b32 s27, s27, 7
s_add_u32 s26, s26, s27
""")
    for src in range(4):
        a(f"s_waitcnt vmcnt({6 - 2*src})")
        for r in range(8):
            x = 8 + src * 8 + r
            if src == 0:
                a(f"v_lshlrev_b32 v{40+2*r}, 16, v{x}")
                a(f"v_and_b32 v{41+2*r}, 0xffff0000, v{x}")
            else:
                a(f"v_lshlrev_b32 v6, 16, v{x}")
                a(f"v_and_b32 v7, 0xffff0000, v{x}")
                a(f"v_pk_add_f32 v[{40+2*r}:{41+2*r}], v[{40+2*r}:{41+2*r}], v[6:7]")
    for mt in range(4):
        d = 40 + mt * 4
        a(f"v_cvt_pk_bf16_f32 v{d}, v{d}, v{d+1}")
        a(f"v_cvt_pk_bf16_f32 v{d+1}, v{d+2}, v{d+3}")
        a(f"buffer_store_dwordx2 v[{d}:{d+1}], v4, s[8:11], s26 offen offset:{mt*32}")
    a.label(END)
    a("s_endpgm")
```

```python
from asmlib import Asm
from sched import *
from common import *

def gen_k3m(a, L2W=0, PROG=0):
    sWO, sWB, sWS, sOUT = 4, 8, 12, 16
    (sWAVE, sRB, sCB, sKQ, sT0, sT1, sCNT, sCSRC, sWSRC, sW4, sOB, sPSRC, sOBB, sRH, sCH, sBC, sBW) = range(24, 41)
    sPD = [41, 42, 43]
    ACC = 0
    ACB = 64
    FR = 80
    vL16, vC1, vC2, vL, vT0, vT1, vT2, vO, vCR, vCR2 = 191, 192, 193, 194, 195, 196, 197, 198, 199, 200
    vWD = [201, 202, 203, 204]
    vZ = 205
    vWR = [144, 145, 146, 147]; vWR2 = [148, 149, 150, 151]
    vBD = [152, 153, 154, 155]; vBC = [156, 157, 158]; vBW = [159, 160, 161, 162, 163, 164]
    RX = 166
    mk = Mk(a); I = mk.I
    a.label("K3_fused_entry")
    a.vmq = []; a.lgq = []
    a(f"v_mov_b32 v{vL}, v215")
    a(f"s_mov_b32 s{sWAVE}, s16")
    a.stamp(14)
    a(f"""
s_load_dwordx2 s[50:51], s[0:1], 80     ; out
s_lshr_b32 s{sT1}, s2, 3                ; q
s_and_b32 s{sCB}, s{sT1}, 3
s_lshr_b32 s{sRB}, s{sT1}, 2
s_and_b32 s{sT0}, s2, 1
s_xor_b32 s{sT0}, s{sT0}, {1 if PROG else 0}
s_lshl_b32 s{sT0}, s{sT0}, 3
s_add_u32 s{sRB}, s{sRB}, s{sT0}
s_bfe_u32 s{sKQ}, s2, 0x20001           ; K quarter
s_lshl_b32 s{sWSRC}, s{sKQ}, 20
s_lshl_b32 s{sT0}, s{sWAVE}, 14
s_add_u32 s{sWSRC}, s{sWSRC}, s{sT0}
s_lshl_b32 s{sT0}, s{sCB}, 8
s_add_u32 s{sWSRC}, s{sWSRC}, s{sT0}
s_lshl_b32 s{sW4}, s{sWAVE}, 12
s_mov_b32 s{sWO}, s88
s_mov_b32 s{sWO+1}, s89
s_mov_b32 s{sWO+2}, 0x400000
s_mov_b32 s{sWO+3}, 0x20000
v_lshrrev_b32 v{vT2}, 4, v{vL}
v_lshlrev_b32 v{vT0}, 10, v{vT2}
v_and_b32 v{vT1}, 15, v{vL}
v_lshlrev_b32 v{vT2}, 1, v{vT2}
v_xor_b32 v{vT1}, v{vT1}, v{vT2}
v_lshl_add_u32 v{vWD[0]}, v{vT1}, 4, v{vT0}
v_xor_b32 v{vT1}, 8, v{vT1}
v_lshl_add_u32 v{vWD[1]}, v{vT1}, 4, v{vT0}
v_add_u32 v{vWD[1]}, 3072, v{vWD[1]}
v_add_u32 v{vWD[2]}, 6144, v{vWD[0]}
v_add_u32 v{vWD[3]}, 6144, v{vWD[1]}
s_barrier
""")
    a.stamp(0); a.stamp(1, real=True)
    def a_dma_c(slot):
        its = [I(f"s_add_u32 m0, s{sW4}, {slot * 32768}"), I("s_nop 0")]
        for i in range(4):
            its.append(mk.VM(f"buffer_load_dwordx4 v{vC1 if i < 2 else vC2}, s[{sWS}:{sWS+3}], s{sCSRC} offen offset:{i*1024} sc1 lds", ("st", slot)))
        return its + [I(f"s_add_u32 s{sCSRC}, s{sCSRC}, 2048")]
    def a_dma_w(slot, tag=None):
        its = [I(f"s_add_u32 m0, s{sW4}, {slot * 32768 + 16384}"), I("s_nop 0")]
        for i in range(4):
            its.append(mk.VM(f"buffer_load_dwordx4 v{vWD[i]}, s[{sWO}:{sWO+3}], s{sWSRC} offen offset:{i*1024} lds", tag or ("st", slot)))
        return its + [I(f"s_add_u32 s{sWSRC}, s{sWSRC}, 0x10000")]
    def a_dma(slot):
        c = a_dma_c(slot); w = a_dma_w(slot)
        return c[:-1] + [w[0], c[-1]] + w[2:]
    def b_dma(slot):
        its = [I(f"s_add_u32 m0, s{sW4}, {slot * 32768}"), I("s_nop 0")]
        for i in range(4):
            its.append(mk.VM(f"buffer_load_dwordx4 v{vL16}, s[{sWS}:{sWS+3}], s{sBC} offen offset:{i*1024} sc1 lds", ("st", slot)))
        its += [I(f"s_add_u32 m0, s{sW4}, {slot * 32768 + 16384}"), I(f"s_add_u32 s{sBC}, s{sBC}, 4096")]
        for i in range(4):
            its.append(mk.VM(f"buffer_load_dwordx4 v{vBD[i]}, s[{sWB}:{sWB+3}], s{sBW} offen offset:{i*1024} lds", ("st", slot)))
        its.append(I(f"s_add_u32 s{sBW}, s{sBW}, 0x20000"))
        return its
    for it in a_dma_w(0, "w0") + a_dma_w(1) + a_dma_w(2): it.fn()
    a(f"""
s_mov_b32 s{sWB}, s92
s_mov_b32 s{sWB+1}, s93
s_mov_b32 s{sWB+2}, 0x80000
s_mov_b32 s{sWB+3}, 0x20000
s_mov_b32 s{sOUT+2}, 0x400000
s_mov_b32 s{sOUT+3}, 0x20000
s_lshr_b32 s{sRH}, s{sWAVE}, 1
s_and_b32 s{sCH}, s{sWAVE}, 1
v_lshlrev_b32 v{vL16}, 4, v{vL}
s_lshl_b32 s{sT0}, s{sRB}, 1
s_add_u32 s{sT0}, s{sT0}, s{sRH}
s_mul_i32 s{sCSRC}, s{sT0}, {4*144*1024}
s_lshl_b32 s{sT0}, s{sKQ}, 15
s_add_u32 s{sCSRC}, s{sCSRC}, s{sT0}
s_add_u32 s{sCSRC}, s{sCSRC}, {CTX - 2048}
s_lshl_b32 s{sT0}, s{sCH}, 1
s_add_u32 s{sT0}, s{sT0}, s{sKQ}
s_and_b32 s{sT1}, s{sT0}, 3
s_mul_i32 s{sT1}, s{sT1}, {144*1024}
s_add_u32 s{sT1}, s{sT1}, 2048
v_add_u32 v{vC1}, s{sT1}, v{vL16}
s_add_u32 s{sT0}, s{sT0}, 1
s_and_b32 s{sT1}, s{sT0}, 3
s_mul_i32 s{sT1}, s{sT1}, {144*1024}
v_add_u32 v{vC2}, s{sT1}, v{vL16}
s_lshl_b32 s{sT0}, s{sRH}, 13
v_add_u32 v{vCR}, s{sT0}, v{vL16}
v_add_u32 v{vCR2}, 0x10000, v{vCR}
v_mov_b32 v{vBC[0]}, v{vCR}
v_mov_b32 v{vBC[1]}, v{vCR2}
v_add_u32 v{vBC[2]}, 0x10000, v{vCR2}
v_lshrrev_b32 v{vT0}, 4, v{vL}              ; kq
v_bfe_u32 v{vT1}, v{vL}, 2, 2               ; r
v_lshl_add_u32 v{vT2}, v{vT0}, 2, v{vT1}    ; kq*4+r
v_and_b32 v{vT0}, 3, v{vL}
v_lshlrev_b32 v{vT0}, 3, v{vT0}
v_add_u32 v{vT0}, 16384, v{vT0}             ; c4*8 + W part
v_lshl_add_u32 v{vZ}, v{vT2}, 8, v{vT0}
v_and_b32 v{vT1}, 7, v{vT2}
s_lshl_b32 s{sT0}, s{sCH}, 2
v_xor_b32 v{vT1}, s{sT0}, v{vT1}
""")
    for mt in range(4):
        a(f"v_xor_b32 v{vO}, {mt}, v{vT1}")
        a(f"v_lshl_add_u32 v{vWR[mt]}, v{vO}, 5, v{vZ}")
        a(f"v_add_u32 v{vWR2[mt]}, 0x10000, v{vWR[mt]}")
    a(f"""
v_lshl_add_u32 v{vZ}, v{vT2}, 7, v{vT0}
v_bfe_u32 v{vT1}, v{vT2}, 1, 2
s_lshl_b32 s{sT0}, s{sCH}, 1
v_xor_b32 v{vT1}, s{sT0}, v{vT1}
v_lshl_add_u32 v{vBW[0]}, v{vT1}, 5, v{vZ}
v_xor_b32 v{vT1}, 1, v{vT1}
v_lshl_add_u32 v{vBW[1]}, v{vT1}, 5, v{vZ}
v_add_u32 v{vBW[2]}, 0x10000, v{vBW[0]}
v_add_u32 v{vBW[3]}, 0x10000, v{vBW[1]}
v_add_u32 v{vBW[4]}, 0x20000, v{vBW[0]}
v_add_u32 v{vBW[5]}, 0x20000, v{vBW[1]}
v_lshrrev_b32 v{vT0}, 3, v{vL}
v_lshlrev_b32 v{vT0}, 10, v{vT0}
v_and_b32 v{vT1}, 7, v{vL}
v_lshrrev_b32 v{vT2}, 4, v{vL}
v_lshlrev_b32 v{vT2}, 1, v{vT2}
v_xor_b32 v{vT1}, v{vT1}, v{vT2}
v_lshl_add_u32 v{vBD[0]}, v{vT1}, 4, v{vT0}
v_add_u32 v{vBD[1]}, {7*1024}, v{vBD[0]}
v_add_u32 v{vBD[2]}, {14*1024}, v{vBD[0]}
v_add_u32 v{vBD[3]}, {21*1024}, v{vBD[0]}
v_and_b32 v{vT0}, 15, v{vL}
v_lshlrev_b32 v{vT0}, 11, v{vT0}
v_lshrrev_b32 v{vT1}, 4, v{vL}
v_lshl_add_u32 v{vO}, v{vT1}, 3, v{vT0}
v_mov_b32 v{vZ}, 0
s_lshl_b32 s{sOB}, s{sRB}, 18
s_lshl_b32 s{sT0}, s{sCB}, 8
s_add_u32 s{sOB}, s{sOB}, s{sT0}
s_mov_b32 s{sOBB}, s{sOB}
s_lshl_b32 s{sT0}, s{sRH}, 17
s_add_u32 s{sOB}, s{sOB}, s{sT0}
s_lshl_b32 s{sT0}, s{sKQ}, 15
s_add_u32 s{sOB}, s{sOB}, s{sT0}
s_lshl_b32 s{sT0}, s{sCH}, 7
s_add_u32 s{sOB}, s{sOB}, s{sT0}
s_lshr_b32 s{sT0}, s{sKQ}, 1
s_lshl_b32 s{sT0}, s{sT0}, 17
s_add_u32 s{sOBB}, s{sOBB}, s{sT0}
s_lshl_b32 s{sT0}, s{sRH}, 16
s_add_u32 s{sOBB}, s{sOBB}, s{sT0}
s_and_b32 s{sT0}, s{sKQ}, 1
s_lshl_b32 s{sT0}, s{sT0}, 7
s_add_u32 s{sOBB}, s{sOBB}, s{sT0}
s_lshl_b32 s{sT0}, s{sCH}, 6
s_add_u32 s{sOBB}, s{sOBB}, s{sT0}
s_lshl_b32 s{sT0}, s{sRB}, 3
s_and_b32 s{sT1}, s{sKQ}, 2
s_lshl_b32 s{sT1}, s{sT1}, 1
s_add_u32 s{sT0}, s{sT0}, s{sT1}
s_add_u32 s{sT0}, s{sT0}, s{sWAVE}
s_mul_i32 s{sBC}, s{sT0}, {144*1024}
s_add_u32 s{sBC}, s{sBC}, {CTX + 128*1024}
s_lshl_b32 s{sBW}, s{sWAVE}, 15
s_lshl_b32 s{sT0}, s{sCB}, 8
s_add_u32 s{sBW}, s{sBW}, s{sT0}
s_and_b32 s{sT0}, s{sKQ}, 1
s_lshl_b32 s{sT0}, s{sT0}, 7
s_add_u32 s{sBW}, s{sBW}, s{sT0}
s_lshl_b32 s{sT0}, s2, 2
s_add_u32 s{sT0}, s{sT0}, s{sWAVE}
s_mul_i32 s{sPSRC}, s{sT0}, 6144
s_add_u32 s{sPSRC}, s{sPSRC}, {PART}
""")
    for j in range(1, 4):
        a(f"""
s_sub_u32 s{sT0}, s{sKQ}, {j}
s_and_b32 s{sT0}, s{sT0}, 3
s_sub_u32 s{sT0}, s{sT0}, s{sKQ}
s_mul_i32 s{sT0}, s{sT0}, {2*4*6144}
s_add_u32 s{sPD[j-1]}, s{sPSRC}, s{sT0}
s_add_u32 s{sPD[j-1]}, s{sPD[j-1]}, {(j-1)*2048}
""")
    MF32 = "v_mfma_f32_32x32x16_bf16"
    for k in range(5): a(f"{MF32} v[{k*16}:{k*16+15}], v[236:239], v[236:239], 0")
    LS = a.newlabel("K3_in"); LP0 = a.newlabel("K3_inp"); LT = a.newlabel("K3_int")
    vP1, vP2, vP3, vPV, vEXP = 206, 207, 208, 209, 210
    sPO = 44
    def spin(vaddr, back):
        L = a.newlabel("K3_sp"); LP = a.newlabel("K3_spl")
        a.stubs.append(f"""{L}:
s_mov_b32 s45, 0x40000
{LP}:
buffer_load_dword v{vPV}, v{vaddr}, s[{sWS}:{sWS+3}], s{sPO} offen sc1
s_waitcnt vmcnt(0)
v_cmp_ne_u32 vcc, 1, v{vPV}
s_sub_u32 s45, s45, 1
s_cmp_eq_u32 s45, 0
s_cbranch_scc1 {back}
s_cbranch_vccz {back}
s_sleep 1
s_branch {LP}""")
        return L
    def poll_issue(vaddr): return mk.VM(f"buffer_load_dword v{vPV}, v{vaddr}, s[{sWS}:{sWS+3}], s{sPO} offen sc1", "poll")
    def poll_check(vaddr):
        def f():
            R = a.newlabel("K3_ok")
            a.wait_vm("poll", always=True)
            a(f"v_cmp_ne_u32 vcc, v{vEXP}, v{vPV}")
            a("s_nop 1")
            a(f"s_cbranch_vccnz {spin(vaddr, R)}")
            a.label(R)
        return Item(f, 16, "X")
    if PROG:
        a(f"""
s_waitcnt lgkmcnt(0)
s_mov_b32 s{sOUT}, s50
s_mov_b32 s{sOUT+1}, s51
s_sub_u32 s{sT0}, 15, s{sRB}
s_min_u32 s{sT0}, s{sT0}, s{sRB}
s_lshl_b32 s{sT0}, s{sT0}, 3
s_lshl_b32 s{sT1}, s{sKQ}, 1
s_add_u32 s{sT0}, s{sT0}, s{sT1}
s_cmp_ge_u32 s{sRB}, 8
s_cselect_b32 s{sT1}, 512, 0
s_add_u32 s{sT0}, s{sT0}, s{sT1}
v_and_b32 v{vT2}, 3, v{vL}
v_lshlrev_b32 v{vT1}, 6, v{vT2}
v_add_u32 v{vP1}, s{sT0}, v{vT1}
v_add_u32 v{vP2}, 1, v{vP1}
v_lshlrev_b32 v{vP1}, 7, v{vP1}
v_lshlrev_b32 v{vP2}, 7, v{vP2}
s_lshr_b32 s{sT0}, s{sRB}, 1
s_lshl_b32 s{sT0}, s{sT0}, 3
s_add_u32 s{sT0}, s{sT0}, 512
v_add_u32 v{vT1}, s{sT0}, v{vT1}
v_bfe_u32 v{vT0}, v{vL}, 2, 3
v_add_u32 v{vT1}, v{vT0}, v{vT1}
v_cmp_gt_u32 vcc, 32, v{vL}
s_and_b32 s{sT0}, s2, 0xf9
v_lshl_add_u32 v{vT2}, v{vT2}, 1, s{sT0}
v_cndmask_b32 v{vP3}, v{vT2}, v{vT1}, vcc
v_lshlrev_b32 v{vP3}, 7, v{vP3}
s_lshl_b32 s99, s2, 7
s_add_u32 s99, s99, {FLAGS + 65536}
s_cmp_eq_u32 s{sWAVE}, 0
s_cselect_b32 s{sPO}, {FLAGS}, s{sWS+2}
s_cselect_b32 s99, s99, s{sWS+2}
s_cselect_b32 s{sT0}, 1, 0
v_mov_b32 v{vEXP}, s{sT0}
""")
        a.wait_vm("w0")
        a("s_barrier")
        a.vm(f"buffer_store_dword v{vEXP}, v{vZ}, s[{sWS}:{sWS+3}], s99 offen sc1", "f2")
        poll_issue(vP1).fn(); poll_check(vP1).fn()
        a("s_barrier")
        a(f"v_mov_b32 v{vP1}, v{vP1}")
    else:
        a(f"""
s_waitcnt lgkmcnt(0)
s_mov_b32 s{sOUT}, s50
s_mov_b32 s{sOUT+1}, s51
s_sub_u32 s{sT0}, 15, s{sRB}
s_min_u32 s{sT0}, s{sT0}, s{sRB}
s_lshl_b32 s{sT0}, s{sT0}, 3
s_lshl_b32 s{sT1}, s{sKQ}, 1
s_add_u32 s{sT0}, s{sT0}, s{sT1}
v_and_b32 v{vT2}, 3, v{vL}
v_lshlrev_b32 v{vT1}, 6, v{vT2}
v_bfe_u32 v{vT0}, v{vL}, 2, 1
v_add3_u32 v{vT0}, v{vT0}, v{vT1}, s{sT0}
s_lshr_b32 s{sT0}, s{sRB}, 1
s_lshl_b32 s{sT0}, s{sT0}, 3
v_add_u32 v{vT1}, s{sT0}, v{vT1}
v_bfe_u32 v{RX}, v{vL}, 2, 3
v_add_u32 v{vT1}, v{RX}, v{vT1}
v_cmp_gt_u32 vcc, 32, v{vL}
s_and_b32 s{sT0}, s2, 0xf9
v_lshl_add_u32 v{vT2}, v{vT2}, 1, s{sT0}
v_cndmask_b32 v{vT1}, v{vT0}, v{vT1}, vcc
v_cmp_le_u32 vcc, 48, v{vL}
s_lshl_b32 s99, s2, 7
s_add_u32 s99, s99, {FLAGS + 65536}
v_cndmask_b32 v{vT1}, v{vT1}, v{vT2}, vcc
v_lshlrev_b32 v{vT1}, 7, v{vT1}
v_mov_b32 v{vT0}, 1
s_mov_b32 s{sT0}, {FLAGS + 65536}
s_mov_b32 s{sCNT}, 0x40000
""")
        a.wait_vm("w0")
        if L2W:
            a(f"""
s_lshr_b32 s60, s2, 3
s_lshl_b32 s60, s60, 2
s_add_u32 s60, s60, s{sWAVE}
s_lshl_b32 s61, s60, 13
s_lshl_b32 s62, s{sKQ}, 20
s_add_u32 s61, s61, s62
s_lshl_b32 s60, s60, 12
v_lshlrev_b32 v{RX+1}, 7, v{vL}
v_and_b32 v{RX+2}, 0xfff, v{RX+1}
""")
        a(f"""
s_barrier
s_cmp_lg_u32 s{sWAVE}, 0
s_cbranch_scc1 {LT}
s_mov_b64 exec, 1
buffer_store_dword v{vT0}, v{vZ}, s[{sWS}:{sWS+3}], s99 offen sc1
s_mov_b64 exec, -1
{LP0}:
buffer_load_dword v{vT2}, v{vT1}, s[{sWS}:{sWS+3}], s{sT0} offen sc1
s_waitcnt vmcnt(0)
v_cmp_ne_u32 vcc, 1, v{vT2}
s_nop 1
s_cbranch_vccz {LS}
s_sleep 1
s_sub_u32 s{sCNT}, s{sCNT}, 1
s_cmp_lg_u32 s{sCNT}, 0
s_cbranch_scc1 {LP0}
{LS}:
{LT}:
""")
        if L2W:
            a(f"buffer_load_dword v{RX+3}, v{RX+1}, s[{sWO}:{sWO+3}], s61 offen")
            a(f"buffer_load_dword v{RX+3}, v{RX+2}, s[{sWB}:{sWB+3}], s60 offen")
        a("s_barrier")
    a.stamp(7)
    for it in a_dma_c(0) + a_dma_c(1) + a_dma_c(2): it.fn()
    def a_reads(slot, k, st):
        c = vCR if slot < 2 else vCR2; w = vWR if slot < 2 else vWR2
        so = (slot & 1) * 32768
        fb = FR + st * 32
        its = []
        for x in range(4):
            its.append(mk.LG(f"ds_read_b128 v[{fb+x*4}:{fb+x*4+3}], v{c} offset:{so + x*2048 + k*1024}", ("fc", st)))
        for x in range(4):
            for jj in range(2):
                b = fb + 16 + x * 4 + jj * 2
                its.append(mk.LG(f"ds_read_b64_tr_b16 v[{b}:{b+1}], v{w[x]} offset:{so + k*8192 + jj*4096}", ("fw", st, x)))
        return its
    def pub(j):
        d = ACC + j * 16
        its = [I(f"v_cvt_pk_bf16_f32 v{d+x}, v{d+2*x}, v{d+2*x+1}") for x in range(8)]
        st = [mk.VM(f"buffer_store_dwordx4 v[{d+hf*4}:{d+hf*4+3}], v{vL16}, s[{sWS}:{sWS+3}], s{sPSRC} offen offset:{((j-1)*2048 + hf*1024) % 4096} sc1", "pub") for hf in range(2)]
        pre = [I(f"s_add_u32 s{sPSRC}, s{sPSRC}, 4096")] if j == 3 else []
        return pre + its[:4] + [st[0]] + its[4:] + [st[1]]
    def a_stage(slot, refill, last=False, pi=None, pc=None):
        B = Body(32)
        for k in range(2):
            fb = FR + k * 32
            for mt in range(4):
                for qt in range(4):
                    d = ACC + (qt * 4 + mt) * 4
                    s = f"{MF} v[{d}:{d+3}], v[{fb+16+mt*4}:{fb+19+mt*4}], v[{fb+qt*4}:{fb+qt*4+3}], v[{d}:{d+3}]"
                    m = mt * 4 + qt if not (last and k) else ((qt + 3) & 3) * 4 + mt
                    B.mfma[k * 16 + m] = (lambda s=s: a(s))
                if last and k:
                    if mt == 0: B.put_pre(16, mk.WL(("fw", k, 3)))
                elif mt % 2 == 0: B.put_pre(k * 16 + mt * 4, mk.WL(("fw", k, mt + 1)))
        r1 = a_reads(slot, 1, 1)
        for j, it in enumerate(r1): B.put((2 if not last else 1) * (j >> 1), it)
        if not last:
            n = (slot + 1) % 4
            B.put(16, mk.WV(("st", n), lg0=True), 3); B.put(16, I("s_barrier"), 3)
            for j, it in enumerate(a_reads(n, 0, 0)): B.put(18 + 2 * (j >> 1), it)
        if pi: B.put(1, pi[0]); [B.put(3, x) for x in pi[1:]]
        if pc: B.put(15, pc, 3)
        if refill: B.stream(refill, 0, 32 if not last else 26)
        if last: B.stream(pub(1), 27, 32)
        B.emit(a)
    a.wait_vm(("st", 0)); a("s_barrier")
    for it in a_reads(0, 0, 0): it.fn()
    L = a.newlabel("K3_loop")
    a(f"s_mov_b32 s{sCNT}, 3")
    a.stamp(2)
    a.label(L)
    def it_():
        for s in range(4):
            a_stage(s, a_dma((s + 3) % 4),
                    pi=[I(f"v_mov_b32 v{vP1}, v{vP2}")] if PROG and s == 2 else [poll_issue(vP1)] if PROG and s == 3 else None,
                    pc=poll_check(vP1) if PROG and s == 0 else None)
            if PROG and s == 1:
                a(f"s_cmp_eq_u32 s{sCNT}, 1")
                a(f"s_cselect_b64 vcc, -1, 0")
                a(f"v_cndmask_b32 v{vP2}, v{vP2}, v{vP3}, vcc")
    loop_emit(a, it_)
    a(f"""
s_sub_u32 s{sCNT}, s{sCNT}, 1
s_cmp_lg_u32 s{sCNT}, 0
s_cbranch_scc1 {L}
""")
    a_stage(0, a_dma(3) + b_dma(4)[:2], pc=poll_check(vP1) if PROG else None)
    bd = b_dma(4)[2:] + b_dma(0) + b_dma(1) + b_dma(2)
    n3 = len(bd) // 3
    a_stage(1, b_dma(4)[2:] + b_dma(0)[:6]); a_stage(2, b_dma(0)[6:] + b_dma(1)); a_stage(3, b_dma(2), last=True)
    a.stamp(3)
    for it in pub(2) + pub(3): it.fn()
    a.stamp(6)
    def b_stage(slot, idx):
        a.wait_vm(("st", slot), always=True)
        a("s_barrier")
        a.stamp(15 + idx)
        c = vBC[slot >> 1]; w = vBW[(slot >> 1) * 2:(slot >> 1) * 2 + 2]
        so = (slot & 1) * 32768
        def reads(k):
            fb = FR + k * 16
            for qt in range(2):
                a.lg(f"ds_read_b128 v[{fb+qt*4}:{fb+qt*4+3}], v{c} offset:{so + qt*4096 + k*1024}", ("f", k))
            for mt in range(2):
                for jj in range(2):
                    b = fb + 8 + mt * 4 + jj * 2
                    a.lg(f"ds_read_b64_tr_b16 v[{b}:{b+1}], v{w[mt]} offset:{so + k*4096 + jj*2048}", ("f", k))
        def mf(k):
            fb = FR + k * 16
            a.wait_lg(("f", k), always=True)
            for mt in range(2):
                for qt in range(2):
                    d = ACB + (mt * 2 + qt) * 4
                    a(f"{MF} v[{d}:{d+3}], v[{fb+8+mt*4}:{fb+8+mt*4+3}], v[{fb+qt*4}:{fb+qt*4+3}], v[{d}:{d+3}]")
        reads(0); reads(1); mf(0); reads(2); mf(1); reads(3); mf(2); mf(3)
    def rx_loads():
        for j in range(3):
            for hf in range(2):
                a(f"buffer_load_dwordx4 v[{RX+j*8+hf*4}:{RX+j*8+hf*4+3}], v{vL16}, s[{sWS}:{sWS+3}], s{sPD[j]} offen offset:{hf*1024} sc1")
    b_stage(4, 0); b_stage(0, 1); b_stage(1, 2)
    a.wait_vm(("st", 2))
    rx_loads()
    a.vmq += ["rx"] * 6
    b_stage(2, 3)
    a.stamp(4)
    for mt in range(2):
        for qt in range(2):
            d = ACB + (mt * 2 + qt) * 4
            if mt == 0 and qt == 0: a("s_nop 7")
            a(f"v_cvt_pk_bf16_f32 v{d}, v{d}, v{d+1}")
            a(f"v_cvt_pk_bf16_f32 v{d+1}, v{d+2}, v{d+3}")
    a(f"s_add_u32 s{sT0}, s{sOBB}, 32768")
    for mt in range(2):
        for qt in range(2):
            d = ACB + (mt * 2 + qt) * 4
            a.vm(f"buffer_store_dwordx2 v[{d}:{d+1}], v{vO}, s[{sOUT}:{sOUT+3}], s{sOBB if qt == 0 else sT0} offen offset:{1024 + mt*32}", "o")
    LP = a.newlabel("K3_poll"); LPD = a.newlabel("K3_polled")
    a(f"s_mov_b32 s{sCNT}, 0x40000")
    a.wait_vm("rx")
    a.label(LP)
    a(f"v_max3_u32 v{vT0}, v{RX}, v{RX+1}, v{RX+2}")
    a(f"v_max3_u32 v{vT1}, v{RX+3}, v{RX+4}, v{RX+5}")
    for r in range(6, 22, 4):
        a(f"v_max3_u32 v{vT0}, v{vT0}, v{RX+r}, v{RX+r+1}")
        a(f"v_max3_u32 v{vT1}, v{vT1}, v{RX+r+2}, v{RX+r+3}")
    a(f"v_max3_u32 v{vT0}, v{vT0}, v{RX+22}, v{RX+23}")
    a(f"""
v_max_u32 v{vT0}, v{vT0}, v{vT1}
v_cmp_eq_u32 vcc, -1, v{vT0}
s_sub_u32 s{sCNT}, s{sCNT}, 1
s_cmp_eq_u32 s{sCNT}, 0
s_cbranch_scc1 {LPD}
s_cbranch_vccz {LPD}
s_sleep 4
""")
    rx_loads()
    a(f"""
s_waitcnt vmcnt(0)
s_branch {LP}
{LPD}:
""")
    a.stamp(5)
    for j in range(3):
        for r in range(8):
            a(f"v_lshlrev_b32 v{32+2*r}, 16, v{RX+j*8+r}")
            a(f"v_and_b32 v{33+2*r}, 0xffff0000, v{RX+j*8+r}")
        for r in range(0, 16, 2):
            a(f"v_pk_add_f32 v[{ACC+r}:{ACC+r+1}], v[{ACC+r}:{ACC+r+1}], v[{32+r}:{33+r}]")
    for mt in range(4):
        d = ACC + mt * 4
        a(f"v_cvt_pk_bf16_f32 v{d}, v{d}, v{d+1}")
        a(f"v_cvt_pk_bf16_f32 v{d+1}, v{d+2}, v{d+3}")
        a(f"buffer_store_dwordx2 v[{d}:{d+1}], v{vO}, s[{sOUT}:{sOUT+3}], s{sOB} offen offset:{mt*32}")
    a.stamp(9)
    if a.diag: a("s_waitcnt vmcnt(0)")
    a.stamp(23); a.stamp(10, real=True)
    a.stamp_flush(sWS, sWAVE, 24, DIAG, vt=(195, 196), kidx=2)
    a("s_endpgm")
    a.flush_stubs()
    a.label("K3_code_end")
    a("s_endpgm")
```

```python
from sched import *
from common import *
WR, FR, AR = 0, 65536, 98304

class PhaseA:
    LEAD = 16
    pre1 = False
    N1 = 9
    def __init__(self, a, ACC, WF, vWA, vXA, vAD, vWD, sACT, sW, sA0, sA1, sWSRC, sROW4, sROWH, sLA, sLW, sT, types, sCO, sWB, sA0c, sA1c):
        self.__dict__.update(locals())
    def acc(self, nt, st): return self.ACC + ((nt >> 2) * 16 + (nt & 3) * 4 + st) * 4
    ring = None
    def act(self, ks, st):
        b = (ks * 4 + st) * 4 if self.ring is None else self.ring + ((ks % 4) * 4 + st) * 4
        return f"a[{b}:{b+3}]"
    def wf(self, ks, nt): return self.WF + ((ks % 2) * 8 + nt) * 4
    def setup_dma(self, vL, vT0, vT1, vT2, sROW1, split=None):
        a = self.a; A = self.vAD; W = self.vWD
        a(f"""
v_lshrrev_b32 v{vT0}, 3, v{vL}
v_lshlrev_b32 v{vT0}, 10, v{vT0}
v_and_b32 v{vT1}, 7, v{vL}
v_lshrrev_b32 v{vT2}, 4, v{vL}
v_xor_b32 v{vT1}, v{vT1}, v{vT2}
v_lshl_add_u32 v{A[0]}, v{vT1}, 4, v{vT0}
v_xor_b32 v{A[1]}, 64, v{A[0]}
v_add_u32 v{A[1]}, {7*1024}, v{A[1]}
v_add_u32 v{A[2]}, {14*1024}, v{A[0]}
v_add_u32 v{A[3]}, {14*1024}, v{A[1]}
v_mul_lo_u32 v{vT0}, v{vT2}, s{sROW1}
v_and_b32 v{vT1}, 15, v{vL}
v_lshlrev_b32 v{vT2}, 1, v{vT2}
v_xor_b32 v{vT1}, v{vT1}, v{vT2}
v_lshl_add_u32 v{W[0]}, v{vT1}, 4, v{vT0}
v_xor_b32 v{vT2}, 8, v{vT1}
v_lshl_add_u32 v{W[2]}, v{vT2}, 4, v{vT0}
""")
        if split is not None:
            a(f"""
v_lshrrev_b32 v{vT1}, 3, v{vT1}
v_mul_lo_u32 v{vT1}, v{vT1}, s{split}
v_add_u32 v{W[0]}, v{W[0]}, v{vT1}
v_lshrrev_b32 v{vT2}, 3, v{vT2}
v_mul_lo_u32 v{vT2}, v{vT2}, s{split}
v_add_u32 v{W[2]}, v{W[2]}, v{vT2}
""")
        a(f"""
s_sub_u32 s{self.sT}, s{self.sROW4}, 1024
v_add_u32 v{W[1]}, s{self.sT}, v{W[0]}
v_add_u32 v{W[2]}, s{self.sT}, v{W[2]}
v_add_u32 v{W[2]}, s{self.sT}, v{W[2]}
v_add_u32 v{W[3]}, s{self.sT}, v{W[2]}
""")
    def setup_read(self, vL, vT0, vT1, vT2):
        a = self.a
        a(f"""
v_lshrrev_b32 v{vT0}, 4, v{vL}              ; kq
v_bfe_u32 v{vT1}, v{vL}, 2, 2               ; r
v_lshl_add_u32 v{vT2}, v{vT0}, 3, v{vT1}    ; kq*8+r
v_lshlrev_b32 v{vT2}, 8, v{vT2}
v_and_b32 v{vT0}, 1, v{vT0}
v_lshl_add_u32 v{vT1}, v{vT0}, 2, v{vT1}    ; f = r | (kq&1)<<2
v_and_b32 v{vT0}, 3, v{vL}
v_lshl_add_u32 v{vT2}, v{vT0}, 3, v{vT2}    ; + c4*8
""")
        for nt in range(8):
            a(f"v_xor_b32 v{vT0}, {nt}, v{vT1}")
            a(f"v_lshl_add_u32 v{self.vWA[nt]}, v{vT0}, 5, v{vT2}")
        a(f"""
v_and_b32 v{vT0}, 15, v{vL}
v_lshlrev_b32 v{vT0}, 7, v{vT0}
v_add_u32 v{vT0}, s{self.sLA}, v{vT0}
v_bfe_u32 v{vT1}, v{vL}, 1, 3
v_lshrrev_b32 v{vT2}, 4, v{vL}
v_xor_b32 v{vT1}, v{vT1}, v{vT2}
v_lshl_add_u32 v{self.vXA[0]}, v{vT1}, 4, v{vT0}
v_xor_b32 v{vT1}, 4, v{vT1}
v_lshl_add_u32 v{self.vXA[1]}, v{vT1}, 4, v{vT0}
""")
    def act_dma(self, c):
        k = Mk(self.a)
        its = []
        for g in range(2):
            its += [k.I(f"s_add_u32 m0, s{self.sLA}, {(c % 2) * 8192 + g * 4096}"),
                    k.I(f"s_add_u32 s{self.sT}, s{self.sA1 if g else self.sA0}, s{self.sCO}")]
            for i in range(4):
                its.append(k.VM(f"buffer_load_dwordx4 v{self.vAD[i]}, s[{self.sACT}:{self.sACT+3}], s{self.sT} offen offset:{i*1024} lds", ("pa", c)))
        return its
    def w_dma(self, c):
        k = Mk(self.a)
        its = [k.I(f"s_add_u32 s{self.sCO}, s{self.sCO}, 128"), k.I(f"s_and_b32 s{self.sCO}, s{self.sCO}, 0x3ff"),
               k.I(f"s_mul_i32 s{self.sWSRC}, s{self.sCO}, s{self.sROWH}"),
               k.I(f"s_add_u32 m0, s{self.sLW}, {(c % 4) * 16384}"),
               k.I(f"s_add_u32 s{self.sWSRC}, s{self.sWSRC}, s{self.sWB}")]
        for i in range(4):
            its.append(k.VM(f"buffer_load_dwordx4 v{self.vWD[i]}, s[{self.sW}:{self.sW+3}], s{self.sWSRC} offen offset:{i*1024} lds", ("pa", c)))
        return its
    def chunk_dmas(self, c):
        return self.w_dma(c) + self.act_dma(c)
    def ar(self, ks, st):
        c = ks >> 1
        return Mk(self.a).LG(f"ds_read_b128 {self.act(ks, st)}, v{self.vXA[ks & 1]} offset:{(c % 2) * 8192 + st * 2048}", ("par", ks, st))
    def wr(self, ks, nt, jj):
        c = ks >> 1
        b = self.wf(ks, nt) + jj * 2
        return Mk(self.a).LG(f"ds_read_b64_tr_b16 v[{b}:{b+1}], v{self.vWA[nt]} offset:{WR + (c % 4) * 16384 + (ks & 1) * 8192 + jj * 1024}", ("pwr", ks, nt))
    def bar_gap(self, c): return 64 * c - self.LEAD - 4
    def build(self, stamp=None):
        a = self.a; k = Mk(a)
        LEAD = self.LEAD
        B = Body(512)
        for m in range(512):
            ks, nt, st0 = m >> 5, (m >> 2) & 7, m & 3
            st = st0 ^ 3 if nt & 1 else st0
            d = self.acc(nt, st); w = self.wf(ks, nt)
            c = "0" if ks == 0 else f"v[{d}:{d+3}]"
            if self.types[nt] == "K": s = f"{MF} v[{d}:{d+3}], v[{w}:{w+3}], {self.act(ks, st)}, {c}"
            else: s = f"{MF} v[{d}:{d+3}], {self.act(ks, st)}, v[{w}:{w+3}], {c}"
            B.mfma[m] = (lambda s=s: a(s))
            if st0 == 0 and nt % 2 == 0: B.put_pre(m, k.WL(("pwr", ks, nt + 1)))
        if stamp is not None: a.stamp(12)
        c1 = self.chunk_dmas(1) if not self.pre1 else []
        for it in c1[:self.N1]: it.fn()
        a.wait_vm(("pa", 0))
        if stamp is not None: a.stamp(13)
        a("s_barrier")
        if stamp is not None: a.stamp(stamp)
        for st in range(4): self.ar(0, st).fn()
        for nt in range(4):
            for jj in range(2): self.wr(0, nt, jj).fn()
        for c in range(8):
            if c > 0:
                g = self.bar_gap(c)
                B.put(g, k.WV(("pa", c)), 0 if not B.gap[g].c[0] else 3)
                B.put(g, k.I("s_barrier"), 3)
                if stamp is not None: B.put(g, Item(lambda c=c: a.stamp(15 + c), 0), 3)
                for st in range(4): B.put(g + 1 + (st >> 1), self.ar(2 * c, st))
            for st in range(4): B.put(max(64 * c - LEAD + 2 + 4 * (st >> 1), st >> 1), self.ar(2 * c + 1, st))
            for ks in (2 * c, 2 * c + 1):
                for nt in range(8):
                    if ks == 0 and nt < 4: continue
                    for jj in range(2):
                        B.put(ks * 32 + nt * 4 - LEAD, self.wr(ks, nt, jj))
        if c1: B.stream(c1[self.N1:], 0, 16, even=False)
        for c in range(6):
            g = self.bar_gap(c) + 3 if c else (16 if c1 else 2)
            s0 = 64 * c + 9 if c else (26 if c1 else 17)
            B.stream(self.w_dma(c + 2), g, s0)
            B.stream(self.act_dma(c + 2), s0, 64 * c + 43)
        return B
```

```python
import re
class Item:
    def __init__(self, fn, cost=4, kind="X"):
        self.fn = fn; self.cost = cost; self.kind = kind

def kind_of(text):
    op = text.split()[0]
    if op.startswith("s_"): return "s"
    if op.startswith("ds_"): return "l"
    if op.startswith(("buffer_", "global_")): return "d"
    if op in ("v_exp_f32", "v_rcp_f32", "v_log_f32") or op.startswith("v_permlane"): return "e"
    return "v"
COST = {"s": 4, "l": 4, "d": 8, "v": 4, "e": 8}

class Gap:
    def __init__(self):
        self.c = [[], [], [], []]
    def used(self, extra=None):
        c = [list(x) for x in self.c]
        if extra: c[extra[0]].append(extra[1])
        u = sum(i.cost for k in (1, 2, 3) for i in c[k])
        if c[0] and any(i.kind == "d" for i in c[1]): u += 4
        return u
    def classes(self, it):
        if it.kind == "s": return ([0] if not self.c[0] else []) + [3]
        if it.kind in "ld": return [1]
        if it.kind in "ve": return [2]
        return [3]

class Body:
    def __init__(self, n, budget=8):
        self.n = n
        self.mfma = [None] * n
        self.pre0 = []
        self.gap = [Gap() for _ in range(n)]
        self.budget = budget
    @property
    def load(self): return [g.used() for g in self.gap]
    def put(self, m, item, cls=None):
        g = self.gap[m]
        if cls is None: cls = g.classes(item)[0]
        g.c[cls].append(item)
        return cls
    def put_pre(self, m, item):
        if m == 0: self.pre0.append(item)
        else: self.put(m - 1, item)
    def put_pre_late(self, m, item):
        if m == 0: self.pre0.append(item)
        else: self.put(m - 1, item, 3)
    def stream(self, items, start, end, even=True):
        n = len(items)
        pos = (start, -1)
        span = end - start
        tot = float(sum(i.cost for i in items)); cum = 0.0
        for k, it in enumerate(items):
            ideal = start + int(span * cum / tot) if even else start
            cum += it.cost
            lo = max(ideal, pos[0])
            hi = min(end, max(lo + 1, start + int(span * cum / tot) + 6))
            best = None
            for g in range(lo, hi):
                for cls in self.gap[g].classes(it):
                    if (g, cls) < pos: continue
                    if (g, cls) == pos and cls == 0: continue
                    before = max(0, self.gap[g].used() - self.budget)
                    after = max(0, self.gap[g].used((cls, it)) - self.budget)
                    add = after - before
                    key = (add, after, g)
                    if best is None or key < best[0]: best = (key, g, cls)
                if best is not None and best[0][0] == 0 and best[0][1] == 0: break
            if best is None:
                g = min(max(pos[0], lo), end - 1); best = (None, g, 3)
            self.gap[best[1]].c[best[2]].append(it)
            pos = (best[1], best[2])
    spread = stream
    def insert_mfma(self, after, fn):
        m = after + 1
        self.mfma.insert(m, fn); self.gap.insert(m, Gap()); self.n += 1
    def est(self):
        return sum(16 + max(0, g.used() - self.budget) for g in self.gap)
    def emit(self, a):
        for it in self.pre0: it.fn()
        for m in range(self.n):
            self.mfma[m]()
            for cl in self.gap[m].c:
                for it in cl: it.fn()

_W = re.compile(r's_waitcnt (vmcnt|lgkmcnt)\((\d+)\)( lgkmcnt\(0\))?$')
def loop_emit(a, gen, nsim=2):
    start = len(a.lines)
    first = None
    lab = a._lab
    nst = len(a.stubs)
    for p in range(nsim):
        a._lab = lab
        del a.stubs[nst:]
        gen()
        seg = a.lines[start:]
        del a.lines[start:]
        if first is None: first = seg
        else:
            assert len(seg) == len(first), "loop passes differ in length %d %d" % (len(seg), len(first))
            for i, (x, y) in enumerate(zip(first, seg)):
                if x != y:
                    mx, my = _W.search(x), _W.search(y)
                    assert mx and my and mx.group(1) == my.group(1), (x, y)
                    if int(my.group(2)) < int(mx.group(2)): first[i] = y
    from asmlib import check_hazards
    for pr in check_hazards(first[-60:] + first[:60], "loop back-edge"): print(pr)
    a.lines.extend(first)

class Mk:
    def __init__(self, a): self.a = a
    def I(self, text):
        k = kind_of(text); return Item(lambda: self.a(text), COST[k], k)
    def LG(self, text, tag): return Item(lambda: self.a.lg(text, tag), 4, "l")
    def VM(self, text, tag): return Item(lambda: self.a.vm(text, tag), 8, "d")
    def WL(self, tag): return Item(lambda: self.a.wait_lg(tag, always=True), 4, "s")
    def WV(self, tag, lg0=False): return Item(lambda: self.a.wait_vm(tag, always=True, lg0=lg0), 4, "s")
    def run(self, items):
        prev = None
        for it in items:
            it.fn()


def code_prefetch(a, start, end, sPC, sT, sWAVE, vL, vT, vDST, tag="cpf"):
    mk = Mk(a)
    L = a.newlabel("CPF")
    def pc():
        a(f"s_getpc_b64 s[{sPC}:{sPC+1}]")
        a.label(L)
        a(f"s_add_u32 s{sPC}, s{sPC}, {start} - {L}")
        a(f"s_addc_u32 s{sPC+1}, s{sPC+1}, 0")
    return [Item(pc, 12, "X"),
            mk.I(f"s_lshr_b32 s{sT}, s2, 3"), mk.I(f"s_lshl_b32 s{sT}, s{sT}, 2"), mk.I(f"s_add_u32 s{sT}, s{sT}, s{sWAVE}"),
            mk.I(f"s_lshl_b32 s{sT}, s{sT}, 10"),
            mk.I(f"v_and_b32 v{vT}, 7, v{vL}"), mk.I(f"v_lshlrev_b32 v{vT}, 7, v{vT}"), mk.I(f"v_add_u32 v{vT}, s{sT}, v{vT}"),
            mk.I(f"v_min_u32 v{vT}, {end} - {start} - 4, v{vT}"),
            mk.VM(f"global_load_dword v{vDST}, v{vT}, s[{sPC}:{sPC+1}]", tag)]
```

```python
import sys
from asmlib import Asm
from k1 import gen_k1
from k2 import gen_k2
from k3 import gen_k3
from k3m import gen_k3m
HEADER = open("concat_heads__compressed_kv_cla__linear_kernel_hedgehog__prompt.s.ref").read().split("; Override launch")[0]
def build(diag, out, k1kw={}, k2kw={}, **k3kw):
    a = Asm()
    a.diag = diag
    gen_k1(a, **k1kw); gen_k2(a, **k2kw); (gen_k3m(a, L2W=(k2kw.get('L2W') == 2), PROG=k2kw.get('PROG', 0)) if k2kw.get('fused3') == 2 else gen_k3(a, **k3kw))
    probs = a.check()
    for p in probs: print(p)
    open(out, "w").write(a.text(HEADER))
    print(out, len(a.lines), "lines", len(probs), "hazards")
if __name__ == "__main__":
    build(True, "all_diag.s")
    build(False, "all.s")
    build(False, "fus.s", k1kw=dict(fused=True), k2kw=dict(fused=True))
    build(True, "fus_diag.s", k1kw=dict(fused=True), k2kw=dict(fused=True))
    M = dict(fused=True, fused3=2, EARLY=1, PROG=1); K1M = dict(fused=True, EARLY=1)
    build(False, "mega.s", k1kw=K1M, k2kw=M)
    build(True, "mega_diag.s", k1kw=K1M, k2kw=M)
    build(False, "v1.s", k1kw=dict(K1M, SWP=1), k2kw=M)
    build(False, "v2.s", k1kw=K1M, k2kw=dict(M, WARM=1, L2W=0))
    build(False, "v3.s", k1kw=K1M, k2kw=dict(M, WARM=1))
```

```python
from asmlib import Asm
from sched import *
from common import *
from phasea import PhaseA, WR, FR, AR
from hedge import *

def gen_k1(a, name="k1_kernel", W0=0, ST="sc1", STL="sc1", MAP=1, WB=0, PT=0, ROT=7, fused=False, CPF=1, EARLY=0, SKIPH=0, SWP=0):
    a.kernel(name, (256,1,1), (256,1,1), 163840, vgpr=256, agpr=256)
    sACT, sW, sWS = 4, 8, 12
    (sWAVE, sRB, sJOB, sSUB, sSCALE, sROW1, sSTB, sWOFF, sA0, sA1, sT0, sT1, sT2, sCNT, sLA, sLW, sSTFIX,
     sWSRC, sROW4, sROWH, sROW8, sWL, sLC, sSPLIT) = range(16, 40)
    sCO, sWB, sA0c, sA1c, sWH, sHU = 92, 93, 94, 95, 96, 97
    sLC3 = sA0c
    a.k1_exit = []
    ACC = 0; WF = 128
    PK = 160
    TM = 192
    vWA = list(range(208, 216)); vXA = [216, 217]
    vAD = [218, 219, 252, 253]; vWD = [220, 221, 254, 255]
    vS = list(range(222, 230))
    vST = [234, 235, 236, 237]
    vDE, vDO = 238, 239
    vL, vT0, vT1, vT2 = 240, 241, 242, 243
    PK2 = 244
    END = a.newlabel("K1_end"); LV = a.newlabel("K1_vtype"); LBKV = a.newlabel("K1_bkv")
    LK = a.newlabel("K1_ktype"); LJ1 = a.newlabel("K1_j1"); LJ2 = a.newlabel("K1_j2"); LJ3 = a.newlabel("K1_j3"); LJD = a.newlabel("K1_jd")
    a(f"""
s_cmp_ge_u32 s2, 256
s_cbranch_scc1 {END}
""")
    a.stamp(14)
    a(f"""
s_load_dwordx4 s[44:47], s[0:1], 8      ; c_kv (44:45)  w_q (46:47)
s_load_dwordx4 s[48:51], s[0:1], 24
s_load_dwordx4 s[52:55], s[0:1], 48     ; B_x (52:53) wqkv (54:55)
s_load_dwordx2 s[56:57], s[0:1], 96     ; ws
s_load_dwordx2 s[58:59], s[0:1], 64     ; w_phi
v_lshrrev_b32 v{vT0}, 6, v0
v_and_b32 v{vL}, 63, v0
v_readfirstlane_b32 s{sWAVE}, v{vT0}
s_lshr_b32 s{sT1}, s2, 3                ; q
s_and_b32 s{sRB}, s2, 1
s_lshl_b32 s{sRB}, s{sRB}, 2
s_and_b32 s{sT0}, s{sT1}, 3
s_add_u32 s{sRB}, s{sRB}, s{sT0}
s_lshr_b32 s{sT1}, s{sT1}, 2
""")
    if MAP == 0:
        a(f"""
s_and_b32 s{sJOB}, s2, 6
s_lshl_b32 s{sJOB}, s{sJOB}, 2
s_add_u32 s{sJOB}, s{sJOB}, s{sT1}
""")
    else:
        if SWP: a(f"""
s_cmp_lt_u32 s{sT1}, 2
s_cselect_b32 s{sT0}, 1, 0
s_xor_b32 s{sT1}, s{sT1}, s{sT0}
""")
        a(f"""
s_and_b32 s{sT0}, s2, 6
s_mul_i32 s{sJOB}, s{sT0}, 3
s_add_u32 s{sJOB}, s{sJOB}, s{sT1}
s_add_u32 s{sT0}, s{sT0}, s{sT1}
s_add_u32 s{sT0}, s{sT0}, 18
s_cmp_ge_u32 s{sT1}, 6
s_cselect_b32 s{sJOB}, s{sT0}, s{sJOB}
""")
    a(f"""
s_lshl_b32 s63, s{sJOB}, 3
s_add_u32 s63, s63, s{sRB}
s_lshl_b32 s99, s63, 7
s_lshl_b32 s{sSTFIX}, s{sRB}, 16
s_lshl_b32 s{sT0}, s{sWAVE}, 14
s_add_u32 s{sSTFIX}, s{sSTFIX}, s{sT0}
s_mov_b32 s{sWS+2}, {WS_USED}
s_mov_b32 s{sWS+3}, 0x20000
s_mov_b32 s{sACT+2}, 0x200000
s_mov_b32 s{sACT+3}, 0x20000
s_mov_b32 s{sW+3}, 0x20000
s_mov_b32 s{sSCALE}, {hex(f2u(CSCALE))}
s_cmp_ge_u32 s{sJOB}, 12
s_cselect_b32 s{sT0}, 12, 0
s_cselect_b32 s{sT2}, {VWS}, 0
s_cselect_b32 s{sSCALE}, {hex(f2u(2.0 ** VEXP))}, s{sSCALE}
s_sub_u32 s{sSUB}, s{sJOB}, s{sT0}
s_add_u32 s{sSTB}, s{sSTFIX}, s{sT2}
s_mul_i32 s{sT0}, s{sSUB}, 43
s_lshr_b32 s{sT0}, s{sT0}, 7             ; j/3
s_mul_i32 s{sT2}, s{sT0}, 3
s_sub_u32 s{sT2}, s{sSUB}, s{sT2}        ; j%3
s_lshl_b32 s{sT0}, s{sT0}, 5
s_lshl_b32 s{sT2}, s{sT2}, 3
s_lshr_b32 s{sSUB}, 0x160c00, s{sT2}
s_and_b32 s{sSUB}, s{sSUB}, 0xff
s_add_u32 s{sSUB}, s{sSUB}, s{sT0}
s_lshr_b32 s{sHU}, 0x1f0b0a, s{sT2}
s_and_b32 s{sHU}, s{sHU}, 0xff
s_add_u32 s{sHU}, s{sHU}, s{sT0}
s_lshl_b32 s{sWOFF}, s{sSUB}, 6
s_sub_u32 s{sT0}, s{sJOB}, 24
s_lshl_b32 s{sT2}, s{sT0}, 7
s_add_u32 s{sT2}, s{sT2}, 1024           ; k section
s_mov_b32 s{sW+2}, 0x400000
s_mov_b32 s{sROW1}, 8192
s_cmp_ge_u32 s{sJOB}, 24
s_cselect_b32 s{sSUB}, s{sT0}, s{sSUB}
s_cselect_b32 s{sWOFF}, s{sT2}, s{sWOFF}
s_cselect_b32 s{sSTFIX}, s{sSTFIX}, s{sSTB}
s_cselect_b32 s{sW+2}, 0x180000, s{sW+2}
s_cselect_b32 s{sROW1}, 3072, s{sROW1}
s_cselect_b32 s{sSPLIT}, 896, 0
s_lshl_b32 s{sROW4}, s{sROW1}, 2
s_lshr_b32 s{sROWH}, s{sROW1}, 1
s_lshl_b32 s{sROW8}, s{sROW1}, 3
s_lshl_b32 s{sCO}, s{sRB}, 1
s_add_u32 s{sCO}, s{sCO}, s{sT1}
s_and_b32 s{sCO}, s{sCO}, {ROT}      ; rotation
s_add_u32 s{sT0}, s{sCO}, s{sWAVE}
s_and_b32 s{sT0}, s{sT0}, 7
s_lshl_b32 s{sT0}, s{sT0}, 6
s_mul_i32 s{sWL}, s{sT0}, s{sROW1}
s_xor_b32 s{sT0}, s{sT0}, 256
s_mul_i32 s{sWH}, s{sT0}, s{sROW1}
s_lshl_b32 s{sCO}, s{sCO}, 7
s_sub_u32 s{sCO}, s{sCO}, 128
s_lshl_b32 s{sA0}, s{sRB}, 18
s_lshl_b32 s{sT0}, s{sWAVE}, 16
s_add_u32 s{sA0}, s{sA0}, s{sT0}
s_add_u32 s{sA1}, s{sA0}, 32768
s_lshl_b32 s{sLA}, s{sWAVE}, 14
s_add_u32 s{sLA}, s{sLA}, {AR}
s_lshl_b32 s{sLW}, s{sWAVE}, 12
s_add_u32 s{sLW}, s{sLW}, {WR}
s_lshl_b32 s{sLC}, s{sWAVE}, 13
s_mov_b32 s{sLC3}, s{sLC}
s_lshl_b32 s{sT0}, s{sWAVE}, 4
s_mul_i32 s{sWB}, s{sT0}, s{sROW1}
s_add_u32 s{sWB}, s{sWB}, s{sWOFF}
""")
    def mkpa(types):
        return PhaseA(a, ACC, WF, vWA, vXA, vAD, vWD, sACT, sW, sA0, sA1, sWSRC, sROW4, sROWH, sLA, sLW, sT2, types, sCO, sWB, sA0c, sA1c)
    pa = mkpa("K" * 8)
    mk = Mk(a)
    pa.setup_dma(vL, vT0, vT1, vT2, sROW1, split=sSPLIT)
    a(f"""
s_cmp_ge_u32 s{sJOB}, 12
s_waitcnt lgkmcnt(0)
s_cselect_b64 s[{sW}:{sW+1}], s[50:51], s[48:49]
s_cmp_ge_u32 s{sJOB}, 24
s_cselect_b64 s[{sW}:{sW+1}], s[54:55], s[{sW}:{sW+1}]
s_cselect_b64 s[{sACT}:{sACT+1}], s[52:53], s[44:45]
""")
    a.stamp(0); a.stamp(1, real=True)
    for it in pa.chunk_dmas(0): it.fn()
    a(f"""
s_mov_b32 s{sWS}, s56
s_mov_b32 s{sWS+1}, s57
s_load_dwordx2 s[44:45], s[0:1], 0
""")
    a.stamp(11)
    pa.setup_read(vL, vT0, vT1, vT2)
    a(f"""
v_lshrrev_b32 v{vT0}, 3, v{vL}
v_mul_lo_u32 v{vT0}, v{vT0}, s{sROW1}
v_and_b32 v{vT1}, 7, v{vL}
v_bfe_u32 v{vT2}, v{vL}, 4, 1
v_lshlrev_b32 v{vT2}, 1, v{vT2}
v_xor_b32 v{vT1}, v{vT1}, v{vT2}
v_lshl_add_u32 v{vDE}, v{vT1}, 4, v{vT0}
v_xor_b32 v{vT1}, 4, v{vT1}
v_lshl_add_u32 v{vDO}, v{vT1}, 4, v{vT0}
v_lshrrev_b32 v{vT0}, 4, v{vL}              ; kq
v_bfe_u32 v{vT1}, v{vL}, 2, 2               ; r
v_lshl_add_u32 v{vT2}, v{vT0}, 3, v{vT1}
v_lshlrev_b32 v{vT2}, 7, v{vT2}             ; (kq*8+r)*128
v_and_b32 v{vT0}, 1, v{vT0}
v_lshrrev_b32 v{vT1}, 1, v{vT1}
v_lshl_add_u32 v{vT1}, v{vT0}, 1, v{vT1}    ; f
v_and_b32 v{vT0}, 3, v{vL}
v_lshl_add_u32 v{vT2}, v{vT0}, 3, v{vT2}
""")
    for nt in range(4):
        a(f"v_xor_b32 v{vT0}, {nt}, v{vT1}")
        a(f"v_lshl_add_u32 v{vS[nt]}, v{vT0}, 5, v{vT2}")
        a(f"v_add_u32 v{vS[4+nt]}, 0x10000, v{vS[nt]}")
    a(f"v_lshlrev_b32 v{vST[0]}, 4, v{vL}")
    for k in range(1, 4):
        a(f"v_add_u32 v{vST[k]}, {4096*k}, v{vST[0]}")
    a(f"""
s_add_u32 s{sWOFF}, s{sWOFF}, 256
s_cmp_lg_u32 s{sWAVE}, 0
s_cbranch_scc1 K1_noclear
s_lshl_b32 s{sT0}, s2, 7
s_add_u32 s{sT0}, s{sT0}, {FLAGS}
v_mov_b32 v{vT0}, 0
v_lshlrev_b32 v{vT1}, 15, v{vL}
s_mov_b64 exec, 7
buffer_store_dword v{vT0}, v{vT1}, s[{sWS}:{sWS+3}], s{sT0} offen sc1
s_mov_b64 exec, -1
K1_noclear:
""")
    if CPF:
        for it in code_prefetch(a, LK, "K2_after" if fused else "K1_code_end", 62, sT0, sWAVE, vL, vT0, 245): it.fn()
    if CPF > 1:
        for it in code_prefetch(a, "K1_code_end", "K3_code_end", 62, sT0, sWAVE, vL, vT0, 245): it.fn()
    def cleared():
        if not fused: return
        L = a.newlabel("K1_cnt")
        a(f"""
s_cmp_lg_u32 s{sWAVE}, 0
s_cbranch_scc1 {L}
s_load_dwordx2 s[88:89], s[0:1], 88
s_mov_b32 s90, 256
s_mov_b32 s91, 0x20000
v_mov_b32 v{vT0}, 1
v_mov_b32 v{vT1}, 0
s_waitcnt lgkmcnt(0)
s_mov_b64 exec, 1
buffer_atomic_add v{vT0}, v{vT1}, s[88:91], 0 offen sc1
s_mov_b64 exec, -1
{L}:
""")
    def touch(bufs, tag):
        a(f"""
s_lshl_b32 s{sT0}, s2, 2
s_add_u32 s{sT0}, s{sT0}, s{sWAVE}
s_mov_b32 s91, 0x20000
""")
        for ptr, size in bufs:
            lg = (size - 1).bit_length() - 10
            a(f"v_and_b32 v{vT0}, {(1 << (lg - 7)) - 1}, v{vL}")
            a(f"v_lshlrev_b32 v{vT0}, 7, v{vT0}")
            a(f"s_lshl_b32 s{sT2}, s{sT0}, {lg}")
            a(f"s_mov_b32 s88, s{ptr}")
            a(f"s_mov_b32 s89, s{ptr+1}")
            a(f"s_mov_b32 s90, {size}")
            a.vm(f"buffer_load_dword v245, v{vT0}, s[88:91], s{sT2} offen", tag)
    def warm0():
        touch(((44, 0x200000), (48, 0x400000), (50, 0x400000), (52, 0x200000), (54, 0x180000)), "warm")
    if W0 == 2: warm0()
    if W0 == 1: warm0()
    a(f"""
s_cmp_ge_u32 s{sJOB}, 24
s_cbranch_scc1 {LBKV}
s_cmp_ge_u32 s{sJOB}, 12
s_cbranch_scc1 {LV}
""")
    state0 = (list(a.vmq), list(a.lgq))
    vTW = 244
    a.stamp0 = 12
    def acc(buf, nt, st): return ACC + (buf * 16 + nt * 4 + st) * 4
    def wf(ks, nt): return WF + ((ks % 2) * 4 + nt) * 4
    SLOT = [65536, 0, 32768, 98304]
    def tr_item(pair, ks, nt, jj, SL=SLOT):
        hi, k8 = ks >> 3, ks & 7
        sb = SL[2 * pair + hi]
        reg = vS[(sb >> 16) * 4 + nt]; off = (sb & 0xffff) + k8 * 4096 + jj * 512
        b = wf(ks, nt) + jj * 2
        return mk.LG(f"ds_read_b64_tr_b16 v[{b}:{b+1}], v{reg} offset:{off}", ("wf", ks % 2, nt))
    def slot_dma(slot, SL=SLOT):
        hi = slot & 1
        its = []
        for i in range(8):
            its.append(mk.I(f"s_add_u32 m0, s{sLC3 if slot == 3 else sLC}, {SL[slot] + i * 1024}"))
            if i == 0: its.append(mk.I(f"s_add_u32 s{sT1}, s{sWOFF}, s{sWH if hi else sWL}"))
            else: its.append(mk.I(f"s_add_u32 s{sT1}, s{sT1}, s{sROW8}"))
            its.append(mk.VM(f"buffer_load_dwordx4 v{vDE if i % 2 == 0 else vDO}, s[{sW}:{sW+3}], s{sT1} offen lds", ("w", slot)))
        if hi: its.append(mk.I(f"s_add_u32 s{sWOFF}, s{sWOFF}, 128"))
        return its
    def epi_items(typ, buf, units=(0, 1), packed=False, st=None):
        items = []
        d = 12
        for u in units:
            items += [mk.I(t) for t in (f"s_lshr_b32 s{sSTB}, s{sSUB}, 2", f"s_lshl_b32 s{sSTB}, s{sSTB}, 19", f"s_and_b32 s{sT0}, s{sSUB}, 3",
                                       f"s_lshl_b32 s{sT0}, s{sT0}, {d}", f"s_add_u32 s{sSTB}, s{sSTB}, s{sT0}",
                                       f"s_add_u32 s{sSTB}, s{sSTB}, s{sSTFIX}", f"s_add_u32 s{sSUB}, s{sSUB}, 1")]
            for x in range(4):
                n = u * 4 + x
                pk = PK + n * 4
                for j in range(4):
                    if typ == "K": r = acc(buf, 2 * u + (j >> 1), x) + (j & 1) * 2
                    else: r = acc(buf, 2 * u + (x & 1), (x >> 1) * 2 + (j >> 1)) + (j & 1) * 2
                    if True:
                        t = TM + ((n * 4 + j) % 8) * 2
                        if packed: items.append(mk.I(f"v_pk_mul_f32 v[{t}:{t+1}], v[{r}:{r+1}], s[{sSCALE}:{sSCALE+1}] op_sel_hi:[1,0]"))
                        else:
                            items.append(mk.I(f"v_mul_f32 v{t}, s{sSCALE}, v{r}"))
                            items.append(mk.I(f"v_mul_f32 v{t+1}, s{sSCALE}, v{r+1}"))
                        items.append(mk.I(f"v_cvt_pk_bf16_f32 v{pk+j}, v{t}, v{t+1}"))
                    else:
                        items.append(mk.I(f"v_cvt_pk_bf16_f32 v{pk+j}, v{r}, v{r+1}"))
                vo, off = vST[0], x * 1024
                items.append(mk.VM(f"buffer_store_dwordx4 v[{pk}:{pk+3}], v{vo}, s[{sWS}:{sWS+3}], s{sSTB} offen offset:{off} {ST if st is None else st}", "st"))
        return items
    def put_bar(B, g, tag, lg0=False):
        B.put(g, mk.WV(tag, lg0=lg0)); B.put(g, mk.I("s_barrier"), 3)
    def next_phase():
        its = [mk.I(t) for t in f"""s_mov_b32 s{sACT}, s44
s_mov_b32 s{sACT+1}, s45
s_mov_b32 s{sW}, s46
s_mov_b32 s{sW+1}, s47
s_mov_b32 s{sW+2}, 0x400000
s_bfe_u32 s{sT1}, s2, 0x30003
s_lshl_b32 s{sA1}, s{sT1}, 2
s_add_u32 s{sA1}, s{sA1}, s{sWAVE}
s_lshl_b32 s{sA1}, s{sA1}, 15
s_sub_u32 s{sT1}, 15, s{sT1}
s_lshl_b32 s{sA0}, s{sT1}, 2
s_add_u32 s{sA0}, s{sA0}, s{sWAVE}
s_lshl_b32 s{sA0}, s{sA0}, 15
s_and_b32 s{sWB}, s2, 7
s_lshl_b32 s{sWB}, s{sWB}, 2
s_lshr_b32 s{sT1}, s2, 6
s_add_u32 s{sWB}, s{sWB}, s{sT1}
s_lshl_b32 s{sWB}, s{sWB}, 8
s_lshl_b32 s{sT1}, s{sWAVE}, 17
s_add_u32 s{sWB}, s{sWB}, s{sT1}
s_mov_b32 s{sROWH}, 4096
s_mov_b32 s{sCO}, -128""".split("\n")]
        return its, pa.chunk_dmas(0) + (pa.chunk_dmas(1) if EARLY == 1 else [])
    def ptr_loads():
        a("""
s_load_dwordx2 s[88:89], s[0:1], 40     ; w_o
s_load_dwordx2 s[92:93], s[0:1], 72     ; wo
s_load_dwordx2 s[52:53], s[0:1], 88     ; debug
""")
    LEAD = 12
    def mf(typ, d, w, ks, st):
        c = "0" if ks == 0 else f"v[{d}:{d+3}]"
        if typ == "K": s = f"{MF} v[{d}:{d+3}], v[{w}:{w+3}], {pa.act(ks, st)}, {c}"
        else: s = f"{MF} v[{d}:{d+3}], {pa.act(ks, st)}, v[{w}:{w+3}], {c}"
        return lambda: a(s)
    def body(typ, buf, SL=SLOT, epi=True, dma=True, nxt=True, extra=None):
        B = Body(256)
        for m in range(256):
            ks, nt, st = m >> 4, (m >> 2) & 3, m & 3
            sn = st ^ 3 if nt & 1 else st
            B.mfma[m] = mf(typ, acc(buf, nt, sn), wf(ks, nt), ks, sn)
            if st == 0 and nt % 2 == 0: B.put_pre(m, mk.WL(("wf", ks % 2, nt + 1)))
        for idx in range(LEAD // 4, 64 + (LEAD // 4 if nxt else 0)):
            ks, nt = idx >> 2, idx & 3
            g = idx * 4 - LEAD
            if idx == 32: put_bar(B, g - 2, ("w", 2 * buf + 1), lg0=(EARLY and buf == 0 and dma))
            if idx == 64: put_bar(B, g - 2, ("w", 2 * (1 - buf)))
            for jj in range(2):
                B.put(g, tr_item(buf, ks, nt, jj, SL) if ks < 16 else tr_item(1 - buf, ks - 16, nt, jj, SL))
        if dma:
            B.stream(slot_dma(2 * (1 - buf), SL), 0, 26)
            B.stream(slot_dma(2 * (1 - buf) + 1, SL), 128 - LEAD, 154 - LEAD)
        if epi:
            B.stream(epi_items(typ, 1 - buf, (0,)), 14, 110)
            B.stream(epi_items(typ, 1 - buf, (1,)), 132, 236)
        if extra: B.stream(extra, 28, 236)
        B.emit(a)
    def kv_warm():
        its = [mk.WL(("none",))] + [mk.I(t) for t in f"""s_lshl_b32 s{sA0}, s2, 2
s_add_u32 s{sA0}, s{sA0}, s{sWAVE}
s_lshl_b32 s{sA0}, s{sA0}, 11
s_lshl_b32 s{sA1}, s{sA0}, 1
s_mov_b32 s{sACT}, s44
s_mov_b32 s{sACT+1}, s45
s_mov_b32 s56, s46
s_mov_b32 s57, s47
s_mov_b32 s58, 0x400000
s_mov_b32 s59, 0x20000
v_and_b32 v244, 31, v{vL}
v_lshlrev_b32 v244, 7, v244""".split("\n")]
        its[0] = Item(lambda: (a("s_waitcnt lgkmcnt(0)"), a.lgq.clear()), 4, "s")
        its.append(mk.VM(f"buffer_load_dword v245, v244, s[56:59], s{sA1} offen", "warm"))
        its.append(mk.I(f"v_and_b32 v244, 0x7ff, v244"))
        its.append(mk.VM(f"buffer_load_dword v245, v244, s[{sACT}:{sACT+3}], s{sA0} offen", "warm"))
        return its
    def half_body(typ, buf):
        B = Body(128)
        for m in range(128):
            ks, nt, st = m >> 3, (m >> 2) & 1, m & 3
            sn = st ^ 3 if nt & 1 else st
            B.mfma[m] = mf(typ, acc(buf, nt, sn), wf(ks, nt), ks, sn)
            if st == 0: B.put_pre(m, mk.WL(("wf", ks % 2, nt)))
        HSL = SLOT[:3] + [SLOT[0] if EARLY else SLOT[3]]
        for jj in range(2): tr_item(buf, 1, 0, jj).fn()
        for idx in range(3, 32):
            ks, nt = idx >> 1, idx & 1
            g = idx * 4 - 12
            if idx == 16: put_bar(B, g - 2, ("w", 2 * buf + 1))
            for jj in range(2): B.put(g, tr_item(buf, ks, nt, jj, HSL))
        if EARLY:
            su, dm = next_phase()
            B.stream(su, 4, 50); B.stream(dm, 51, 126)
        B.stream(epi_items(typ, 1 - buf, st=STL), 8, 124)
        B.emit(a)
    vWX = 244
    def warm():
        a(f"""
s_sub_u32 s{sT0}, s{sJOB}, 24
s_lshl_b32 s{sT0}, s{sT0}, 3
s_add_u32 s{sT0}, s{sT0}, s{sRB}
s_lshl_b32 s{sT0}, s{sT0}, 2
s_add_u32 s{sT0}, s{sT0}, s{sWAVE}
v_lshlrev_b32 v{vWX}, 7, v{vL}
s_mov_b32 s88, s46
s_mov_b32 s89, s47
s_mov_b32 s90, 0x400000
s_mov_b32 s91, 0x20000
s_lshl_b32 s{sA1}, s{sT0}, 14
s_lshl_b32 s{sA0}, s{sT0}, 13
s_waitcnt lgkmcnt(0)
s_mov_b32 s{sACT}, s44
s_mov_b32 s{sACT+1}, s45
""")
        def tq():
            a.vm(f"buffer_load_dword v245, v{vWX}, s[88:91], s{sA1} offen", "warm")
            a(f"s_add_u32 s{sA1}, s{sA1}, 8192")
        def tx():
            a.vm(f"buffer_load_dword v245, v{vWX}, s[{sACT}:{sACT+3}], s{sA0} offen", "warm")
        no = lambda: None
        return [tx, tq, tq, no]
    def path(typ):
        a.vmq, a.lgq = list(state0[0]), list(state0[1])
        p = mkpa(typ * 8)
        if PT:
            a(f"""
s_sub_u32 s{sT0}, s{sJOB}, {0 if typ == "K" else 12}
s_lshl_b32 s{sT0}, s{sT0}, 3
s_add_u32 s{sT0}, s{sT0}, s{sRB}
s_lshl_b32 s{sT0}, s{sT0}, 2
s_add_u32 s{sT0}, s{sT0}, s{sWAVE}
s_mul_i32 s{sT0}, s{sT0}, {11*128}
v_min_u32 v{vTW}, 10, v{vL}
v_lshlrev_b32 v{vTW}, 7, v{vTW}
v_add_u32 v{vTW}, s{sT0}, v{vTW}
""")
        B = p.build(stamp=2)
        if PT:
            for c in range(8):
                B.stream([mk.I(f"s_mov_b32 s{sT0}, {((c + PT + 2) & 7) * 0x80000}"),
                          mk.VM(f"buffer_load_dword v245, v{vTW}, s[{sW}:{sW+3}], s{sT0} offen", "pt")], 64 * c + 43, 64 * c + 47)
        B.stream(slot_dma(0), p.bar_gap(6) + 3, p.bar_gap(6) + 50)
        B.stream(slot_dma(1), p.bar_gap(7) + 3, p.bar_gap(7) + 50)
        if SKIPH: B.stream(kv_warm(), p.bar_gap(7) + 50, 511)
        B.emit(a)
        a.stamp(3)
        cleared()
        a("s_nop 3")
        for it in epi_items(typ, 0, packed=True): it.fn()
        a.wait_vm(("w", 0)); a("s_barrier")
        for idx in range(LEAD // 4):
            for jj in range(2): tr_item(0, idx >> 2, idx & 3, jj).fn()
        a.stamp(4)
        LOOP = a.newlabel("K1_loop"); DONE = a.newlabel("K1_done")
        a(f"s_mov_b32 s{sCNT}, 0")
        a.label(LOOP)
        mid = []
        def it():
            body(typ, 0)
            a.stamp(7)
            a(f"s_cmp_eq_u32 s{sCNT}, 1")
            a(f"s_cbranch_scc1 {DONE}")
            mid[:] = [list(a.vmq), list(a.lgq)]
            if a.diag: a("s_mov_b32 s69, s71")
            body(typ, 1)
            a.stamp(6)
            a(f"s_mov_b32 s{sCNT}, 1")
            a(f"s_lshl_b32 s{sWOFF}, s{sHU}, 6")
            if EARLY: a(f"s_sub_u32 s{sLC3}, s{sLC}, {SLOT[3] - SLOT[0]}")
            if SKIPH:
                a(f"s_and_b32 s{sT0}, s{sHU}, 31")
                a(f"s_cmp_eq_u32 s{sT0}, 31")
                a(f"s_cselect_b32 s{sW+2}, 0, s{sW+2}")
            a(f"v_and_b32 v{vDE}, 0xffffffbf, v{vDE}")
            a(f"v_and_b32 v{vDO}, 0xffffffbf, v{vDO}")
        loop_emit(a, it)
        a(f"s_branch {LOOP}")
        a.label(DONE)
        a.vmq, a.lgq = list(mid[0]), list(mid[1])
        if SKIPH:
            LH = a.newlabel("K1_h")
            a(f"s_and_b32 s{sT0}, s{sHU}, 31")
            a(f"s_cmp_lg_u32 s{sT0}, 31")
            a(f"s_cbranch_scc1 {LH}")
            su, dm = next_phase()
            for it in su: it.fn()
            a("s_waitcnt lgkmcnt(0)"); a("s_barrier")
            for it in dm: it.fn()
            ptr_loads()
            for itm in epi_items(typ, 0, packed=True, st=STL): itm.fn()
            a.stamp(12); a.stamp(8); a.stamp(9); a.stamp(10, real=True)
            a.stamp_flush(sWS, sWAVE, 24, DIAG)
            a.k1_exit.append(list(a.vmq))
            a("s_branch K2_fused_entry")
            a.label(LH)
            a.vmq, a.lgq = list(mid[0]), list(mid[1])
        half_body(typ, 1)
        a.stamp(12)
        a(f"s_mov_b32 s{sSUB}, s{sHU}")
        if EARLY: ptr_loads()
        a("s_nop 3")
        for itm in epi_items(typ, 1, (0,), packed=True, st=STL): itm.fn()
        a.stamp(8)
        if a.diag and not fused: a("s_waitcnt vmcnt(0)")
        a.stamp(9); a.stamp(10, real=True)
        a.stamp_flush(sWS, sWAVE, 24, DIAG)
        a.k1_exit.append(list(a.vmq))
        a("s_branch K2_fused_entry" if fused else "s_endpgm")
    a.label(LK)
    path("K")
    a.label(LV)
    path("V")
    a.label(LBKV)
    a.vmq, a.lgq = list(state0[0]), list(state0[1])
    sPHI = 40; sLOG2E = 60; sRET = 62
    sHM = [48, 50, 52, 54]
    WPH = 192
    vPH, vPW, vPR, vVW, vZ, vONE = 246, 247, 248, 249, 250, 252
    vPW2, vPR2, vVR = 230, 231, 232
    BSL = [0, 32768, 65536, 98304]
    a(f"""
s_mov_b32 s{sPHI}, s58
s_mov_b32 s{sPHI+1}, s59
s_mov_b32 s{sPHI+2}, 16384
s_mov_b32 s{sPHI+3}, 0x20000
s_mov_b32 s{sLOG2E}, {hex(f2u(LOG2E))}
s_sub_u32 s{sWOFF}, s{sWOFF}, 1280
v_and_b32 v{vT0}, 15, v{vL}
v_lshrrev_b32 v{vT1}, 4, v{vL}
v_bfe_u32 v{vT2}, v{vL}, 2, 2                  ; hq
v_cmp_eq_u32 s[{sHM[0]}:{sHM[0]+1}], 0, v{vT2}
v_cmp_eq_u32 s[{sHM[1]}:{sHM[1]+1}], 1, v{vT2}
v_cmp_eq_u32 s[{sHM[2]}:{sHM[2]+1}], 2, v{vT2}
v_cmp_eq_u32 s[{sHM[3]}:{sHM[3]+1}], 3, v{vT2}
v_and_b32 v{vPH}, 3, v{vL}
v_lshlrev_b32 v{vPH}, 1, v{vPH}
v_lshl_add_u32 v{vPH}, v{vT1}, 7, v{vPH}
v_lshl_add_u32 v{vPH}, v{vT2}, 9, v{vPH}
v_lshlrev_b32 v{vPW}, 6, v{vT0}
v_lshl_add_u32 v{vPW}, v{vT1}, 14, v{vPW}
s_lshl_b32 s{sT0}, s{sWAVE}, 12
s_add_u32 s{sT0}, s{sT0}, {AR}
v_add_u32 v{vPW}, s{sT0}, v{vPW}
v_lshlrev_b32 v{vPW2}, 4, v{vT0}
v_lshl_add_u32 v{vPW2}, v{vT1}, 17, v{vPW2}
v_lshl_add_u32 v{vT2}, v{vT1}, 2, v{vT2}
v_lshlrev_b32 v{vPR}, 6, v{vT2}
v_and_b32 v{vT2}, 3, v{vL}
v_lshl_add_u32 v{vPR}, v{vT2}, 4, v{vPR}
v_add_u32 v{vPR}, s{sLA}, v{vPR}
v_lshlrev_b32 v{vZ}, 4, v{vT1}
s_add_u32 s{sT0}, s{sLC}, {FR}
v_add_u32 v{vVW}, s{sT0}, v{vST[0]}
s_lshl_b32 s{sT0}, s{sWAVE}, 10
s_add_u32 s{sT0}, s{sT0}, {FR}
v_add_u32 v{vVR}, s{sT0}, v{vST[0]}
""")
    VFR, AW = 128, 160
    X, EP, EM, PHO, MX, NF = 64, 80, 96, 112, 128, 136
    LSM = a.newlabel("K1_sm16")
    def pack_nf(st):
        for kp in range(2):
            for j in range(4):
                r = acc(0, 2 * kp + (j >> 1), st) + (j & 1) * 2
                a(f"v_cvt_pk_bf16_f32 v{NF+kp*4+j}, v{r}, v{r+1}")
    def pk_mfma():
        for kp in range(2):
            for i in range(4):
                c = "0" if kp == 0 else f"v[{X+i*4}:{X+i*4+3}]"
                a(f"{MF} v[{X+i*4}:{X+i*4+3}], v[{AW+i*8+kp*4}:{AW+i*8+kp*4+3}], v[{NF+kp*4}:{NF+kp*4+3}], {c}")
    def feature_map(out, ts):
        pack_nf(0); a("s_nop 1"); pk_mfma()
        for st in range(4):
            ts.pop(0)()
            pack_nf(min(st + 1, 3))
            a(f"s_call_b64 s[{sRET}:{sRET+1}], {LSM}")
            out(st)
    def sm16():
        a.label(LSM)
        x = X
        a(f"v_max3_f32 v{MX}, v{x}, v{x+1}, v{x+2}")
        a(f"v_min3_f32 v{MX+1}, v{x}, v{x+1}, v{x+2}")
        for k in range(3, 15, 2):
            a(f"v_max3_f32 v{MX}, v{MX}, v{x+k}, v{x+k+1}")
            a(f"v_min3_f32 v{MX+1}, v{MX+1}, v{x+k}, v{x+k+1}")
        a(f"v_max_f32 v{MX}, v{MX}, v{x+15}")
        a(f"v_min_f32 v{MX+1}, v{MX+1}, v{x+15}")
        a(f"v_pk_mul_f32 v[{MX}:{MX+1}], v[{MX}:{MX+1}], s[{sLOG2E}:{sLOG2E+1}] op_sel_hi:[1,0]")
        for k in range(0, 16, 2):
            a(f"v_pk_fma_f32 v[{EP+k}:{EP+k+1}], v[{x+k}:{x+k+1}], s[{sLOG2E}:{sLOG2E+1}], v[{MX}:{MX+1}] op_sel_hi:[1,0,0] neg_lo:[0,0,1] neg_hi:[0,0,1]")
            a(f"v_pk_fma_f32 v[{EM+k}:{EM+k+1}], v[{x+k}:{x+k+1}], s[{sLOG2E}:{sLOG2E+1}], v[{MX}:{MX+1}] op_sel:[0,0,1] op_sel_hi:[1,0,1] neg_lo:[1,0,0] neg_hi:[1,0,0]")
        n = 0
        for k in range(16):
            if k % 2 == 0:
                kp, i = n >> 2, n & 3; n += 1
                c = "0" if kp == 0 else f"v[{X+i*4}:{X+i*4+3}]"
                a(f"{MF} v[{X+i*4}:{X+i*4+3}], v[{AW+i*8+kp*4}:{AW+i*8+kp*4+3}], v[{NF+kp*4}:{NF+kp*4+3}], {c}")
            a(f"v_exp_f32 v{EP+k}, v{EP+k}")
            a(f"v_exp_f32 v{EM+k}, v{EM+k}")
        SP, SM = MX + 2, MX + 4
        a(f"v_pk_add_f32 v[{SP}:{SP+1}], v[{EP}:{EP+1}], v[{EP+2}:{EP+3}]")
        a(f"v_pk_add_f32 v[{SM}:{SM+1}], v[{EM}:{EM+1}], v[{EM+2}:{EM+3}]")
        for k in range(4, 16, 2):
            a(f"v_pk_add_f32 v[{SP}:{SP+1}], v[{SP}:{SP+1}], v[{EP+k}:{EP+k+1}]")
            a(f"v_pk_add_f32 v[{SM}:{SM+1}], v[{SM}:{SM+1}], v[{EM+k}:{EM+k+1}]")
        a(f"v_add_f32 v{SP}, v{SP}, v{SP+1}")
        a(f"v_add_f32 v{SM}, v{SM}, v{SM+1}")
        a(f"v_rcp_f32 v{SP}, v{SP}")
        a(f"v_rcp_f32 v{SM}, v{SM}")
        a("s_nop 0")
        for k in range(0, 16, 2):
            a(f"v_pk_mul_f32 v[{EP+k}:{EP+k+1}], v[{EP+k}:{EP+k+1}], v[{SP}:{SP+1}] op_sel_hi:[1,0]")
            a(f"v_pk_mul_f32 v[{EM+k}:{EM+k+1}], v[{EM+k}:{EM+k+1}], v[{SM}:{SM+1}] op_sel_hi:[1,0]")
        for k in range(8):
            a(f"v_cvt_pk_bf16_f32 v{PHO+(k>>1)*4+(k&1)}, v{EP+2*k}, v{EP+2*k+1}")
            a(f"v_cvt_pk_bf16_f32 v{PHO+(k>>1)*4+2+(k&1)}, v{EM+2*k}, v{EM+2*k+1}")
        a(f"s_setpc_b64 s[{sRET}:{sRET+1}]")
    def post(ts):
        a.lgq = []
        for u in range(2):
            for hd in range(4):
                f = VFR + (u * 4 + hd) * 4
                for j in range(4):
                    r = acc(1, hd, 2 * u + (j >> 1)) + (j & 1) * 2
                    a(f"v_cvt_pk_bf16_f32 v{f+j}, v{r}, v{r+1}")
                a(f"ds_write_b128 v{vVW}, v[{f}:{f+3}] offset:{(u*4+hd)*1024}")
        for i in range(4):
            a(f"v_lshl_or_b32 v{WPH+i*4}, v{WPH+i*4+1}, 16, v{WPH+i*4}")
            a(f"v_lshl_or_b32 v{WPH+i*4+1}, v{WPH+i*4+3}, 16, v{WPH+i*4+2}")
        for i in range(4):
            for hq in range(4):
                for e in range(2):
                    a(f"v_cndmask_b32 v{AW+i*8+hq*2+e}, 0, v{WPH+i*4+e}, s[{sHM[hq]}:{sHM[hq]+1}]")
        a("s_waitcnt lgkmcnt(0)")
        def out_k(st):
            for kq in range(4):
                a(f"ds_write_b128 v{vPW}, v[{PHO+kq*4}:{PHO+kq*4+3}] offset:{st*1024 + kq*16}")
        feature_map(out_k, ts)
        a("s_waitcnt lgkmcnt(0)")
        a("s_barrier")
        KV = 0
        def mfs(k):
            fb = 16 + k * 12
            a.wait_lg(("b", k), always=True)
            for ft in range(2):
                d = KV + ft * 4; c = "0" if k == 0 else f"v[{d}:{d+3}]"
                a(f"{MF} v[{d}:{d+3}], v[{fb+4+ft*4}:{fb+7+ft*4}], v[{fb}:{fb+3}], {c}")
            for ft in range(2):
                d = KV + 8 + ft * 4; c = "0" if k == 0 else f"v[{d}:{d+3}]"
                a(f"{MF} v[{d}:{d+3}], v[{fb+4+ft*4}:{fb+7+ft*4}], v[{vONE}:{vONE+3}], {c}")
        for k in range(8):
            fb = 16 + k * 12
            a.lg(f"ds_read_b128 v[{fb}:{fb+3}], v{vVR} offset:{k*4096}", ("b", k))
            for ft in range(2):
                for jj in range(2):
                    b = fb + 4 + ft * 4 + jj * 2
                    a.lg(f"ds_read_b64_tr_b16 v[{b}:{b+1}], v{vPR} offset:{k*2048 + jj*1024 + ft*8}", ("b", k))
            if k >= 2: mfs(k - 2)
        mfs(6); mfs(7)
        a(f"""
s_lshl_b32 s{sT0}, s{sSUB}, 2
s_add_u32 s{sT0}, s{sT0}, s{sWAVE}
s_lshl_b32 s{sT0}, s{sT0}, 3
s_add_u32 s{sT0}, s{sT0}, s{sRB}
s_mul_i32 s{sT0}, s{sT0}, {BKV_P}
s_add_u32 s{sT0}, s{sT0}, {BKV}
v_and_b32 v{vT0}, 15, v{vL}
v_cmp_eq_u32 vcc, 0, v{vT0}
buffer_store_dwordx4 v[{KV}:{KV+3}], v{vST[0]}, s[{sWS}:{sWS+3}], s{sT0} offen sc1
buffer_store_dwordx4 v[{KV+4}:{KV+7}], v{vST[0]}, s[{sWS}:{sWS+3}], s{sT0} offen offset:1024 sc1
s_mov_b64 exec, vcc
buffer_store_dwordx4 v[{KV+8}:{KV+11}], v{vZ}, s[{sWS}:{sWS+3}], s{sT0} offen offset:2048 sc1
buffer_store_dwordx4 v[{KV+12}:{KV+15}], v{vZ}, s[{sWS}:{sWS+3}], s{sT0} offen offset:2112 sc1
s_mov_b64 exec, -1
""")
        a.vmq += ["st"] * 4
    def wphi_loads():
        a(f"s_lshl_b32 s{sT0}, s{sSUB}, 11")
        for i in range(4):
            for j in range(4):
                a.vm(f"buffer_load_ushort v{WPH+i*4+j}, v{vPH}, s[{sPHI}:{sPHI+3}], s{sT0} offen offset:{j*32 + i*8}", "wphi")
    wphi_loads()
    p = mkpa("KKKKVVVV")
    B = p.build()
    B.stream(slot_dma(0, BSL), p.bar_gap(7) + 3, p.bar_gap(7) + 50)
    if SKIPH: B.stream(kv_warm(), p.bar_gap(7) + 50, 511)
    B.emit(a)
    a.stamp(3)
    a("s_barrier")
    for it in slot_dma(1, BSL): it.fn()
    cleared()
    for r in range(4): a(f"v_mov_b32 v{vONE+r}, 0x3f803f80")
    post(warm() if not SKIPH else [lambda: None] * 4)
    a.stamp(4)
    a.wait_vm(("w", 0)); a("s_barrier")
    for idx in range(LEAD // 4):
        for jj in range(2): tr_item(0, idx >> 2, idx & 3, jj, BSL).fn()
    body("K", 0, BSL, epi=False, dma=False, nxt=False)
    a.stamp(5)
    a(f"""
s_lshl_b32 s{sT0}, s{sSUB}, 19
s_lshr_b32 s{sT1}, s{sSTFIX}, 2
s_add_u32 s{sT0}, s{sT0}, s{sT1}
s_add_u32 s{sT0}, s{sT0}, {PHIQ}
s_nop 3
""")
    if EARLY:
        su, dm = next_phase()
        for it in su: it.fn()
        a(f"s_mov_b32 s{sROW1}, 8192")
        a(f"s_mov_b32 s{sROW4}, 32768")
        pa.setup_dma(vL, vT0, vT1, vT2, sROW1)
        a("s_barrier")
        for it in dm: it.fn()
        ptr_loads()
    def out_q(st):
        for kq in range(4):
            a.vm(f"buffer_store_dwordx4 v[{PHO+kq*4}:{PHO+kq*4+3}], v{vPW2}, s[{sWS}:{sWS+3}], s{sT0} offen offset:{st*1024 + kq*256} sc1", "st")
    feature_map(out_q, [lambda: None] * 4)
    a.stamp(6)
    if WB:
        LW = a.newlabel("K1_nowb")
        a(f"s_cmp_lg_u32 s{sWAVE}, 0")
        a(f"s_cbranch_scc1 {LW}")
        for i in range(WB):
            a("buffer_wbl2 sc1")
            a("s_waitcnt vmcnt(0)")
        a.label(LW)
    a.stamp(8)
    if a.diag and not fused: a("s_waitcnt vmcnt(0)")
    a.stamp(9); a.stamp(10, real=True)
    a.stamp_flush(sWS, sWAVE, 24, DIAG, vt=(241, 242))
    a.k1_exit.append(list(a.vmq))
    if fused: a("s_branch K2_fused_entry")
    a.label(END)
    a("s_endpgm")
    sm16()
    a.label("K1_code_end")

if __name__ == "__main__":
    import sys
    a = Asm()
    a.diag = len(sys.argv) > 1
    gen_k1(a)
    for p in a.check(): print(p)
    open("k1.s", "w").write(a.text())
    print(len(a.lines), "lines")
```

```python
from asmlib import Asm
from sched import *
from common import *
from phasea import PhaseA, WR, FR, AR
from hedge import *

BIG = f2u(-1.0e30)
THR = f2u(2.0 ** 60)
OFFS = f2u(40.0)
RQ = 0x20000
MX = 0xC000
MF32 = "v_mfma_f32_32x32x16_bf16"

def gen_k2(a, name="k2_kernel", CPF=1, ROT=0, fused=False, PLEAD=50, PSLEEP=12, NLATE=0, FST="", OST="", L2W=1, fused3=False, CH=0, WARM=0, EARLY=0, PROG=0, AL=3, BG=95, OFF=96.0):
    OFFS = f2u(OFF); THR = f2u(2.0 ** (100 - OFF))
    if fused3: FST = OST = "sc1"
    if not fused: a.kernel(name, (256,1,1), (256,1,1), 163840, vgpr=256, agpr=256)
    SC = " sc1" if fused else ""
    sX, sW, sWS = 4, 8, 12
    (sWAVE, sH, sI, sROW1, sA0, sA1, sT0, sT1, sT2, sCNT, sLA, sLW, sWSRC, sROW4, sROWH,
     sKSRC, sVSRC, sKD, sVD, sKAP, sDGA, sDGB, sDMIN, sTHR, sCTXA, sCTXB, sP, sW4) = range(16, 44)
    sRET = 44
    sM = [46, 48, 50, 52]
    sB0, sB1 = 54, 55
    sEVA, sEVB = 98, 99
    sCO, sWB, sA0c, sA1c = 46, 47, 48, 49
    sOFF = sTHR
    Q = 0; S = 64; P = 128; NM = 160; TE = 192; LC = 200; M = 208
    vK, vV, vL16, vL, vT0, vT1, vTHR, vQX = 212, 213, 214, 215, 216, 217, 218, 219
    vX16, vX32, vBIG, vDG = 220, 221, 222, 223
    D = 224; F = 228; vST = [232, 233]; vMX = 234; vT2 = 235
    ZERO = 236
    PKR = 240
    pACC, pWF = 64, 0
    vWA = list(range(192, 200)); vXA = [200, 201]; vAD = [202, 203, 204, 205]; vWD = [206, 207, 208, 209]
    O = 0; KF = 128; VF = 160; LA = 192; ONES = 208
    END = a.newlabel("K2_end")
    def q(u, dk): return Q + (u * 4 + dk) * 4
    def s_(buf, u, kt): return S + ((buf * 4 + u) * 2 + kt) * 4
    def p_(buf, u): return P + (buf * 4 + u) * 4
    def nm(u, kt): return NM + (u * 2 + kt) * 4
    def o_(u, dt): return O + (u * 8 + dt) * 4
    def lc(par, u): return LC + par * 4 + u
    mk = Mk(a)
    I = lambda s, c=None: mk.I(s)
    if fused:
        a.label("K2_fused_entry")
        a.vmq = []; a.lgq = []
        if EARLY:
            def behind(qq, tag): return len(qq) - 1 - max(i for i, t in enumerate(qq) if t == tag)
            n0 = min(behind(qq, ("pa", 0)) for qq in a.k1_exit)
            if EARLY == 1:
                n1 = min(behind(qq, ("pa", 1)) for qq in a.k1_exit)
                a.vmq = [("pa", 0)] + ["x"] * (n0 - n1 - 1) + [("pa", 1)] + ["x"] * n1
            else: a.vmq = [("pa", 0)] + ["x"] * n0
            src = list(range(208, 216)) + [216, 217] + [218, 219, 252, 253] + [220, 221, 254, 255]
            for d_, s0 in zip(vWA + vXA + vAD + vWD, src): a(f"v_mov_b32 v{d_}, v{s0}")
        a(f"v_mov_b32 v{vL}, v240")
    else:
        a(f"""
s_cmp_ge_u32 s2, 256
s_cbranch_scc1 {END}
v_lshrrev_b32 v{vT0}, 6, v0
v_and_b32 v{vL}, 63, v0
v_readfirstlane_b32 s{sWAVE}, v{vT0}
""")
    a.stamp(14)
    if not EARLY: a(f"""
s_load_dwordx2 s[56:57], s[0:1], 0      ; x
s_load_dwordx2 s[58:59], s[0:1], 16     ; w_q
s_load_dwordx2 s[60:61], s[0:1], 96     ; ws
s_load_dwordx2 s[88:89], s[0:1], 40     ; w_o
s_load_dwordx2 s[92:93], s[0:1], 72     ; wo
s_load_dwordx2 s[52:53], s[0:1], 88
""")
    a(f"""
s_lshr_b32 s{sT1}, s2, 3
s_and_b32 s{sI}, s{sT1}, 7
s_lshr_b32 s{sT1}, s{sT1}, 3
s_and_b32 s{sH}, s2, 7
s_lshl_b32 s{sH}, s{sH}, 2
s_add_u32 s{sH}, s{sH}, s{sT1}
s_mov_b32 s{sROW1}, 8192
s_mov_b32 s{sROW4}, 32768
s_mov_b32 s{sROWH}, 4096
s_lshl_b32 s{sCO}, s{sT1}, 1
s_add_u32 s{sCO}, s{sCO}, s{sI}
s_and_b32 s{sCO}, s{sCO}, {7 if ROT else 0}
s_lshl_b32 s{sCO}, s{sCO}, 7
s_sub_u32 s{sCO}, s{sCO}, {[128, -128, 0][EARLY]}
s_sub_u32 s{sT0}, 15, s{sI}             ; L
s_lshl_b32 s{sDGA}, s{sT0}, 2
s_add_u32 s{sDGA}, s{sDGA}, s{sWAVE}
s_lshl_b32 s{sDGB}, s{sI}, 2
s_add_u32 s{sDGB}, s{sDGB}, s{sWAVE}
s_lshl_b32 s{sA0}, s{sDGA}, 15
s_lshl_b32 s{sA1}, s{sDGB}, 15
s_lshl_b32 s{sLA}, s{sWAVE}, 14
s_add_u32 s{sLA}, s{sLA}, {AR}
s_lshl_b32 s{sW4}, s{sWAVE}, 12
s_add_u32 s{sLW}, s{sW4}, {WR}
s_lshl_b32 s{sWB}, s{sWAVE}, 17       ; 16 rows * 8192
s_lshl_b32 s{sT0}, s{sH}, 8
s_add_u32 s{sWB}, s{sWB}, s{sT0}
s_lshl_b32 s{sKSRC}, s{sH}, 19
s_add_u32 s{sKSRC}, s{sKSRC}, s{sW4}
s_add_u32 s{sVSRC}, s{sKSRC}, {VWS}
s_mov_b32 s{sX+2}, 0x200000
s_mov_b32 s{sX+3}, 0x20000
s_mov_b32 s{sW+2}, 0x400000
s_mov_b32 s{sW+3}, 0x20000
s_mov_b32 s{sWS+2}, {WS_USED}
s_mov_b32 s{sWS+3}, 0x20000
""")
    pa = PhaseA(a, pACC, pWF, vWA, vXA, vAD, vWD, sX, sW, sA0, sA1, sWSRC, sROW4, sROWH, sLA, sLW, sT2, "K" * 8, sCO, sWB, sA0c, sA1c)
    pa.ring = 128
    if not EARLY: pa.setup_dma(vL, vT0, vT1, vT2, sROW1)
    pa.pre1 = EARLY == 1
    if EARLY == 2: pa.N1 = 0
    a("s_waitcnt lgkmcnt(0)")
    if not EARLY: a(f"""
s_mov_b32 s{sX}, s56
s_mov_b32 s{sX+1}, s57
s_mov_b32 s{sW}, s58
s_mov_b32 s{sW+1}, s59
s_mov_b32 s{sWS}, s60
s_mov_b32 s{sWS+1}, s61
""")
    a(f"""
s_mov_b32 s54, 256
s_mov_b32 s55, 0x20000
""")
    if fused:
        a(f"""
s_add_u32 s51, s99, {FLAGS + 32768}
s_cmp_eq_u32 s{sWAVE}, 0
s_cselect_b32 s62, 256, 0
s_cselect_b32 s50, {FLAGS + 32768}, s{sWS+2}
s_cselect_b32 s{sT0}, 1, 0
v_mov_b32 v{vX32}, s{sT0}
v_mov_b32 v{vT0}, 0
""")
        a.vm(f"buffer_load_dword v{vT2}, v{vT0}, s[52:55], s{sW4} offen sc1", "cnt")
        if not EARLY: a("s_barrier")
    a.stamp(0); a.stamp(1, real=True)
    if not EARLY:
        for it in pa.chunk_dmas(0): it.fn()
    a.stamp(11)
    if not EARLY: pa.setup_read(vL, vT0, vT1, vBIG)
    if fused:
        a(f"""
s_lshr_b32 s{sT0}, s{sH}, 3
s_mul_i32 s{sT0}, s{sT0}, 24
v_min_u32 v{vT0}, 55, v{vL}
v_add_u32 v{vX16}, s{sT0}, v{vT0}         ; K producers
v_add_u32 v{vT1}, 72, v{vX16}             ; V producers
v_cmp_le_u32 vcc, 24, v{vT0}
s_lshr_b32 s{sT0}, s{sH}, 2
s_lshl_b32 s{sT0}, s{sT0}, 3
s_add_u32 s{sT0}, s{sT0}, 144
v_cndmask_b32 v{vX16}, v{vX16}, v{vT1}, vcc
v_add_u32 v{vT1}, s{sT0}, v{vT0}          ; B producers
v_cmp_le_u32 vcc, 48, v{vT0}
s_nop 1
v_cndmask_b32 v{vX16}, v{vX16}, v{vT1}, vcc
v_lshlrev_b32 v{vX16}, 7, v{vX16}
""")
    setup2 = f"""
v_lshlrev_b32 v{vL16}, 4, v{vL}
v_mov_b32 v{vBIG}, {hex(BIG)}
v_mov_b32 v{vTHR}, {hex(THR)}
v_and_b32 v{vT0}, 15, v{vL}
v_lshrrev_b32 v{vT1}, 4, v{vL}
v_lshlrev_b32 v{vT1}, 2, v{vT1}
v_sub_u32 v{vDG}, v{vT0}, v{vT1}
v_mov_b32 v{vST[0]}, v{vL16}
v_add_u32 v{vST[1]}, {144*1024}, v{vL16}
v_mov_b32 v{vT0}, 0x3f803f80
s_and_b32 s{sP}, s{sWAVE}, 1
s_mul_i32 s{sCTXA}, s{sDGA}, {2*144*1024}
s_mul_i32 s{sCTXB}, s{sDGB}, {2*144*1024}
s_lshl_b32 s{sT0}, s{sH}, 12
s_add_u32 s{sT0}, s{sT0}, {CTX}
s_add_u32 s{sCTXA}, s{sCTXA}, s{sT0}
s_add_u32 s{sCTXB}, s{sCTXB}, s{sT0}
v_add_u32 v{vK}, 0x10000, v{vL16}
v_add_u32 v{vV}, 0x10000, v{vL16}
s_lshl_b32 s{sT0}, s{sWAVE}, 13
s_add_u32 s{sT0}, s{sT0}, {RQ}
v_add_u32 v{vQX}, s{sT0}, v{vL16}
s_lshl_b32 s{sT0}, s{sWAVE}, 9
s_add_u32 s{sT0}, s{sT0}, {MX}
v_lshlrev_b32 v{vMX}, 3, v{vL}
v_add_u32 v{vMX}, s{sT0}, v{vMX}
s_add_u32 s{sKD}, s{sW4}, 0x10000         ; K(2) -> parity 0
s_add_u32 s{sVD}, s{sW4}, 0x4000          ; V(1) -> parity 1
s_mov_b32 s{sKAP}, -1
s_min_u32 s{sDMIN}, s{sDGA}, s{sDGB}
s_mov_b32 s{sEVA}, s{sDGA}
s_mov_b32 s{sEVB}, s{sDGB}
s_mov_b32 s90, 0x400000
s_mov_b32 s91, 0x20000
s_mov_b32 s94, 0x80000
s_mov_b32 s95, 0x20000
"""
    def zero16(reg):
        return f"{MF32} {reg}, v[{ZERO}:{ZERO+3}], v[{ZERO}:{ZERO+3}], 0"
    late = [I(l.split(";")[0].strip()) for l in setup2.strip().split("\n")]
    late += [I(f"v_accvgpr_write_b32 a{ONES+r}, v{vT0}") for r in range(4)]
    for r in range(4): a(f"v_mov_b32 v{ZERO+r}, 0")
    if EARLY:
        late += [I(f"v_accvgpr_write_b32 a{r}, 0") for r in list(range(O, O + 128)) + [LA, LA + 4, LA + 8, LA + 12]]
        late += [I(f"v_accvgpr_write_b32 a{r}, 0") for r in range(LA, LA + 16) if r % 4]
    else:
        a("s_nop 1")
        for k in range(8): a(zero16(f"a[{O+k*16}:{O+k*16+15}]"))
        a(zero16(f"a[{LA}:{LA+15}]"))
    def tile_dma(src, ldsexpr, tag, srcadd=None, post=()):
        its = [I(f"s_add_u32 m0, s{ldsexpr[0]}, {ldsexpr[1]}"), I(f"s_add_u32 s{sT1}, s{src}, {srcadd}" if srcadd is not None else "s_nop 0")]
        for i in range(4):
            its.append(mk.VM(f"buffer_load_dwordx4 v{vL16}, s[{sWS}:{sWS+3}], s{sT1 if srcadd is not None else src} offen offset:{i*1024}{SC} lds", tag))
        return its + [I(t) for t in post]
    def chores():
        its = [I(f"s_lshl_b32 s{sB0}, s2, 2"), I(f"s_add_u32 s{sB0}, s{sB0}, s{sWAVE}")]
        if WARM:
            its += [I(f"v_and_b32 v{vT1}, 31, v{vL}"), I(f"v_lshlrev_b32 v{vT1}, 7, v{vT1}"), I(f"s_lshl_b32 s{sB1}, s{sB0}, 12"),
                    mk.VM(f"buffer_load_dword v245, v{vT1}, s[88:91], s{sB1} offen", "warm"),
                    I(f"v_and_b32 v{vT1}, 0x180, v{vT1}"), I(f"s_lshl_b32 s{sB1}, s{sB0}, 9"),
                    mk.VM(f"buffer_load_dword v245, v{vT1}, s[92:95], s{sB1} offen", "warm")]
        if fused3 == 2:
            its += [I(f"s_mul_i32 s{sB1}, s{sB0}, 6144"), I(f"s_add_u32 s{sB1}, s{sB1}, {PART}")]
            its += [I(f"v_mov_b32 v{PKR+8+r}, -1") for r in range(4)]
            for k in range(6):
                if k == 4: its.append(I(f"s_add_u32 s{sB1}, s{sB1}, 4096"))
                its.append(mk.VM(f"buffer_store_dwordx4 v[{PKR+8}:{PKR+11}], v{vL16}, s[{sWS}:{sWS+3}], s{sB1} offen offset:{(k % 4)*1024} sc1", "clr"))
        return its
    B = pa.build(stamp=2)
    g6 = pa.bar_gap(6) + 6
    LAFTER = "K2_after"
    if CPF: late = code_prefetch(a, LAFTER, "K3_code_end" if fused3 else "K2_code_end", 96, sT0, sWAVE, vL, vT0, 245) + late
    B.stream(late[NLATE:], 50 if not EARLY else 4, 300 if not EARLY else 340)
    if fused:
        def sig():
            L = a.newlabel("K2_sig")
            a(f"""
s_cmp_lg_u32 s{sWAVE}, 0
s_cbranch_scc1 {L}
s_mov_b64 exec, 1
buffer_store_dword v{vX32}, v{ZERO}, s[{sWS}:{sWS+3}], s51 offen sc1
s_mov_b64 exec, -1
{L}:
v_readfirstlane_b32 s51, v{vT2}
""")
        if EARLY: B.put(pa.bar_gap(3 - EARLY) + 3, Item(sig, 16, "X"), 3)
        else: sig()
        B.put(pa.bar_gap(6) - PLEAD, mk.VM(f"buffer_load_dword v{vT2}, v{vX16}, s[{sWS}:{sWS+3}], s50 offen sc1", "poll"))
        def chk():
            L = a.newlabel("K2_spin"); R = a.newlabel("K2_spun"); LP = a.newlabel("K2_spl"); LQ = a.newlabel("K2_spq")
            a.wait_vm("poll", always=True)
            a(f"v_cmp_ne_u32 vcc, v{vX32}, v{vT2}")
            a(f"s_cmp_lt_u32 s51, s62")
            a(f"s_cbranch_scc1 {L}")
            a(f"s_cbranch_vccnz {L}")
            a.label(R)
            a.stubs.append(f"""{L}:
s_mov_b32 s{sT1}, 0x40000
{LP}:
s_cmp_ge_u32 s51, 256
s_cbranch_scc1 {LQ}
s_sleep {PSLEEP}
buffer_load_dword v{vT2}, v{ZERO}, s[52:55], 0 offen sc1
s_waitcnt vmcnt(0)
v_readfirstlane_b32 s51, v{vT2}
s_sub_u32 s{sT1}, s{sT1}, 1
s_cmp_lg_u32 s{sT1}, 0
s_cbranch_scc1 {LP}
s_branch {R}
{LQ}:
buffer_load_dword v{vT2}, v{vX16}, s[{sWS}:{sWS+3}], s50 offen sc1
s_waitcnt vmcnt(0)
v_cmp_ne_u32 vcc, 1, v{vT2}
s_sub_u32 s{sT1}, s{sT1}, 1
s_cmp_eq_u32 s{sT1}, 0
s_cbranch_scc1 {R}
s_cbranch_vccz {R}
s_sleep 2
s_branch {LQ}""")
        B.put(pa.bar_gap(6) - 1, Item(chk, 20, "X"), 3)
    B.spread(tile_dma(sKSRC, (sW4, 0x10000), "kv") + tile_dma(sVSRC, (sW4, 0x14000), "kv") + tile_dma(sKSRC, (sW4, 0), "kv", 16384), g6, g6 + 56)
    if CH == 1: B.stream(chores(), g6 + 60, 492)
    def qcvt(u, dk, j):
        r = pa.acc(2 * dk + (j >> 1), u) + (j & 1) * 2
        return f"v_cvt_pk_bf16_f32 v{q(u, dk) + j}, v{r}, v{r+1}"
    qearly = []
    for dk in range(2):
        its = [I(qcvt(u, dk, j), 5) for u in range(2) for j in range(4)]
        B.spread(its, 480 + dk * 8 + 14, 480 + dk * 8 + 22)
        qearly += [(u, dk) for u in range(2)]
    B.emit(a)
    a.label(LAFTER)
    a.stamp(3); a.stamp(21, real=True)
    a.wait_vm("kv"); a("s_barrier")

    LMASK = a.newlabel("K2_mask"); LADJ = [a.newlabel("K2_adj0"), a.newlabel("K2_adj1")]
    def kread(hs, f):
        b = KF + f * 4
        return mk.LG(f"ds_read_b128 a[{b}:{b+3}], v{vK} offset:{(f >> 1)*4096 + (hs*2 + (f & 1))*1024}", ("kf", f))
    def vread(hs, f):
        b = VF + f * 4
        return mk.LG(f"ds_read_b128 a[{b}:{b+3}], v{vV} offset:{0x4000 + (f >> 1)*4096 + (hs*2 + (f & 1))*1024}", ("vf", f))
    def qk_mfma(B, base, buf, wait=2, late=False):
        for f in range(8):
            kt, dk = f & 1, f >> 1
            for u in range(4):
                d = s_(buf, u, kt); c = nm(u, kt) if dk == 0 else d
                st = f"{MF} v[{d}:{d+3}], a[{KF+f*4}:{KF+f*4+3}], v[{q(u,dk)}:{q(u,dk)+3}], v[{c}:{c+3}]"
                B.mfma[base + f * 4 + (u if kt else u ^ 3)] = (lambda st=st: a(st))
            if f % wait == 0: B.put_pre(base + f * 4, mk.WL(("kf", f + wait - 1)))
    def pv_mfma(B, base, buf, wait=2, order="d"):
        for f in range(8):
            for u in range(4):
                o = o_(u, f); p = p_(buf, u)
                st = f"{MF} a[{o}:{o+3}], a[{VF+f*4}:{VF+f*4+3}], v[{p}:{p+3}], a[{o}:{o+3}]"
                m = {"d": f * 4 + u, "b": (0 if u >= 2 else 16) + f * 2 + (u & 1), "u": u * 8 + (f ^ 7 if u & 1 else f)}[order]
                B.mfma[base + m] = (lambda st=st: a(st))
            if f % wait == 0:
                B.put_pre(base + {"d": f * 4, "b": f * 2, "u": f}[order], mk.WL(("vf", f + wait - 1)))
    def lmfma(par, u):
        t = f"{MF} a[{LA+u*4}:{LA+u*4+3}], a[{ONES}:{ONES+3}], v[{p_(par,u)}:{p_(par,u)+3}], a[{LA+u*4}:{LA+u*4+3}]"
        return Item(lambda: a(t), 8, "v")
    def lread(par, u): return I(f"v_accvgpr_read_b32 v{lc(par,u)}, a{LA+u*4}")
    def ex(par, i): return I(f"v_exp_f32 v{TE+i%8}, v{S+par*32+i}")
    def cv(par, c): return I(f"v_cvt_pk_bf16_f32 v{P+par*16+c}, v{TE+(2*c)%8}, v{TE+(2*c+1)%8}")
    def early(par):
        return [ex(par, 0), ex(par, 1), ex(par, 2), cv(par, 0), ex(par, 3), ex(par, 4), cv(par, 1), ex(par, 5)]
    def softmax_items(par, skip_early=False):
        its = [] if skip_early else early(par)
        for i in range(6, 34):
            if i < 32: its.append(ex(par, i))
            if i == 32: its.append(I("v_nop"))
            if i % 2 == 0 and i // 2 - 1 < 16: its.append(cv(par, i // 2 - 1))
            if i in (10, 18, 26): its.append(lmfma(par, (i >> 3) - 1))
            if i in (20, 28): its.append(lread(par, (i >> 3) - 2))
        return its
    def softmax_tail(B, g, par, check=True):
        B.put(g, I("v_nop")); B.put(g, lmfma(par, 3))
        B.put(g + 2, lread(par, 2))
        if check: B.put(g + 3, I(f"v_max3_f32 v{vT0}, v{lc(par,0)}, v{lc(par,1)}, v{lc(par,2)}"))
        B.put(g + 7, lread(par, 3))
        if check:
            B.put(g + 8, I(f"v_max_f32 v{vT0}, v{vT0}, v{lc(par,3)}"))
            B.put(g + 8, I(f"v_cmp_nle_f32 vcc, v{vT0}, v{vTHR}"))
            B.put(g + 10, check_item(par), 3)
    def call_stub(branch, target):
        def f():
            L = a.newlabel("K2_st"); R = a.newlabel("K2_rt")
            a(f"{branch} {L}")
            a.label(R)
            a.stubs.append(f"{L}:\ns_call_b64 s[{sRET}:{sRET+1}], {target}\ns_branch {R}")
        return Item(f, 4, "s")
    def check_item(par): return call_stub("s_cbranch_vccnz", LADJ[par])
    def mask_items():
        return [I(f"s_add_u32 s{sKAP}, s{sKAP}, 1"), I(f"s_cmp_ge_u32 s{sKAP}, s{sDMIN}"),
                Item(lambda: a(f"s_getpc_b64 s[{sRET}:{sRET+1}]\ns_cbranch_scc1 {LMASK}"), 8, "X")]
    def put_mask(B, g):
        m = mask_items()
        B.put(g - 1, m[0])
        assert not B.gap[g].c[0] and not B.gap[g].c[3]
        B.put(g, m[1], 0); B.put(g, m[2], 3)
    def put_bar(B, g):
        B.put(g, mk.WV("kv", lg0=True), 3); B.put(g, I("s_barrier"), 3)
    def togK(): return I(f"v_xor_b32 v{vK}, 0x10000, v{vK}")
    def togV(): return I(f"v_xor_b32 v{vV}, 0x10000, v{vV}")
    def kv_dmas(src, dst, two):
        adv = (f"s_add_u32 s{src}, s{src}, 16384", f"s_xor_b32 s{dst}, s{dst}, 0x10000")
        if not two: return tile_dma(src, (dst, 0), "kv", post=adv)
        return tile_dma(src, (dst, 0), "kv") + tile_dma(src, (dst, 0x8000), "kv", f"s{sOFF}", post=adv)
    NPRE = 6
    sF3 = 63
    def f3_item():
        return mk.VM(f"buffer_store_dword v{vX32}, v{ZERO}, s[{sWS}:{sWS+3}], s{sF3} offen sc1", "f3")
    def body_emit(two):
        B = Body(128)
        qk_mfma(B, 0, 0, 4); pv_mfma(B, 32, 0, 4, "u"); qk_mfma(B, 64, 1, 4); pv_mfma(B, 96, 1, 8, "u")
        ins = []
        for par, G0 in ((1, -12), (0, 52), (1, 116)):
            for i in range(32):
                g = G0 + 2 * i
                if 0 <= g < 128: B.put(g, ex(par, i))
            for c in range(16):
                g = G0 + 4 * c + 5
                if 0 <= g < 128: B.put(g, cv(par, c))
            if G0 < 100:
                for u in range(4):
                    ins.append((G0 + 16 * u + 19, lmfma(par, u).fn))
                    B.put(G0 + 16 * u + 23, lread(par, u))
                B.put(G0 + 55, I(f"v_max3_f32 v{vT0}, v{lc(par,0)}, v{lc(par,1)}, v{lc(par,2)}"))
                B.put(G0 + 71, I(f"v_max_f32 v{vT0}, v{vT0}, v{lc(par,3)}"))
                B.put(G0 + 73, I(f"v_cmp_nle_f32 vcc, v{vT0}, v{vTHR}"))
                B.put(G0 + 75, check_item(par), 3)
        B.put(1, kread(0, 6)); B.put(5, kread(0, 7))
        for f, g in enumerate((9, 11, 13, 17, 21, 25, 27, 29)): B.put(g, vread(0, f))
        for f, g in enumerate((33, 37, 41, 45, 47, 49, 53, 57)): B.put(g, kread(1, f))
        B.put(63, togK())
        for f, g in enumerate((65, 69, 73, 75, 77, 81, 85, 89)): B.put(g, vread(1, f))
        B.put(91, togV())
        put_bar(B, BG)
        for f, g in enumerate((101, 105, 109, 113, 117, 121)): B.put(g, kread(0, f))
        put_mask(B, 51)
        put_mask(B, 87)
        B.put(84, I(f"s_sub_u32 s{sCNT}, s{sCNT}, 1"))
        for after, fn in sorted(ins, reverse=True): B.insert_mfma(after, fn)
        r = lambda v: v + sum(1 for x, _ in ins if x < v)
        B.stream(kv_dmas(sVSRC, sVD, two), 0, r(50), even=False)
        kd = kv_dmas(sKSRC, sKD, two)
        if two and PROG: kd = [f3_item()] + kd
        B.stream(kd, r(BG) + 1, r(127), even=False)
        print("body est", two, B.est())
        B.emit(a)
    def quad_max(regs, tmp):
        for sw in ("v_permlane16_swap_b32", "v_permlane32_swap_b32"):
            for i, r in enumerate(regs): a(f"v_mov_b32 v{tmp+i}, v{r}")
            for i, r in enumerate(regs): a(f"{sw} v{r}, v{tmp+i}")
            for i, r in enumerate(regs): a(f"v_max_f32 v{r}, v{r}, v{tmp+i}")
    def row_max(par, dst):
        for u in range(4):
            b = s_(par, u, 0)
            a(f"v_max3_f32 v{dst[u]}, v{b}, v{b+1}, v{b+2}")
            a(f"v_max3_f32 v{TE+u}, v{b+3}, v{b+4}, v{b+5}")
        for u in range(4):
            b = s_(par, u, 0)
            a(f"v_max3_f32 v{dst[u]}, v{dst[u]}, v{b+6}, v{b+7}")
        for u in range(4): a(f"v_max_f32 v{dst[u]}, v{dst[u]}, v{TE+u}")
        quad_max(dst, TE)
        for u in range(4): a(f"v_add_f32 v{dst[u]}, {hex(OFFS)}, v{dst[u]}")
    def fin_items(us, sCTX, scale, T):
        its = []; n = 0
        for ui, u in enumerate(us):
            for dk in range(4):
                pk = PKR + (n % 4) * 4
                for j in range(4):
                    r = o_(u, 2 * dk + (j >> 1)) + (j & 1) * 2
                    t = T + (j % 4) * 2
                    its.append(I(f"v_accvgpr_read_b32 v{t}, a{r}", 5))
                    its.append(I(f"v_accvgpr_read_b32 v{t+1}, a{r+1}", 5))
                    its.append(I(f"v_mul_f32 v{t}, v{t}, v{scale[ui]}"))
                    its.append(I(f"v_mul_f32 v{t+1}, v{t+1}, v{scale[ui]}"))
                    its.append(I(f"v_cvt_pk_bf16_f32 v{pk+j}, v{t}, v{t+1}", 5))
                its.append(mk.VM(f"buffer_store_dwordx4 v[{pk}:{pk+3}], v{vST[ui]}, s[{sWS}:{sWS+3}], s{sCTX} offen offset:{dk*1024} sc1", "st"))
                n += 1
        return its

    for f in range(NPRE): kread(0, f).fn()
    for u in range(4):
        for dk in range(4):
            if (u, dk) in qearly: continue
            for j in range(4): a(qcvt(u, dk, j))
    a(zero16(f"v[{NM}:{NM+15}]")); a(zero16(f"v[{NM+16}:{NM+31}]"))
    for r in range(4): a(f"v_cmp_gt_i32 s[{sM[r]}:{sM[r]+1}], {r}, v{vDG}")
    a(f"""
s_add_u32 s{sKSRC}, s{sKSRC}, 32768
s_add_u32 s{sVSRC}, s{sVSRC}, 16384
s_lshl_b32 s{sOFF}, s{sI}, 15
s_sub_u32 s{sOFF}, {15*16384}, s{sOFF}    ; T tiles
s_add_u32 s{sT0}, s{sKSRC}, {15*16384}    ; tile D+T = 17
""")
    for u in range(2):
        for dk in range(4):
            a.lg(f"ds_write_b128 v{vQX}, v[{q(u,dk)}:{q(u,dk)+3}] offset:{(u*4+dk)*1024}", "qx")
    a.stamp(4)
    for it in mask_items(): it.fn()
    B = Body(32)
    qk_mfma(B, 0, 0)
    for f in range(NPRE, 8): B.put(4 * (f - NPRE), kread(0, f))
    for f in range(NPRE): B.put(8 + 4 * f, kread(1, f))
    B.spread(tile_dma(sT0, (sW4, 0x18000), "kd") + tile_dma(sT0, (sW4, 0x8000), "kd", 16384), 1, 25)
    put_mask(B, 26)
    B.emit(a)
    for f in range(NPRE, 8): kread(1, f).fn()
    togK().fn()
    a("s_nop 4")
    DE = [D, D + 2, F, F + 2]
    row_max(0, DE)
    for u in range(4):
        a(f"v_mov_b32 v{M+u}, v{DE[u]}")
        for r in range(0, 8, 2):
            a(f"v_pk_add_f32 v[{nm(u,0)+r}:{nm(u,0)+r+1}], v[{nm(u,0)+r}:{nm(u,0)+r+1}], v[{DE[u]}:{DE[u]+1}] op_sel_hi:[1,0] neg_lo:[0,1] neg_hi:[0,1]")
    for k in range(0, 32, 2):
        a(f"v_pk_add_f32 v[{S+k}:{S+k+1}], v[{S+k}:{S+k+1}], v[{DE[k>>3]}:{DE[k>>3]+1}] op_sel_hi:[1,0] neg_lo:[0,1] neg_hi:[0,1]")
    B = Body(32)
    qk_mfma(B, 0, 1, 8)
    put_bar(B, 1)
    for f in range(NPRE): B.put(8 + 4 * f, kread(0, f))
    softmax_tail(B, 23, 0, check=False)
    B.spread(softmax_items(0), 0, 23)
    put_mask(B, 25)
    B.stream(kv_dmas(sKSRC, sKD, False), 23, 32)
    B.emit(a)
    a("s_nop 3")
    for it in early(1): it.fn()
    a.stamp(5); a.stamp(16, real=True)
    LD = a.newlabel("K2_dual")
    a(f"""
s_lshl_b32 s{sCNT}, s{sI}, 1
s_add_u32 s{sCNT}, s{sCNT}, 1
""")
    a(f".p2align {AL}")
    a.label(LD)
    loop_emit(a, lambda: body_emit(False))
    a(f"""
s_cmp_lg_u32 s{sCNT}, 0
s_cbranch_scc1 {LD}
""")
    a.stamp(6); a.stamp(17, real=True)
    B = Body(128)
    pv_mfma(B, 0, 0); pv_mfma(B, 32, 1, 2, "b"); qk_mfma(B, 64, 0, 4); qk_mfma(B, 96, 1, 4)
    for f in range(NPRE): vread(0, f).fn()
    for f in range(NPRE, 8): B.put(3 * (f - NPRE), vread(0, f))
    for f in range(7): B.put(4 * f + 4, vread(1, f))
    B.put(31, vread(1, 7))
    softmax_tail(B, 21, 1)
    B.spread(softmax_items(1, True), 0, 21)
    def sw1():
        a.lg(f"ds_write_b64 v{vMX}, v[{M}:{M+1}]", "mx")
        a(f"v_xor_b32 v{vMX}, 512, v{vMX}")
        a(f"v_xor_b32 v{vQX}, 0x2000, v{vQX}")
        a(f"v_rcp_f32 v{F}, v{lc(1,2)}")
        a(f"v_rcp_f32 v{F+1}, v{lc(1,3)}")
    B.put(32, Item(sw1, 28))
    B.put(33, togV())
    B.put(35, I(f"v_mul_f32 v{F}, {hex(f2u(2.0 ** -VEXP))}, v{F}")); B.put(35, I(f"v_mul_f32 v{F+1}, {hex(f2u(2.0 ** -VEXP))}, v{F+1}"))
    def sw2():
        a(f"""
s_xor_b32 s{sDGB}, s{sDGA}, 1
s_mov_b32 s{sEVB}, s{sDGB}
s_min_u32 s{sDMIN}, s{sEVA}, s{sEVB}
s_sub_u32 s{sKAP}, s{sKAP}, 1
s_cmp_eq_u32 s{sP}, 1
s_cselect_b32 s{sKAP}, 33, s{sKAP}
s_lshl_b32 s{sT0}, s{sP}, 15
v_add_u32 v{vK}, s{sT0}, v{vK}
v_add_u32 v{vV}, s{sT0}, v{vV}
""")
    B.put(34, Item(sw2, 28))
    def sw3():
        a("s_waitcnt lgkmcnt(0)"); a.lgq = []
        a("s_barrier")
        a.lg(f"ds_read_b64 v[{M+2}:{M+3}], v{vMX}", "mx")
    B.put(36, Item(sw3, 12))
    for k in range(8):
        u, dk = k >> 2, k & 3
        B.put(37 + k, mk.LG(f"ds_read_b128 v[{q(2+u,dk)}:{q(2+u,dk)+3}], v{vQX} offset:{(u*4+dk)*1024}", "qx"))
    for f in range(8): B.put(46 + 2 * f, kread(0, f))
    B.put(45, mk.WL("mx"), 3)
    nmi = []
    for u in (2, 3):
        for r in range(8): nmi.append(I(f"v_sub_f32 v{nm(u,0)+r}, 0, v{M+u}"))
        nmi.append(I(f"v_mov_b32 v{lc(1,u)}, 0"))
        nmi.append(I(f"v_accvgpr_write_b32 a{LA+4*u}, 0", 5))
    B.spread(nmi, 46, 56)
    put_mask(B, 60)
    put_mask(B, 92)
    for f in range(8): B.put(68 + 4 * f, kread(1, f))
    B.put(97, togK())
    put_bar(B, 104)
    for f in range(NPRE): B.put(106 + 4 * f, kread(0, f)) if 106 + 4 * f < 128 else None
    B.spread(kv_dmas(sVSRC, sVD, True), 22, 56)
    B.spread(fin_items([2, 3], sCTXB, [F, F + 1], S + 32), 56, 95)
    zs = [Item(lambda k=k: a(zero16(f"a[{o_(2,0)+k*16}:{o_(2,0)+k*16+15}]")), 32, "X") for k in range(4)]
    for k in range(4): B.put(96 + k, zs[k])
    softmax_tail(B, 117, 0)
    B.spread(softmax_items(0), 100, 117)
    put_mask(B, 121)
    B.stream(kv_dmas(sKSRC, sKD, True), 108, 127)
    B.emit(a)
    a("s_nop 2")
    for it in early(1): it.fn()
    a.stamp(7); a.stamp(18, real=True)
    LS1 = a.newlabel("K2_single"); LS2 = a.newlabel("K2_sdone")
    if CH == 0:
        for it in chores(): it.fn()
    if PROG:
        a(f"""
s_lshl_b32 s{sF3}, s2, 7
s_add_u32 s{sF3}, s{sF3}, {FLAGS}
s_cmp_eq_u32 s{sWAVE}, 0
s_cselect_b32 s{sF3}, s{sF3}, s{sWS+2}
""")
    a(f"""
s_lshl_b32 s{sCNT}, s{sI}, 1
s_sub_u32 s{sCNT}, 14, s{sCNT}
s_cmp_eq_u32 s{sCNT}, 0
s_cbranch_scc1 {LS2}
""")
    st = (list(a.vmq), list(a.lgq))
    a(f".p2align {AL}")
    a.label(LS1)
    loop_emit(a, lambda: body_emit(True))
    a(f"""
s_cmp_lg_u32 s{sCNT}, 0
s_cbranch_scc1 {LS1}
""")
    a.label(LS2)
    assert a.diag or st[1] == a.lgq, (st[1], a.lgq)
    a.vmq = ["kv"]
    a.stamp(8); a.stamp(20, real=True)
    BQ, BZ = 220, 212
    a(f"""
s_mul_i32 s{sB0}, s{sH}, {8 * BKV_P}
s_add_u32 s{sB0}, s{sB0}, {BKV}
s_lshl_b32 s{sB1}, s{sH}, 17
s_lshl_b32 s{sT2}, s{sI}, 14
s_add_u32 s{sB1}, s{sB1}, s{sT2}
s_add_u32 s{sB1}, s{sB1}, s{sW4}
s_add_u32 s{sB1}, s{sB1}, {PHIQ}
s_lshl_b32 s{sT0}, s{sWAVE}, 15
v_add_u32 v{vK}, s{sT0}, v{vL16}
v_lshrrev_b32 v{vT1}, 4, v{vL}
v_and_b32 v{vMX}, 7, v{vL}
v_mul_u32_u24 v{vMX}, {BKV_P}, v{vMX}
v_lshl_add_u32 v{vMX}, v{vT1}, 4, v{vMX}
v_xor_b32 v{vQX}, 0x2000, v{vQX}
""")
    B = Body(64)
    pv_mfma(B, 0, 0); pv_mfma(B, 32, 1, 2, "b")
    for f in range(NPRE): vread(0, f).fn()
    for f in range(NPRE, 8): B.put(3 * (f - NPRE), vread(0, f))
    for f in range(7): B.put(4 * f + 4, vread(1, f))
    B.put(31, vread(1, 7))
    softmax_tail(B, 21, 1)
    bl = []
    if fused3 and L2W != 1: bl += code_prefetch(a, "K3_fused_entry", "K3_code_end", 96, sT0, sWAVE, vL, vX16, vT2)
    if L2W == 1:
        a(f"""
s_lshr_b32 s{sT0}, s2, 3
s_lshl_b32 s{sT0}, s{sT0}, 2
s_add_u32 s{sT0}, s{sT0}, s{sWAVE}        ; 0..127
s_lshl_b32 s{sKSRC}, s{sT0}, 13
s_and_b32 s{sT1}, s2, 6
s_lshl_b32 s{sT1}, s{sT1}, 19
s_add_u32 s{sKSRC}, s{sKSRC}, s{sT1}
s_lshl_b32 s{sVSRC}, s{sT0}, 12
v_lshlrev_b32 v{vDG}, 7, v{vL}
v_and_b32 v{vBIG}, 0xfff, v{vDG}
""")
        bl.append(mk.VM(f"buffer_load_dword v{vT2}, v{vDG}, s[88:91], s{sKSRC} offen", "l2w"))
        bl.append(mk.VM(f"buffer_load_dword v{vT2}, v{vBIG}, s[92:95], s{sVSRC} offen", "l2w"))
        if fused3: bl += code_prefetch(a, "K3_fused_entry", "K3_code_end", 96, sT0, sWAVE, vL, vX16, vT2)
    for ft in range(2):
        bl.append(mk.VM(f"buffer_load_dwordx4 a[{BZ+ft*4}:{BZ+ft*4+3}], v{vMX}, s[{sWS}:{sWS+3}], s{sB0} offen offset:{2048+ft*64}{SC}", "bl"))
    for t in range(4):
        bl.append(mk.VM(f"buffer_load_dwordx4 a[{BQ+4*t}:{BQ+4*t+3}], v{vL16}, s[{sWS}:{sWS+3}], s{sB1} offen offset:{t*1024}{SC}", "bl"))
    for pp in range(8):
        for ft in range(2):
            bl.append(mk.VM(f"buffer_load_dwordx4 v[{Q+pp*8+ft*4}:{Q+pp*8+ft*4+3}], v{vL16}, s[{sWS}:{sWS+3}], s{sB0} offen offset:{ft*1024}{SC}", "bl"))
        bl.append(I(f"s_add_u32 s{sB0}, s{sB0}, {BKV_P}"))
    B.spread(bl, 0, 60)
    B.spread(softmax_items(1, True), 0, 21)
    def st1():
        a(f"v_mov_b32 v{D}, v{M+2}")
        a(f"v_mov_b32 v{D+1}, v{M+3}")
        a(f"v_mov_b32 v{D+2}, v{lc(1,2)}")
        a(f"v_mov_b32 v{D+3}, v{lc(1,3)}")
        a.lg(f"ds_write_b128 v{vQX}, v[{D}:{D+3}]", "sx")
        a(f"v_xor_b32 v{vQX}, 0x2000, v{vQX}")
    B.put(32, Item(st1, 24))
    def st2():
        a.wait_vm("kv", always=True)
        a("s_waitcnt lgkmcnt(0)"); a.lgq = []
        a("s_barrier")
        a.lg(f"ds_read_b128 v[{D}:{D+3}], v{vQX}", "sx")
        if PROG: f3_item().fn()
    B.put(38, Item(st2, 12))
    for f in range(8):
        for ub in range(2):
            o = o_(2 + ub, f)
            B.put(min(32 + 2 * f + ub + 10, 63), Item(lambda o=o, f=f, ub=ub: a.lg(f"ds_write_b128 v{vK}, a[{o}:{o+3}] offset:{(ub*8+f)*1024}", "ox"), 8))
    FA = [F, F + 2]; FB = [TE, TE + 2]
    def st3():
        a.wait_lg("sx", always=True)
        for u in range(2):
            a(f"v_max_f32 v{vT1}, v{M+u}, v{D+u}")
            a(f"v_sub_f32 v{FA[u]}, v{M+u}, v{vT1}")
            a(f"v_sub_f32 v{FB[u]}, v{D+u}, v{vT1}")
        for u in range(2):
            a(f"v_exp_f32 v{FA[u]}, v{FA[u]}")
            a(f"v_exp_f32 v{FB[u]}, v{FB[u]}")
    def st4():
        for u in range(2):
            a(f"v_mul_f32 v{lc(1,u)}, v{lc(1,u)}, v{FA[u]}")
            a(f"v_fmac_f32 v{lc(1,u)}, v{D+2+u}, v{FB[u]}")
        for u in range(2): a(f"v_rcp_f32 v{lc(1,u)}, v{lc(1,u)}")
    def st5():
        for u in range(2): a(f"v_mul_f32 v{lc(1,u)}, {hex(f2u(2.0 ** -VEXP))}, v{lc(1,u)}")
        for u in range(2):
            a(f"v_mul_f32 v{FA[u]}, v{FA[u]}, v{lc(1,u)}")
            a(f"v_mul_f32 v{FB[u]}, v{FB[u]}, v{lc(1,u)}")
    B.put(46, Item(st3, 60)); B.put(50, Item(st4, 32)); B.put(53, Item(st5, 16))
    B.emit(a)
    a(f"""
v_xor_b32 v{vK}, 0x8000, v{vK}
s_waitcnt lgkmcnt(0)
s_barrier
""")
    a.lgq = []
    OB = S
    for r in range(15): a.lg(f"ds_read_b128 v[{OB+r*4}:{OB+r*4+3}], v{vK} offset:{r*1024}", ("ob", r))
    T = P
    n = 0
    for u in range(2):
        for r in range(32): a(f"v_accvgpr_read_b32 v{T+r}, a{o_(u,0)+r}")
        if u == 0: a.lg(f"ds_read_b128 v[{OB+60}:{OB+63}], v{vK} offset:{15*1024}", ("ob", 15))
        for r in range(0, 32, 2):
            a(f"v_pk_mul_f32 v[{T+r}:{T+r+1}], v[{T+r}:{T+r+1}], v[{FA[u]}:{FA[u]+1}] op_sel_hi:[1,0]")
        a.wait_lg(("ob", u * 8 + 7))
        for dk in range(4):
            pk = PKR + (n % 4) * 4
            for j in range(4):
                r = dk * 8 + j * 2
                a(f"v_pk_fma_f32 v[{T+r}:{T+r+1}], v[{OB+u*32+r}:{OB+u*32+r+1}], v[{FB[u]}:{FB[u]+1}], v[{T+r}:{T+r+1}] op_sel_hi:[1,0,1]")
            for j in range(4):
                r = dk * 8 + j * 2
                a(f"v_cvt_pk_bf16_f32 v{pk+j}, v{T+r}, v{T+r+1}")
            a.vm(f"buffer_store_dwordx4 v[{pk}:{pk+3}], v{vST[u]}, s[{sWS}:{sWS+3}], s{sCTXA} offen offset:{dk*1024} {FST}", "st")
            n += 1
    a.stamp(9)
    a.wait_vm("bl")
    ZS = P + 16
    for r in range(8): a(f"v_accvgpr_read_b32 v{ZS+r}, a{BZ+r}")
    for step in (32, 16, 8):
        for r in range(0, step, 2): a(f"v_pk_add_f32 v[{Q+r}:{Q+r+1}], v[{Q+r}:{Q+r+1}], v[{Q+step+r}:{Q+step+r+1}]")
    for dpp in ("quad_perm:[1,0,3,2]", "quad_perm:[2,3,0,1]", "row_half_mirror"):
        for r in range(8): a(f"v_add_f32_dpp v{ZS+r}, v{ZS+r}, v{ZS+r} {dpp} row_mask:0xf bank_mask:0xf")
    KVF, ZF = Q + 8, Q + 12
    for j in range(4):
        a(f"v_cvt_pk_bf16_f32 v{KVF+j}, v{Q+2*j}, v{Q+2*j+1}")
        a(f"v_cvt_pk_bf16_f32 v{ZF+j}, v{ZS+2*j}, v{ZS+2*j+1}")
    a("s_nop 1")
    NUM, DEN = Q + 16, Q + 32
    for t in range(4):
        a(f"{MF} v[{NUM+t*4}:{NUM+t*4+3}], v[{KVF}:{KVF+3}], a[{BQ+t*4}:{BQ+t*4+3}], 0")
        a(f"{MF} v[{DEN+t*4}:{DEN+t*4+3}], v[{ZF}:{ZF+3}], a[{BQ+t*4}:{BQ+t*4+3}], 0")
    a(f"""
s_lshl_b32 s{sT0}, s{sI}, 2
s_add_u32 s{sT0}, s{sT0}, s{sWAVE}
s_mul_i32 s{sT0}, s{sT0}, {4*144*1024}
s_lshr_b32 s{sT1}, s{sH}, 1
s_lshl_b32 s{sT1}, s{sT1}, 10
s_add_u32 s{sT0}, s{sT0}, s{sT1}
s_and_b32 s{sT2}, s{sH}, 1
s_lshl_b32 s{sT2}, s{sT2}, 3
s_add_u32 s{sT0}, s{sT0}, s{sT2}
s_add_u32 s{sT0}, s{sT0}, {CTX + 128*1024}
""")
    for t in range(4): a(f"v_add_f32 v{TE+t}, {hex(f2u(1e-6))}, v{DEN+t*4}")
    for t in range(4): a(f"v_rcp_f32 v{TE+t}, v{TE+t}")
    for t in range(4):
        for r in range(4): a(f"v_mul_f32 v{NUM+t*4+r}, v{NUM+t*4+r}, v{TE+t}")
        a(f"v_cvt_pk_bf16_f32 v{NUM+t*4}, v{NUM+t*4}, v{NUM+t*4+1}")
        a(f"v_cvt_pk_bf16_f32 v{NUM+t*4+1}, v{NUM+t*4+2}, v{NUM+t*4+3}")
        a.vm(f"buffer_store_dwordx2 v[{NUM+t*4}:{NUM+t*4+1}], v{vL16}, s[{sWS}:{sWS+3}], s{sT0} offen {OST}", "ost")
        a(f"s_add_u32 s{sT0}, s{sT0}, {144*1024}")
    a.stamp(12)
    if a.diag and not fused3: a("s_waitcnt vmcnt(0)")
    a.stamp(23); a.stamp(10, real=True)
    a.stamp_flush(sWS, sWAVE, 24, DIAG, kidx=1)
    a.k2_exit = list(a.vmq)
    if fused3:
        a(f"""
s_lshl_b32 s99, s{sH}, 3
s_add_u32 s99, s99, s{sI}
s_lshl_b32 s99, s99, 7
s_branch K3_fused_entry
""")
    a.label(END)
    a("s_endpgm")
    a.flush_stubs()

    a.label(LMASK)
    a(f"s_add_u32 s{sRET}, s{sRET}, 4")
    a(f"s_addc_u32 s{sRET+1}, s{sRET+1}, 0")
    for g, sD, sE in ((0, sDGA, sEVA), (1, sDGB, sEVB)):
        L1 = a.newlabel("K2_m1"); L2 = a.newlabel("K2_m2")
        a(f"""
s_cmp_lt_u32 s{sKAP}, s{sE}
s_cbranch_scc1 {L2}
s_cmp_eq_u32 s{sKAP}, s{sD}
s_cbranch_scc1 {L1}
s_mov_b32 s{sE}, 0x7fffffff
""")
        for r in range(0, 16, 2): a(f"v_pk_mov_b32 v[{nm(2*g,0)+r}:{nm(2*g,0)+r+1}], v[{vBIG}:{vBIG+1}], v[{vBIG}:{vBIG+1}] op_sel:[0,0]")
        a(f"s_branch {L2}")
        a.label(L1)
        a(f"s_add_u32 s{sE}, s{sD}, 1")
        for r in range(0, 4, 2): a(f"v_pk_mov_b32 v[{nm(2*g,1)+r}:{nm(2*g,1)+r+1}], v[{vBIG}:{vBIG+1}], v[{vBIG}:{vBIG+1}] op_sel:[0,0]")
        for r in range(4):
            a(f"v_cndmask_b32 v{nm(2*g,0)+r}, v{nm(2*g,0)+r}, v{vBIG}, s[{sM[r]}:{sM[r]+1}]")
            a(f"v_cndmask_b32 v{nm(2*g+1,1)+r}, v{nm(2*g+1,1)+r}, v{vBIG}, s[{sM[r]}:{sM[r]+1}]")
        a.label(L2)
    a(f"s_min_u32 s{sDMIN}, s{sEVA}, s{sEVB}")
    a(f"s_setpc_b64 s[{sRET}:{sRET+1}]")
    def adjust(par):
        a("s_nop 15")
        DD = [D + u for u in range(4)]
        row_max(par, DD)
        for u in range(4): a(f"v_max_f32 v{D+u}, 0, v{D+u}")
        for u in range(4): a(f"v_exp_f32 v{F+u}, -v{D+u}")
        a("s_nop 0")
        for u in range(4):
            a(f"v_mul_f32 v{lc(par^1,u)}, v{lc(par^1,u)}, v{F+u}")
            a(f"v_accvgpr_write_b32 a{LA+4*u}, v{lc(par^1,u)}")
            for r in range(32):
                t = TE + r % 8
                a(f"v_accvgpr_read_b32 v{t}, a{o_(u,0)+r}")
                a(f"v_mul_f32 v{t}, v{t}, v{F+u}")
                a(f"v_accvgpr_write_b32 a{o_(u,0)+r}, v{t}")
        for u in range(4):
            a(f"v_add_f32 v{M+u}, v{M+u}, v{D+u}")
            for r in range(8):
                a(f"v_sub_f32 v{s_(0,u,0)+r}, v{s_(0,u,0)+r}, v{D+u}")
                a(f"v_sub_f32 v{s_(1,u,0)+r}, v{s_(1,u,0)+r}, v{D+u}")
                a(f"v_sub_f32 v{nm(u,0)+r}, v{nm(u,0)+r}, v{D+u}")
        for it in softmax_items(par): it.fn()
        a("s_nop 1"); lmfma(par, 3).fn(); a("s_nop 7")
        lread(par, 2).fn(); lread(par, 3).fn()
        for it in early(par ^ 1): it.fn()
        a("s_nop 1")
        a(f"s_setpc_b64 s[{sRET}:{sRET+1}]")
    for par in range(2):
        a.label(LADJ[par]); adjust(par)
    a.label("K2_code_end")
    a("s_endpgm")
```

```python
from asmlib import Asm
from sched import *
from common import *

def gen_k3m(a, L2W=0, PROG=0, BP=48, FAST=2, SPLITF=1):
    sWO, sWB, sWS, sOUT = 4, 8, 12, 16
    (sWAVE, sRB, sCB, sKQ, sT0, sT1, sCNT, sCSRC, sWSRC, sW4, sOB, sPSRC, sOBB, sRH, sCH, sBC, sBW) = range(24, 41)
    sPD = [41, 42, 43]
    ACC = 0
    ACB = 64
    FR = 80
    vL16, vC1, vC2, vL, vT0, vT1, vT2, vO, vCR, vCR2 = 191, 192, 193, 194, 195, 196, 197, 198, 199, 200
    vWD = [201, 202, 203, 204]
    vZ = 205
    vWR = [144, 145, 146, 147]; vWR2 = [148, 149, 150, 151]
    vBD = [152, 153, 154, 155]; vBC = [156, 157, 158]; vBW = [159, 160, 161, 162, 163, 164]
    RX = 166
    mk = Mk(a); I = mk.I
    a.label("K3_fused_entry")
    a.vmq = list(a.k2_exit) if SPLITF else []; a.lgq = []
    a(f"v_mov_b32 v{vL}, v215")
    a(f"s_mov_b32 s{sWAVE}, s16")
    a.stamp(14)
    a(f"""
s_load_dwordx2 s[50:51], s[0:1], 80     ; out
s_lshr_b32 s{sT1}, s2, 3                ; q
s_and_b32 s{sCB}, s{sT1}, 3
s_lshr_b32 s{sRB}, s{sT1}, 2
s_and_b32 s{sT0}, s2, 1
s_xor_b32 s{sT0}, s{sT0}, {1 if PROG else 0}
s_lshl_b32 s{sT0}, s{sT0}, 3
s_add_u32 s{sRB}, s{sRB}, s{sT0}
s_bfe_u32 s{sKQ}, s2, 0x20001           ; K quarter
s_lshl_b32 s{sWSRC}, s{sKQ}, 20
s_lshl_b32 s{sT0}, s{sWAVE}, 14
s_add_u32 s{sWSRC}, s{sWSRC}, s{sT0}
s_lshl_b32 s{sT0}, s{sCB}, 8
s_add_u32 s{sWSRC}, s{sWSRC}, s{sT0}
s_lshl_b32 s{sW4}, s{sWAVE}, 12
s_mov_b32 s{sWO}, s88
s_mov_b32 s{sWO+1}, s89
s_mov_b32 s{sWO+2}, 0x400000
s_mov_b32 s{sWO+3}, 0x20000
v_lshrrev_b32 v{vT2}, 4, v{vL}
v_lshlrev_b32 v{vT0}, 10, v{vT2}
v_and_b32 v{vT1}, 15, v{vL}
v_lshlrev_b32 v{vT2}, 1, v{vT2}
v_xor_b32 v{vT1}, v{vT1}, v{vT2}
v_lshl_add_u32 v{vWD[0]}, v{vT1}, 4, v{vT0}
v_xor_b32 v{vT1}, 8, v{vT1}
v_lshl_add_u32 v{vWD[1]}, v{vT1}, 4, v{vT0}
v_add_u32 v{vWD[1]}, 3072, v{vWD[1]}
v_add_u32 v{vWD[2]}, 6144, v{vWD[0]}
v_add_u32 v{vWD[3]}, 6144, v{vWD[1]}
s_barrier
""")
    a.stamp(0); a.stamp(1, real=True)
    def a_dma_c(slot):
        its = [I(f"s_add_u32 m0, s{sW4}, {slot * 32768}"), I("s_nop 0")]
        for i in range(4):
            its.append(mk.VM(f"buffer_load_dwordx4 v{vC1 if i < 2 else vC2}, s[{sWS}:{sWS+3}], s{sCSRC} offen offset:{i*1024} sc1 lds", ("st", slot)))
        return its + [I(f"s_add_u32 s{sCSRC}, s{sCSRC}, 2048")]
    def a_dma_w(slot, tag=None):
        its = [I(f"s_add_u32 m0, s{sW4}, {slot * 32768 + 16384}"), I("s_nop 0")]
        for i in range(4):
            its.append(mk.VM(f"buffer_load_dwordx4 v{vWD[i]}, s[{sWO}:{sWO+3}], s{sWSRC} offen offset:{i*1024} lds", tag or ("st", slot)))
        return its + [I(f"s_add_u32 s{sWSRC}, s{sWSRC}, 0x10000")]
    def a_dma(slot):
        c = a_dma_c(slot); w = a_dma_w(slot)
        return c[:-1] + [w[0], c[-1]] + w[2:]
    def b_dma(slot):
        its = [I(f"s_add_u32 m0, s{sW4}, {slot * 32768}"), I("s_nop 0")]
        for i in range(4):
            its.append(mk.VM(f"buffer_load_dwordx4 v{vL16}, s[{sWS}:{sWS+3}], s{sBC} offen offset:{i*1024} sc1 lds", ("st", slot)))
        its += [I(f"s_add_u32 m0, s{sW4}, {slot * 32768 + 16384}"), I(f"s_add_u32 s{sBC}, s{sBC}, 4096")]
        for i in range(4):
            its.append(mk.VM(f"buffer_load_dwordx4 v{vBD[i]}, s[{sWB}:{sWB+3}], s{sBW} offen offset:{i*1024} lds", ("st", slot)))
        its.append(I(f"s_add_u32 s{sBW}, s{sBW}, 0x20000"))
        return its
    for it in a_dma_w(0, "w0") + ([] if FAST else a_dma_w(1) + a_dma_w(2)): it.fn()
    a(f"""
s_mov_b32 s{sWB}, s92
s_mov_b32 s{sWB+1}, s93
s_mov_b32 s{sWB+2}, 0x80000
s_mov_b32 s{sWB+3}, 0x20000
s_mov_b32 s{sOUT+2}, 0x400000
s_mov_b32 s{sOUT+3}, 0x20000
s_lshr_b32 s{sRH}, s{sWAVE}, 1
s_and_b32 s{sCH}, s{sWAVE}, 1
v_lshlrev_b32 v{vL16}, 4, v{vL}
s_lshl_b32 s{sT0}, s{sRB}, 1
s_add_u32 s{sT0}, s{sT0}, s{sRH}
s_mul_i32 s{sCSRC}, s{sT0}, {4*144*1024}
s_lshl_b32 s{sT0}, s{sKQ}, 15
s_add_u32 s{sCSRC}, s{sCSRC}, s{sT0}
s_add_u32 s{sCSRC}, s{sCSRC}, {CTX - 2048}
s_lshl_b32 s{sT0}, s{sCH}, 1
s_add_u32 s{sT0}, s{sT0}, s{sKQ}
s_and_b32 s{sT1}, s{sT0}, 3
s_mul_i32 s{sT1}, s{sT1}, {144*1024}
s_add_u32 s{sT1}, s{sT1}, 2048
v_add_u32 v{vC1}, s{sT1}, v{vL16}
s_add_u32 s{sT0}, s{sT0}, 1
s_and_b32 s{sT1}, s{sT0}, 3
s_mul_i32 s{sT1}, s{sT1}, {144*1024}
v_add_u32 v{vC2}, s{sT1}, v{vL16}
""")
    def setup_rest():
        a(f"""
s_lshl_b32 s{sT0}, s{sRH}, 13
v_add_u32 v{vCR}, s{sT0}, v{vL16}
v_add_u32 v{vCR2}, 0x10000, v{vCR}
v_mov_b32 v{vBC[0]}, v{vCR}
v_mov_b32 v{vBC[1]}, v{vCR2}
v_add_u32 v{vBC[2]}, 0x10000, v{vCR2}
v_lshrrev_b32 v{vT0}, 4, v{vL}              ; kq
v_bfe_u32 v{vT1}, v{vL}, 2, 2               ; r
v_lshl_add_u32 v{vT2}, v{vT0}, 2, v{vT1}    ; kq*4+r
v_and_b32 v{vT0}, 3, v{vL}
v_lshlrev_b32 v{vT0}, 3, v{vT0}
v_add_u32 v{vT0}, 16384, v{vT0}             ; c4*8 + W part
v_lshl_add_u32 v{vZ}, v{vT2}, 8, v{vT0}
v_and_b32 v{vT1}, 7, v{vT2}
s_lshl_b32 s{sT0}, s{sCH}, 2
v_xor_b32 v{vT1}, s{sT0}, v{vT1}
""")
        for mt in range(4):
            a(f"v_xor_b32 v{vO}, {mt}, v{vT1}")
            a(f"v_lshl_add_u32 v{vWR[mt]}, v{vO}, 5, v{vZ}")
            a(f"v_add_u32 v{vWR2[mt]}, 0x10000, v{vWR[mt]}")
        a(f"""
v_lshl_add_u32 v{vZ}, v{vT2}, 7, v{vT0}
v_bfe_u32 v{vT1}, v{vT2}, 1, 2
s_lshl_b32 s{sT0}, s{sCH}, 1
v_xor_b32 v{vT1}, s{sT0}, v{vT1}
v_lshl_add_u32 v{vBW[0]}, v{vT1}, 5, v{vZ}
v_xor_b32 v{vT1}, 1, v{vT1}
v_lshl_add_u32 v{vBW[1]}, v{vT1}, 5, v{vZ}
v_add_u32 v{vBW[2]}, 0x10000, v{vBW[0]}
v_add_u32 v{vBW[3]}, 0x10000, v{vBW[1]}
v_add_u32 v{vBW[4]}, 0x20000, v{vBW[0]}
v_add_u32 v{vBW[5]}, 0x20000, v{vBW[1]}
v_lshrrev_b32 v{vT0}, 3, v{vL}
v_lshlrev_b32 v{vT0}, 10, v{vT0}
v_and_b32 v{vT1}, 7, v{vL}
v_lshrrev_b32 v{vT2}, 4, v{vL}
v_lshlrev_b32 v{vT2}, 1, v{vT2}
v_xor_b32 v{vT1}, v{vT1}, v{vT2}
v_lshl_add_u32 v{vBD[0]}, v{vT1}, 4, v{vT0}
v_add_u32 v{vBD[1]}, {7*1024}, v{vBD[0]}
v_add_u32 v{vBD[2]}, {14*1024}, v{vBD[0]}
v_add_u32 v{vBD[3]}, {21*1024}, v{vBD[0]}
v_and_b32 v{vT0}, 15, v{vL}
v_lshlrev_b32 v{vT0}, 11, v{vT0}
v_lshrrev_b32 v{vT1}, 4, v{vL}
v_lshl_add_u32 v{vO}, v{vT1}, 3, v{vT0}
v_mov_b32 v{vZ}, 0
s_lshl_b32 s{sOB}, s{sRB}, 18
s_lshl_b32 s{sT0}, s{sCB}, 8
s_add_u32 s{sOB}, s{sOB}, s{sT0}
s_mov_b32 s{sOBB}, s{sOB}
s_lshl_b32 s{sT0}, s{sRH}, 17
s_add_u32 s{sOB}, s{sOB}, s{sT0}
s_lshl_b32 s{sT0}, s{sKQ}, 15
s_add_u32 s{sOB}, s{sOB}, s{sT0}
s_lshl_b32 s{sT0}, s{sCH}, 7
s_add_u32 s{sOB}, s{sOB}, s{sT0}
s_lshr_b32 s{sT0}, s{sKQ}, 1
s_lshl_b32 s{sT0}, s{sT0}, 17
s_add_u32 s{sOBB}, s{sOBB}, s{sT0}
s_lshl_b32 s{sT0}, s{sRH}, 16
s_add_u32 s{sOBB}, s{sOBB}, s{sT0}
s_and_b32 s{sT0}, s{sKQ}, 1
s_lshl_b32 s{sT0}, s{sT0}, 7
s_add_u32 s{sOBB}, s{sOBB}, s{sT0}
s_lshl_b32 s{sT0}, s{sCH}, 6
s_add_u32 s{sOBB}, s{sOBB}, s{sT0}
s_lshl_b32 s{sT0}, s{sRB}, 3
s_and_b32 s{sT1}, s{sKQ}, 2
s_lshl_b32 s{sT1}, s{sT1}, 1
s_add_u32 s{sT0}, s{sT0}, s{sT1}
s_add_u32 s{sT0}, s{sT0}, s{sWAVE}
s_mul_i32 s{sBC}, s{sT0}, {144*1024}
s_add_u32 s{sBC}, s{sBC}, {CTX + 128*1024}
s_lshl_b32 s{sBW}, s{sWAVE}, 15
s_lshl_b32 s{sT0}, s{sCB}, 8
s_add_u32 s{sBW}, s{sBW}, s{sT0}
s_and_b32 s{sT0}, s{sKQ}, 1
s_lshl_b32 s{sT0}, s{sT0}, 7
s_add_u32 s{sBW}, s{sBW}, s{sT0}
s_lshl_b32 s{sT0}, s2, 2
s_add_u32 s{sT0}, s{sT0}, s{sWAVE}
s_mul_i32 s{sPSRC}, s{sT0}, 6144
s_add_u32 s{sPSRC}, s{sPSRC}, {PART}
""")
        for j in range(1, 4):
            a(f"""
s_sub_u32 s{sT0}, s{sKQ}, {j}
s_and_b32 s{sT0}, s{sT0}, 3
s_sub_u32 s{sT0}, s{sT0}, s{sKQ}
s_mul_i32 s{sT0}, s{sT0}, {2*4*6144}
s_add_u32 s{sPD[j-1]}, s{sPSRC}, s{sT0}
s_add_u32 s{sPD[j-1]}, s{sPD[j-1]}, {(j-1)*2048}
""")
        MF32 = "v_mfma_f32_32x32x16_bf16"
        for k in range(5): a(f"{MF32} v[{k*16}:{k*16+15}], v[236:239], v[236:239], 0")
    if not FAST: setup_rest()
    LS = a.newlabel("K3_in"); LP0 = a.newlabel("K3_inp"); LT = a.newlabel("K3_int")
    vP1, vP2, vP3, vPV, vEXP, vE3, vTWO = 206, 207, 208, 209, 210, 211, 212
    sPO = 44
    def spin(vaddr, back):
        L = a.newlabel("K3_sp"); LP = a.newlabel("K3_spl")
        a.stubs.append(f"""{L}:
s_mov_b32 s45, 0x40000
{LP}:
buffer_load_dword v{vPV}, v{vaddr}, s[{sWS}:{sWS+3}], s{sPO} offen sc1
s_waitcnt vmcnt(0)
v_cmp_gt_u32 vcc, v{vEXP}, v{vPV}
s_sub_u32 s45, s45, 1
s_cmp_eq_u32 s45, 0
s_cbranch_scc1 {back}
s_cbranch_vccz {back}
s_sleep 1
s_branch {LP}""")
        return L
    def poll_issue(vaddr): return mk.VM(f"buffer_load_dword v{vPV}, v{vaddr}, s[{sWS}:{sWS+3}], s{sPO} offen sc1", "poll")
    def poll_check(vaddr):
        def f():
            R = a.newlabel("K3_ok")
            a.wait_vm("poll", always=True)
            a(f"v_cmp_gt_u32 vcc, v{vEXP}, v{vPV}")
            a("s_nop 1")
            a(f"s_cbranch_vccnz {spin(vaddr, R)}")
            a.label(R)
        return Item(f, 16, "X")
    if PROG:
        a(f"""
s_waitcnt lgkmcnt(0)
s_mov_b32 s{sOUT}, s50
s_mov_b32 s{sOUT+1}, s51
s_sub_u32 s{sT0}, 15, s{sRB}
s_min_u32 s{sT0}, s{sT0}, s{sRB}
s_lshl_b32 s{sT0}, s{sT0}, 3
s_lshl_b32 s{sT1}, s{sKQ}, 1
s_add_u32 s{sT0}, s{sT0}, s{sT1}
s_cmp_ge_u32 s{sRB}, 8
s_cselect_b32 s{sT1}, 512, 0
s_add_u32 s{sT0}, s{sT0}, s{sT1}
v_and_b32 v{vT2}, 3, v{vL}
v_lshlrev_b32 v{vT1}, 6, v{vT2}
v_add_u32 v{vP1}, s{sT0}, v{vT1}
v_add_u32 v{vP2}, 1, v{vP1}
v_lshlrev_b32 v{vP1}, 7, v{vP1}
v_lshlrev_b32 v{vP2}, 7, v{vP2}
s_lshr_b32 s{sT0}, s{sRB}, 1
s_lshl_b32 s{sT0}, s{sT0}, 3
s_add_u32 s{sT0}, s{sT0}, 512
v_add_u32 v{vT1}, s{sT0}, v{vT1}
v_bfe_u32 v{vT0}, v{vL}, 2, 3
v_add_u32 v{vT1}, v{vT0}, v{vT1}
v_cmp_gt_u32 vcc, 32, v{vL}
s_and_b32 s{sT0}, s2, 0xf9
s_add_u32 s{sT0}, s{sT0}, 512
v_lshl_add_u32 v{vT2}, v{vT2}, 1, s{sT0}
v_cndmask_b32 v{vP3}, v{vT2}, v{vT1}, vcc
v_lshlrev_b32 v{vP3}, 7, v{vP3}
s_lshl_b32 s99, s2, 7
s_add_u32 s99, s99, {FLAGS + 65536}
s_cmp_eq_u32 s{sWAVE}, 0
s_cselect_b32 s{sPO}, {FLAGS}, s{sWS+2}
s_cselect_b32 s99, s99, s{sWS+2}
s_cselect_b32 s{sT0}, 1, 0
v_mov_b32 v{vEXP}, s{sT0}
v_lshlrev_b32 v{vTWO}, {1 if SPLITF else 0}, v{vEXP}
v_cndmask_b32 v{vE3}, v{vEXP}, v{vTWO}, vcc
""")
        if SPLITF: a.wait_vm("st")
        elif FAST == 1:
            poll_issue(vP1).fn()
            a.wait_vm("poll")
        else: a.wait_vm("w0")
        a("s_barrier")
        a.vm(f"buffer_store_dword v{vEXP}, v236, s[{sWS}:{sWS+3}], s99 offen sc1", "f2")
        if FAST == 2:
            for it in a_dma_w(1) + a_dma_w(2): it.fn()
            poll_issue(vP1).fn()
            setup_rest()
        elif FAST == 0: poll_issue(vP1).fn()
        poll_check(vP1).fn()
        a("s_barrier")
        a(f"v_mov_b32 v{vP1}, v{vP1}")
    else:
        a(f"""
s_waitcnt lgkmcnt(0)
s_mov_b32 s{sOUT}, s50
s_mov_b32 s{sOUT+1}, s51
s_sub_u32 s{sT0}, 15, s{sRB}
s_min_u32 s{sT0}, s{sT0}, s{sRB}
s_lshl_b32 s{sT0}, s{sT0}, 3
s_lshl_b32 s{sT1}, s{sKQ}, 1
s_add_u32 s{sT0}, s{sT0}, s{sT1}
v_and_b32 v{vT2}, 3, v{vL}
v_lshlrev_b32 v{vT1}, 6, v{vT2}
v_bfe_u32 v{vT0}, v{vL}, 2, 1
v_add3_u32 v{vT0}, v{vT0}, v{vT1}, s{sT0}
s_lshr_b32 s{sT0}, s{sRB}, 1
s_lshl_b32 s{sT0}, s{sT0}, 3
v_add_u32 v{vT1}, s{sT0}, v{vT1}
v_bfe_u32 v{RX}, v{vL}, 2, 3
v_add_u32 v{vT1}, v{RX}, v{vT1}
v_cmp_gt_u32 vcc, 32, v{vL}
s_and_b32 s{sT0}, s2, 0xf9
v_lshl_add_u32 v{vT2}, v{vT2}, 1, s{sT0}
v_cndmask_b32 v{vT1}, v{vT0}, v{vT1}, vcc
v_cmp_le_u32 vcc, 48, v{vL}
s_lshl_b32 s99, s2, 7
s_add_u32 s99, s99, {FLAGS + 65536}
v_cndmask_b32 v{vT1}, v{vT1}, v{vT2}, vcc
v_lshlrev_b32 v{vT1}, 7, v{vT1}
v_mov_b32 v{vT0}, 1
s_mov_b32 s{sT0}, {FLAGS + 65536}
s_mov_b32 s{sCNT}, 0x40000
""")
        a.wait_vm("w0")
        if L2W:
            a(f"""
s_lshr_b32 s60, s2, 3
s_lshl_b32 s60, s60, 2
s_add_u32 s60, s60, s{sWAVE}
s_lshl_b32 s61, s60, 13
s_lshl_b32 s62, s{sKQ}, 20
s_add_u32 s61, s61, s62
s_lshl_b32 s60, s60, 12
v_lshlrev_b32 v{RX+1}, 7, v{vL}
v_and_b32 v{RX+2}, 0xfff, v{RX+1}
""")
        a(f"""
s_barrier
s_cmp_lg_u32 s{sWAVE}, 0
s_cbranch_scc1 {LT}
s_mov_b64 exec, 1
buffer_store_dword v{vT0}, v{vZ}, s[{sWS}:{sWS+3}], s99 offen sc1
s_mov_b64 exec, -1
{LP0}:
buffer_load_dword v{vT2}, v{vT1}, s[{sWS}:{sWS+3}], s{sT0} offen sc1
s_waitcnt vmcnt(0)
v_cmp_ne_u32 vcc, 1, v{vT2}
s_nop 1
s_cbranch_vccz {LS}
s_sleep 1
s_sub_u32 s{sCNT}, s{sCNT}, 1
s_cmp_lg_u32 s{sCNT}, 0
s_cbranch_scc1 {LP0}
{LS}:
{LT}:
""")
        if L2W:
            a(f"buffer_load_dword v{RX+3}, v{RX+1}, s[{sWO}:{sWO+3}], s61 offen")
            a(f"buffer_load_dword v{RX+3}, v{RX+2}, s[{sWB}:{sWB+3}], s60 offen")
        a("s_barrier")
    a.stamp(7)
    if FAST == 1:
        for it in a_dma_c(0) + a_dma(1): it.fn()
        setup_rest()
        for it in a_dma(2): it.fn()
    else:
        for it in a_dma_c(0) + a_dma_c(1) + a_dma_c(2): it.fn()
    def a_reads(slot, k, st):
        c = vCR if slot < 2 else vCR2; w = vWR if slot < 2 else vWR2
        so = (slot & 1) * 32768
        fb = FR + st * 32
        its = []
        for x in range(4):
            its.append(mk.LG(f"ds_read_b128 v[{fb+x*4}:{fb+x*4+3}], v{c} offset:{so + x*2048 + k*1024}", ("fc", st)))
        for x in range(4):
            for jj in range(2):
                b = fb + 16 + x * 4 + jj * 2
                its.append(mk.LG(f"ds_read_b64_tr_b16 v[{b}:{b+1}], v{w[x]} offset:{so + k*8192 + jj*4096}", ("fw", st, x)))
        return its
    def pub(j):
        d = ACC + j * 16
        its = [I(f"v_cvt_pk_bf16_f32 v{d+x}, v{d+2*x}, v{d+2*x+1}") for x in range(8)]
        st = [mk.VM(f"buffer_store_dwordx4 v[{d+hf*4}:{d+hf*4+3}], v{vL16}, s[{sWS}:{sWS+3}], s{sPSRC} offen offset:{((j-1)*2048 + hf*1024) % 4096} sc1", "pub") for hf in range(2)]
        pre = [I(f"s_add_u32 s{sPSRC}, s{sPSRC}, 4096")] if j == 3 else []
        return pre + its[:4] + [st[0]] + its[4:] + [st[1]]
    def a_stage(slot, refill, last=False, pi=None, pc=None):
        B = Body(32)
        for k in range(2):
            fb = FR + k * 32
            for mt in range(4):
                for qt in range(4):
                    d = ACC + (qt * 4 + mt) * 4
                    s = f"{MF} v[{d}:{d+3}], v[{fb+16+mt*4}:{fb+19+mt*4}], v[{fb+qt*4}:{fb+qt*4+3}], v[{d}:{d+3}]"
                    m = mt * 4 + (qt ^ 3 if mt & 1 else qt) if not (last and k) else ((qt + 3) & 3) * 4 + mt
                    B.mfma[k * 16 + m] = (lambda s=s: a(s))
                if last and k:
                    if mt == 0: B.put_pre(16, mk.WL(("fw", k, 3)))
                elif mt % 2 == 0: B.put_pre(k * 16 + mt * 4, mk.WL(("fw", k, mt + 1)))
        r1 = a_reads(slot, 1, 1)
        for j, it in enumerate(r1): B.put((2 if not last else 1) * (j >> 1), it)
        if not last:
            n = (slot + 1) % 4
            B.put(16, mk.WV(("st", n), lg0=True), 3); B.put(16, I("s_barrier"), 3)
            for j, it in enumerate(a_reads(n, 0, 0)): B.put(18 + 2 * (j >> 1), it)
        if pi: B.put(1, pi[0]); [B.put(3, x) for x in pi[1:]]
        if pc: B.put(15, pc, 3)
        if refill: B.stream(refill, 0, 32 if not last else 26)
        if last: B.stream(pub(1), 27, 32)
        B.emit(a)
    a.wait_vm(("st", 0)); a("s_barrier")
    if SPLITF: a.vm(f"buffer_store_dword v{vTWO}, v236, s[{sWS}:{sWS+3}], s99 offen sc1", "f2")
    for it in a_reads(0, 0, 0): it.fn()
    L = a.newlabel("K3_loop")
    a(f"s_mov_b32 s{sCNT}, 3")
    a.stamp(2)
    a.label(L)
    def it_():
        for s in range(4):
            a_stage(s, a_dma((s + 3) % 4),
                    pi=[I(f"v_mov_b32 v{vP1}, v{vP2}")] if PROG and s == 2 else [poll_issue(vP1)] if PROG and s == 3 else None,
                    pc=poll_check(vP1) if PROG and s == 0 else None)
            if PROG and s == 1:
                a(f"s_cmp_eq_u32 s{sCNT}, 1")
                a(f"s_cselect_b64 vcc, -1, 0")
                a(f"v_cndmask_b32 v{vP2}, v{vP2}, v{vP3}, vcc")
                a(f"v_cndmask_b32 v{vEXP}, v{vEXP}, v{vE3}, vcc")
    loop_emit(a, it_)
    a(f"""
s_sub_u32 s{sCNT}, s{sCNT}, 1
s_cmp_lg_u32 s{sCNT}, 0
s_cbranch_scc1 {L}
""")
    a_stage(0, a_dma(3) + b_dma(4)[:2], pc=poll_check(vP1) if PROG else None)
    bd = b_dma(4)[2:] + b_dma(0) + b_dma(1) + b_dma(2)
    n3 = len(bd) // 3
    a_stage(1, b_dma(4)[2:] + b_dma(0)[:6]); a_stage(2, b_dma(0)[6:] + b_dma(1)); a_stage(3, b_dma(2), last=True)
    a.stamp(3)
    if BP:
        a.wait_vm(("st", 1)); a("s_barrier")
        pre_b = True
    for it in pub(2) + pub(3): it.fn()
    a.stamp(6)
    def b_stage(slot, idx):
        a.wait_vm(("st", slot), always=True)
        a("s_barrier")
        a.stamp(15 + idx)
        c = vBC[slot >> 1]; w = vBW[(slot >> 1) * 2:(slot >> 1) * 2 + 2]
        so = (slot & 1) * 32768
        def reads(k):
            fb = FR + k * 16
            for qt in range(2):
                a.lg(f"ds_read_b128 v[{fb+qt*4}:{fb+qt*4+3}], v{c} offset:{so + qt*4096 + k*1024}", ("f", k))
            for mt in range(2):
                for jj in range(2):
                    b = fb + 8 + mt * 4 + jj * 2
                    a.lg(f"ds_read_b64_tr_b16 v[{b}:{b+1}], v{w[mt]} offset:{so + k*4096 + jj*2048}", ("f", k))
        def mf(k):
            fb = FR + k * 16
            a.wait_lg(("f", k), always=True)
            for mt in range(2):
                for qt in range(2):
                    d = ACB + (mt * 2 + qt) * 4
                    a(f"{MF} v[{d}:{d+3}], v[{fb+8+mt*4}:{fb+8+mt*4+3}], v[{fb+qt*4}:{fb+qt*4+3}], v[{d}:{d+3}]")
        reads(0); reads(1); mf(0); reads(2); mf(1); reads(3); mf(2); mf(3)
    def rx_loads():
        for j in range(3):
            for hf in range(2):
                a(f"buffer_load_dwordx4 v[{RX+j*8+hf*4}:{RX+j*8+hf*4+3}], v{vL16}, s[{sWS}:{sWS+3}], s{sPD[j]} offen offset:{hf*1024} sc1")
    if BP:
        order = [4, 0, 1, 2]
        def breads(kk):
            slot, k = order[kk >> 2], kk & 3
            c = vBC[slot >> 1]; w = vBW[(slot >> 1) * 2:(slot >> 1) * 2 + 2]
            so = (slot & 1) * 32768; fb = FR + (kk & 3) * 16
            its = [mk.LG(f"ds_read_b128 v[{fb+qt*4}:{fb+qt*4+3}], v{c} offset:{so + qt*4096 + k*1024}", ("f", kk)) for qt in range(2)]
            for mt in range(2):
                for jj in range(2):
                    b = fb + 8 + mt * 4 + jj * 2
                    its.append(mk.LG(f"ds_read_b64_tr_b16 v[{b}:{b+1}], v{w[mt]} offset:{so + k*4096 + jj*2048}", ("f", kk)))
            return its
        for kk in range(2):
            for it in breads(kk): it.fn()
        Bb = Body(64)
        for kk in range(16):
            fb = FR + (kk & 3) * 16
            for mt in range(2):
                for qt in range(2):
                    d = ACB + (mt * 2 + qt) * 4
                    t = f"{MF} v[{d}:{d+3}], v[{fb+8+mt*4}:{fb+8+mt*4+3}], v[{fb+qt*4}:{fb+qt*4+3}], v[{d}:{d+3}]"
                    Bb.mfma[kk * 4 + mt * 2 + qt] = (lambda t=t: a(t))
            Bb.put_pre(kk * 4, mk.WL(("f", kk)))
            if kk >= 2:
                if kk == 12:
                    Bb.put(39, mk.WV(("st", 2)), 3); Bb.put(39, I("s_barrier"), 3)
                for j, it in enumerate(breads(kk)): Bb.put((kk - 2) * 4 + (j >> 1), it)
        rx = [mk.VM(f"buffer_load_dwordx4 v[{RX+j*8+hf*4}:{RX+j*8+hf*4+3}], v{vL16}, s[{sWS}:{sWS+3}], s{sPD[j]} offen offset:{hf*1024} sc1", "rx") for j in range(3) for hf in range(2)]
        for n, it in enumerate(rx): Bb.put(BP + n, it)
        Bb.emit(a)
    else:
        b_stage(4, 0); b_stage(0, 1); b_stage(1, 2)
        a.wait_vm(("st", 2))
        rx_loads()
        a.vmq += ["rx"] * 6
        b_stage(2, 3)
    a.stamp(4)
    for mt in range(2):
        for qt in range(2):
            d = ACB + (mt * 2 + qt) * 4
            if mt == 0 and qt == 0: a("s_nop 7")
            a(f"v_cvt_pk_bf16_f32 v{d}, v{d}, v{d+1}")
            a(f"v_cvt_pk_bf16_f32 v{d+1}, v{d+2}, v{d+3}")
    a(f"s_add_u32 s{sT0}, s{sOBB}, 32768")
    for mt in range(2):
        for qt in range(2):
            d = ACB + (mt * 2 + qt) * 4
            a.vm(f"buffer_store_dwordx2 v[{d}:{d+1}], v{vO}, s[{sOUT}:{sOUT+3}], s{sOBB if qt == 0 else sT0} offen offset:{1024 + mt*32}", "o")
    LP = a.newlabel("K3_poll"); LPD = a.newlabel("K3_polled")
    a(f"s_mov_b32 s{sCNT}, 0x40000")
    a.wait_vm("rx")
    a.label(LP)
    a(f"v_max3_u32 v{vT0}, v{RX}, v{RX+1}, v{RX+2}")
    a(f"v_max3_u32 v{vT1}, v{RX+3}, v{RX+4}, v{RX+5}")
    for r in range(6, 22, 4):
        a(f"v_max3_u32 v{vT0}, v{vT0}, v{RX+r}, v{RX+r+1}")
        a(f"v_max3_u32 v{vT1}, v{vT1}, v{RX+r+2}, v{RX+r+3}")
    a(f"v_max3_u32 v{vT0}, v{vT0}, v{RX+22}, v{RX+23}")
    a(f"""
v_max_u32 v{vT0}, v{vT0}, v{vT1}
v_cmp_eq_u32 vcc, -1, v{vT0}
s_sub_u32 s{sCNT}, s{sCNT}, 1
s_cmp_eq_u32 s{sCNT}, 0
s_cbranch_scc1 {LPD}
s_cbranch_vccz {LPD}
s_sleep 4
""")
    rx_loads()
    a(f"""
s_waitcnt vmcnt(0)
s_branch {LP}
{LPD}:
""")
    a.stamp(5)
    for j in range(3):
        for r in range(8):
            a(f"v_lshlrev_b32 v{32+2*r}, 16, v{RX+j*8+r}")
            a(f"v_and_b32 v{33+2*r}, 0xffff0000, v{RX+j*8+r}")
        for r in range(0, 16, 2):
            a(f"v_pk_add_f32 v[{ACC+r}:{ACC+r+1}], v[{ACC+r}:{ACC+r+1}], v[{32+r}:{33+r}]")
    for mt in range(4):
        d = ACC + mt * 4
        a(f"v_cvt_pk_bf16_f32 v{d}, v{d}, v{d+1}")
        a(f"v_cvt_pk_bf16_f32 v{d+1}, v{d+2}, v{d+3}")
        a(f"buffer_store_dwordx2 v[{d}:{d+1}], v{vO}, s[{sOUT}:{sOUT+3}], s{sOB} offen offset:{mt*32}")
    a.stamp(9)
    if a.diag: a("s_waitcnt vmcnt(0)")
    a.stamp(23); a.stamp(10, real=True)
    a.stamp_flush(sWS, sWAVE, 24, DIAG, vt=(195, 196), kidx=2)
    a("s_endpgm")
    a.flush_stubs()
    a.label("K3_code_end")
    a("s_endpgm")
```

```python
import sys
from asmlib import Asm
from k1 import gen_k1
from k2 import gen_k2
from k3 import gen_k3
from k3m import gen_k3m
HEADER = open("concat_heads__compressed_kv_cla__linear_kernel_hedgehog__prompt.s.ref").read().split("; Override launch")[0]
HEADER += """
"""
def build(diag, out, k1kw={}, k2kw={}, **k3kw):
    a = Asm()
    a.diag = diag
    gen_k1(a, **k1kw); gen_k2(a, **k2kw); (gen_k3m(a, L2W=(k2kw.get('L2W') == 2), PROG=k2kw.get('PROG', 0), **k3kw) if k2kw.get('fused3') == 2 else gen_k3(a, **k3kw))
    probs = a.check()
    for p in probs: print(p)
    open(out, "w").write(a.text(HEADER))
    print(out, len(a.lines), "lines", len(probs), "hazards")
if __name__ == "__main__":
    build(True, "all_diag.s")
    build(False, "all.s")
    build(False, "fus.s", k1kw=dict(fused=True), k2kw=dict(fused=True))
    build(True, "fus_diag.s", k1kw=dict(fused=True), k2kw=dict(fused=True))
    M = dict(fused=True, fused3=2, EARLY=0, PROG=1, WARM=1, L2W=0, CH=2); K1M = dict(fused=True, EARLY=0)
    build(False, "mega.s", k1kw=K1M, k2kw=M)
    build(True, "mega_diag.s", k1kw=K1M, k2kw=M)
```

```python
from asmlib import Asm
from sched import *
from common import *
from phasea import PhaseA, WR, FR, AR
from hedge import *

def gen_k1(a, name="k1_kernel", W0=0, ST="sc1", STL="sc1", MAP=1, WB=0, PT=0, ROT=7, fused=False, CPF=1, EARLY=0, SKIPH=0, SWP=0, CT=0):
    a.kernel(name, (256,1,1), (256,1,1), 163840, vgpr=256, agpr=256)
    sACT, sW, sWS = 4, 8, 12
    (sWAVE, sRB, sJOB, sSUB, sSCALE, sROW1, sSTB, sWOFF, sA0, sA1, sT0, sT1, sT2, sCNT, sLA, sLW, sSTFIX,
     sWSRC, sROW4, sROWH, sROW8, sWL, sLC, sSPLIT) = range(16, 40)
    sCO, sWB, sA0c, sA1c, sWH, sHU = 92, 93, 94, 95, 96, 97
    sLC3 = sA0c
    a.k1_exit = []
    ACC = 0; WF = 128
    PK = 160
    TM = 192
    vWA = list(range(208, 216)); vXA = [216, 217]
    vAD = [218, 219, 252, 253]; vWD = [220, 221, 254, 255]
    vS = list(range(222, 230))
    vST = [234, 235, 236, 237]
    vDE, vDO = 238, 239
    vL, vT0, vT1, vT2 = 240, 241, 242, 243
    PK2 = 244
    END = a.newlabel("K1_end"); LV = a.newlabel("K1_vtype"); LBKV = a.newlabel("K1_bkv")
    LK = a.newlabel("K1_ktype"); LJ1 = a.newlabel("K1_j1"); LJ2 = a.newlabel("K1_j2"); LJ3 = a.newlabel("K1_j3"); LJD = a.newlabel("K1_jd")
    a(f"""
s_cmp_ge_u32 s2, 256
s_cbranch_scc1 {END}
""")
    a.stamp(14)
    a(f"""
s_load_dwordx4 s[44:47], s[0:1], 8      ; c_kv (44:45)  w_q (46:47)
s_load_dwordx4 s[48:51], s[0:1], 24
s_load_dwordx4 s[52:55], s[0:1], 48     ; B_x (52:53) wqkv (54:55)
s_load_dwordx2 s[56:57], s[0:1], 96     ; ws
s_load_dwordx2 s[58:59], s[0:1], 64     ; w_phi
v_lshrrev_b32 v{vT0}, 6, v0
v_and_b32 v{vL}, 63, v0
v_readfirstlane_b32 s{sWAVE}, v{vT0}
s_lshr_b32 s{sT1}, s2, 3                ; q
s_and_b32 s{sRB}, s2, 1
s_lshl_b32 s{sRB}, s{sRB}, 2
s_and_b32 s{sT0}, s{sT1}, 3
s_add_u32 s{sRB}, s{sRB}, s{sT0}
s_lshr_b32 s{sT1}, s{sT1}, 2
""")
    if MAP == 0:
        a(f"""
s_and_b32 s{sJOB}, s2, 6
s_lshl_b32 s{sJOB}, s{sJOB}, 2
s_add_u32 s{sJOB}, s{sJOB}, s{sT1}
""")
    else:
        if SWP: a(f"""
s_cmp_lt_u32 s{sT1}, 2
s_cselect_b32 s{sT0}, 1, 0
s_xor_b32 s{sT1}, s{sT1}, s{sT0}
""")
        a(f"""
s_and_b32 s{sT0}, s2, 6
s_mul_i32 s{sJOB}, s{sT0}, 3
s_add_u32 s{sJOB}, s{sJOB}, s{sT1}
s_add_u32 s{sT0}, s{sT0}, s{sT1}
s_add_u32 s{sT0}, s{sT0}, 18
s_cmp_ge_u32 s{sT1}, 6
s_cselect_b32 s{sJOB}, s{sT0}, s{sJOB}
""")
    a(f"""
s_lshl_b32 s63, s{sJOB}, 3
s_add_u32 s63, s63, s{sRB}
s_lshl_b32 s99, s63, 7
s_lshl_b32 s{sSTFIX}, s{sRB}, 16
s_lshl_b32 s{sT0}, s{sWAVE}, 14
s_add_u32 s{sSTFIX}, s{sSTFIX}, s{sT0}
s_mov_b32 s{sWS+2}, {WS_USED}
s_mov_b32 s{sWS+3}, 0x20000
s_mov_b32 s{sACT+2}, 0x200000
s_mov_b32 s{sACT+3}, 0x20000
s_mov_b32 s{sW+3}, 0x20000
s_mov_b32 s{sSCALE}, {hex(f2u(CSCALE))}
s_cmp_ge_u32 s{sJOB}, 12
s_cselect_b32 s{sT0}, 12, 0
s_cselect_b32 s{sT2}, {VWS}, 0
s_cselect_b32 s{sSCALE}, {hex(f2u(2.0 ** VEXP))}, s{sSCALE}
s_sub_u32 s{sSUB}, s{sJOB}, s{sT0}
s_add_u32 s{sSTB}, s{sSTFIX}, s{sT2}
s_mul_i32 s{sT0}, s{sSUB}, 43
s_lshr_b32 s{sT0}, s{sT0}, 7             ; j/3
s_mul_i32 s{sT2}, s{sT0}, 3
s_sub_u32 s{sT2}, s{sSUB}, s{sT2}        ; j%3
s_lshl_b32 s{sT0}, s{sT0}, 5
s_lshl_b32 s{sT2}, s{sT2}, 3
s_lshr_b32 s{sSUB}, 0x160c00, s{sT2}
s_and_b32 s{sSUB}, s{sSUB}, 0xff
s_add_u32 s{sSUB}, s{sSUB}, s{sT0}
s_lshr_b32 s{sHU}, 0x1f0b0a, s{sT2}
s_and_b32 s{sHU}, s{sHU}, 0xff
s_add_u32 s{sHU}, s{sHU}, s{sT0}
s_lshl_b32 s{sWOFF}, s{sSUB}, 6
s_sub_u32 s{sT0}, s{sJOB}, 24
s_lshl_b32 s{sT2}, s{sT0}, 7
s_add_u32 s{sT2}, s{sT2}, 1024           ; k section
s_mov_b32 s{sW+2}, 0x400000
s_mov_b32 s{sROW1}, 8192
s_cmp_ge_u32 s{sJOB}, 24
s_cselect_b32 s{sSUB}, s{sT0}, s{sSUB}
s_cselect_b32 s{sWOFF}, s{sT2}, s{sWOFF}
s_cselect_b32 s{sSTFIX}, s{sSTFIX}, s{sSTB}
s_cselect_b32 s{sW+2}, 0x180000, s{sW+2}
s_cselect_b32 s{sROW1}, 3072, s{sROW1}
s_cselect_b32 s{sSPLIT}, 896, 0
s_lshl_b32 s{sROW4}, s{sROW1}, 2
s_lshr_b32 s{sROWH}, s{sROW1}, 1
s_lshl_b32 s{sROW8}, s{sROW1}, 3
s_lshl_b32 s{sCO}, s{sRB}, 1
s_add_u32 s{sCO}, s{sCO}, s{sT1}
s_and_b32 s{sCO}, s{sCO}, {ROT}      ; rotation
s_add_u32 s{sT0}, s{sCO}, s{sWAVE}
s_and_b32 s{sT0}, s{sT0}, 7
s_lshl_b32 s{sT0}, s{sT0}, 6
s_mul_i32 s{sWL}, s{sT0}, s{sROW1}
s_xor_b32 s{sT0}, s{sT0}, 256
s_mul_i32 s{sWH}, s{sT0}, s{sROW1}
s_lshl_b32 s{sCO}, s{sCO}, 7
s_sub_u32 s{sCO}, s{sCO}, 128
s_lshl_b32 s{sA0}, s{sRB}, 18
s_lshl_b32 s{sT0}, s{sWAVE}, 16
s_add_u32 s{sA0}, s{sA0}, s{sT0}
s_add_u32 s{sA1}, s{sA0}, 32768
s_lshl_b32 s{sLA}, s{sWAVE}, 14
s_add_u32 s{sLA}, s{sLA}, {AR}
s_lshl_b32 s{sLW}, s{sWAVE}, 12
s_add_u32 s{sLW}, s{sLW}, {WR}
s_lshl_b32 s{sLC}, s{sWAVE}, 13
s_mov_b32 s{sLC3}, s{sLC}
s_lshl_b32 s{sT0}, s{sWAVE}, 4
s_mul_i32 s{sWB}, s{sT0}, s{sROW1}
s_add_u32 s{sWB}, s{sWB}, s{sWOFF}
""")
    def mkpa(types):
        return PhaseA(a, ACC, WF, vWA, vXA, vAD, vWD, sACT, sW, sA0, sA1, sWSRC, sROW4, sROWH, sLA, sLW, sT2, types, sCO, sWB, sA0c, sA1c)
    pa = mkpa("K" * 8)
    mk = Mk(a)
    pa.setup_dma(vL, vT0, vT1, vT2, sROW1, split=sSPLIT)
    a(f"""
s_cmp_ge_u32 s{sJOB}, 12
s_waitcnt lgkmcnt(0)
s_cselect_b64 s[{sW}:{sW+1}], s[50:51], s[48:49]
s_cmp_ge_u32 s{sJOB}, 24
s_cselect_b64 s[{sW}:{sW+1}], s[54:55], s[{sW}:{sW+1}]
s_cselect_b64 s[{sACT}:{sACT+1}], s[52:53], s[44:45]
""")
    a.stamp(0); a.stamp(1, real=True)
    for it in pa.chunk_dmas(0): it.fn()
    a(f"""
s_mov_b32 s{sWS}, s56
s_mov_b32 s{sWS+1}, s57
s_load_dwordx2 s[44:45], s[0:1], 0
""")
    vTA, vTW = 233, 244
    sTC = 98
    def ctouch(c):
        return [mk.I(f"s_mul_i32 s{sTC}, s{sROW1}, {64 * c}"),
                mk.VM(f"buffer_load_dword v245, v{vTA}, s[{sACT}:{sACT+3}], 0 offen offset:{c * 128}", "ct"),
                mk.VM(f"buffer_load_dword v245, v{vTW}, s[{sW}:{sW+3}], s{sTC} offen", "ct")]
    if CT:
        a(f"""
s_cmp_ge_u32 s{sT1}, 6
s_cselect_b32 s{sT0}, 32, 11
s_cselect_b32 s{sT2}, 6, 0
s_sub_u32 s{sT2}, s{sT1}, s{sT2}
s_lshl_b32 s{sT2}, s{sT2}, 2
s_add_u32 s{sT2}, s{sT2}, s{sWAVE}
s_mul_i32 s{sT2}, s{sT2}, s{sT0}
s_sub_u32 s{sT0}, s{sT0}, 1
v_min_u32 v{vTA}, s{sT0}, v{vL}
v_add_u32 v{vTA}, s{sT2}, v{vTA}
v_min_u32 v{vTA}, 255, v{vTA}
v_lshlrev_b32 v{vTA}, 10, v{vTA}
s_lshl_b32 s{sT0}, s{sRB}, 18
v_add_u32 v{vTA}, s{sT0}, v{vTA}
s_and_b32 s{sT0}, s{sRB}, 3
s_lshl_b32 s{sT0}, s{sT0}, 2
s_add_u32 s{sT0}, s{sT0}, s{sWAVE}
s_lshl_b32 s{sT0}, s{sT0}, 2
v_and_b32 v{vT0}, 3, v{vL}
v_add_u32 v{vT0}, s{sT0}, v{vT0}
v_mul_lo_u32 v{vTW}, v{vT0}, s{sROW1}
s_add_u32 s{sT0}, s{sSPLIT}, 128
v_bfe_u32 v{vT0}, v{vL}, 2, 1
v_mul_lo_u32 v{vT0}, v{vT0}, s{sT0}
v_add3_u32 v{vTW}, v{vTW}, v{vT0}, s{sWOFF}
""")
        for c in range(1, CT):
            for it in ctouch(c): it.fn()
    a.stamp(11)
    pa.setup_read(vL, vT0, vT1, vT2)
    a(f"""
v_lshrrev_b32 v{vT0}, 3, v{vL}
v_mul_lo_u32 v{vT0}, v{vT0}, s{sROW1}
v_and_b32 v{vT1}, 7, v{vL}
v_bfe_u32 v{vT2}, v{vL}, 4, 1
v_lshlrev_b32 v{vT2}, 1, v{vT2}
v_xor_b32 v{vT1}, v{vT1}, v{vT2}
v_lshl_add_u32 v{vDE}, v{vT1}, 4, v{vT0}
v_xor_b32 v{vT1}, 4, v{vT1}
v_lshl_add_u32 v{vDO}, v{vT1}, 4, v{vT0}
v_lshrrev_b32 v{vT0}, 4, v{vL}              ; kq
v_bfe_u32 v{vT1}, v{vL}, 2, 2               ; r
v_lshl_add_u32 v{vT2}, v{vT0}, 3, v{vT1}
v_lshlrev_b32 v{vT2}, 7, v{vT2}             ; (kq*8+r)*128
v_and_b32 v{vT0}, 1, v{vT0}
v_lshrrev_b32 v{vT1}, 1, v{vT1}
v_lshl_add_u32 v{vT1}, v{vT0}, 1, v{vT1}    ; f
v_and_b32 v{vT0}, 3, v{vL}
v_lshl_add_u32 v{vT2}, v{vT0}, 3, v{vT2}
""")
    for nt in range(4):
        a(f"v_xor_b32 v{vT0}, {nt}, v{vT1}")
        a(f"v_lshl_add_u32 v{vS[nt]}, v{vT0}, 5, v{vT2}")
        a(f"v_add_u32 v{vS[4+nt]}, 0x10000, v{vS[nt]}")
    a(f"v_lshlrev_b32 v{vST[0]}, 4, v{vL}")
    for k in range(1, 4):
        a(f"v_add_u32 v{vST[k]}, {4096*k}, v{vST[0]}")
    a(f"""
s_add_u32 s{sWOFF}, s{sWOFF}, 256
s_cmp_lg_u32 s{sWAVE}, 0
s_cbranch_scc1 K1_noclear
s_lshl_b32 s{sT0}, s2, 7
v_lshlrev_b32 v{vT1}, 15, v{vL}
v_add_u32 v{vT2}, s99, v{vT1}
v_add_u32 v{vT1}, s{sT0}, v{vT1}
v_cmp_eq_u32 vcc, 1, v{vL}
s_mov_b32 s{sT0}, {FLAGS}
v_mov_b32 v{vT0}, 0
v_cndmask_b32 v{vT1}, v{vT1}, v{vT2}, vcc
s_mov_b64 exec, 7
buffer_store_dword v{vT0}, v{vT1}, s[{sWS}:{sWS+3}], s{sT0} offen sc1
s_mov_b64 exec, -1
K1_noclear:
""")
    if CPF:
        for it in code_prefetch(a, LK, "K2_after" if fused else "K1_code_end", 62, sT0, sWAVE, vL, vT0, 245): it.fn()
    if CPF > 1:
        for it in code_prefetch(a, "K1_code_end", "K3_code_end", 62, sT0, sWAVE, vL, vT0, 245): it.fn()
    def cleared():
        if not fused: return
        L = a.newlabel("K1_cnt")
        a(f"""
s_cmp_lg_u32 s{sWAVE}, 0
s_cbranch_scc1 {L}
s_load_dwordx2 s[88:89], s[0:1], 88
s_mov_b32 s90, 256
s_mov_b32 s91, 0x20000
v_mov_b32 v{vT0}, 1
v_mov_b32 v{vT1}, 0
s_waitcnt lgkmcnt(0)
s_mov_b64 exec, 1
buffer_atomic_add v{vT0}, v{vT1}, s[88:91], 0 offen sc1
s_mov_b64 exec, -1
{L}:
""")
    def touch(bufs, tag):
        a(f"""
s_lshl_b32 s{sT0}, s2, 2
s_add_u32 s{sT0}, s{sT0}, s{sWAVE}
s_mov_b32 s91, 0x20000
""")
        for ptr, size in bufs:
            lg = (size - 1).bit_length() - 10
            a(f"v_and_b32 v{vT0}, {(1 << (lg - 7)) - 1}, v{vL}")
            a(f"v_lshlrev_b32 v{vT0}, 7, v{vT0}")
            a(f"s_lshl_b32 s{sT2}, s{sT0}, {lg}")
            a(f"s_mov_b32 s88, s{ptr}")
            a(f"s_mov_b32 s89, s{ptr+1}")
            a(f"s_mov_b32 s90, {size}")
            a.vm(f"buffer_load_dword v245, v{vT0}, s[88:91], s{sT2} offen", tag)
    def warm0():
        touch(((44, 0x200000), (48, 0x400000), (50, 0x400000), (52, 0x200000), (54, 0x180000)), "warm")
    if W0 == 2: warm0()
    if W0 == 1: warm0()
    a(f"""
s_cmp_ge_u32 s{sJOB}, 24
s_cbranch_scc1 {LBKV}
s_cmp_ge_u32 s{sJOB}, 12
s_cbranch_scc1 {LV}
""")
    state0 = (list(a.vmq), list(a.lgq))
    a.stamp0 = 12
    def acc(buf, nt, st): return ACC + (buf * 16 + nt * 4 + st) * 4
    def wf(ks, nt): return WF + ((ks % 2) * 4 + nt) * 4
    SLOT = [65536, 0, 32768, 98304]
    def tr_item(pair, ks, nt, jj, SL=SLOT):
        hi, k8 = ks >> 3, ks & 7
        sb = SL[2 * pair + hi]
        reg = vS[(sb >> 16) * 4 + nt]; off = (sb & 0xffff) + k8 * 4096 + jj * 512
        b = wf(ks, nt) + jj * 2
        return mk.LG(f"ds_read_b64_tr_b16 v[{b}:{b+1}], v{reg} offset:{off}", ("wf", ks % 2, nt))
    def slot_dma(slot, SL=SLOT):
        hi = slot & 1
        its = []
        for i in range(8):
            its.append(mk.I(f"s_add_u32 m0, s{sLC3 if slot == 3 else sLC}, {SL[slot] + i * 1024}"))
            if i == 0: its.append(mk.I(f"s_add_u32 s{sT1}, s{sWOFF}, s{sWH if hi else sWL}"))
            else: its.append(mk.I(f"s_add_u32 s{sT1}, s{sT1}, s{sROW8}"))
            its.append(mk.VM(f"buffer_load_dwordx4 v{vDE if i % 2 == 0 else vDO}, s[{sW}:{sW+3}], s{sT1} offen lds", ("w", slot)))
        if hi: its.append(mk.I(f"s_add_u32 s{sWOFF}, s{sWOFF}, 128"))
        return its
    def epi_items(typ, buf, units=(0, 1), packed=False, st=None):
        items = []
        d = 12
        for u in units:
            items += [mk.I(t) for t in (f"s_lshr_b32 s{sSTB}, s{sSUB}, 2", f"s_lshl_b32 s{sSTB}, s{sSTB}, 19", f"s_and_b32 s{sT0}, s{sSUB}, 3",
                                       f"s_lshl_b32 s{sT0}, s{sT0}, {d}", f"s_add_u32 s{sSTB}, s{sSTB}, s{sT0}",
                                       f"s_add_u32 s{sSTB}, s{sSTB}, s{sSTFIX}", f"s_add_u32 s{sSUB}, s{sSUB}, 1")]
            for x in range(4):
                n = u * 4 + x
                pk = PK + n * 4
                for j in range(4):
                    if typ == "K": r = acc(buf, 2 * u + (j >> 1), x) + (j & 1) * 2
                    else: r = acc(buf, 2 * u + (x & 1), (x >> 1) * 2 + (j >> 1)) + (j & 1) * 2
                    if True:
                        t = TM + ((n * 4 + j) % 8) * 2
                        if packed: items.append(mk.I(f"v_pk_mul_f32 v[{t}:{t+1}], v[{r}:{r+1}], s[{sSCALE}:{sSCALE+1}] op_sel_hi:[1,0]"))
                        else:
                            items.append(mk.I(f"v_mul_f32 v{t}, s{sSCALE}, v{r}"))
                            items.append(mk.I(f"v_mul_f32 v{t+1}, s{sSCALE}, v{r+1}"))
                        items.append(mk.I(f"v_cvt_pk_bf16_f32 v{pk+j}, v{t}, v{t+1}"))
                    else:
                        items.append(mk.I(f"v_cvt_pk_bf16_f32 v{pk+j}, v{r}, v{r+1}"))
                vo, off = vST[0], x * 1024
                items.append(mk.VM(f"buffer_store_dwordx4 v[{pk}:{pk+3}], v{vo}, s[{sWS}:{sWS+3}], s{sSTB} offen offset:{off} {ST if st is None else st}", "st"))
        return items
    def put_bar(B, g, tag, lg0=False):
        B.put(g, mk.WV(tag, lg0=lg0)); B.put(g, mk.I("s_barrier"), 3)
    def next_phase():
        its = [mk.I(t) for t in f"""s_mov_b32 s{sACT}, s44
s_mov_b32 s{sACT+1}, s45
s_mov_b32 s{sW}, s46
s_mov_b32 s{sW+1}, s47
s_mov_b32 s{sW+2}, 0x400000
s_bfe_u32 s{sT1}, s2, 0x30003
s_lshl_b32 s{sA1}, s{sT1}, 2
s_add_u32 s{sA1}, s{sA1}, s{sWAVE}
s_lshl_b32 s{sA1}, s{sA1}, 15
s_sub_u32 s{sT1}, 15, s{sT1}
s_lshl_b32 s{sA0}, s{sT1}, 2
s_add_u32 s{sA0}, s{sA0}, s{sWAVE}
s_lshl_b32 s{sA0}, s{sA0}, 15
s_and_b32 s{sWB}, s2, 7
s_lshl_b32 s{sWB}, s{sWB}, 2
s_lshr_b32 s{sT1}, s2, 6
s_add_u32 s{sWB}, s{sWB}, s{sT1}
s_lshl_b32 s{sWB}, s{sWB}, 8
s_lshl_b32 s{sT1}, s{sWAVE}, 17
s_add_u32 s{sWB}, s{sWB}, s{sT1}
s_mov_b32 s{sROWH}, 4096
s_mov_b32 s{sCO}, -128""".split("\n")]
        return its, pa.chunk_dmas(0) + (pa.chunk_dmas(1) if EARLY == 1 else [])
    def ptr_loads():
        a("""
s_load_dwordx2 s[88:89], s[0:1], 40     ; w_o
s_load_dwordx2 s[92:93], s[0:1], 72     ; wo
s_load_dwordx2 s[52:53], s[0:1], 88     ; debug
""")
    LEAD = 12
    def mf(typ, d, w, ks, st):
        c = "0" if ks == 0 else f"v[{d}:{d+3}]"
        if typ == "K": s = f"{MF} v[{d}:{d+3}], v[{w}:{w+3}], {pa.act(ks, st)}, {c}"
        else: s = f"{MF} v[{d}:{d+3}], {pa.act(ks, st)}, v[{w}:{w+3}], {c}"
        return lambda: a(s)
    def body(typ, buf, SL=SLOT, epi=True, dma=True, nxt=True, extra=None):
        B = Body(256)
        for m in range(256):
            ks, nt, st = m >> 4, (m >> 2) & 3, m & 3
            sn = st ^ 3 if nt & 1 else st
            B.mfma[m] = mf(typ, acc(buf, nt, sn), wf(ks, nt), ks, sn)
            if st == 0 and nt % 2 == 0: B.put_pre(m, mk.WL(("wf", ks % 2, nt + 1)))
        for idx in range(LEAD // 4, 64 + (LEAD // 4 if nxt else 0)):
            ks, nt = idx >> 2, idx & 3
            g = idx * 4 - LEAD
            if idx == 32: put_bar(B, g - 2, ("w", 2 * buf + 1), lg0=(EARLY and buf == 0 and dma))
            if idx == 64: put_bar(B, g - 2, ("w", 2 * (1 - buf)))
            for jj in range(2):
                B.put(g, tr_item(buf, ks, nt, jj, SL) if ks < 16 else tr_item(1 - buf, ks - 16, nt, jj, SL))
        if dma:
            B.stream(slot_dma(2 * (1 - buf), SL), 0, 26)
            B.stream(slot_dma(2 * (1 - buf) + 1, SL), 128 - LEAD, 154 - LEAD)
        if epi:
            B.stream(epi_items(typ, 1 - buf, (0,)), 14, 110)
            B.stream(epi_items(typ, 1 - buf, (1,)), 132, 236)
        if extra: B.stream(extra, 28, 236)
        B.emit(a)
    def kv_warm():
        its = [mk.WL(("none",))] + [mk.I(t) for t in f"""s_lshl_b32 s{sA0}, s2, 2
s_add_u32 s{sA0}, s{sA0}, s{sWAVE}
s_lshl_b32 s{sA0}, s{sA0}, 11
s_lshl_b32 s{sA1}, s{sA0}, 1
s_mov_b32 s{sACT}, s44
s_mov_b32 s{sACT+1}, s45
s_mov_b32 s56, s46
s_mov_b32 s57, s47
s_mov_b32 s58, 0x400000
s_mov_b32 s59, 0x20000
v_and_b32 v244, 31, v{vL}
v_lshlrev_b32 v244, 7, v244""".split("\n")]
        its[0] = Item(lambda: (a("s_waitcnt lgkmcnt(0)"), a.lgq.clear()), 4, "s")
        its.append(mk.VM(f"buffer_load_dword v245, v244, s[56:59], s{sA1} offen", "warm"))
        its.append(mk.I(f"v_and_b32 v244, 0x7ff, v244"))
        its.append(mk.VM(f"buffer_load_dword v245, v244, s[{sACT}:{sACT+3}], s{sA0} offen", "warm"))
        return its
    def half_body(typ, buf):
        B = Body(128)
        for m in range(128):
            ks, nt, st = m >> 3, (m >> 2) & 1, m & 3
            sn = st ^ 3 if nt & 1 else st
            B.mfma[m] = mf(typ, acc(buf, nt, sn), wf(ks, nt), ks, sn)
            if st == 0: B.put_pre(m, mk.WL(("wf", ks % 2, nt)))
        HSL = SLOT[:3] + [SLOT[0] if EARLY else SLOT[3]]
        for jj in range(2): tr_item(buf, 1, 0, jj).fn()
        for idx in range(3, 32):
            ks, nt = idx >> 1, idx & 1
            g = idx * 4 - 12
            if idx == 16: put_bar(B, g - 2, ("w", 2 * buf + 1))
            for jj in range(2): B.put(g, tr_item(buf, ks, nt, jj, HSL))
        if EARLY:
            su, dm = next_phase()
            B.stream(su, 4, 50); B.stream(dm, 51, 126)
        B.stream(epi_items(typ, 1 - buf, st=STL), 8, 124)
        B.emit(a)
    vWX = 244
    def warm():
        a(f"""
s_sub_u32 s{sT0}, s{sJOB}, 24
s_lshl_b32 s{sT0}, s{sT0}, 3
s_add_u32 s{sT0}, s{sT0}, s{sRB}
s_lshl_b32 s{sT0}, s{sT0}, 2
s_add_u32 s{sT0}, s{sT0}, s{sWAVE}
v_lshlrev_b32 v{vWX}, 7, v{vL}
s_mov_b32 s88, s46
s_mov_b32 s89, s47
s_mov_b32 s90, 0x400000
s_mov_b32 s91, 0x20000
s_lshl_b32 s{sA1}, s{sT0}, 14
s_lshl_b32 s{sA0}, s{sT0}, 13
s_waitcnt lgkmcnt(0)
s_mov_b32 s{sACT}, s44
s_mov_b32 s{sACT+1}, s45
""")
        def tq():
            a.vm(f"buffer_load_dword v245, v{vWX}, s[88:91], s{sA1} offen", "warm")
            a(f"s_add_u32 s{sA1}, s{sA1}, 8192")
        def tx():
            a.vm(f"buffer_load_dword v245, v{vWX}, s[{sACT}:{sACT+3}], s{sA0} offen", "warm")
        no = lambda: None
        return [tx, tq, tq, no]
    def path(typ):
        a.vmq, a.lgq = list(state0[0]), list(state0[1])
        p = mkpa(typ * 8)
        if PT:
            a(f"""
s_sub_u32 s{sT0}, s{sJOB}, {0 if typ == "K" else 12}
s_lshl_b32 s{sT0}, s{sT0}, 3
s_add_u32 s{sT0}, s{sT0}, s{sRB}
s_lshl_b32 s{sT0}, s{sT0}, 2
s_add_u32 s{sT0}, s{sT0}, s{sWAVE}
s_mul_i32 s{sT0}, s{sT0}, {11*128}
v_min_u32 v{vTW}, 10, v{vL}
v_lshlrev_b32 v{vTW}, 7, v{vTW}
v_add_u32 v{vTW}, s{sT0}, v{vTW}
""")
        B = p.build(stamp=2)
        if CT:
            for c in range(CT, 8): B.stream(ctouch(c), 64 * (c - CT) + 43, 64 * (c - CT) + 47)
        if PT:
            for c in range(8):
                B.stream([mk.I(f"s_mov_b32 s{sT0}, {((c + PT + 2) & 7) * 0x80000}"),
                          mk.VM(f"buffer_load_dword v245, v{vTW}, s[{sW}:{sW+3}], s{sT0} offen", "pt")], 64 * c + 43, 64 * c + 47)
        B.stream(slot_dma(0), p.bar_gap(6) + 3, p.bar_gap(6) + 50)
        B.stream(slot_dma(1), p.bar_gap(7) + 3, p.bar_gap(7) + 50)
        if SKIPH: B.stream(kv_warm(), p.bar_gap(7) + 50, 511)
        B.emit(a)
        a.stamp(3)
        cleared()
        a("s_nop 3")
        for it in epi_items(typ, 0, packed=True): it.fn()
        a.wait_vm(("w", 0)); a("s_barrier")
        for idx in range(LEAD // 4):
            for jj in range(2): tr_item(0, idx >> 2, idx & 3, jj).fn()
        a.stamp(4)
        LOOP = a.newlabel("K1_loop"); DONE = a.newlabel("K1_done")
        a(f"s_mov_b32 s{sCNT}, 0")
        a.label(LOOP)
        mid = []
        def it():
            body(typ, 0)
            a.stamp(7)
            a(f"s_cmp_eq_u32 s{sCNT}, 1")
            a(f"s_cbranch_scc1 {DONE}")
            mid[:] = [list(a.vmq), list(a.lgq)]
            if a.diag: a("s_mov_b32 s69, s71")
            body(typ, 1)
            a.stamp(6)
            a(f"s_mov_b32 s{sCNT}, 1")
            a(f"s_lshl_b32 s{sWOFF}, s{sHU}, 6")
            if EARLY: a(f"s_sub_u32 s{sLC3}, s{sLC}, {SLOT[3] - SLOT[0]}")
            if SKIPH:
                a(f"s_and_b32 s{sT0}, s{sHU}, 31")
                a(f"s_cmp_eq_u32 s{sT0}, 31")
                a(f"s_cselect_b32 s{sW+2}, 0, s{sW+2}")
            a(f"v_and_b32 v{vDE}, 0xffffffbf, v{vDE}")
            a(f"v_and_b32 v{vDO}, 0xffffffbf, v{vDO}")
        loop_emit(a, it)
        a(f"s_branch {LOOP}")
        a.label(DONE)
        a.vmq, a.lgq = list(mid[0]), list(mid[1])
        if SKIPH:
            LH = a.newlabel("K1_h")
            a(f"s_and_b32 s{sT0}, s{sHU}, 31")
            a(f"s_cmp_lg_u32 s{sT0}, 31")
            a(f"s_cbranch_scc1 {LH}")
            su, dm = next_phase()
            for it in su: it.fn()
            a("s_waitcnt lgkmcnt(0)"); a("s_barrier")
            for it in dm: it.fn()
            ptr_loads()
            for itm in epi_items(typ, 0, packed=True, st=STL): itm.fn()
            a.stamp(12); a.stamp(8); a.stamp(9); a.stamp(10, real=True)
            a.stamp_flush(sWS, sWAVE, 24, DIAG)
            a.k1_exit.append(list(a.vmq))
            a("s_branch K2_fused_entry")
            a.label(LH)
            a.vmq, a.lgq = list(mid[0]), list(mid[1])
        half_body(typ, 1)
        a.stamp(12)
        a(f"s_mov_b32 s{sSUB}, s{sHU}")
        if EARLY: ptr_loads()
        a("s_nop 3")
        for itm in epi_items(typ, 1, (0,), packed=True, st=STL): itm.fn()
        a.stamp(8)
        if a.diag and not fused: a("s_waitcnt vmcnt(0)")
        a.stamp(9); a.stamp(10, real=True)
        a.stamp_flush(sWS, sWAVE, 24, DIAG)
        a.k1_exit.append(list(a.vmq))
        a("s_branch K2_fused_entry" if fused else "s_endpgm")
    a.label(LK)
    path("K")
    a.label(LV)
    path("V")
    a.label(LBKV)
    a.vmq, a.lgq = list(state0[0]), list(state0[1])
    sPHI = 40; sLOG2E = 60; sRET = 62
    sHM = [48, 50, 52, 54]
    WPH = 192
    vPH, vPW, vPR, vVW, vZ, vONE = 246, 247, 248, 249, 250, 252
    vPW2, vPR2, vVR = 230, 231, 232
    BSL = [0, 32768, 65536, 98304]
    a(f"""
s_mov_b32 s{sPHI}, s58
s_mov_b32 s{sPHI+1}, s59
s_mov_b32 s{sPHI+2}, 16384
s_mov_b32 s{sPHI+3}, 0x20000
s_mov_b32 s{sLOG2E}, {hex(f2u(LOG2E))}
s_sub_u32 s{sWOFF}, s{sWOFF}, 1280
v_and_b32 v{vT0}, 15, v{vL}
v_lshrrev_b32 v{vT1}, 4, v{vL}
v_bfe_u32 v{vT2}, v{vL}, 2, 2                  ; hq
v_cmp_eq_u32 s[{sHM[0]}:{sHM[0]+1}], 0, v{vT2}
v_cmp_eq_u32 s[{sHM[1]}:{sHM[1]+1}], 1, v{vT2}
v_cmp_eq_u32 s[{sHM[2]}:{sHM[2]+1}], 2, v{vT2}
v_cmp_eq_u32 s[{sHM[3]}:{sHM[3]+1}], 3, v{vT2}
v_and_b32 v{vPH}, 3, v{vL}
v_lshlrev_b32 v{vPH}, 1, v{vPH}
v_lshl_add_u32 v{vPH}, v{vT1}, 7, v{vPH}
v_lshl_add_u32 v{vPH}, v{vT2}, 9, v{vPH}
v_lshlrev_b32 v{vPW}, 6, v{vT0}
v_lshl_add_u32 v{vPW}, v{vT1}, 14, v{vPW}
s_lshl_b32 s{sT0}, s{sWAVE}, 12
s_add_u32 s{sT0}, s{sT0}, {AR}
v_add_u32 v{vPW}, s{sT0}, v{vPW}
v_lshlrev_b32 v{vPW2}, 4, v{vT0}
v_lshl_add_u32 v{vPW2}, v{vT1}, 17, v{vPW2}
v_lshl_add_u32 v{vT2}, v{vT1}, 2, v{vT2}
v_lshlrev_b32 v{vPR}, 6, v{vT2}
v_and_b32 v{vT2}, 3, v{vL}
v_lshl_add_u32 v{vPR}, v{vT2}, 4, v{vPR}
v_add_u32 v{vPR}, s{sLA}, v{vPR}
v_lshlrev_b32 v{vZ}, 4, v{vT1}
s_add_u32 s{sT0}, s{sLC}, {FR}
v_add_u32 v{vVW}, s{sT0}, v{vST[0]}
s_lshl_b32 s{sT0}, s{sWAVE}, 10
s_add_u32 s{sT0}, s{sT0}, {FR}
v_add_u32 v{vVR}, s{sT0}, v{vST[0]}
""")
    VFR, AW = 128, 160
    X, EP, EM, PHO, MX, NF = 64, 80, 96, 112, 128, 136
    LSM = a.newlabel("K1_sm16")
    def pack_nf(st):
        for kp in range(2):
            for j in range(4):
                r = acc(0, 2 * kp + (j >> 1), st) + (j & 1) * 2
                a(f"v_cvt_pk_bf16_f32 v{NF+kp*4+j}, v{r}, v{r+1}")
    def pk_mfma():
        for kp in range(2):
            for i in range(4):
                c = "0" if kp == 0 else f"v[{X+i*4}:{X+i*4+3}]"
                a(f"{MF} v[{X+i*4}:{X+i*4+3}], v[{AW+i*8+kp*4}:{AW+i*8+kp*4+3}], v[{NF+kp*4}:{NF+kp*4+3}], {c}")
    def feature_map(out, ts):
        pack_nf(0); a("s_nop 1"); pk_mfma()
        for st in range(4):
            ts.pop(0)()
            pack_nf(min(st + 1, 3))
            a(f"s_call_b64 s[{sRET}:{sRET+1}], {LSM}")
            out(st)
    def sm16():
        a.label(LSM)
        x = X
        a(f"v_max3_f32 v{MX}, v{x}, v{x+1}, v{x+2}")
        a(f"v_min3_f32 v{MX+1}, v{x}, v{x+1}, v{x+2}")
        for k in range(3, 15, 2):
            a(f"v_max3_f32 v{MX}, v{MX}, v{x+k}, v{x+k+1}")
            a(f"v_min3_f32 v{MX+1}, v{MX+1}, v{x+k}, v{x+k+1}")
        a(f"v_max_f32 v{MX}, v{MX}, v{x+15}")
        a(f"v_min_f32 v{MX+1}, v{MX+1}, v{x+15}")
        a(f"v_pk_mul_f32 v[{MX}:{MX+1}], v[{MX}:{MX+1}], s[{sLOG2E}:{sLOG2E+1}] op_sel_hi:[1,0]")
        for k in range(0, 16, 2):
            a(f"v_pk_fma_f32 v[{EP+k}:{EP+k+1}], v[{x+k}:{x+k+1}], s[{sLOG2E}:{sLOG2E+1}], v[{MX}:{MX+1}] op_sel_hi:[1,0,0] neg_lo:[0,0,1] neg_hi:[0,0,1]")
            a(f"v_pk_fma_f32 v[{EM+k}:{EM+k+1}], v[{x+k}:{x+k+1}], s[{sLOG2E}:{sLOG2E+1}], v[{MX}:{MX+1}] op_sel:[0,0,1] op_sel_hi:[1,0,1] neg_lo:[1,0,0] neg_hi:[1,0,0]")
        n = 0
        for k in range(16):
            if k % 2 == 0:
                kp, i = n >> 2, n & 3; n += 1
                c = "0" if kp == 0 else f"v[{X+i*4}:{X+i*4+3}]"
                a(f"{MF} v[{X+i*4}:{X+i*4+3}], v[{AW+i*8+kp*4}:{AW+i*8+kp*4+3}], v[{NF+kp*4}:{NF+kp*4+3}], {c}")
            a(f"v_exp_f32 v{EP+k}, v{EP+k}")
            a(f"v_exp_f32 v{EM+k}, v{EM+k}")
        SP, SM = MX + 2, MX + 4
        a(f"v_pk_add_f32 v[{SP}:{SP+1}], v[{EP}:{EP+1}], v[{EP+2}:{EP+3}]")
        a(f"v_pk_add_f32 v[{SM}:{SM+1}], v[{EM}:{EM+1}], v[{EM+2}:{EM+3}]")
        for k in range(4, 16, 2):
            a(f"v_pk_add_f32 v[{SP}:{SP+1}], v[{SP}:{SP+1}], v[{EP+k}:{EP+k+1}]")
            a(f"v_pk_add_f32 v[{SM}:{SM+1}], v[{SM}:{SM+1}], v[{EM+k}:{EM+k+1}]")
        a(f"v_add_f32 v{SP}, v{SP}, v{SP+1}")
        a(f"v_add_f32 v{SM}, v{SM}, v{SM+1}")
        a(f"v_rcp_f32 v{SP}, v{SP}")
        a(f"v_rcp_f32 v{SM}, v{SM}")
        a("s_nop 0")
        for k in range(0, 16, 2):
            a(f"v_pk_mul_f32 v[{EP+k}:{EP+k+1}], v[{EP+k}:{EP+k+1}], v[{SP}:{SP+1}] op_sel_hi:[1,0]")
            a(f"v_pk_mul_f32 v[{EM+k}:{EM+k+1}], v[{EM+k}:{EM+k+1}], v[{SM}:{SM+1}] op_sel_hi:[1,0]")
        for k in range(8):
            a(f"v_cvt_pk_bf16_f32 v{PHO+(k>>1)*4+(k&1)}, v{EP+2*k}, v{EP+2*k+1}")
            a(f"v_cvt_pk_bf16_f32 v{PHO+(k>>1)*4+2+(k&1)}, v{EM+2*k}, v{EM+2*k+1}")
        a(f"s_setpc_b64 s[{sRET}:{sRET+1}]")
    def post(ts):
        a.lgq = []
        for u in range(2):
            for hd in range(4):
                f = VFR + (u * 4 + hd) * 4
                for j in range(4):
                    r = acc(1, hd, 2 * u + (j >> 1)) + (j & 1) * 2
                    a(f"v_cvt_pk_bf16_f32 v{f+j}, v{r}, v{r+1}")
                a(f"ds_write_b128 v{vVW}, v[{f}:{f+3}] offset:{(u*4+hd)*1024}")
        for i in range(4):
            a(f"v_lshl_or_b32 v{WPH+i*4}, v{WPH+i*4+1}, 16, v{WPH+i*4}")
            a(f"v_lshl_or_b32 v{WPH+i*4+1}, v{WPH+i*4+3}, 16, v{WPH+i*4+2}")
        for i in range(4):
            for hq in range(4):
                for e in range(2):
                    a(f"v_cndmask_b32 v{AW+i*8+hq*2+e}, 0, v{WPH+i*4+e}, s[{sHM[hq]}:{sHM[hq]+1}]")
        a("s_waitcnt lgkmcnt(0)")
        def out_k(st):
            for kq in range(4):
                a(f"ds_write_b128 v{vPW}, v[{PHO+kq*4}:{PHO+kq*4+3}] offset:{st*1024 + kq*16}")
        feature_map(out_k, ts)
        a("s_waitcnt lgkmcnt(0)")
        a("s_barrier")
        KV = 0
        def mfs(k):
            fb = 16 + k * 12
            a.wait_lg(("b", k), always=True)
            for ft in range(2):
                d = KV + ft * 4; c = "0" if k == 0 else f"v[{d}:{d+3}]"
                a(f"{MF} v[{d}:{d+3}], v[{fb+4+ft*4}:{fb+7+ft*4}], v[{fb}:{fb+3}], {c}")
            for ft in range(2):
                d = KV + 8 + ft * 4; c = "0" if k == 0 else f"v[{d}:{d+3}]"
                a(f"{MF} v[{d}:{d+3}], v[{fb+4+ft*4}:{fb+7+ft*4}], v[{vONE}:{vONE+3}], {c}")
        for k in range(8):
            fb = 16 + k * 12
            a.lg(f"ds_read_b128 v[{fb}:{fb+3}], v{vVR} offset:{k*4096}", ("b", k))
            for ft in range(2):
                for jj in range(2):
                    b = fb + 4 + ft * 4 + jj * 2
                    a.lg(f"ds_read_b64_tr_b16 v[{b}:{b+1}], v{vPR} offset:{k*2048 + jj*1024 + ft*8}", ("b", k))
            if k >= 2: mfs(k - 2)
        mfs(6); mfs(7)
        a(f"""
s_lshl_b32 s{sT0}, s{sSUB}, 2
s_add_u32 s{sT0}, s{sT0}, s{sWAVE}
s_lshl_b32 s{sT0}, s{sT0}, 3
s_add_u32 s{sT0}, s{sT0}, s{sRB}
s_mul_i32 s{sT0}, s{sT0}, {BKV_P}
s_add_u32 s{sT0}, s{sT0}, {BKV}
v_and_b32 v{vT0}, 15, v{vL}
v_cmp_eq_u32 vcc, 0, v{vT0}
buffer_store_dwordx4 v[{KV}:{KV+3}], v{vST[0]}, s[{sWS}:{sWS+3}], s{sT0} offen sc1
buffer_store_dwordx4 v[{KV+4}:{KV+7}], v{vST[0]}, s[{sWS}:{sWS+3}], s{sT0} offen offset:1024 sc1
s_mov_b64 exec, vcc
buffer_store_dwordx4 v[{KV+8}:{KV+11}], v{vZ}, s[{sWS}:{sWS+3}], s{sT0} offen offset:2048 sc1
buffer_store_dwordx4 v[{KV+12}:{KV+15}], v{vZ}, s[{sWS}:{sWS+3}], s{sT0} offen offset:2112 sc1
s_mov_b64 exec, -1
""")
        a.vmq += ["st"] * 4
    def wphi_loads():
        a(f"s_lshl_b32 s{sT0}, s{sSUB}, 11")
        for i in range(4):
            for j in range(4):
                a.vm(f"buffer_load_ushort v{WPH+i*4+j}, v{vPH}, s[{sPHI}:{sPHI+3}], s{sT0} offen offset:{j*32 + i*8}", "wphi")
    wphi_loads()
    p = mkpa("KKKKVVVV")
    B = p.build()
    if CT:
        for c in range(CT, 8): B.stream(ctouch(c), 64 * (c - CT) + 43, 64 * (c - CT) + 47)
    B.stream(slot_dma(0, BSL), p.bar_gap(7) + 3, p.bar_gap(7) + 50)
    if SKIPH: B.stream(kv_warm(), p.bar_gap(7) + 50, 511)
    B.emit(a)
    a.stamp(3)
    a("s_barrier")
    for it in slot_dma(1, BSL): it.fn()
    cleared()
    for r in range(4): a(f"v_mov_b32 v{vONE+r}, 0x3f803f80")
    post(warm() if not SKIPH else [lambda: None] * 4)
    a.stamp(4)
    a.wait_vm(("w", 0)); a("s_barrier")
    for idx in range(LEAD // 4):
        for jj in range(2): tr_item(0, idx >> 2, idx & 3, jj, BSL).fn()
    body("K", 0, BSL, epi=False, dma=False, nxt=False)
    a.stamp(5)
    a(f"""
s_lshl_b32 s{sT0}, s{sSUB}, 19
s_lshr_b32 s{sT1}, s{sSTFIX}, 2
s_add_u32 s{sT0}, s{sT0}, s{sT1}
s_add_u32 s{sT0}, s{sT0}, {PHIQ}
s_nop 3
""")
    if EARLY:
        su, dm = next_phase()
        for it in su: it.fn()
        a(f"s_mov_b32 s{sROW1}, 8192")
        a(f"s_mov_b32 s{sROW4}, 32768")
        pa.setup_dma(vL, vT0, vT1, vT2, sROW1)
        a("s_barrier")
        for it in dm: it.fn()
        ptr_loads()
    def out_q(st):
        for kq in range(4):
            a.vm(f"buffer_store_dwordx4 v[{PHO+kq*4}:{PHO+kq*4+3}], v{vPW2}, s[{sWS}:{sWS+3}], s{sT0} offen offset:{st*1024 + kq*256} sc1", "st")
    feature_map(out_q, [lambda: None] * 4)
    a.stamp(6)
    if WB:
        LW = a.newlabel("K1_nowb")
        a(f"s_cmp_lg_u32 s{sWAVE}, 0")
        a(f"s_cbranch_scc1 {LW}")
        for i in range(WB):
            a("buffer_wbl2 sc1")
            a("s_waitcnt vmcnt(0)")
        a.label(LW)
    a.stamp(8)
    if a.diag and not fused: a("s_waitcnt vmcnt(0)")
    a.stamp(9); a.stamp(10, real=True)
    a.stamp_flush(sWS, sWAVE, 24, DIAG, vt=(241, 242))
    a.k1_exit.append(list(a.vmq))
    if fused: a("s_branch K2_fused_entry")
    a.label(END)
    a("s_endpgm")
    sm16()
    a.label("K1_code_end")

if __name__ == "__main__":
    import sys
    a = Asm()
    a.diag = len(sys.argv) > 1
    gen_k1(a)
    for p in a.check(): print(p)
    open("k1.s", "w").write(a.text())
    print(len(a.lines), "lines")
```

```python
from asmlib import Asm
from sched import *
from common import *
from phasea import PhaseA, WR, FR, AR
from hedge import *

BIG = f2u(-1.0e30)
THR = f2u(2.0 ** 60)
OFFS = f2u(40.0)
RQ = 0x20000
MX = 0xC000
MF32 = "v_mfma_f32_32x32x16_bf16"

def gen_k2(a, name="k2_kernel", CPF=1, ROT=0, fused=False, PLEAD=50, PSLEEP=12, NLATE=0, FST="", OST="", L2W=1, fused3=False, CH=0, WARM=0, EARLY=0, PROG=0, AL=3, BG=95, OFF=96.0, VW=50, KW=127):
    OFFS = f2u(OFF); THR = f2u(2.0 ** (100 - OFF))
    if fused3: FST = OST = "sc1"
    if not fused: a.kernel(name, (256,1,1), (256,1,1), 163840, vgpr=256, agpr=256)
    SC = " sc1" if fused else ""
    sX, sW, sWS = 4, 8, 12
    (sWAVE, sH, sI, sROW1, sA0, sA1, sT0, sT1, sT2, sCNT, sLA, sLW, sWSRC, sROW4, sROWH,
     sKSRC, sVSRC, sKD, sVD, sKAP, sDGA, sDGB, sDMIN, sTHR, sCTXA, sCTXB, sP, sW4) = range(16, 44)
    sRET = 44
    sM = [46, 48, 50, 52]
    sB0, sB1 = 54, 55
    sEVA, sEVB = 98, 99
    sCO, sWB, sA0c, sA1c = 46, 47, 48, 49
    sOFF = sTHR
    Q = 0; S = 64; P = 128; NM = 160; TE = 192; LC = 200; M = 208
    vK, vV, vL16, vL, vT0, vT1, vTHR, vQX = 212, 213, 214, 215, 216, 217, 218, 219
    vX16, vX32, vBIG, vDG = 220, 221, 222, 223
    D = 224; F = 228; vST = [232, 233]; vMX = 234; vT2 = 235
    ZERO = 236
    PKR = 240
    pACC, pWF = 64, 0
    vWA = list(range(192, 200)); vXA = [200, 201]; vAD = [202, 203, 204, 205]; vWD = [206, 207, 208, 209]
    O = 0; KF = 128; VF = 160; LA = 192; ONES = 208
    END = a.newlabel("K2_end")
    def q(u, dk): return Q + (u * 4 + dk) * 4
    def s_(buf, u, kt): return S + ((buf * 4 + u) * 2 + kt) * 4
    def p_(buf, u): return P + (buf * 4 + u) * 4
    def nm(u, kt): return NM + (u * 2 + kt) * 4
    def o_(u, dt): return O + (u * 8 + dt) * 4
    def lc(par, u): return LC + par * 4 + u
    mk = Mk(a)
    I = lambda s, c=None: mk.I(s)
    if fused:
        a.label("K2_fused_entry")
        a.vmq = []; a.lgq = []
        if EARLY:
            def behind(qq, tag): return len(qq) - 1 - max(i for i, t in enumerate(qq) if t == tag)
            n0 = min(behind(qq, ("pa", 0)) for qq in a.k1_exit)
            if EARLY == 1:
                n1 = min(behind(qq, ("pa", 1)) for qq in a.k1_exit)
                a.vmq = [("pa", 0)] + ["x"] * (n0 - n1 - 1) + [("pa", 1)] + ["x"] * n1
            else: a.vmq = [("pa", 0)] + ["x"] * n0
            src = list(range(208, 216)) + [216, 217] + [218, 219, 252, 253] + [220, 221, 254, 255]
            for d_, s0 in zip(vWA + vXA + vAD + vWD, src): a(f"v_mov_b32 v{d_}, v{s0}")
        a(f"v_mov_b32 v{vL}, v240")
    else:
        a(f"""
s_cmp_ge_u32 s2, 256
s_cbranch_scc1 {END}
v_lshrrev_b32 v{vT0}, 6, v0
v_and_b32 v{vL}, 63, v0
v_readfirstlane_b32 s{sWAVE}, v{vT0}
""")
    a.stamp(14)
    if not EARLY: a(f"""
s_load_dwordx2 s[56:57], s[0:1], 0      ; x
s_load_dwordx2 s[58:59], s[0:1], 16     ; w_q
s_load_dwordx2 s[60:61], s[0:1], 96     ; ws
s_load_dwordx2 s[88:89], s[0:1], 40     ; w_o
s_load_dwordx2 s[92:93], s[0:1], 72     ; wo
s_load_dwordx2 s[52:53], s[0:1], 88
""")
    a(f"""
s_lshr_b32 s{sT1}, s2, 3
s_and_b32 s{sI}, s{sT1}, 7
s_lshr_b32 s{sT1}, s{sT1}, 3
s_and_b32 s{sH}, s2, 7
s_lshl_b32 s{sH}, s{sH}, 2
s_add_u32 s{sH}, s{sH}, s{sT1}
s_mov_b32 s{sROW1}, 8192
s_mov_b32 s{sROW4}, 32768
s_mov_b32 s{sROWH}, 4096
s_lshl_b32 s{sCO}, s{sT1}, 1
s_add_u32 s{sCO}, s{sCO}, s{sI}
s_and_b32 s{sCO}, s{sCO}, {7 if ROT else 0}
s_lshl_b32 s{sCO}, s{sCO}, 7
s_sub_u32 s{sCO}, s{sCO}, {[128, -128, 0][EARLY]}
s_sub_u32 s{sT0}, 15, s{sI}             ; L
s_lshl_b32 s{sDGA}, s{sT0}, 2
s_add_u32 s{sDGA}, s{sDGA}, s{sWAVE}
s_lshl_b32 s{sDGB}, s{sI}, 2
s_add_u32 s{sDGB}, s{sDGB}, s{sWAVE}
s_lshl_b32 s{sA0}, s{sDGA}, 15
s_lshl_b32 s{sA1}, s{sDGB}, 15
s_lshl_b32 s{sLA}, s{sWAVE}, 14
s_add_u32 s{sLA}, s{sLA}, {AR}
s_lshl_b32 s{sW4}, s{sWAVE}, 12
s_add_u32 s{sLW}, s{sW4}, {WR}
s_lshl_b32 s{sWB}, s{sWAVE}, 17       ; 16 rows * 8192
s_lshl_b32 s{sT0}, s{sH}, 8
s_add_u32 s{sWB}, s{sWB}, s{sT0}
s_lshl_b32 s{sKSRC}, s{sH}, 19
s_add_u32 s{sKSRC}, s{sKSRC}, s{sW4}
s_add_u32 s{sVSRC}, s{sKSRC}, {VWS}
s_mov_b32 s{sX+2}, 0x200000
s_mov_b32 s{sX+3}, 0x20000
s_mov_b32 s{sW+2}, 0x400000
s_mov_b32 s{sW+3}, 0x20000
s_mov_b32 s{sWS+2}, {WS_USED}
s_mov_b32 s{sWS+3}, 0x20000
""")
    pa = PhaseA(a, pACC, pWF, vWA, vXA, vAD, vWD, sX, sW, sA0, sA1, sWSRC, sROW4, sROWH, sLA, sLW, sT2, "K" * 8, sCO, sWB, sA0c, sA1c)
    pa.ring = 128
    if not EARLY: pa.setup_dma(vL, vT0, vT1, vT2, sROW1)
    pa.pre1 = EARLY == 1
    if EARLY == 2: pa.N1 = 0
    a("s_waitcnt lgkmcnt(0)")
    if not EARLY: a(f"""
s_mov_b32 s{sX}, s56
s_mov_b32 s{sX+1}, s57
s_mov_b32 s{sW}, s58
s_mov_b32 s{sW+1}, s59
s_mov_b32 s{sWS}, s60
s_mov_b32 s{sWS+1}, s61
""")
    a(f"""
s_mov_b32 s54, 256
s_mov_b32 s55, 0x20000
""")
    if fused:
        a(f"""
s_add_u32 s51, s99, {FLAGS + 32768}
s_cmp_eq_u32 s{sWAVE}, 0
s_cselect_b32 s62, 256, 0
s_cselect_b32 s50, {FLAGS + 32768}, s{sWS+2}
s_cselect_b32 s{sT0}, 1, 0
v_mov_b32 v{vX32}, s{sT0}
v_mov_b32 v{vT0}, 0
""")
        a.vm(f"buffer_load_dword v{vT2}, v{vT0}, s[52:55], s{sW4} offen sc1", "cnt")
        if not EARLY: a("s_barrier")
    a.stamp(0); a.stamp(1, real=True)
    if not EARLY:
        for it in pa.chunk_dmas(0): it.fn()
    a.stamp(11)
    if not EARLY: pa.setup_read(vL, vT0, vT1, vBIG)
    if fused:
        a(f"""
s_lshr_b32 s{sT0}, s{sH}, 3
s_mul_i32 s{sT0}, s{sT0}, 24
v_min_u32 v{vT0}, 55, v{vL}
v_add_u32 v{vX16}, s{sT0}, v{vT0}         ; K producers
v_add_u32 v{vT1}, 72, v{vX16}             ; V producers
v_cmp_le_u32 vcc, 24, v{vT0}
s_lshr_b32 s{sT0}, s{sH}, 2
s_lshl_b32 s{sT0}, s{sT0}, 3
s_add_u32 s{sT0}, s{sT0}, 144
v_cndmask_b32 v{vX16}, v{vX16}, v{vT1}, vcc
v_add_u32 v{vT1}, s{sT0}, v{vT0}          ; B producers
v_cmp_le_u32 vcc, 48, v{vT0}
s_nop 1
v_cndmask_b32 v{vX16}, v{vX16}, v{vT1}, vcc
v_lshlrev_b32 v{vX16}, 7, v{vX16}
""")
    setup2 = f"""
v_lshlrev_b32 v{vL16}, 4, v{vL}
v_mov_b32 v{vBIG}, {hex(BIG)}
v_mov_b32 v{vTHR}, {hex(THR)}
v_and_b32 v{vT0}, 15, v{vL}
v_lshrrev_b32 v{vT1}, 4, v{vL}
v_lshlrev_b32 v{vT1}, 2, v{vT1}
v_sub_u32 v{vDG}, v{vT0}, v{vT1}
v_mov_b32 v{vST[0]}, v{vL16}
v_add_u32 v{vST[1]}, {144*1024}, v{vL16}
v_mov_b32 v{vT0}, 0x3f803f80
s_and_b32 s{sP}, s{sWAVE}, 1
s_mul_i32 s{sCTXA}, s{sDGA}, {2*144*1024}
s_mul_i32 s{sCTXB}, s{sDGB}, {2*144*1024}
s_lshl_b32 s{sT0}, s{sH}, 12
s_add_u32 s{sT0}, s{sT0}, {CTX}
s_add_u32 s{sCTXA}, s{sCTXA}, s{sT0}
s_add_u32 s{sCTXB}, s{sCTXB}, s{sT0}
v_add_u32 v{vK}, 0x10000, v{vL16}
v_add_u32 v{vV}, 0x10000, v{vL16}
s_lshl_b32 s{sT0}, s{sWAVE}, 13
s_add_u32 s{sT0}, s{sT0}, {RQ}
v_add_u32 v{vQX}, s{sT0}, v{vL16}
s_lshl_b32 s{sT0}, s{sWAVE}, 9
s_add_u32 s{sT0}, s{sT0}, {MX}
v_lshlrev_b32 v{vMX}, 3, v{vL}
v_add_u32 v{vMX}, s{sT0}, v{vMX}
s_add_u32 s{sKD}, s{sW4}, 0x10000         ; K(2) -> parity 0
s_add_u32 s{sVD}, s{sW4}, 0x4000          ; V(1) -> parity 1
s_mov_b32 s{sKAP}, -1
s_min_u32 s{sDMIN}, s{sDGA}, s{sDGB}
s_mov_b32 s{sEVA}, s{sDGA}
s_mov_b32 s{sEVB}, s{sDGB}
s_mov_b32 s90, 0x400000
s_mov_b32 s91, 0x20000
s_mov_b32 s94, 0x80000
s_mov_b32 s95, 0x20000
"""
    def zero16(reg):
        return f"{MF32} {reg}, v[{ZERO}:{ZERO+3}], v[{ZERO}:{ZERO+3}], 0"
    late = [I(l.split(";")[0].strip()) for l in setup2.strip().split("\n")]
    late += [I(f"v_accvgpr_write_b32 a{ONES+r}, v{vT0}") for r in range(4)]
    for r in range(4): a(f"v_mov_b32 v{ZERO+r}, 0")
    if EARLY:
        late += [I(f"v_accvgpr_write_b32 a{r}, 0") for r in list(range(O, O + 128)) + [LA, LA + 4, LA + 8, LA + 12]]
        late += [I(f"v_accvgpr_write_b32 a{r}, 0") for r in range(LA, LA + 16) if r % 4]
    else:
        a("s_nop 1")
        for k in range(8): a(zero16(f"a[{O+k*16}:{O+k*16+15}]"))
        a(zero16(f"a[{LA}:{LA+15}]"))
    def tile_dma(src, ldsexpr, tag, srcadd=None, post=()):
        its = [I(f"s_add_u32 m0, s{ldsexpr[0]}, {ldsexpr[1]}"), I(f"s_add_u32 s{sT1}, s{src}, {srcadd}" if srcadd is not None else "s_nop 0")]
        for i in range(4):
            its.append(mk.VM(f"buffer_load_dwordx4 v{vL16}, s[{sWS}:{sWS+3}], s{sT1 if srcadd is not None else src} offen offset:{i*1024}{SC} lds", tag))
        return its + [I(t) for t in post]
    def chores():
        its = [I(f"s_lshl_b32 s{sB0}, s2, 2"), I(f"s_add_u32 s{sB0}, s{sB0}, s{sWAVE}")]
        if WARM:
            its += [I(f"v_and_b32 v{vT1}, 31, v{vL}"), I(f"v_lshlrev_b32 v{vT1}, 7, v{vT1}"), I(f"s_lshl_b32 s{sB1}, s{sB0}, 12"),
                    mk.VM(f"buffer_load_dword v245, v{vT1}, s[88:91], s{sB1} offen", "warm"),
                    I(f"v_and_b32 v{vT1}, 0x180, v{vT1}"), I(f"s_lshl_b32 s{sB1}, s{sB0}, 9"),
                    mk.VM(f"buffer_load_dword v245, v{vT1}, s[92:95], s{sB1} offen", "warm")]
        if fused3 == 2:
            its += [I(f"s_mul_i32 s{sB1}, s{sB0}, 6144"), I(f"s_add_u32 s{sB1}, s{sB1}, {PART}")]
            its += [I(f"v_mov_b32 v{PKR+8+r}, -1") for r in range(4)]
            for k in range(6):
                if k == 4: its.append(I(f"s_add_u32 s{sB1}, s{sB1}, 4096"))
                its.append(mk.VM(f"buffer_store_dwordx4 v[{PKR+8}:{PKR+11}], v{vL16}, s[{sWS}:{sWS+3}], s{sB1} offen offset:{(k % 4)*1024} sc1", "clr"))
        return its
    B = pa.build(stamp=2)
    g6 = pa.bar_gap(6) + 6
    LAFTER = "K2_after"
    if CPF: late = code_prefetch(a, LAFTER, "K3_code_end" if fused3 else "K2_code_end", 96, sT0, sWAVE, vL, vT0, 245) + late
    B.stream(late[NLATE:], 50 if not EARLY else 4, 300 if not EARLY else 340)
    if fused:
        def sig():
            L = a.newlabel("K2_sig")
            a(f"""
s_cmp_lg_u32 s{sWAVE}, 0
s_cbranch_scc1 {L}
s_mov_b64 exec, 1
buffer_store_dword v{vX32}, v{ZERO}, s[{sWS}:{sWS+3}], s51 offen sc1
s_mov_b64 exec, -1
{L}:
v_readfirstlane_b32 s51, v{vT2}
""")
        if EARLY: B.put(pa.bar_gap(3 - EARLY) + 3, Item(sig, 16, "X"), 3)
        else: sig()
        B.put(pa.bar_gap(6) - PLEAD, mk.VM(f"buffer_load_dword v{vT2}, v{vX16}, s[{sWS}:{sWS+3}], s50 offen sc1", "poll"))
        def chk():
            L = a.newlabel("K2_spin"); R = a.newlabel("K2_spun"); LP = a.newlabel("K2_spl"); LQ = a.newlabel("K2_spq")
            a.wait_vm("poll", always=True)
            a(f"v_cmp_ne_u32 vcc, v{vX32}, v{vT2}")
            a(f"s_cmp_lt_u32 s51, s62")
            a(f"s_cbranch_scc1 {L}")
            a(f"s_cbranch_vccnz {L}")
            a.label(R)
            a.stubs.append(f"""{L}:
s_mov_b32 s{sT1}, 0x40000
{LP}:
s_cmp_ge_u32 s51, 256
s_cbranch_scc1 {LQ}
s_sleep {PSLEEP}
buffer_load_dword v{vT2}, v{ZERO}, s[52:55], 0 offen sc1
s_waitcnt vmcnt(0)
v_readfirstlane_b32 s51, v{vT2}
s_sub_u32 s{sT1}, s{sT1}, 1
s_cmp_lg_u32 s{sT1}, 0
s_cbranch_scc1 {LP}
s_branch {R}
{LQ}:
buffer_load_dword v{vT2}, v{vX16}, s[{sWS}:{sWS+3}], s50 offen sc1
s_waitcnt vmcnt(0)
v_cmp_ne_u32 vcc, 1, v{vT2}
s_sub_u32 s{sT1}, s{sT1}, 1
s_cmp_eq_u32 s{sT1}, 0
s_cbranch_scc1 {R}
s_cbranch_vccz {R}
s_sleep 2
s_branch {LQ}""")
        B.put(pa.bar_gap(6) - 1, Item(chk, 20, "X"), 3)
    B.spread(tile_dma(sKSRC, (sW4, 0x10000), "kv") + tile_dma(sVSRC, (sW4, 0x14000), "kv") + tile_dma(sKSRC, (sW4, 0), "kv", 16384), g6, g6 + 56)
    if CH == 1: B.stream(chores(), g6 + 60, 492)
    def qcvt(u, dk, j):
        r = pa.acc(2 * dk + (j >> 1), u) + (j & 1) * 2
        return f"v_cvt_pk_bf16_f32 v{q(u, dk) + j}, v{r}, v{r+1}"
    qearly = []
    for dk in range(2):
        its = [I(qcvt(u, dk, j), 5) for u in range(2) for j in range(4)]
        B.spread(its, 480 + dk * 8 + 14, 480 + dk * 8 + 22)
        qearly += [(u, dk) for u in range(2)]
    B.emit(a)
    a.label(LAFTER)
    a.stamp(3); a.stamp(21, real=True)
    a.wait_vm("kv"); a("s_barrier")

    LMASK = a.newlabel("K2_mask"); LADJ = [a.newlabel("K2_adj0"), a.newlabel("K2_adj1")]
    def kread(hs, f):
        b = KF + f * 4
        return mk.LG(f"ds_read_b128 a[{b}:{b+3}], v{vK} offset:{(f >> 1)*4096 + (hs*2 + (f & 1))*1024}", ("kf", f))
    def vread(hs, f):
        b = VF + f * 4
        return mk.LG(f"ds_read_b128 a[{b}:{b+3}], v{vV} offset:{0x4000 + (f >> 1)*4096 + (hs*2 + (f & 1))*1024}", ("vf", f))
    def qk_mfma(B, base, buf, wait=2, late=False):
        for f in range(8):
            kt, dk = f & 1, f >> 1
            for u in range(4):
                d = s_(buf, u, kt); c = nm(u, kt) if dk == 0 else d
                st = f"{MF} v[{d}:{d+3}], a[{KF+f*4}:{KF+f*4+3}], v[{q(u,dk)}:{q(u,dk)+3}], v[{c}:{c+3}]"
                B.mfma[base + f * 4 + (u if kt else u ^ 3)] = (lambda st=st: a(st))
            if f % wait == 0: B.put_pre(base + f * 4, mk.WL(("kf", f + wait - 1)))
    def pv_mfma(B, base, buf, wait=2, order="d"):
        for f in range(8):
            for u in range(4):
                o = o_(u, f); p = p_(buf, u)
                st = f"{MF} a[{o}:{o+3}], a[{VF+f*4}:{VF+f*4+3}], v[{p}:{p+3}], a[{o}:{o+3}]"
                m = {"d": f * 4 + u, "b": (0 if u >= 2 else 16) + f * 2 + (u & 1), "u": u * 8 + (f ^ 7 if u & 1 else f)}[order]
                B.mfma[base + m] = (lambda st=st: a(st))
            if f % wait == 0:
                B.put_pre(base + {"d": f * 4, "b": f * 2, "u": f}[order], mk.WL(("vf", f + wait - 1)))
    def lmfma(par, u):
        t = f"{MF} a[{LA+u*4}:{LA+u*4+3}], a[{ONES}:{ONES+3}], v[{p_(par,u)}:{p_(par,u)+3}], a[{LA+u*4}:{LA+u*4+3}]"
        return Item(lambda: a(t), 8, "v")
    def lread(par, u): return I(f"v_accvgpr_read_b32 v{lc(par,u)}, a{LA+u*4}")
    def ex(par, i): return I(f"v_exp_f32 v{TE+i%8}, v{S+par*32+i}")
    def cv(par, c): return I(f"v_cvt_pk_bf16_f32 v{P+par*16+c}, v{TE+(2*c)%8}, v{TE+(2*c+1)%8}")
    def early(par):
        return [ex(par, 0), ex(par, 1), ex(par, 2), cv(par, 0), ex(par, 3), ex(par, 4), cv(par, 1), ex(par, 5)]
    def softmax_items(par, skip_early=False):
        its = [] if skip_early else early(par)
        for i in range(6, 34):
            if i < 32: its.append(ex(par, i))
            if i == 32: its.append(I("v_nop"))
            if i % 2 == 0 and i // 2 - 1 < 16: its.append(cv(par, i // 2 - 1))
            if i in (10, 18, 26): its.append(lmfma(par, (i >> 3) - 1))
            if i in (20, 28): its.append(lread(par, (i >> 3) - 2))
        return its
    def softmax_tail(B, g, par, check=True):
        B.put(g, I("v_nop")); B.put(g, lmfma(par, 3))
        B.put(g + 2, lread(par, 2))
        if check: B.put(g + 3, I(f"v_max3_f32 v{vT0}, v{lc(par,0)}, v{lc(par,1)}, v{lc(par,2)}"))
        B.put(g + 7, lread(par, 3))
        if check:
            B.put(g + 8, I(f"v_max_f32 v{vT0}, v{vT0}, v{lc(par,3)}"))
            B.put(g + 8, I(f"v_cmp_nle_f32 vcc, v{vT0}, v{vTHR}"))
            B.put(g + 10, check_item(par), 3)
    def call_stub(branch, target):
        def f():
            L = a.newlabel("K2_st"); R = a.newlabel("K2_rt")
            a(f"{branch} {L}")
            a.label(R)
            a.stubs.append(f"{L}:\ns_call_b64 s[{sRET}:{sRET+1}], {target}\ns_branch {R}")
        return Item(f, 4, "s")
    def check_item(par): return call_stub("s_cbranch_vccnz", LADJ[par])
    def mask_items():
        return [I(f"s_add_u32 s{sKAP}, s{sKAP}, 1"), I(f"s_cmp_ge_u32 s{sKAP}, s{sDMIN}"),
                Item(lambda: a(f"s_getpc_b64 s[{sRET}:{sRET+1}]\ns_cbranch_scc1 {LMASK}"), 8, "X")]
    def put_mask(B, g):
        m = mask_items()
        B.put(g - 1, m[0])
        assert not B.gap[g].c[0] and not B.gap[g].c[3]
        B.put(g, m[1], 0); B.put(g, m[2], 3)
    def put_bar(B, g):
        B.put(g, mk.WV("kv", lg0=True), 3); B.put(g, I("s_barrier"), 3)
    def togK(): return I(f"v_xor_b32 v{vK}, 0x10000, v{vK}")
    def togV(): return I(f"v_xor_b32 v{vV}, 0x10000, v{vV}")
    def kv_dmas(src, dst, two):
        adv = (f"s_add_u32 s{src}, s{src}, 16384", f"s_xor_b32 s{dst}, s{dst}, 0x10000")
        if not two: return tile_dma(src, (dst, 0), "kv", post=adv)
        return tile_dma(src, (dst, 0), "kv") + tile_dma(src, (dst, 0x8000), "kv", f"s{sOFF}", post=adv)
    NPRE = 6
    sF3 = 63
    sCW, sCC, sCE = 56, 57, 58
    def f3_item():
        return mk.VM(f"buffer_store_dword v{vX32}, v{ZERO}, s[{sWS}:{sWS+3}], s{sF3} offen sc1", "f3")
    def body_emit(two):
        B = Body(128)
        qk_mfma(B, 0, 0, 4); pv_mfma(B, 32, 0, 4, "u"); qk_mfma(B, 64, 1, 4); pv_mfma(B, 96, 1, 8, "u")
        ins = []
        for par, G0 in ((1, -12), (0, 52), (1, 116)):
            for i in range(32):
                g = G0 + 2 * i
                if 0 <= g < 128: B.put(g, ex(par, i))
            for c in range(16):
                g = G0 + 4 * c + 5
                if 0 <= g < 128: B.put(g, cv(par, c))
            if G0 < 100:
                for u in range(4):
                    ins.append((G0 + 16 * u + 19, lmfma(par, u).fn))
                    B.put(G0 + 16 * u + 23, lread(par, u))
                B.put(G0 + 55, I(f"v_max3_f32 v{vT0}, v{lc(par,0)}, v{lc(par,1)}, v{lc(par,2)}"))
                B.put(G0 + 71, I(f"v_max_f32 v{vT0}, v{vT0}, v{lc(par,3)}"))
                B.put(G0 + 73, I(f"v_cmp_nle_f32 vcc, v{vT0}, v{vTHR}"))
                B.put(G0 + 75, check_item(par), 3)
        B.put(1, kread(0, 6)); B.put(5, kread(0, 7))
        for f, g in enumerate((9, 11, 13, 17, 21, 25, 27, 29)): B.put(g, vread(0, f))
        for f, g in enumerate((33, 37, 41, 45, 47, 49, 53, 57)): B.put(g, kread(1, f))
        B.put(63, togK())
        for f, g in enumerate((65, 69, 73, 75, 77, 81, 85, 89)): B.put(g, vread(1, f))
        B.put(91, togV())
        put_bar(B, BG)
        for f, g in enumerate((101, 105, 109, 113, 117, 121)): B.put(g, kread(0, f))
        put_mask(B, 51)
        put_mask(B, 87)
        B.put(84, I(f"s_sub_u32 s{sCNT}, s{sCNT}, 1"))
        for after, fn in sorted(ins, reverse=True): B.insert_mfma(after, fn)
        r = lambda v: v + sum(1 for x, _ in ins if x < v)
        B.stream(kv_dmas(sVSRC, sVD, two), 0, r(VW), even=False)
        if CH == 2:
            B.stream([mk.VM(f"buffer_load_dword v{vT2}, v{vX16}, s[88:91], s{sCW} offen", "warm"),
                      I(f"s_add_u32 s{sCW}, s{sCW}, 384"),
                      mk.VM(f"buffer_store_dwordx4 a[236:239], v{vL16}, s[{sWS}:{sWS+3}], s{sCC} offen sc1", "clr"),
                      I(f"s_add_u32 s{sCC}, s{sCC}, 1024"),
                      Item(lambda: a(f"s_cmp_ge_u32 s{sCC}, s{sCE}\ns_cselect_b32 s{sCC}, s{sWS+2}, s{sCC}"), 8, "X")], r(52), r(90), even=False)
        kd = kv_dmas(sKSRC, sKD, two)
        if two and PROG: kd = [f3_item()] + kd
        B.stream(kd, r(BG) + 1, r(KW), even=False)
        print("body est", two, B.est())
        B.emit(a)
    def quad_max(regs, tmp):
        for sw in ("v_permlane16_swap_b32", "v_permlane32_swap_b32"):
            for i, r in enumerate(regs): a(f"v_mov_b32 v{tmp+i}, v{r}")
            for i, r in enumerate(regs): a(f"{sw} v{r}, v{tmp+i}")
            for i, r in enumerate(regs): a(f"v_max_f32 v{r}, v{r}, v{tmp+i}")
    def row_max(par, dst):
        for u in range(4):
            b = s_(par, u, 0)
            a(f"v_max3_f32 v{dst[u]}, v{b}, v{b+1}, v{b+2}")
            a(f"v_max3_f32 v{TE+u}, v{b+3}, v{b+4}, v{b+5}")
        for u in range(4):
            b = s_(par, u, 0)
            a(f"v_max3_f32 v{dst[u]}, v{dst[u]}, v{b+6}, v{b+7}")
        for u in range(4): a(f"v_max_f32 v{dst[u]}, v{dst[u]}, v{TE+u}")
        quad_max(dst, TE)
        for u in range(4): a(f"v_add_f32 v{dst[u]}, {hex(OFFS)}, v{dst[u]}")
    def fin_items(us, sCTX, scale, T):
        its = []; n = 0
        for ui, u in enumerate(us):
            for dk in range(4):
                pk = PKR + (n % 4) * 4
                for j in range(4):
                    r = o_(u, 2 * dk + (j >> 1)) + (j & 1) * 2
                    t = T + (j % 4) * 2
                    its.append(I(f"v_accvgpr_read_b32 v{t}, a{r}", 5))
                    its.append(I(f"v_accvgpr_read_b32 v{t+1}, a{r+1}", 5))
                    its.append(I(f"v_mul_f32 v{t}, v{t}, v{scale[ui]}"))
                    its.append(I(f"v_mul_f32 v{t+1}, v{t+1}, v{scale[ui]}"))
                    its.append(I(f"v_cvt_pk_bf16_f32 v{pk+j}, v{t}, v{t+1}", 5))
                its.append(mk.VM(f"buffer_store_dwordx4 v[{pk}:{pk+3}], v{vST[ui]}, s[{sWS}:{sWS+3}], s{sCTX} offen offset:{dk*1024} sc1", "st"))
                n += 1
        return its

    for f in range(NPRE): kread(0, f).fn()
    for u in range(4):
        for dk in range(4):
            if (u, dk) in qearly: continue
            for j in range(4): a(qcvt(u, dk, j))
    a(zero16(f"v[{NM}:{NM+15}]")); a(zero16(f"v[{NM+16}:{NM+31}]"))
    for r in range(4): a(f"v_cmp_gt_i32 s[{sM[r]}:{sM[r]+1}], {r}, v{vDG}")
    a(f"""
s_add_u32 s{sKSRC}, s{sKSRC}, 32768
s_add_u32 s{sVSRC}, s{sVSRC}, 16384
s_lshl_b32 s{sOFF}, s{sI}, 15
s_sub_u32 s{sOFF}, {15*16384}, s{sOFF}    ; T tiles
s_add_u32 s{sT0}, s{sKSRC}, {15*16384}    ; tile D+T = 17
""")
    for u in range(2):
        for dk in range(4):
            a.lg(f"ds_write_b128 v{vQX}, v[{q(u,dk)}:{q(u,dk)+3}] offset:{(u*4+dk)*1024}", "qx")
    a.stamp(4)
    for it in mask_items(): it.fn()
    B = Body(32)
    qk_mfma(B, 0, 0)
    for f in range(NPRE, 8): B.put(4 * (f - NPRE), kread(0, f))
    for f in range(NPRE): B.put(8 + 4 * f, kread(1, f))
    B.spread(tile_dma(sT0, (sW4, 0x18000), "kd") + tile_dma(sT0, (sW4, 0x8000), "kd", 16384), 1, 25)
    put_mask(B, 26)
    if CH == 2:
        B.stream([I(f"s_lshl_b32 s{sCW}, s2, 2"), I(f"s_add_u32 s{sCW}, s{sCW}, s{sWAVE}"), I(f"s_mul_i32 s{sCC}, s{sCW}, 6144"),
                  I(f"s_add_u32 s{sCC}, s{sCC}, {PART}"), I(f"s_add_u32 s{sCE}, s{sCC}, 6144"), I(f"s_lshl_b32 s59, s{sCW}, 9"),
                  I(f"s_lshl_b32 s{sCW}, s{sCW}, 12"), I(f"v_and_b32 v{vX16}, 3, v{vL}"), I(f"v_lshlrev_b32 v{vX16}, 7, v{vX16}"),
                  mk.VM(f"buffer_load_dword v{vT2}, v{vX16}, s[92:95], s59 offen", "warm"), I(f"v_min_u32 v{vX16}, 0x100, v{vX16}")]
                 + [I(f"v_accvgpr_write_b32 a{236+r}, -1") for r in range(4)], 1, 31)
    B.emit(a)
    for f in range(NPRE, 8): kread(1, f).fn()
    togK().fn()
    a("s_nop 4")
    DE = [D, D + 2, F, F + 2]
    row_max(0, DE)
    for u in range(4):
        a(f"v_mov_b32 v{M+u}, v{DE[u]}")
        for r in range(0, 8, 2):
            a(f"v_pk_add_f32 v[{nm(u,0)+r}:{nm(u,0)+r+1}], v[{nm(u,0)+r}:{nm(u,0)+r+1}], v[{DE[u]}:{DE[u]+1}] op_sel_hi:[1,0] neg_lo:[0,1] neg_hi:[0,1]")
    for k in range(0, 32, 2):
        a(f"v_pk_add_f32 v[{S+k}:{S+k+1}], v[{S+k}:{S+k+1}], v[{DE[k>>3]}:{DE[k>>3]+1}] op_sel_hi:[1,0] neg_lo:[0,1] neg_hi:[0,1]")
    B = Body(32)
    qk_mfma(B, 0, 1, 8)
    put_bar(B, 1)
    for f in range(NPRE): B.put(8 + 4 * f, kread(0, f))
    softmax_tail(B, 23, 0, check=False)
    B.spread(softmax_items(0), 0, 23)
    put_mask(B, 25)
    B.stream(kv_dmas(sKSRC, sKD, False), 23, 32)
    B.emit(a)
    a("s_nop 3")
    for it in early(1): it.fn()
    a.stamp(5); a.stamp(16, real=True)
    LD = a.newlabel("K2_dual")
    a(f"""
s_lshl_b32 s{sCNT}, s{sI}, 1
s_add_u32 s{sCNT}, s{sCNT}, 1
""")
    a(f".p2align {AL}")
    a.label(LD)
    loop_emit(a, lambda: body_emit(False))
    a(f"""
s_cmp_lg_u32 s{sCNT}, 0
s_cbranch_scc1 {LD}
""")
    a.stamp(6); a.stamp(17, real=True)
    B = Body(128)
    pv_mfma(B, 0, 0); pv_mfma(B, 32, 1, 2, "b"); qk_mfma(B, 64, 0, 4); qk_mfma(B, 96, 1, 4)
    for f in range(NPRE): vread(0, f).fn()
    for f in range(NPRE, 8): B.put(3 * (f - NPRE), vread(0, f))
    for f in range(7): B.put(4 * f + 4, vread(1, f))
    B.put(31, vread(1, 7))
    softmax_tail(B, 21, 1)
    B.spread(softmax_items(1, True), 0, 21)
    def sw1():
        a.lg(f"ds_write_b64 v{vMX}, v[{M}:{M+1}]", "mx")
        a(f"v_xor_b32 v{vMX}, 512, v{vMX}")
        a(f"v_xor_b32 v{vQX}, 0x2000, v{vQX}")
        a(f"v_rcp_f32 v{F}, v{lc(1,2)}")
        a(f"v_rcp_f32 v{F+1}, v{lc(1,3)}")
    B.put(32, Item(sw1, 28))
    B.put(33, togV())
    B.put(35, I(f"v_mul_f32 v{F}, {hex(f2u(2.0 ** -VEXP))}, v{F}")); B.put(35, I(f"v_mul_f32 v{F+1}, {hex(f2u(2.0 ** -VEXP))}, v{F+1}"))
    def sw2():
        a(f"""
s_xor_b32 s{sDGB}, s{sDGA}, 1
s_mov_b32 s{sEVB}, s{sDGB}
s_min_u32 s{sDMIN}, s{sEVA}, s{sEVB}
s_sub_u32 s{sKAP}, s{sKAP}, 1
s_cmp_eq_u32 s{sP}, 1
s_cselect_b32 s{sKAP}, 33, s{sKAP}
s_lshl_b32 s{sT0}, s{sP}, 15
v_add_u32 v{vK}, s{sT0}, v{vK}
v_add_u32 v{vV}, s{sT0}, v{vV}
""")
    B.put(34, Item(sw2, 28))
    def sw3():
        a("s_waitcnt lgkmcnt(0)"); a.lgq = []
        a("s_barrier")
        a.lg(f"ds_read_b64 v[{M+2}:{M+3}], v{vMX}", "mx")
    B.put(36, Item(sw3, 12))
    for k in range(8):
        u, dk = k >> 2, k & 3
        B.put(37 + k, mk.LG(f"ds_read_b128 v[{q(2+u,dk)}:{q(2+u,dk)+3}], v{vQX} offset:{(u*4+dk)*1024}", "qx"))
    for f in range(8): B.put(46 + 2 * f, kread(0, f))
    B.put(45, mk.WL("mx"), 3)
    nmi = []
    for u in (2, 3):
        for r in range(8): nmi.append(I(f"v_sub_f32 v{nm(u,0)+r}, 0, v{M+u}"))
        nmi.append(I(f"v_mov_b32 v{lc(1,u)}, 0"))
        nmi.append(I(f"v_accvgpr_write_b32 a{LA+4*u}, 0", 5))
    B.spread(nmi, 46, 56)
    put_mask(B, 60)
    put_mask(B, 92)
    for f in range(8): B.put(68 + 4 * f, kread(1, f))
    B.put(97, togK())
    put_bar(B, 104)
    for f in range(NPRE): B.put(106 + 4 * f, kread(0, f)) if 106 + 4 * f < 128 else None
    B.spread(kv_dmas(sVSRC, sVD, True), 22, 56)
    B.spread(fin_items([2, 3], sCTXB, [F, F + 1], S + 32), 56, 95)
    zs = [Item(lambda k=k: a(zero16(f"a[{o_(2,0)+k*16}:{o_(2,0)+k*16+15}]")), 32, "X") for k in range(4)]
    for k in range(4): B.put(96 + k, zs[k])
    softmax_tail(B, 117, 0)
    B.spread(softmax_items(0), 100, 117)
    put_mask(B, 121)
    B.stream(kv_dmas(sKSRC, sKD, True), 108, 127)
    B.emit(a)
    a("s_nop 2")
    for it in early(1): it.fn()
    a.stamp(7); a.stamp(18, real=True)
    LS1 = a.newlabel("K2_single"); LS2 = a.newlabel("K2_sdone")
    if CH == 0:
        for it in chores(): it.fn()
    if PROG:
        a(f"""
s_lshl_b32 s{sF3}, s2, 7
s_add_u32 s{sF3}, s{sF3}, {FLAGS}
s_cmp_eq_u32 s{sWAVE}, 0
s_cselect_b32 s{sF3}, s{sF3}, s{sWS+2}
""")
    a(f"""
s_lshl_b32 s{sCNT}, s{sI}, 1
s_sub_u32 s{sCNT}, 14, s{sCNT}
s_cmp_eq_u32 s{sCNT}, 0
s_cbranch_scc1 {LS2}
""")
    st = (list(a.vmq), list(a.lgq))
    a(f".p2align {AL}")
    a.label(LS1)
    loop_emit(a, lambda: body_emit(True))
    a(f"""
s_cmp_lg_u32 s{sCNT}, 0
s_cbranch_scc1 {LS1}
""")
    a.label(LS2)
    assert a.diag or st[1] == a.lgq, (st[1], a.lgq)
    a.vmq = ["kv"]
    a.stamp(8); a.stamp(20, real=True)
    BQ, BZ = 220, 212
    a(f"""
s_mul_i32 s{sB0}, s{sH}, {8 * BKV_P}
s_add_u32 s{sB0}, s{sB0}, {BKV}
s_lshl_b32 s{sB1}, s{sH}, 17
s_lshl_b32 s{sT2}, s{sI}, 14
s_add_u32 s{sB1}, s{sB1}, s{sT2}
s_add_u32 s{sB1}, s{sB1}, s{sW4}
s_add_u32 s{sB1}, s{sB1}, {PHIQ}
s_lshl_b32 s{sT0}, s{sWAVE}, 15
v_add_u32 v{vK}, s{sT0}, v{vL16}
v_lshrrev_b32 v{vT1}, 4, v{vL}
v_and_b32 v{vMX}, 7, v{vL}
v_mul_u32_u24 v{vMX}, {BKV_P}, v{vMX}
v_lshl_add_u32 v{vMX}, v{vT1}, 4, v{vMX}
v_xor_b32 v{vQX}, 0x2000, v{vQX}
""")
    B = Body(64)
    pv_mfma(B, 0, 0); pv_mfma(B, 32, 1, 2, "b")
    for f in range(NPRE): vread(0, f).fn()
    for f in range(NPRE, 8): B.put(3 * (f - NPRE), vread(0, f))
    for f in range(7): B.put(4 * f + 4, vread(1, f))
    B.put(31, vread(1, 7))
    softmax_tail(B, 21, 1)
    bl = []
    if fused3 and L2W != 1: bl += code_prefetch(a, "K3_fused_entry", "K3_code_end", 96, sT0, sWAVE, vL, vX16, vT2)
    if L2W == 1:
        a(f"""
s_lshr_b32 s{sT0}, s2, 3
s_lshl_b32 s{sT0}, s{sT0}, 2
s_add_u32 s{sT0}, s{sT0}, s{sWAVE}        ; 0..127
s_lshl_b32 s{sKSRC}, s{sT0}, 13
s_and_b32 s{sT1}, s2, 6
s_lshl_b32 s{sT1}, s{sT1}, 19
s_add_u32 s{sKSRC}, s{sKSRC}, s{sT1}
s_lshl_b32 s{sVSRC}, s{sT0}, 12
v_lshlrev_b32 v{vDG}, 7, v{vL}
v_and_b32 v{vBIG}, 0xfff, v{vDG}
""")
        bl.append(mk.VM(f"buffer_load_dword v{vT2}, v{vDG}, s[88:91], s{sKSRC} offen", "l2w"))
        bl.append(mk.VM(f"buffer_load_dword v{vT2}, v{vBIG}, s[92:95], s{sVSRC} offen", "l2w"))
        if fused3: bl += code_prefetch(a, "K3_fused_entry", "K3_code_end", 96, sT0, sWAVE, vL, vX16, vT2)
    for ft in range(2):
        bl.append(mk.VM(f"buffer_load_dwordx4 a[{BZ+ft*4}:{BZ+ft*4+3}], v{vMX}, s[{sWS}:{sWS+3}], s{sB0} offen offset:{2048+ft*64}{SC}", "bl"))
    for t in range(4):
        bl.append(mk.VM(f"buffer_load_dwordx4 a[{BQ+4*t}:{BQ+4*t+3}], v{vL16}, s[{sWS}:{sWS+3}], s{sB1} offen offset:{t*1024}{SC}", "bl"))
    for pp in range(8):
        for ft in range(2):
            bl.append(mk.VM(f"buffer_load_dwordx4 v[{Q+pp*8+ft*4}:{Q+pp*8+ft*4+3}], v{vL16}, s[{sWS}:{sWS+3}], s{sB0} offen offset:{ft*1024}{SC}", "bl"))
        bl.append(I(f"s_add_u32 s{sB0}, s{sB0}, {BKV_P}"))
    B.spread(bl, 0, 60)
    B.spread(softmax_items(1, True), 0, 21)
    def st1():
        a(f"v_mov_b32 v{D}, v{M+2}")
        a(f"v_mov_b32 v{D+1}, v{M+3}")
        a(f"v_mov_b32 v{D+2}, v{lc(1,2)}")
        a(f"v_mov_b32 v{D+3}, v{lc(1,3)}")
        a.lg(f"ds_write_b128 v{vQX}, v[{D}:{D+3}]", "sx")
        a(f"v_xor_b32 v{vQX}, 0x2000, v{vQX}")
    B.put(32, Item(st1, 24))
    def st2():
        a.wait_vm("kv", always=True)
        a("s_waitcnt lgkmcnt(0)"); a.lgq = []
        a("s_barrier")
        a.lg(f"ds_read_b128 v[{D}:{D+3}], v{vQX}", "sx")
        if PROG: f3_item().fn()
    B.put(38, Item(st2, 12))
    for f in range(8):
        for ub in range(2):
            o = o_(2 + ub, f)
            B.put(min(32 + 2 * f + ub + 10, 63), Item(lambda o=o, f=f, ub=ub: a.lg(f"ds_write_b128 v{vK}, a[{o}:{o+3}] offset:{(ub*8+f)*1024}", "ox"), 8))
    FA = [F, F + 2]; FB = [TE, TE + 2]
    def st3():
        a.wait_lg("sx", always=True)
        for u in range(2):
            a(f"v_max_f32 v{vT1}, v{M+u}, v{D+u}")
            a(f"v_sub_f32 v{FA[u]}, v{M+u}, v{vT1}")
            a(f"v_sub_f32 v{FB[u]}, v{D+u}, v{vT1}")
        for u in range(2):
            a(f"v_exp_f32 v{FA[u]}, v{FA[u]}")
            a(f"v_exp_f32 v{FB[u]}, v{FB[u]}")
    def st4():
        for u in range(2):
            a(f"v_mul_f32 v{lc(1,u)}, v{lc(1,u)}, v{FA[u]}")
            a(f"v_fmac_f32 v{lc(1,u)}, v{D+2+u}, v{FB[u]}")
        for u in range(2): a(f"v_rcp_f32 v{lc(1,u)}, v{lc(1,u)}")
    def st5():
        for u in range(2): a(f"v_mul_f32 v{lc(1,u)}, {hex(f2u(2.0 ** -VEXP))}, v{lc(1,u)}")
        for u in range(2):
            a(f"v_mul_f32 v{FA[u]}, v{FA[u]}, v{lc(1,u)}")
            a(f"v_mul_f32 v{FB[u]}, v{FB[u]}, v{lc(1,u)}")
    B.put(46, Item(st3, 60)); B.put(50, Item(st4, 32)); B.put(53, Item(st5, 16))
    B.emit(a)
    a(f"""
v_xor_b32 v{vK}, 0x8000, v{vK}
s_waitcnt lgkmcnt(0)
s_barrier
""")
    a.lgq = []
    OB = S
    for r in range(15): a.lg(f"ds_read_b128 v[{OB+r*4}:{OB+r*4+3}], v{vK} offset:{r*1024}", ("ob", r))
    T = P
    n = 0
    for u in range(2):
        for r in range(32): a(f"v_accvgpr_read_b32 v{T+r}, a{o_(u,0)+r}")
        if u == 0: a.lg(f"ds_read_b128 v[{OB+60}:{OB+63}], v{vK} offset:{15*1024}", ("ob", 15))
        for r in range(0, 32, 2):
            a(f"v_pk_mul_f32 v[{T+r}:{T+r+1}], v[{T+r}:{T+r+1}], v[{FA[u]}:{FA[u]+1}] op_sel_hi:[1,0]")
        a.wait_lg(("ob", u * 8 + 7))
        for dk in range(4):
            pk = PKR + (n % 4) * 4
            for j in range(4):
                r = dk * 8 + j * 2
                a(f"v_pk_fma_f32 v[{T+r}:{T+r+1}], v[{OB+u*32+r}:{OB+u*32+r+1}], v[{FB[u]}:{FB[u]+1}], v[{T+r}:{T+r+1}] op_sel_hi:[1,0,1]")
            for j in range(4):
                r = dk * 8 + j * 2
                a(f"v_cvt_pk_bf16_f32 v{pk+j}, v{T+r}, v{T+r+1}")
            a.vm(f"buffer_store_dwordx4 v[{pk}:{pk+3}], v{vST[u]}, s[{sWS}:{sWS+3}], s{sCTXA} offen offset:{dk*1024} {FST}", "st")
            n += 1
    a.stamp(9)
    a.wait_vm("bl")
    ZS = P + 16
    for r in range(8): a(f"v_accvgpr_read_b32 v{ZS+r}, a{BZ+r}")
    for step in (32, 16, 8):
        for r in range(0, step, 2): a(f"v_pk_add_f32 v[{Q+r}:{Q+r+1}], v[{Q+r}:{Q+r+1}], v[{Q+step+r}:{Q+step+r+1}]")
    for dpp in ("quad_perm:[1,0,3,2]", "quad_perm:[2,3,0,1]", "row_half_mirror"):
        for r in range(8): a(f"v_add_f32_dpp v{ZS+r}, v{ZS+r}, v{ZS+r} {dpp} row_mask:0xf bank_mask:0xf")
    KVF, ZF = Q + 8, Q + 12
    for j in range(4):
        a(f"v_cvt_pk_bf16_f32 v{KVF+j}, v{Q+2*j}, v{Q+2*j+1}")
        a(f"v_cvt_pk_bf16_f32 v{ZF+j}, v{ZS+2*j}, v{ZS+2*j+1}")
    a("s_nop 1")
    NUM, DEN = Q + 16, Q + 32
    for t in range(4):
        a(f"{MF} v[{NUM+t*4}:{NUM+t*4+3}], v[{KVF}:{KVF+3}], a[{BQ+t*4}:{BQ+t*4+3}], 0")
        a(f"{MF} v[{DEN+t*4}:{DEN+t*4+3}], v[{ZF}:{ZF+3}], a[{BQ+t*4}:{BQ+t*4+3}], 0")
    a(f"""
s_lshl_b32 s{sT0}, s{sI}, 2
s_add_u32 s{sT0}, s{sT0}, s{sWAVE}
s_mul_i32 s{sT0}, s{sT0}, {4*144*1024}
s_lshr_b32 s{sT1}, s{sH}, 1
s_lshl_b32 s{sT1}, s{sT1}, 10
s_add_u32 s{sT0}, s{sT0}, s{sT1}
s_and_b32 s{sT2}, s{sH}, 1
s_lshl_b32 s{sT2}, s{sT2}, 3
s_add_u32 s{sT0}, s{sT0}, s{sT2}
s_add_u32 s{sT0}, s{sT0}, {CTX + 128*1024}
""")
    for t in range(4): a(f"v_add_f32 v{TE+t}, {hex(f2u(1e-6))}, v{DEN+t*4}")
    for t in range(4): a(f"v_rcp_f32 v{TE+t}, v{TE+t}")
    for t in range(4):
        for r in range(4): a(f"v_mul_f32 v{NUM+t*4+r}, v{NUM+t*4+r}, v{TE+t}")
        a(f"v_cvt_pk_bf16_f32 v{NUM+t*4}, v{NUM+t*4}, v{NUM+t*4+1}")
        a(f"v_cvt_pk_bf16_f32 v{NUM+t*4+1}, v{NUM+t*4+2}, v{NUM+t*4+3}")
        a.vm(f"buffer_store_dwordx2 v[{NUM+t*4}:{NUM+t*4+1}], v{vL16}, s[{sWS}:{sWS+3}], s{sT0} offen {OST}", "ost")
        a(f"s_add_u32 s{sT0}, s{sT0}, {144*1024}")
    a.stamp(12)
    if a.diag and not fused3: a("s_waitcnt vmcnt(0)")
    a.stamp(23); a.stamp(10, real=True)
    a.stamp_flush(sWS, sWAVE, 24, DIAG, kidx=1)
    a.k2_exit = list(a.vmq)
    if fused3:
        a(f"""
s_lshl_b32 s99, s{sH}, 3
s_add_u32 s99, s99, s{sI}
s_lshl_b32 s99, s99, 7
s_branch K3_fused_entry
""")
    a.label(END)
    a("s_endpgm")
    a.flush_stubs()

    a.label(LMASK)
    a(f"s_add_u32 s{sRET}, s{sRET}, 4")
    a(f"s_addc_u32 s{sRET+1}, s{sRET+1}, 0")
    for g, sD, sE in ((0, sDGA, sEVA), (1, sDGB, sEVB)):
        L1 = a.newlabel("K2_m1"); L2 = a.newlabel("K2_m2")
        a(f"""
s_cmp_lt_u32 s{sKAP}, s{sE}
s_cbranch_scc1 {L2}
s_cmp_eq_u32 s{sKAP}, s{sD}
s_cbranch_scc1 {L1}
s_mov_b32 s{sE}, 0x7fffffff
""")
        for r in range(0, 16, 2): a(f"v_pk_mov_b32 v[{nm(2*g,0)+r}:{nm(2*g,0)+r+1}], v[{vBIG}:{vBIG+1}], v[{vBIG}:{vBIG+1}] op_sel:[0,0]")
        a(f"s_branch {L2}")
        a.label(L1)
        a(f"s_add_u32 s{sE}, s{sD}, 1")
        for r in range(0, 4, 2): a(f"v_pk_mov_b32 v[{nm(2*g,1)+r}:{nm(2*g,1)+r+1}], v[{vBIG}:{vBIG+1}], v[{vBIG}:{vBIG+1}] op_sel:[0,0]")
        for r in range(4):
            a(f"v_cndmask_b32 v{nm(2*g,0)+r}, v{nm(2*g,0)+r}, v{vBIG}, s[{sM[r]}:{sM[r]+1}]")
            a(f"v_cndmask_b32 v{nm(2*g+1,1)+r}, v{nm(2*g+1,1)+r}, v{vBIG}, s[{sM[r]}:{sM[r]+1}]")
        a.label(L2)
    a(f"s_min_u32 s{sDMIN}, s{sEVA}, s{sEVB}")
    a(f"s_setpc_b64 s[{sRET}:{sRET+1}]")
    def adjust(par):
        a("s_nop 15")
        DD = [D + u for u in range(4)]
        row_max(par, DD)
        for u in range(4): a(f"v_max_f32 v{D+u}, 0, v{D+u}")
        for u in range(4): a(f"v_exp_f32 v{F+u}, -v{D+u}")
        a("s_nop 0")
        for u in range(4):
            a(f"v_mul_f32 v{lc(par^1,u)}, v{lc(par^1,u)}, v{F+u}")
            a(f"v_accvgpr_write_b32 a{LA+4*u}, v{lc(par^1,u)}")
            for r in range(32):
                t = TE + r % 8
                a(f"v_accvgpr_read_b32 v{t}, a{o_(u,0)+r}")
                a(f"v_mul_f32 v{t}, v{t}, v{F+u}")
                a(f"v_accvgpr_write_b32 a{o_(u,0)+r}, v{t}")
        for u in range(4):
            a(f"v_add_f32 v{M+u}, v{M+u}, v{D+u}")
            for r in range(8):
                a(f"v_sub_f32 v{s_(0,u,0)+r}, v{s_(0,u,0)+r}, v{D+u}")
                a(f"v_sub_f32 v{s_(1,u,0)+r}, v{s_(1,u,0)+r}, v{D+u}")
                a(f"v_sub_f32 v{nm(u,0)+r}, v{nm(u,0)+r}, v{D+u}")
        for it in softmax_items(par): it.fn()
        a("s_nop 1"); lmfma(par, 3).fn(); a("s_nop 7")
        lread(par, 2).fn(); lread(par, 3).fn()
        for it in early(par ^ 1): it.fn()
        a("s_nop 1")
        a(f"s_setpc_b64 s[{sRET}:{sRET+1}]")
    for par in range(2):
        a.label(LADJ[par]); adjust(par)
    a.label("K2_code_end")
    a("s_endpgm")
```

```python
from asmlib import Asm
from sched import *
from common import *
from phasea import PhaseA, WR, FR, AR
from hedge import *

def gen_k1(a, name="k1_kernel", W0=0, ST="sc1", STL="sc1", MAP=1, WB=0, PT=0, ROT=7, fused=False, CPF=1, EARLY=0, SKIPH=0, SWP=0, CT=0):
    a.kernel(name, (256,1,1), (256,1,1), 163840, vgpr=256, agpr=256)
    sACT, sW, sWS = 4, 8, 12
    (sWAVE, sRB, sJOB, sSUB, sSCALE, sROW1, sSTB, sWOFF, sA0, sA1, sT0, sT1, sT2, sCNT, sLA, sLW, sSTFIX,
     sWSRC, sROW4, sROWH, sROW8, sWL, sLC, sSPLIT) = range(16, 40)
    sCO, sWB, sA0c, sA1c, sWH, sHU = 92, 93, 94, 95, 96, 97
    sLC3 = sA0c
    a.k1_exit = []
    ACC = 0; WF = 128
    PK = 160
    TM = 192
    vWA = list(range(208, 216)); vXA = [216, 217]
    vAD = [218, 219, 252, 253]; vWD = [220, 221, 254, 255]
    vS = list(range(222, 230))
    vST = [234, 235, 236, 237]
    vDE, vDO = 238, 239
    vL, vT0, vT1, vT2 = 240, 241, 242, 243
    PK2 = 244
    END = a.newlabel("K1_end"); LV = a.newlabel("K1_vtype"); LBKV = a.newlabel("K1_bkv")
    LK = a.newlabel("K1_ktype"); LJ1 = a.newlabel("K1_j1"); LJ2 = a.newlabel("K1_j2"); LJ3 = a.newlabel("K1_j3"); LJD = a.newlabel("K1_jd")
    a(f"""
s_cmp_ge_u32 s2, 256
s_cbranch_scc1 {END}
""")
    a.stamp(14)
    a(f"""
s_load_dwordx4 s[44:47], s[0:1], 8      ; c_kv (44:45)  w_q (46:47)
s_load_dwordx4 s[48:51], s[0:1], 24
s_load_dwordx4 s[52:55], s[0:1], 48     ; B_x (52:53) wqkv (54:55)
s_load_dwordx2 s[56:57], s[0:1], 96     ; ws
s_load_dwordx2 s[58:59], s[0:1], 64     ; w_phi
v_lshrrev_b32 v{vT0}, 6, v0
v_and_b32 v{vL}, 63, v0
v_readfirstlane_b32 s{sWAVE}, v{vT0}
s_lshr_b32 s{sT1}, s2, 3                ; q
s_and_b32 s{sRB}, s2, 1
s_lshl_b32 s{sRB}, s{sRB}, 2
s_and_b32 s{sT0}, s{sT1}, 3
s_add_u32 s{sRB}, s{sRB}, s{sT0}
s_lshr_b32 s{sT1}, s{sT1}, 2
""")
    if MAP == 0:
        a(f"""
s_and_b32 s{sJOB}, s2, 6
s_lshl_b32 s{sJOB}, s{sJOB}, 2
s_add_u32 s{sJOB}, s{sJOB}, s{sT1}
""")
    else:
        if SWP: a(f"""
s_cmp_lt_u32 s{sT1}, 2
s_cselect_b32 s{sT0}, 1, 0
s_xor_b32 s{sT1}, s{sT1}, s{sT0}
""")
        a(f"""
s_and_b32 s{sT0}, s2, 6
s_mul_i32 s{sJOB}, s{sT0}, 3
s_add_u32 s{sJOB}, s{sJOB}, s{sT1}
s_add_u32 s{sT0}, s{sT0}, s{sT1}
s_add_u32 s{sT0}, s{sT0}, 18
s_cmp_ge_u32 s{sT1}, 6
s_cselect_b32 s{sJOB}, s{sT0}, s{sJOB}
""")
    a(f"""
s_lshl_b32 s63, s{sJOB}, 3
s_add_u32 s63, s63, s{sRB}
s_lshl_b32 s99, s63, 7
s_lshl_b32 s{sSTFIX}, s{sRB}, 16
s_lshl_b32 s{sT0}, s{sWAVE}, 14
s_add_u32 s{sSTFIX}, s{sSTFIX}, s{sT0}
s_mov_b32 s{sWS+2}, {WS_USED}
s_mov_b32 s{sWS+3}, 0x20000
s_mov_b32 s{sACT+2}, 0x200000
s_mov_b32 s{sACT+3}, 0x20000
s_mov_b32 s{sW+3}, 0x20000
s_mov_b32 s{sSCALE}, {hex(f2u(CSCALE))}
s_cmp_ge_u32 s{sJOB}, 12
s_cselect_b32 s{sT0}, 12, 0
s_cselect_b32 s{sT2}, {VWS}, 0
s_cselect_b32 s{sSCALE}, {hex(f2u(2.0 ** VEXP))}, s{sSCALE}
s_sub_u32 s{sSUB}, s{sJOB}, s{sT0}
s_add_u32 s{sSTB}, s{sSTFIX}, s{sT2}
s_mul_i32 s{sT0}, s{sSUB}, 43
s_lshr_b32 s{sT0}, s{sT0}, 7             ; j/3
s_mul_i32 s{sT2}, s{sT0}, 3
s_sub_u32 s{sT2}, s{sSUB}, s{sT2}        ; j%3
s_lshl_b32 s{sT0}, s{sT0}, 5
s_lshl_b32 s{sT2}, s{sT2}, 3
s_lshr_b32 s{sSUB}, 0x160c00, s{sT2}
s_and_b32 s{sSUB}, s{sSUB}, 0xff
s_add_u32 s{sSUB}, s{sSUB}, s{sT0}
s_lshr_b32 s{sHU}, 0x1f0b0a, s{sT2}
s_and_b32 s{sHU}, s{sHU}, 0xff
s_add_u32 s{sHU}, s{sHU}, s{sT0}
s_lshl_b32 s{sWOFF}, s{sSUB}, 6
s_sub_u32 s{sT0}, s{sJOB}, 24
s_lshl_b32 s{sT2}, s{sT0}, 7
s_add_u32 s{sT2}, s{sT2}, 1024           ; k section
s_mov_b32 s{sW+2}, 0x400000
s_mov_b32 s{sROW1}, 8192
s_cmp_ge_u32 s{sJOB}, 24
s_cselect_b32 s{sSUB}, s{sT0}, s{sSUB}
s_cselect_b32 s{sWOFF}, s{sT2}, s{sWOFF}
s_cselect_b32 s{sSTFIX}, s{sSTFIX}, s{sSTB}
s_cselect_b32 s{sW+2}, 0x180000, s{sW+2}
s_cselect_b32 s{sROW1}, 3072, s{sROW1}
s_cselect_b32 s{sSPLIT}, 896, 0
s_lshl_b32 s{sROW4}, s{sROW1}, 2
s_lshr_b32 s{sROWH}, s{sROW1}, 1
s_lshl_b32 s{sROW8}, s{sROW1}, 3
s_lshl_b32 s{sCO}, s{sRB}, 1
s_add_u32 s{sCO}, s{sCO}, s{sT1}
s_and_b32 s{sCO}, s{sCO}, {ROT}      ; rotation
s_add_u32 s{sT0}, s{sCO}, s{sWAVE}
s_and_b32 s{sT0}, s{sT0}, 7
s_lshl_b32 s{sT0}, s{sT0}, 6
s_mul_i32 s{sWL}, s{sT0}, s{sROW1}
s_xor_b32 s{sT0}, s{sT0}, 256
s_mul_i32 s{sWH}, s{sT0}, s{sROW1}
s_lshl_b32 s{sCO}, s{sCO}, 7
s_sub_u32 s{sCO}, s{sCO}, 128
s_lshl_b32 s{sA0}, s{sRB}, 18
s_lshl_b32 s{sT0}, s{sWAVE}, 16
s_add_u32 s{sA0}, s{sA0}, s{sT0}
s_add_u32 s{sA1}, s{sA0}, 32768
s_lshl_b32 s{sLA}, s{sWAVE}, 14
s_add_u32 s{sLA}, s{sLA}, {AR}
s_lshl_b32 s{sLW}, s{sWAVE}, 12
s_add_u32 s{sLW}, s{sLW}, {WR}
s_lshl_b32 s{sLC}, s{sWAVE}, 13
s_mov_b32 s{sLC3}, s{sLC}
s_lshl_b32 s{sT0}, s{sWAVE}, 4
s_mul_i32 s{sWB}, s{sT0}, s{sROW1}
s_add_u32 s{sWB}, s{sWB}, s{sWOFF}
""")
    def mkpa(types):
        return PhaseA(a, ACC, WF, vWA, vXA, vAD, vWD, sACT, sW, sA0, sA1, sWSRC, sROW4, sROWH, sLA, sLW, sT2, types, sCO, sWB, sA0c, sA1c)
    pa = mkpa("K" * 8)
    mk = Mk(a)
    pa.setup_dma(vL, vT0, vT1, vT2, sROW1, split=sSPLIT)
    a(f"""
s_cmp_ge_u32 s{sJOB}, 12
s_waitcnt lgkmcnt(0)
s_cselect_b64 s[{sW}:{sW+1}], s[50:51], s[48:49]
s_cmp_ge_u32 s{sJOB}, 24
s_cselect_b64 s[{sW}:{sW+1}], s[54:55], s[{sW}:{sW+1}]
s_cselect_b64 s[{sACT}:{sACT+1}], s[52:53], s[44:45]
""")
    a.stamp(0); a.stamp(1, real=True)
    for it in pa.chunk_dmas(0): it.fn()
    a(f"""
s_mov_b32 s{sWS}, s56
s_mov_b32 s{sWS+1}, s57
s_load_dwordx2 s[44:45], s[0:1], 0
""")
    vTA, vTW = 233, 244
    sTC = 98
    def ctouch(c):
        return [mk.I(f"s_mul_i32 s{sTC}, s{sROW1}, {64 * c}"),
                mk.VM(f"buffer_load_dword v245, v{vTA}, s[{sACT}:{sACT+3}], 0 offen offset:{c * 128}", "ct"),
                mk.VM(f"buffer_load_dword v245, v{vTW}, s[{sW}:{sW+3}], s{sTC} offen", "ct")]
    if CT:
        a(f"""
s_cmp_ge_u32 s{sT1}, 6
s_cselect_b32 s{sT0}, 32, 11
s_cselect_b32 s{sT2}, 6, 0
s_sub_u32 s{sT2}, s{sT1}, s{sT2}
s_lshl_b32 s{sT2}, s{sT2}, 2
s_add_u32 s{sT2}, s{sT2}, s{sWAVE}
s_mul_i32 s{sT2}, s{sT2}, s{sT0}
s_sub_u32 s{sT0}, s{sT0}, 1
v_min_u32 v{vTA}, s{sT0}, v{vL}
v_add_u32 v{vTA}, s{sT2}, v{vTA}
v_min_u32 v{vTA}, 255, v{vTA}
v_lshlrev_b32 v{vTA}, 10, v{vTA}
s_lshl_b32 s{sT0}, s{sRB}, 18
v_add_u32 v{vTA}, s{sT0}, v{vTA}
s_and_b32 s{sT0}, s{sRB}, 3
s_lshl_b32 s{sT0}, s{sT0}, 2
s_add_u32 s{sT0}, s{sT0}, s{sWAVE}
s_lshl_b32 s{sT0}, s{sT0}, 2
v_and_b32 v{vT0}, 3, v{vL}
v_add_u32 v{vT0}, s{sT0}, v{vT0}
v_mul_lo_u32 v{vTW}, v{vT0}, s{sROW1}
s_add_u32 s{sT0}, s{sSPLIT}, 128
v_bfe_u32 v{vT0}, v{vL}, 2, 1
v_mul_lo_u32 v{vT0}, v{vT0}, s{sT0}
v_add3_u32 v{vTW}, v{vTW}, v{vT0}, s{sWOFF}
""")
        for c in range(1, CT):
            for it in ctouch(c): it.fn()
    a.stamp(11)
    pa.setup_read(vL, vT0, vT1, vT2)
    a(f"""
v_lshrrev_b32 v{vT0}, 3, v{vL}
v_mul_lo_u32 v{vT0}, v{vT0}, s{sROW1}
v_and_b32 v{vT1}, 7, v{vL}
v_bfe_u32 v{vT2}, v{vL}, 4, 1
v_lshlrev_b32 v{vT2}, 1, v{vT2}
v_xor_b32 v{vT1}, v{vT1}, v{vT2}
v_lshl_add_u32 v{vDE}, v{vT1}, 4, v{vT0}
v_xor_b32 v{vT1}, 4, v{vT1}
v_lshl_add_u32 v{vDO}, v{vT1}, 4, v{vT0}
v_lshrrev_b32 v{vT0}, 4, v{vL}              ; kq
v_bfe_u32 v{vT1}, v{vL}, 2, 2               ; r
v_lshl_add_u32 v{vT2}, v{vT0}, 3, v{vT1}
v_lshlrev_b32 v{vT2}, 7, v{vT2}             ; (kq*8+r)*128
v_and_b32 v{vT0}, 1, v{vT0}
v_lshrrev_b32 v{vT1}, 1, v{vT1}
v_lshl_add_u32 v{vT1}, v{vT0}, 1, v{vT1}    ; f
v_and_b32 v{vT0}, 3, v{vL}
v_lshl_add_u32 v{vT2}, v{vT0}, 3, v{vT2}
""")
    for nt in range(4):
        a(f"v_xor_b32 v{vT0}, {nt}, v{vT1}")
        a(f"v_lshl_add_u32 v{vS[nt]}, v{vT0}, 5, v{vT2}")
        a(f"v_add_u32 v{vS[4+nt]}, 0x10000, v{vS[nt]}")
    a(f"v_lshlrev_b32 v{vST[0]}, 4, v{vL}")
    for k in range(1, 4):
        a(f"v_add_u32 v{vST[k]}, {4096*k}, v{vST[0]}")
    a(f"""
s_add_u32 s{sWOFF}, s{sWOFF}, 256
s_cmp_lg_u32 s{sWAVE}, 0
s_cbranch_scc1 K1_noclear
s_lshl_b32 s{sT0}, s2, 7
v_lshlrev_b32 v{vT1}, 15, v{vL}
v_add_u32 v{vT2}, s99, v{vT1}
v_add_u32 v{vT1}, s{sT0}, v{vT1}
v_cmp_eq_u32 vcc, 1, v{vL}
s_mov_b32 s{sT0}, {FLAGS}
v_mov_b32 v{vT0}, 0
v_cndmask_b32 v{vT1}, v{vT1}, v{vT2}, vcc
s_mov_b64 exec, 7
buffer_store_dword v{vT0}, v{vT1}, s[{sWS}:{sWS+3}], s{sT0} offen sc1
s_mov_b64 exec, -1
K1_noclear:
""")
    if CPF:
        for it in code_prefetch(a, LK, "K2_after" if fused else "K1_code_end", 62, sT0, sWAVE, vL, vT0, 245): it.fn()
    if CPF > 1:
        for it in code_prefetch(a, "K1_code_end", "K3_code_end", 62, sT0, sWAVE, vL, vT0, 245): it.fn()
    def cleared():
        if not fused: return
        L = a.newlabel("K1_cnt")
        a(f"""
s_cmp_lg_u32 s{sWAVE}, 0
s_cbranch_scc1 {L}
s_load_dwordx2 s[88:89], s[0:1], 88
s_mov_b32 s90, 256
s_mov_b32 s91, 0x20000
v_mov_b32 v{vT0}, 1
v_mov_b32 v{vT1}, 0
s_waitcnt lgkmcnt(0)
s_mov_b64 exec, 1
buffer_atomic_add v{vT0}, v{vT1}, s[88:91], 0 offen sc1
s_mov_b64 exec, -1
{L}:
""")
    def touch(bufs, tag):
        a(f"""
s_lshl_b32 s{sT0}, s2, 2
s_add_u32 s{sT0}, s{sT0}, s{sWAVE}
s_mov_b32 s91, 0x20000
""")
        for ptr, size in bufs:
            lg = (size - 1).bit_length() - 10
            a(f"v_and_b32 v{vT0}, {(1 << (lg - 7)) - 1}, v{vL}")
            a(f"v_lshlrev_b32 v{vT0}, 7, v{vT0}")
            a(f"s_lshl_b32 s{sT2}, s{sT0}, {lg}")
            a(f"s_mov_b32 s88, s{ptr}")
            a(f"s_mov_b32 s89, s{ptr+1}")
            a(f"s_mov_b32 s90, {size}")
            a.vm(f"buffer_load_dword v245, v{vT0}, s[88:91], s{sT2} offen", tag)
    def warm0():
        touch(((44, 0x200000), (48, 0x400000), (50, 0x400000), (52, 0x200000), (54, 0x180000)), "warm")
    if W0 == 2: warm0()
    if W0 == 1: warm0()
    a(f"""
s_cmp_ge_u32 s{sJOB}, 24
s_cbranch_scc1 {LBKV}
s_cmp_ge_u32 s{sJOB}, 12
s_cbranch_scc1 {LV}
""")
    state0 = (list(a.vmq), list(a.lgq))
    a.stamp0 = 12
    def acc(buf, nt, st): return ACC + (buf * 16 + nt * 4 + st) * 4
    def wf(ks, nt): return WF + ((ks % 2) * 4 + nt) * 4
    SLOT = [65536, 0, 32768, 98304]
    def tr_item(pair, ks, nt, jj, SL=SLOT):
        hi, k8 = ks >> 3, ks & 7
        sb = SL[2 * pair + hi]
        reg = vS[(sb >> 16) * 4 + nt]; off = (sb & 0xffff) + k8 * 4096 + jj * 512
        b = wf(ks, nt) + jj * 2
        return mk.LG(f"ds_read_b64_tr_b16 v[{b}:{b+1}], v{reg} offset:{off}", ("wf", ks % 2, nt))
    def slot_dma(slot, SL=SLOT):
        hi = slot & 1
        its = []
        for i in range(8):
            its.append(mk.I(f"s_add_u32 m0, s{sLC3 if slot == 3 else sLC}, {SL[slot] + i * 1024}"))
            if i == 0: its.append(mk.I(f"s_add_u32 s{sT1}, s{sWOFF}, s{sWH if hi else sWL}"))
            else: its.append(mk.I(f"s_add_u32 s{sT1}, s{sT1}, s{sROW8}"))
            its.append(mk.VM(f"buffer_load_dwordx4 v{vDE if i % 2 == 0 else vDO}, s[{sW}:{sW+3}], s{sT1} offen lds", ("w", slot)))
        if hi: its.append(mk.I(f"s_add_u32 s{sWOFF}, s{sWOFF}, 128"))
        return its
    def epi_items(typ, buf, units=(0, 1), packed=False, st=None):
        items = []
        d = 12
        for u in units:
            items += [mk.I(t) for t in (f"s_lshr_b32 s{sSTB}, s{sSUB}, 2", f"s_lshl_b32 s{sSTB}, s{sSTB}, 19", f"s_and_b32 s{sT0}, s{sSUB}, 3",
                                       f"s_lshl_b32 s{sT0}, s{sT0}, {d}", f"s_add_u32 s{sSTB}, s{sSTB}, s{sT0}",
                                       f"s_add_u32 s{sSTB}, s{sSTB}, s{sSTFIX}", f"s_add_u32 s{sSUB}, s{sSUB}, 1")]
            for x in range(4):
                n = u * 4 + x
                pk = PK + n * 4
                for j in range(4):
                    if typ == "K": r = acc(buf, 2 * u + (j >> 1), x) + (j & 1) * 2
                    else: r = acc(buf, 2 * u + (x & 1), (x >> 1) * 2 + (j >> 1)) + (j & 1) * 2
                    if True:
                        t = TM + ((n * 4 + j) % 8) * 2
                        if packed: items.append(mk.I(f"v_pk_mul_f32 v[{t}:{t+1}], v[{r}:{r+1}], s[{sSCALE}:{sSCALE+1}] op_sel_hi:[1,0]"))
                        else:
                            items.append(mk.I(f"v_mul_f32 v{t}, s{sSCALE}, v{r}"))
                            items.append(mk.I(f"v_mul_f32 v{t+1}, s{sSCALE}, v{r+1}"))
                        items.append(mk.I(f"v_cvt_pk_bf16_f32 v{pk+j}, v{t}, v{t+1}"))
                    else:
                        items.append(mk.I(f"v_cvt_pk_bf16_f32 v{pk+j}, v{r}, v{r+1}"))
                vo, off = vST[0], x * 1024
                items.append(mk.VM(f"buffer_store_dwordx4 v[{pk}:{pk+3}], v{vo}, s[{sWS}:{sWS+3}], s{sSTB} offen offset:{off} {ST if st is None else st}", "st"))
        return items
    def put_bar(B, g, tag, lg0=False):
        B.put(g, mk.WV(tag, lg0=lg0)); B.put(g, mk.I("s_barrier"), 3)
    def next_phase():
        its = [mk.I(t) for t in f"""s_mov_b32 s{sACT}, s44
s_mov_b32 s{sACT+1}, s45
s_mov_b32 s{sW}, s46
s_mov_b32 s{sW+1}, s47
s_mov_b32 s{sW+2}, 0x400000
s_bfe_u32 s{sT1}, s2, 0x30003
s_lshl_b32 s{sA1}, s{sT1}, 2
s_add_u32 s{sA1}, s{sA1}, s{sWAVE}
s_lshl_b32 s{sA1}, s{sA1}, 15
s_sub_u32 s{sT1}, 15, s{sT1}
s_lshl_b32 s{sA0}, s{sT1}, 2
s_add_u32 s{sA0}, s{sA0}, s{sWAVE}
s_lshl_b32 s{sA0}, s{sA0}, 15
s_and_b32 s{sWB}, s2, 7
s_lshl_b32 s{sWB}, s{sWB}, 2
s_lshr_b32 s{sT1}, s2, 6
s_add_u32 s{sWB}, s{sWB}, s{sT1}
s_lshl_b32 s{sWB}, s{sWB}, 8
s_lshl_b32 s{sT1}, s{sWAVE}, 17
s_add_u32 s{sWB}, s{sWB}, s{sT1}
s_mov_b32 s{sROWH}, 4096
s_mov_b32 s{sCO}, -128""".split("\n")]
        return its, pa.chunk_dmas(0) + (pa.chunk_dmas(1) if EARLY == 1 else [])
    def ptr_loads():
        a("""
s_load_dwordx2 s[88:89], s[0:1], 40     ; w_o
s_load_dwordx2 s[92:93], s[0:1], 72     ; wo
s_load_dwordx2 s[52:53], s[0:1], 88     ; debug
""")
    LEAD = 12
    def mf(typ, d, w, ks, st):
        c = "0" if ks == 0 else f"v[{d}:{d+3}]"
        if typ == "K": s = f"{MF} v[{d}:{d+3}], v[{w}:{w+3}], {pa.act(ks, st)}, {c}"
        else: s = f"{MF} v[{d}:{d+3}], {pa.act(ks, st)}, v[{w}:{w+3}], {c}"
        return lambda: a(s)
    def body(typ, buf, SL=SLOT, epi=True, dma=True, nxt=True, extra=None):
        B = Body(256)
        for m in range(256):
            ks, nt, st = m >> 4, (m >> 2) & 3, m & 3
            sn = st ^ 3 if nt & 1 else st
            B.mfma[m] = mf(typ, acc(buf, nt, sn), wf(ks, nt), ks, sn)
            if st == 0 and nt % 2 == 0: B.put_pre(m, mk.WL(("wf", ks % 2, nt + 1)))
        for idx in range(LEAD // 4, 64 + (LEAD // 4 if nxt else 0)):
            ks, nt = idx >> 2, idx & 3
            g = idx * 4 - LEAD
            if idx == 32: put_bar(B, g - 2, ("w", 2 * buf + 1), lg0=(EARLY and buf == 0 and dma))
            if idx == 64: put_bar(B, g - 2, ("w", 2 * (1 - buf)))
            for jj in range(2):
                B.put(g, tr_item(buf, ks, nt, jj, SL) if ks < 16 else tr_item(1 - buf, ks - 16, nt, jj, SL))
        if dma:
            B.stream(slot_dma(2 * (1 - buf), SL), 0, 26)
            B.stream(slot_dma(2 * (1 - buf) + 1, SL), 128 - LEAD, 154 - LEAD)
        if epi:
            B.stream(epi_items(typ, 1 - buf, (0,)), 14, 110)
            B.stream(epi_items(typ, 1 - buf, (1,)), 132, 236)
        if extra: B.stream(extra, 28, 236)
        B.emit(a)
    def kv_warm():
        its = [mk.WL(("none",))] + [mk.I(t) for t in f"""s_lshl_b32 s{sA0}, s2, 2
s_add_u32 s{sA0}, s{sA0}, s{sWAVE}
s_lshl_b32 s{sA0}, s{sA0}, 11
s_lshl_b32 s{sA1}, s{sA0}, 1
s_mov_b32 s{sACT}, s44
s_mov_b32 s{sACT+1}, s45
s_mov_b32 s56, s46
s_mov_b32 s57, s47
s_mov_b32 s58, 0x400000
s_mov_b32 s59, 0x20000
v_and_b32 v244, 31, v{vL}
v_lshlrev_b32 v244, 7, v244""".split("\n")]
        its[0] = Item(lambda: (a("s_waitcnt lgkmcnt(0)"), a.lgq.clear()), 4, "s")
        its.append(mk.VM(f"buffer_load_dword v245, v244, s[56:59], s{sA1} offen", "warm"))
        its.append(mk.I(f"v_and_b32 v244, 0x7ff, v244"))
        its.append(mk.VM(f"buffer_load_dword v245, v244, s[{sACT}:{sACT+3}], s{sA0} offen", "warm"))
        return its
    def half_body(typ, buf):
        B = Body(128)
        for m in range(128):
            ks, nt, st = m >> 3, (m >> 2) & 1, m & 3
            sn = st ^ 3 if nt & 1 else st
            B.mfma[m] = mf(typ, acc(buf, nt, sn), wf(ks, nt), ks, sn)
            if st == 0: B.put_pre(m, mk.WL(("wf", ks % 2, nt)))
        HSL = SLOT[:3] + [SLOT[0] if EARLY else SLOT[3]]
        for jj in range(2): tr_item(buf, 1, 0, jj).fn()
        for idx in range(3, 32):
            ks, nt = idx >> 1, idx & 1
            g = idx * 4 - 12
            if idx == 16: put_bar(B, g - 2, ("w", 2 * buf + 1))
            for jj in range(2): B.put(g, tr_item(buf, ks, nt, jj, HSL))
        if EARLY:
            su, dm = next_phase()
            B.stream(su, 4, 50); B.stream(dm, 51, 126)
        B.stream(epi_items(typ, 1 - buf, st=STL), 8, 124)
        B.emit(a)
    vWX = 244
    def warm():
        a(f"""
s_sub_u32 s{sT0}, s{sJOB}, 24
s_lshl_b32 s{sT0}, s{sT0}, 3
s_add_u32 s{sT0}, s{sT0}, s{sRB}
s_lshl_b32 s{sT0}, s{sT0}, 2
s_add_u32 s{sT0}, s{sT0}, s{sWAVE}
v_lshlrev_b32 v{vWX}, 7, v{vL}
s_mov_b32 s88, s46
s_mov_b32 s89, s47
s_mov_b32 s90, 0x400000
s_mov_b32 s91, 0x20000
s_lshl_b32 s{sA1}, s{sT0}, 14
s_lshl_b32 s{sA0}, s{sT0}, 13
s_waitcnt lgkmcnt(0)
s_mov_b32 s{sACT}, s44
s_mov_b32 s{sACT+1}, s45
""")
        def tq():
            a.vm(f"buffer_load_dword v245, v{vWX}, s[88:91], s{sA1} offen", "warm")
            a(f"s_add_u32 s{sA1}, s{sA1}, 8192")
        def tx():
            a.vm(f"buffer_load_dword v245, v{vWX}, s[{sACT}:{sACT+3}], s{sA0} offen", "warm")
        no = lambda: None
        return [tx, tq, tq, no]
    def path(typ):
        a.vmq, a.lgq = list(state0[0]), list(state0[1])
        p = mkpa(typ * 8)
        if PT:
            a(f"""
s_sub_u32 s{sT0}, s{sJOB}, {0 if typ == "K" else 12}
s_lshl_b32 s{sT0}, s{sT0}, 3
s_add_u32 s{sT0}, s{sT0}, s{sRB}
s_lshl_b32 s{sT0}, s{sT0}, 2
s_add_u32 s{sT0}, s{sT0}, s{sWAVE}
s_mul_i32 s{sT0}, s{sT0}, {11*128}
v_min_u32 v{vTW}, 10, v{vL}
v_lshlrev_b32 v{vTW}, 7, v{vTW}
v_add_u32 v{vTW}, s{sT0}, v{vTW}
""")
        B = p.build(stamp=2)
        if CT:
            for c in range(CT, 8): B.stream(ctouch(c), 64 * (c - CT) + 43, 64 * (c - CT) + 47)
        if PT:
            for c in range(8):
                B.stream([mk.I(f"s_mov_b32 s{sT0}, {((c + PT + 2) & 7) * 0x80000}"),
                          mk.VM(f"buffer_load_dword v245, v{vTW}, s[{sW}:{sW+3}], s{sT0} offen", "pt")], 64 * c + 43, 64 * c + 47)
        B.stream(slot_dma(0), p.bar_gap(6) + 3, p.bar_gap(6) + 50)
        B.stream(slot_dma(1), p.bar_gap(7) + 3, p.bar_gap(7) + 50)
        if SKIPH == 1: B.stream(kv_warm(), p.bar_gap(7) + 50, 511)
        B.emit(a)
        a.stamp(3)
        cleared()
        a("s_nop 3")
        for it in epi_items(typ, 0, packed=True): it.fn()
        a.wait_vm(("w", 0)); a("s_barrier")
        for idx in range(LEAD // 4):
            for jj in range(2): tr_item(0, idx >> 2, idx & 3, jj).fn()
        a.stamp(4)
        LOOP = a.newlabel("K1_loop"); DONE = a.newlabel("K1_done")
        a(f"s_mov_b32 s{sCNT}, 0")
        a.label(LOOP)
        mid = []
        def it():
            body(typ, 0)
            a.stamp(7)
            a(f"s_cmp_eq_u32 s{sCNT}, 1")
            a(f"s_cbranch_scc1 {DONE}")
            mid[:] = [list(a.vmq), list(a.lgq)]
            if a.diag: a("s_mov_b32 s69, s71")
            body(typ, 1)
            a.stamp(6)
            a(f"s_mov_b32 s{sCNT}, 1")
            a(f"s_lshl_b32 s{sWOFF}, s{sHU}, 6")
            if EARLY: a(f"s_sub_u32 s{sLC3}, s{sLC}, {SLOT[3] - SLOT[0]}")
            if SKIPH:
                a(f"s_and_b32 s{sT0}, s{sHU}, 31")
                a(f"s_cmp_eq_u32 s{sT0}, 31")
                a(f"s_cselect_b32 s{sW+2}, 0, s{sW+2}")
            a(f"v_and_b32 v{vDE}, 0xffffffbf, v{vDE}")
            a(f"v_and_b32 v{vDO}, 0xffffffbf, v{vDO}")
        loop_emit(a, it)
        a(f"s_branch {LOOP}")
        a.label(DONE)
        a.vmq, a.lgq = list(mid[0]), list(mid[1])
        if SKIPH:
            LH = a.newlabel("K1_h")
            a(f"s_and_b32 s{sT0}, s{sHU}, 31")
            a(f"s_cmp_lg_u32 s{sT0}, 31")
            a(f"s_cbranch_scc1 {LH}")
            if EARLY:
                su, dm = next_phase()
                for it in su: it.fn()
                a("s_waitcnt lgkmcnt(0)"); a("s_barrier")
                for it in dm: it.fn()
                ptr_loads()
            for itm in epi_items(typ, 0, packed=True, st=STL): itm.fn()
            a.stamp(12); a.stamp(8); a.stamp(9); a.stamp(10, real=True)
            a.stamp_flush(sWS, sWAVE, 24, DIAG)
            a.k1_exit.append(list(a.vmq))
            a("s_branch K2_fused_entry")
            a.label(LH)
            a.vmq, a.lgq = list(mid[0]), list(mid[1])
        half_body(typ, 1)
        a.stamp(12)
        a(f"s_mov_b32 s{sSUB}, s{sHU}")
        if EARLY: ptr_loads()
        a("s_nop 3")
        for itm in epi_items(typ, 1, (0,), packed=True, st=STL): itm.fn()
        a.stamp(8)
        if a.diag and not fused: a("s_waitcnt vmcnt(0)")
        a.stamp(9); a.stamp(10, real=True)
        a.stamp_flush(sWS, sWAVE, 24, DIAG)
        a.k1_exit.append(list(a.vmq))
        a("s_branch K2_fused_entry" if fused else "s_endpgm")
    a.label(LK)
    path("K")
    a.label(LV)
    path("V")
    a.label(LBKV)
    a.vmq, a.lgq = list(state0[0]), list(state0[1])
    sPHI = 40; sLOG2E = 60; sRET = 62
    sHM = [48, 50, 52, 54]
    WPH = 192
    vPH, vPW, vPR, vVW, vZ, vONE = 246, 247, 248, 249, 250, 252
    vPW2, vPR2, vVR = 230, 231, 232
    BSL = [0, 32768, 65536, 98304]
    a(f"""
s_mov_b32 s{sPHI}, s58
s_mov_b32 s{sPHI+1}, s59
s_mov_b32 s{sPHI+2}, 16384
s_mov_b32 s{sPHI+3}, 0x20000
s_mov_b32 s{sLOG2E}, {hex(f2u(LOG2E))}
s_sub_u32 s{sWOFF}, s{sWOFF}, 1280
v_and_b32 v{vT0}, 15, v{vL}
v_lshrrev_b32 v{vT1}, 4, v{vL}
v_bfe_u32 v{vT2}, v{vL}, 2, 2                  ; hq
v_cmp_eq_u32 s[{sHM[0]}:{sHM[0]+1}], 0, v{vT2}
v_cmp_eq_u32 s[{sHM[1]}:{sHM[1]+1}], 1, v{vT2}
v_cmp_eq_u32 s[{sHM[2]}:{sHM[2]+1}], 2, v{vT2}
v_cmp_eq_u32 s[{sHM[3]}:{sHM[3]+1}], 3, v{vT2}
v_and_b32 v{vPH}, 3, v{vL}
v_lshlrev_b32 v{vPH}, 1, v{vPH}
v_lshl_add_u32 v{vPH}, v{vT1}, 7, v{vPH}
v_lshl_add_u32 v{vPH}, v{vT2}, 9, v{vPH}
v_lshlrev_b32 v{vPW}, 6, v{vT0}
v_lshl_add_u32 v{vPW}, v{vT1}, 14, v{vPW}
s_lshl_b32 s{sT0}, s{sWAVE}, 12
s_add_u32 s{sT0}, s{sT0}, {AR}
v_add_u32 v{vPW}, s{sT0}, v{vPW}
v_lshlrev_b32 v{vPW2}, 4, v{vT0}
v_lshl_add_u32 v{vPW2}, v{vT1}, 17, v{vPW2}
v_lshl_add_u32 v{vT2}, v{vT1}, 2, v{vT2}
v_lshlrev_b32 v{vPR}, 6, v{vT2}
v_and_b32 v{vT2}, 3, v{vL}
v_lshl_add_u32 v{vPR}, v{vT2}, 4, v{vPR}
v_add_u32 v{vPR}, s{sLA}, v{vPR}
v_lshlrev_b32 v{vZ}, 4, v{vT1}
s_add_u32 s{sT0}, s{sLC}, {FR}
v_add_u32 v{vVW}, s{sT0}, v{vST[0]}
s_lshl_b32 s{sT0}, s{sWAVE}, 10
s_add_u32 s{sT0}, s{sT0}, {FR}
v_add_u32 v{vVR}, s{sT0}, v{vST[0]}
""")
    VFR, AW = 128, 160
    X, EP, EM, PHO, MX, NF = 64, 80, 96, 112, 128, 136
    LSM = a.newlabel("K1_sm16")
    def pack_nf(st):
        for kp in range(2):
            for j in range(4):
                r = acc(0, 2 * kp + (j >> 1), st) + (j & 1) * 2
                a(f"v_cvt_pk_bf16_f32 v{NF+kp*4+j}, v{r}, v{r+1}")
    def pk_mfma():
        for kp in range(2):
            for i in range(4):
                c = "0" if kp == 0 else f"v[{X+i*4}:{X+i*4+3}]"
                a(f"{MF} v[{X+i*4}:{X+i*4+3}], v[{AW+i*8+kp*4}:{AW+i*8+kp*4+3}], v[{NF+kp*4}:{NF+kp*4+3}], {c}")
    def feature_map(out, ts):
        pack_nf(0); a("s_nop 1"); pk_mfma()
        for st in range(4):
            ts.pop(0)()
            pack_nf(min(st + 1, 3))
            a(f"s_call_b64 s[{sRET}:{sRET+1}], {LSM}")
            out(st)
    def sm16():
        a.label(LSM)
        x = X
        a(f"v_max3_f32 v{MX}, v{x}, v{x+1}, v{x+2}")
        a(f"v_min3_f32 v{MX+1}, v{x}, v{x+1}, v{x+2}")
        for k in range(3, 15, 2):
            a(f"v_max3_f32 v{MX}, v{MX}, v{x+k}, v{x+k+1}")
            a(f"v_min3_f32 v{MX+1}, v{MX+1}, v{x+k}, v{x+k+1}")
        a(f"v_max_f32 v{MX}, v{MX}, v{x+15}")
        a(f"v_min_f32 v{MX+1}, v{MX+1}, v{x+15}")
        a(f"v_pk_mul_f32 v[{MX}:{MX+1}], v[{MX}:{MX+1}], s[{sLOG2E}:{sLOG2E+1}] op_sel_hi:[1,0]")
        for k in range(0, 16, 2):
            a(f"v_pk_fma_f32 v[{EP+k}:{EP+k+1}], v[{x+k}:{x+k+1}], s[{sLOG2E}:{sLOG2E+1}], v[{MX}:{MX+1}] op_sel_hi:[1,0,0] neg_lo:[0,0,1] neg_hi:[0,0,1]")
            a(f"v_pk_fma_f32 v[{EM+k}:{EM+k+1}], v[{x+k}:{x+k+1}], s[{sLOG2E}:{sLOG2E+1}], v[{MX}:{MX+1}] op_sel:[0,0,1] op_sel_hi:[1,0,1] neg_lo:[1,0,0] neg_hi:[1,0,0]")
        n = 0
        for k in range(16):
            if k % 2 == 0:
                kp, i = n >> 2, n & 3; n += 1
                c = "0" if kp == 0 else f"v[{X+i*4}:{X+i*4+3}]"
                a(f"{MF} v[{X+i*4}:{X+i*4+3}], v[{AW+i*8+kp*4}:{AW+i*8+kp*4+3}], v[{NF+kp*4}:{NF+kp*4+3}], {c}")
            a(f"v_exp_f32 v{EP+k}, v{EP+k}")
            a(f"v_exp_f32 v{EM+k}, v{EM+k}")
        SP, SM = MX + 2, MX + 4
        a(f"v_pk_add_f32 v[{SP}:{SP+1}], v[{EP}:{EP+1}], v[{EP+2}:{EP+3}]")
        a(f"v_pk_add_f32 v[{SM}:{SM+1}], v[{EM}:{EM+1}], v[{EM+2}:{EM+3}]")
        for k in range(4, 16, 2):
            a(f"v_pk_add_f32 v[{SP}:{SP+1}], v[{SP}:{SP+1}], v[{EP+k}:{EP+k+1}]")
            a(f"v_pk_add_f32 v[{SM}:{SM+1}], v[{SM}:{SM+1}], v[{EM+k}:{EM+k+1}]")
        a(f"v_add_f32 v{SP}, v{SP}, v{SP+1}")
        a(f"v_add_f32 v{SM}, v{SM}, v{SM+1}")
        a(f"v_rcp_f32 v{SP}, v{SP}")
        a(f"v_rcp_f32 v{SM}, v{SM}")
        a("s_nop 0")
        for k in range(0, 16, 2):
            a(f"v_pk_mul_f32 v[{EP+k}:{EP+k+1}], v[{EP+k}:{EP+k+1}], v[{SP}:{SP+1}] op_sel_hi:[1,0]")
            a(f"v_pk_mul_f32 v[{EM+k}:{EM+k+1}], v[{EM+k}:{EM+k+1}], v[{SM}:{SM+1}] op_sel_hi:[1,0]")
        for k in range(8):
            a(f"v_cvt_pk_bf16_f32 v{PHO+(k>>1)*4+(k&1)}, v{EP+2*k}, v{EP+2*k+1}")
            a(f"v_cvt_pk_bf16_f32 v{PHO+(k>>1)*4+2+(k&1)}, v{EM+2*k}, v{EM+2*k+1}")
        a(f"s_setpc_b64 s[{sRET}:{sRET+1}]")
    def post(ts):
        a.lgq = []
        for u in range(2):
            for hd in range(4):
                f = VFR + (u * 4 + hd) * 4
                for j in range(4):
                    r = acc(1, hd, 2 * u + (j >> 1)) + (j & 1) * 2
                    a(f"v_cvt_pk_bf16_f32 v{f+j}, v{r}, v{r+1}")
                a(f"ds_write_b128 v{vVW}, v[{f}:{f+3}] offset:{(u*4+hd)*1024}")
        for i in range(4):
            a(f"v_lshl_or_b32 v{WPH+i*4}, v{WPH+i*4+1}, 16, v{WPH+i*4}")
            a(f"v_lshl_or_b32 v{WPH+i*4+1}, v{WPH+i*4+3}, 16, v{WPH+i*4+2}")
        for i in range(4):
            for hq in range(4):
                for e in range(2):
                    a(f"v_cndmask_b32 v{AW+i*8+hq*2+e}, 0, v{WPH+i*4+e}, s[{sHM[hq]}:{sHM[hq]+1}]")
        a("s_waitcnt lgkmcnt(0)")
        def out_k(st):
            for kq in range(4):
                a(f"ds_write_b128 v{vPW}, v[{PHO+kq*4}:{PHO+kq*4+3}] offset:{st*1024 + kq*16}")
        feature_map(out_k, ts)
        a("s_waitcnt lgkmcnt(0)")
        a("s_barrier")
        KV = 0
        def mfs(k):
            fb = 16 + k * 12
            a.wait_lg(("b", k), always=True)
            for ft in range(2):
                d = KV + ft * 4; c = "0" if k == 0 else f"v[{d}:{d+3}]"
                a(f"{MF} v[{d}:{d+3}], v[{fb+4+ft*4}:{fb+7+ft*4}], v[{fb}:{fb+3}], {c}")
            for ft in range(2):
                d = KV + 8 + ft * 4; c = "0" if k == 0 else f"v[{d}:{d+3}]"
                a(f"{MF} v[{d}:{d+3}], v[{fb+4+ft*4}:{fb+7+ft*4}], v[{vONE}:{vONE+3}], {c}")
        for k in range(8):
            fb = 16 + k * 12
            a.lg(f"ds_read_b128 v[{fb}:{fb+3}], v{vVR} offset:{k*4096}", ("b", k))
            for ft in range(2):
                for jj in range(2):
                    b = fb + 4 + ft * 4 + jj * 2
                    a.lg(f"ds_read_b64_tr_b16 v[{b}:{b+1}], v{vPR} offset:{k*2048 + jj*1024 + ft*8}", ("b", k))
            if k >= 2: mfs(k - 2)
        mfs(6); mfs(7)
        a(f"""
s_lshl_b32 s{sT0}, s{sSUB}, 2
s_add_u32 s{sT0}, s{sT0}, s{sWAVE}
s_lshl_b32 s{sT0}, s{sT0}, 3
s_add_u32 s{sT0}, s{sT0}, s{sRB}
s_mul_i32 s{sT0}, s{sT0}, {BKV_P}
s_add_u32 s{sT0}, s{sT0}, {BKV}
v_and_b32 v{vT0}, 15, v{vL}
v_cmp_eq_u32 vcc, 0, v{vT0}
buffer_store_dwordx4 v[{KV}:{KV+3}], v{vST[0]}, s[{sWS}:{sWS+3}], s{sT0} offen sc1
buffer_store_dwordx4 v[{KV+4}:{KV+7}], v{vST[0]}, s[{sWS}:{sWS+3}], s{sT0} offen offset:1024 sc1
s_mov_b64 exec, vcc
buffer_store_dwordx4 v[{KV+8}:{KV+11}], v{vZ}, s[{sWS}:{sWS+3}], s{sT0} offen offset:2048 sc1
buffer_store_dwordx4 v[{KV+12}:{KV+15}], v{vZ}, s[{sWS}:{sWS+3}], s{sT0} offen offset:2112 sc1
s_mov_b64 exec, -1
""")
        a.vmq += ["st"] * 4
    def wphi_loads():
        a(f"s_lshl_b32 s{sT0}, s{sSUB}, 11")
        for i in range(4):
            for j in range(4):
                a.vm(f"buffer_load_ushort v{WPH+i*4+j}, v{vPH}, s[{sPHI}:{sPHI+3}], s{sT0} offen offset:{j*32 + i*8}", "wphi")
    wphi_loads()
    p = mkpa("KKKKVVVV")
    B = p.build()
    if CT:
        for c in range(CT, 8): B.stream(ctouch(c), 64 * (c - CT) + 43, 64 * (c - CT) + 47)
    B.stream(slot_dma(0, BSL), p.bar_gap(7) + 3, p.bar_gap(7) + 50)
    if SKIPH == 1: B.stream(kv_warm(), p.bar_gap(7) + 50, 511)
    B.emit(a)
    a.stamp(3)
    a("s_barrier")
    for it in slot_dma(1, BSL): it.fn()
    cleared()
    for r in range(4): a(f"v_mov_b32 v{vONE+r}, 0x3f803f80")
    post(warm() if SKIPH != 1 else [lambda: None] * 4)
    a.stamp(4)
    a.wait_vm(("w", 0)); a("s_barrier")
    for idx in range(LEAD // 4):
        for jj in range(2): tr_item(0, idx >> 2, idx & 3, jj, BSL).fn()
    body("K", 0, BSL, epi=False, dma=False, nxt=False)
    a.stamp(5)
    a(f"""
s_lshl_b32 s{sT0}, s{sSUB}, 19
s_lshr_b32 s{sT1}, s{sSTFIX}, 2
s_add_u32 s{sT0}, s{sT0}, s{sT1}
s_add_u32 s{sT0}, s{sT0}, {PHIQ}
s_nop 3
""")
    if EARLY:
        su, dm = next_phase()
        for it in su: it.fn()
        a(f"s_mov_b32 s{sROW1}, 8192")
        a(f"s_mov_b32 s{sROW4}, 32768")
        pa.setup_dma(vL, vT0, vT1, vT2, sROW1)
        a("s_barrier")
        for it in dm: it.fn()
        ptr_loads()
    def out_q(st):
        for kq in range(4):
            a.vm(f"buffer_store_dwordx4 v[{PHO+kq*4}:{PHO+kq*4+3}], v{vPW2}, s[{sWS}:{sWS+3}], s{sT0} offen offset:{st*1024 + kq*256} sc1", "st")
    feature_map(out_q, [lambda: None] * 4)
    a.stamp(6)
    if WB:
        LW = a.newlabel("K1_nowb")
        a(f"s_cmp_lg_u32 s{sWAVE}, 0")
        a(f"s_cbranch_scc1 {LW}")
        for i in range(WB):
            a("buffer_wbl2 sc1")
            a("s_waitcnt vmcnt(0)")
        a.label(LW)
    a.stamp(8)
    if a.diag and not fused: a("s_waitcnt vmcnt(0)")
    a.stamp(9); a.stamp(10, real=True)
    a.stamp_flush(sWS, sWAVE, 24, DIAG, vt=(241, 242))
    a.k1_exit.append(list(a.vmq))
    if fused: a("s_branch K2_fused_entry")
    a.label(END)
    a("s_endpgm")
    sm16()
    a.label("K1_code_end")

if __name__ == "__main__":
    import sys
    a = Asm()
    a.diag = len(sys.argv) > 1
    gen_k1(a)
    for p in a.check(): print(p)
    open("k1.s", "w").write(a.text())
    print(len(a.lines), "lines")
```

```python
from asmlib import Asm
from sched import *
from common import *
from phasea import PhaseA, WR, FR, AR
from hedge import *

BIG = f2u(-1.0e30)
THR = f2u(2.0 ** 60)
OFFS = f2u(40.0)
RQ = 0x20000
MX = 0xC000
MF32 = "v_mfma_f32_32x32x16_bf16"

def gen_k2(a, name="k2_kernel", CPF=1, ROT=0, fused=False, PLEAD=50, PSLEEP=12, NLATE=0, FST="", OST="", L2W=1, fused3=False, CH=0, WARM=0, EARLY=0, PROG=0, AL=3, BG=95, OFF=96.0, VW=50, KW=127, NOOV=0):
    OFFS = f2u(OFF); THR = f2u(2.0 ** (100 - OFF))
    if fused3: FST = OST = "sc1"
    if not fused: a.kernel(name, (256,1,1), (256,1,1), 163840, vgpr=256, agpr=256)
    SC = " sc1" if fused else ""
    sX, sW, sWS = 4, 8, 12
    (sWAVE, sH, sI, sROW1, sA0, sA1, sT0, sT1, sT2, sCNT, sLA, sLW, sWSRC, sROW4, sROWH,
     sKSRC, sVSRC, sKD, sVD, sKAP, sDGA, sDGB, sDMIN, sTHR, sCTXA, sCTXB, sP, sW4) = range(16, 44)
    sRET = 44
    sM = [46, 48, 50, 52]
    sB0, sB1 = 54, 55
    sEVA, sEVB = 98, 99
    sCO, sWB, sA0c, sA1c = 46, 47, 48, 49
    sOFF = sTHR
    Q = 0; S = 64; P = 128; NM = 160; TE = 192; LC = 200; M = 208
    vK, vV, vL16, vL, vT0, vT1, vTHR, vQX = 212, 213, 214, 215, 216, 217, 218, 219
    vX16, vX32, vBIG, vDG = 220, 221, 222, 223
    D = 224; F = 228; vST = [232, 233]; vMX = 234; vT2 = 235
    ZERO = 236
    PKR = 240
    pACC, pWF = 64, 0
    vWA = list(range(192, 200)); vXA = [200, 201]; vAD = [202, 203, 204, 205]; vWD = [206, 207, 208, 209]
    O = 0; KF = 128; VF = 160; LA = 192; ONES = 208
    END = a.newlabel("K2_end")
    def q(u, dk): return Q + (u * 4 + dk) * 4
    def s_(buf, u, kt): return S + ((buf * 4 + u) * 2 + kt) * 4
    def p_(buf, u): return P + (buf * 4 + u) * 4
    def nm(u, kt): return NM + (u * 2 + kt) * 4
    def o_(u, dt): return O + (u * 8 + dt) * 4
    def lc(par, u): return LC + par * 4 + u
    mk = Mk(a)
    I = lambda s, c=None: mk.I(s)
    if fused:
        a.label("K2_fused_entry")
        a.vmq = []; a.lgq = []
        if EARLY:
            def behind(qq, tag): return len(qq) - 1 - max(i for i, t in enumerate(qq) if t == tag)
            n0 = min(behind(qq, ("pa", 0)) for qq in a.k1_exit)
            if EARLY == 1:
                n1 = min(behind(qq, ("pa", 1)) for qq in a.k1_exit)
                a.vmq = [("pa", 0)] + ["x"] * (n0 - n1 - 1) + [("pa", 1)] + ["x"] * n1
            else: a.vmq = [("pa", 0)] + ["x"] * n0
            src = list(range(208, 216)) + [216, 217] + [218, 219, 252, 253] + [220, 221, 254, 255]
            for d_, s0 in zip(vWA + vXA + vAD + vWD, src): a(f"v_mov_b32 v{d_}, v{s0}")
        a(f"v_mov_b32 v{vL}, v240")
    else:
        a(f"""
s_cmp_ge_u32 s2, 256
s_cbranch_scc1 {END}
v_lshrrev_b32 v{vT0}, 6, v0
v_and_b32 v{vL}, 63, v0
v_readfirstlane_b32 s{sWAVE}, v{vT0}
""")
    a.stamp(14)
    if not EARLY: a(f"""
s_load_dwordx2 s[56:57], s[0:1], 0      ; x
s_load_dwordx2 s[58:59], s[0:1], 16     ; w_q
s_load_dwordx2 s[60:61], s[0:1], 96     ; ws
s_load_dwordx2 s[88:89], s[0:1], 40     ; w_o
s_load_dwordx2 s[92:93], s[0:1], 72     ; wo
s_load_dwordx2 s[52:53], s[0:1], 88
""")
    a(f"""
s_lshr_b32 s{sT1}, s2, 3
s_and_b32 s{sI}, s{sT1}, 7
s_lshr_b32 s{sT1}, s{sT1}, 3
s_and_b32 s{sH}, s2, 7
s_lshl_b32 s{sH}, s{sH}, 2
s_add_u32 s{sH}, s{sH}, s{sT1}
s_mov_b32 s{sROW1}, 8192
s_mov_b32 s{sROW4}, 32768
s_mov_b32 s{sROWH}, 4096
s_lshl_b32 s{sCO}, s{sT1}, 1
s_add_u32 s{sCO}, s{sCO}, s{sI}
s_and_b32 s{sCO}, s{sCO}, {7 if ROT else 0}
s_lshl_b32 s{sCO}, s{sCO}, 7
s_sub_u32 s{sCO}, s{sCO}, {[128, -128, 0][EARLY]}
s_sub_u32 s{sT0}, 15, s{sI}             ; L
s_lshl_b32 s{sDGA}, s{sT0}, 2
s_add_u32 s{sDGA}, s{sDGA}, s{sWAVE}
s_lshl_b32 s{sDGB}, s{sI}, 2
s_add_u32 s{sDGB}, s{sDGB}, s{sWAVE}
s_lshl_b32 s{sA0}, s{sDGA}, 15
s_lshl_b32 s{sA1}, s{sDGB}, 15
s_lshl_b32 s{sLA}, s{sWAVE}, 14
s_add_u32 s{sLA}, s{sLA}, {AR}
s_lshl_b32 s{sW4}, s{sWAVE}, 12
s_add_u32 s{sLW}, s{sW4}, {WR}
s_lshl_b32 s{sWB}, s{sWAVE}, 17       ; 16 rows * 8192
s_lshl_b32 s{sT0}, s{sH}, 8
s_add_u32 s{sWB}, s{sWB}, s{sT0}
s_lshl_b32 s{sKSRC}, s{sH}, 19
s_add_u32 s{sKSRC}, s{sKSRC}, s{sW4}
s_add_u32 s{sVSRC}, s{sKSRC}, {VWS}
s_mov_b32 s{sX+2}, 0x200000
s_mov_b32 s{sX+3}, 0x20000
s_mov_b32 s{sW+2}, 0x400000
s_mov_b32 s{sW+3}, 0x20000
s_mov_b32 s{sWS+2}, {WS_USED}
s_mov_b32 s{sWS+3}, 0x20000
""")
    pa = PhaseA(a, pACC, pWF, vWA, vXA, vAD, vWD, sX, sW, sA0, sA1, sWSRC, sROW4, sROWH, sLA, sLW, sT2, "K" * 8, sCO, sWB, sA0c, sA1c)
    pa.ring = 128
    if not EARLY: pa.setup_dma(vL, vT0, vT1, vT2, sROW1)
    pa.pre1 = EARLY == 1
    if EARLY == 2: pa.N1 = 0
    a("s_waitcnt lgkmcnt(0)")
    if not EARLY: a(f"""
s_mov_b32 s{sX}, s56
s_mov_b32 s{sX+1}, s57
s_mov_b32 s{sW}, s58
s_mov_b32 s{sW+1}, s59
s_mov_b32 s{sWS}, s60
s_mov_b32 s{sWS+1}, s61
""")
    a(f"""
s_mov_b32 s54, 256
s_mov_b32 s55, 0x20000
""")
    if fused:
        a(f"""
s_add_u32 s51, s99, {FLAGS + 32768}
s_cmp_eq_u32 s{sWAVE}, 0
s_cselect_b32 s62, 256, 0
s_cselect_b32 s50, {FLAGS + 32768}, s{sWS+2}
s_cselect_b32 s{sT0}, 1, 0
v_mov_b32 v{vX32}, s{sT0}
v_mov_b32 v{vT0}, 0
""")
        a.vm(f"buffer_load_dword v{vT2}, v{vT0}, s[52:55], s{sW4} offen sc1", "cnt")
        if not EARLY: a("s_barrier")
    a.stamp(0); a.stamp(1, real=True)
    if not EARLY:
        for it in pa.chunk_dmas(0): it.fn()
    a.stamp(11)
    if not EARLY: pa.setup_read(vL, vT0, vT1, vBIG)
    if fused:
        a(f"""
s_lshr_b32 s{sT0}, s{sH}, 3
s_mul_i32 s{sT0}, s{sT0}, 24
v_min_u32 v{vT0}, 55, v{vL}
v_add_u32 v{vX16}, s{sT0}, v{vT0}         ; K producers
v_add_u32 v{vT1}, 72, v{vX16}             ; V producers
v_cmp_le_u32 vcc, 24, v{vT0}
s_lshr_b32 s{sT0}, s{sH}, 2
s_lshl_b32 s{sT0}, s{sT0}, 3
s_add_u32 s{sT0}, s{sT0}, 144
v_cndmask_b32 v{vX16}, v{vX16}, v{vT1}, vcc
v_add_u32 v{vT1}, s{sT0}, v{vT0}          ; B producers
v_cmp_le_u32 vcc, 48, v{vT0}
s_nop 1
v_cndmask_b32 v{vX16}, v{vX16}, v{vT1}, vcc
v_lshlrev_b32 v{vX16}, 7, v{vX16}
""")
    setup2 = f"""
v_lshlrev_b32 v{vL16}, 4, v{vL}
v_mov_b32 v{vBIG}, {hex(BIG)}
v_mov_b32 v{vTHR}, {hex(THR)}
v_and_b32 v{vT0}, 15, v{vL}
v_lshrrev_b32 v{vT1}, 4, v{vL}
v_lshlrev_b32 v{vT1}, 2, v{vT1}
v_sub_u32 v{vDG}, v{vT0}, v{vT1}
v_mov_b32 v{vST[0]}, v{vL16}
v_add_u32 v{vST[1]}, {144*1024}, v{vL16}
v_mov_b32 v{vT0}, 0x3f803f80
s_and_b32 s{sP}, s{sWAVE}, 1
s_mul_i32 s{sCTXA}, s{sDGA}, {2*144*1024}
s_mul_i32 s{sCTXB}, s{sDGB}, {2*144*1024}
s_lshl_b32 s{sT0}, s{sH}, 12
s_add_u32 s{sT0}, s{sT0}, {CTX}
s_add_u32 s{sCTXA}, s{sCTXA}, s{sT0}
s_add_u32 s{sCTXB}, s{sCTXB}, s{sT0}
v_add_u32 v{vK}, 0x10000, v{vL16}
v_add_u32 v{vV}, 0x10000, v{vL16}
s_lshl_b32 s{sT0}, s{sWAVE}, 13
s_add_u32 s{sT0}, s{sT0}, {RQ}
v_add_u32 v{vQX}, s{sT0}, v{vL16}
s_lshl_b32 s{sT0}, s{sWAVE}, 9
s_add_u32 s{sT0}, s{sT0}, {MX}
v_lshlrev_b32 v{vMX}, 3, v{vL}
v_add_u32 v{vMX}, s{sT0}, v{vMX}
s_add_u32 s{sKD}, s{sW4}, 0x10000         ; K(2) -> parity 0
s_add_u32 s{sVD}, s{sW4}, 0x4000          ; V(1) -> parity 1
s_mov_b32 s{sKAP}, -1
s_min_u32 s{sDMIN}, s{sDGA}, s{sDGB}
s_mov_b32 s{sEVA}, s{sDGA}
s_mov_b32 s{sEVB}, s{sDGB}
s_mov_b32 s90, 0x400000
s_mov_b32 s91, 0x20000
s_mov_b32 s94, 0x80000
s_mov_b32 s95, 0x20000
"""
    def zero16(reg):
        return f"{MF32} {reg}, v[{ZERO}:{ZERO+3}], v[{ZERO}:{ZERO+3}], 0"
    late = [I(l.split(";")[0].strip()) for l in setup2.strip().split("\n")]
    late += [I(f"v_accvgpr_write_b32 a{ONES+r}, v{vT0}") for r in range(4)]
    for r in range(4): a(f"v_mov_b32 v{ZERO+r}, 0")
    if EARLY:
        late += [I(f"v_accvgpr_write_b32 a{r}, 0") for r in list(range(O, O + 128)) + [LA, LA + 4, LA + 8, LA + 12]]
        late += [I(f"v_accvgpr_write_b32 a{r}, 0") for r in range(LA, LA + 16) if r % 4]
    else:
        a("s_nop 1")
        for k in range(8): a(zero16(f"a[{O+k*16}:{O+k*16+15}]"))
        a(zero16(f"a[{LA}:{LA+15}]"))
    def tile_dma(src, ldsexpr, tag, srcadd=None, post=()):
        its = [I(f"s_add_u32 m0, s{ldsexpr[0]}, {ldsexpr[1]}"), I(f"s_add_u32 s{sT1}, s{src}, {srcadd}" if srcadd is not None else "s_nop 0")]
        for i in range(4):
            its.append(mk.VM(f"buffer_load_dwordx4 v{vL16}, s[{sWS}:{sWS+3}], s{sT1 if srcadd is not None else src} offen offset:{i*1024}{SC} lds", tag))
        return its + [I(t) for t in post]
    def chores():
        its = [I(f"s_lshl_b32 s{sB0}, s2, 2"), I(f"s_add_u32 s{sB0}, s{sB0}, s{sWAVE}")]
        if WARM:
            its += [I(f"v_and_b32 v{vT1}, 31, v{vL}"), I(f"v_lshlrev_b32 v{vT1}, 7, v{vT1}"), I(f"s_lshl_b32 s{sB1}, s{sB0}, 12"),
                    mk.VM(f"buffer_load_dword v245, v{vT1}, s[88:91], s{sB1} offen", "warm"),
                    I(f"v_and_b32 v{vT1}, 0x180, v{vT1}"), I(f"s_lshl_b32 s{sB1}, s{sB0}, 9"),
                    mk.VM(f"buffer_load_dword v245, v{vT1}, s[92:95], s{sB1} offen", "warm")]
        if fused3 == 2:
            its += [I(f"s_mul_i32 s{sB1}, s{sB0}, 6144"), I(f"s_add_u32 s{sB1}, s{sB1}, {PART}")]
            its += [I(f"v_mov_b32 v{PKR+8+r}, -1") for r in range(4)]
            for k in range(6):
                if k == 4: its.append(I(f"s_add_u32 s{sB1}, s{sB1}, 4096"))
                its.append(mk.VM(f"buffer_store_dwordx4 v[{PKR+8}:{PKR+11}], v{vL16}, s[{sWS}:{sWS+3}], s{sB1} offen offset:{(k % 4)*1024} sc1", "clr"))
        return its
    B = pa.build(stamp=2)
    g6 = pa.bar_gap(6) + 6
    LAFTER = "K2_after"
    if CPF: late = code_prefetch(a, LAFTER, "K3_code_end" if fused3 else "K2_code_end", 96, sT0, sWAVE, vL, vT0, 245) + late
    B.stream(late[NLATE:], 50 if not EARLY else 4, 300 if not EARLY else 340)
    if fused:
        def sig():
            L = a.newlabel("K2_sig")
            a(f"""
s_cmp_lg_u32 s{sWAVE}, 0
s_cbranch_scc1 {L}
s_mov_b64 exec, 1
buffer_store_dword v{vX32}, v{ZERO}, s[{sWS}:{sWS+3}], s51 offen sc1
s_mov_b64 exec, -1
{L}:
v_readfirstlane_b32 s51, v{vT2}
""")
        if EARLY: B.put(pa.bar_gap(3 - EARLY) + 3, Item(sig, 16, "X"), 3)
        else: sig()
        B.put(pa.bar_gap(6) - PLEAD, mk.VM(f"buffer_load_dword v{vT2}, v{vX16}, s[{sWS}:{sWS+3}], s50 offen sc1", "poll"))
        def chk():
            L = a.newlabel("K2_spin"); R = a.newlabel("K2_spun"); LP = a.newlabel("K2_spl"); LQ = a.newlabel("K2_spq")
            a.wait_vm("poll", always=True)
            a(f"v_cmp_ne_u32 vcc, v{vX32}, v{vT2}")
            a(f"s_cmp_lt_u32 s51, s62")
            a(f"s_cbranch_scc1 {L}")
            a(f"s_cbranch_vccnz {L}")
            a.label(R)
            a.stubs.append(f"""{L}:
s_mov_b32 s{sT1}, 0x40000
{LP}:
s_cmp_ge_u32 s51, 256
s_cbranch_scc1 {LQ}
s_sleep {PSLEEP}
buffer_load_dword v{vT2}, v{ZERO}, s[52:55], 0 offen sc1
s_waitcnt vmcnt(0)
v_readfirstlane_b32 s51, v{vT2}
s_sub_u32 s{sT1}, s{sT1}, 1
s_cmp_lg_u32 s{sT1}, 0
s_cbranch_scc1 {LP}
s_branch {R}
{LQ}:
buffer_load_dword v{vT2}, v{vX16}, s[{sWS}:{sWS+3}], s50 offen sc1
s_waitcnt vmcnt(0)
v_cmp_ne_u32 vcc, 1, v{vT2}
s_sub_u32 s{sT1}, s{sT1}, 1
s_cmp_eq_u32 s{sT1}, 0
s_cbranch_scc1 {R}
s_cbranch_vccz {R}
s_sleep 2
s_branch {LQ}""")
        B.put(pa.bar_gap(6) - 1, Item(chk, 20, "X"), 3)
    B.spread(tile_dma(sKSRC, (sW4, 0x10000), "kv") + tile_dma(sVSRC, (sW4, 0x14000), "kv") + tile_dma(sKSRC, (sW4, 0), "kv", 16384), g6, g6 + 56)
    if CH == 1: B.stream(chores(), g6 + 60, 492)
    def qcvt(u, dk, j):
        r = pa.acc(2 * dk + (j >> 1), u) + (j & 1) * 2
        return f"v_cvt_pk_bf16_f32 v{q(u, dk) + j}, v{r}, v{r+1}"
    qearly = []
    for dk in range(2):
        its = [I(qcvt(u, dk, j), 5) for u in range(2) for j in range(4)]
        B.spread(its, 480 + dk * 8 + 14, 480 + dk * 8 + 22)
        qearly += [(u, dk) for u in range(2)]
    B.emit(a)
    a.label(LAFTER)
    a.stamp(3); a.stamp(21, real=True)
    a.wait_vm("kv"); a("s_barrier")

    LMASK = a.newlabel("K2_mask"); LADJ = [a.newlabel("K2_adj0"), a.newlabel("K2_adj1")]
    def kread(hs, f):
        b = KF + f * 4
        return mk.LG(f"ds_read_b128 a[{b}:{b+3}], v{vK} offset:{(f >> 1)*4096 + (hs*2 + (f & 1))*1024}", ("kf", f))
    def vread(hs, f):
        b = VF + f * 4
        return mk.LG(f"ds_read_b128 a[{b}:{b+3}], v{vV} offset:{0x4000 + (f >> 1)*4096 + (hs*2 + (f & 1))*1024}", ("vf", f))
    def qk_mfma(B, base, buf, wait=2, late=False):
        for f in range(8):
            kt, dk = f & 1, f >> 1
            for u in range(4):
                d = s_(buf, u, kt); c = nm(u, kt) if dk == 0 else d
                st = f"{MF} v[{d}:{d+3}], a[{KF+f*4}:{KF+f*4+3}], v[{q(u,dk)}:{q(u,dk)+3}], v[{c}:{c+3}]"
                B.mfma[base + f * 4 + (u if kt else u ^ 3)] = (lambda st=st: a(st))
            if f % wait == 0: B.put_pre(base + f * 4, mk.WL(("kf", f + wait - 1)))
    def pv_mfma(B, base, buf, wait=2, order="d"):
        for f in range(8):
            for u in range(4):
                o = o_(u, f); p = p_(buf, u)
                st = f"{MF} a[{o}:{o+3}], a[{VF+f*4}:{VF+f*4+3}], v[{p}:{p+3}], a[{o}:{o+3}]"
                m = {"d": f * 4 + u, "b": (0 if u >= 2 else 16) + f * 2 + (u & 1), "u": u * 8 + (f ^ 7 if u & 1 else f)}[order]
                B.mfma[base + m] = (lambda st=st: a(st))
            if f % wait == 0:
                B.put_pre(base + {"d": f * 4, "b": f * 2, "u": f}[order], mk.WL(("vf", f + wait - 1)))
    def lmfma(par, u):
        t = f"{MF} a[{LA+u*4}:{LA+u*4+3}], a[{ONES}:{ONES+3}], v[{p_(par,u)}:{p_(par,u)+3}], a[{LA+u*4}:{LA+u*4+3}]"
        return Item(lambda: a(t), 8, "v")
    def lread(par, u): return I(f"v_accvgpr_read_b32 v{lc(par,u)}, a{LA+u*4}")
    def ex(par, i): return I(f"v_exp_f32 v{TE+i%8}, v{S+par*32+i}")
    def cv(par, c): return I(f"v_cvt_pk_bf16_f32 v{P+par*16+c}, v{TE+(2*c)%8}, v{TE+(2*c+1)%8}")
    def early(par):
        return [ex(par, 0), ex(par, 1), ex(par, 2), cv(par, 0), ex(par, 3), ex(par, 4), cv(par, 1), ex(par, 5)]
    def softmax_items(par, skip_early=False):
        its = [] if skip_early else early(par)
        for i in range(6, 34):
            if i < 32: its.append(ex(par, i))
            if i == 32: its.append(I("v_nop"))
            if i % 2 == 0 and i // 2 - 1 < 16: its.append(cv(par, i // 2 - 1))
            if i in (10, 18, 26): its.append(lmfma(par, (i >> 3) - 1))
            if i in (20, 28): its.append(lread(par, (i >> 3) - 2))
        return its
    def softmax_tail(B, g, par, check=True):
        B.put(g, I("v_nop")); B.put(g, lmfma(par, 3))
        B.put(g + 2, lread(par, 2))
        if check: B.put(g + 3, I(f"v_max3_f32 v{vT0}, v{lc(par,0)}, v{lc(par,1)}, v{lc(par,2)}"))
        B.put(g + 7, lread(par, 3))
        if check:
            B.put(g + 8, I(f"v_max_f32 v{vT0}, v{vT0}, v{lc(par,3)}"))
            B.put(g + 8, I(f"v_cmp_nle_f32 vcc, v{vT0}, v{vTHR}"))
            B.put(g + 10, check_item(par), 3)
    def call_stub(branch, target):
        def f():
            L = a.newlabel("K2_st"); R = a.newlabel("K2_rt")
            a(f"{branch} {L}")
            a.label(R)
            a.stubs.append(f"{L}:\ns_call_b64 s[{sRET}:{sRET+1}], {target}\ns_branch {R}")
        return Item(f, 4, "s")
    def check_item(par): return call_stub("s_cbranch_vccnz", LADJ[par])
    def mask_items():
        return [I(f"s_add_u32 s{sKAP}, s{sKAP}, 1"), I(f"s_cmp_ge_u32 s{sKAP}, s{sDMIN}"),
                Item(lambda: a(f"s_getpc_b64 s[{sRET}:{sRET+1}]\ns_cbranch_scc1 {LMASK}"), 8, "X")]
    def put_mask(B, g):
        m = mask_items()
        B.put(g - 1, m[0])
        assert not B.gap[g].c[0] and not B.gap[g].c[3]
        B.put(g, m[1], 0); B.put(g, m[2], 3)
    def put_bar(B, g):
        B.put(g, mk.WV("kv", lg0=True), 3); B.put(g, I("s_barrier"), 3)
    def togK(): return I(f"v_xor_b32 v{vK}, 0x10000, v{vK}")
    def togV(): return I(f"v_xor_b32 v{vV}, 0x10000, v{vV}")
    def kv_dmas(src, dst, two):
        adv = (f"s_add_u32 s{src}, s{src}, 16384", f"s_xor_b32 s{dst}, s{dst}, 0x10000")
        if not two: return tile_dma(src, (dst, 0), "kv", post=adv)
        return tile_dma(src, (dst, 0), "kv") + tile_dma(src, (dst, 0x8000), "kv", f"s{sOFF}", post=adv)
    NPRE = 6
    sF3 = 63
    sCW, sCC, sCE = 56, 57, 58
    def f3_item():
        return mk.VM(f"buffer_store_dword v{vX32}, v{ZERO}, s[{sWS}:{sWS+3}], s{sF3} offen sc1", "f3")
    def body_emit(two):
        B = Body(128)
        qk_mfma(B, 0, 0, 4); pv_mfma(B, 32, 0, 4, "u"); qk_mfma(B, 64, 1, 4); pv_mfma(B, 96, 1, 8, "u")
        ins = []
        for par, G0 in ((1, -12), (0, 52), (1, 116)):
            for i in range(32):
                g = G0 + 2 * i
                if 0 <= g < 128: B.put(g, ex(par, i))
            for c in range(16):
                g = G0 + 4 * c + 5
                if 0 <= g < 128: B.put(g, cv(par, c))
            if G0 < 100:
                for u in range(4):
                    ins.append((G0 + 16 * u + 19, lmfma(par, u).fn))
                    B.put(G0 + 16 * u + 23, lread(par, u))
                B.put(G0 + 55, I(f"v_max3_f32 v{vT0}, v{lc(par,0)}, v{lc(par,1)}, v{lc(par,2)}"))
                B.put(G0 + 71, I(f"v_max_f32 v{vT0}, v{vT0}, v{lc(par,3)}"))
                B.put(G0 + 73, I(f"v_cmp_nle_f32 vcc, v{vT0}, v{vTHR}"))
                B.put(G0 + 75, check_item(par), 3)
        B.put(1, kread(0, 6)); B.put(5, kread(0, 7))
        for f, g in enumerate((9, 11, 13, 17, 21, 25, 27, 29)): B.put(g, vread(0, f))
        for f, g in enumerate((33, 37, 41, 45, 47, 49, 53, 57)): B.put(g, kread(1, f))
        B.put(63, togK())
        for f, g in enumerate((65, 69, 73, 75, 77, 81, 85, 89)): B.put(g, vread(1, f))
        B.put(91, togV())
        put_bar(B, BG)
        for f, g in enumerate((101, 105, 109, 113, 117, 121)): B.put(g, kread(0, f))
        put_mask(B, 51)
        put_mask(B, 87)
        B.put(84, I(f"s_sub_u32 s{sCNT}, s{sCNT}, 1"))
        for after, fn in sorted(ins, reverse=True): B.insert_mfma(after, fn)
        r = lambda v: v + sum(1 for x, _ in ins if x < v)
        B.stream(kv_dmas(sVSRC, sVD, two), 0, r(VW), even=False)
        if CH == 2:
            B.stream([mk.VM(f"buffer_load_dword v{vT2}, v{vX16}, s[88:91], s{sCW} offen", "warm"),
                      I(f"s_add_u32 s{sCW}, s{sCW}, {640 if L2W == 3 else 384}"),
                      mk.VM(f"buffer_store_dwordx4 a[236:239], v{vL16}, s[{sWS}:{sWS+3}], s{sCC} offen sc1", "clr"),
                      I(f"s_add_u32 s{sCC}, s{sCC}, 1024"),
                      Item(lambda: a(f"s_cmp_ge_u32 s{sCC}, s{sCE}\ns_cselect_b32 s{sCC}, s{sWS+2}, s{sCC}"), 8, "X")], r(52), r(90), even=False)
        kd = kv_dmas(sKSRC, sKD, two)
        if two and PROG: kd = [f3_item()] + kd
        if two and NOOV: B.stream([Item(lambda: a(f"s_cmp_le_u32 s{sCNT}, 1\ns_cselect_b32 s{sKSRC}, s{sWS+2}, s{sKSRC}"), 8, "X")], r(88), r(94))
        B.stream(kd, r(BG) + 1, r(KW), even=False)
        print("body est", two, B.est())
        B.emit(a)
    def quad_max(regs, tmp):
        for sw in ("v_permlane16_swap_b32", "v_permlane32_swap_b32"):
            for i, r in enumerate(regs): a(f"v_mov_b32 v{tmp+i}, v{r}")
            for i, r in enumerate(regs): a(f"{sw} v{r}, v{tmp+i}")
            for i, r in enumerate(regs): a(f"v_max_f32 v{r}, v{r}, v{tmp+i}")
    def row_max(par, dst):
        for u in range(4):
            b = s_(par, u, 0)
            a(f"v_max3_f32 v{dst[u]}, v{b}, v{b+1}, v{b+2}")
            a(f"v_max3_f32 v{TE+u}, v{b+3}, v{b+4}, v{b+5}")
        for u in range(4):
            b = s_(par, u, 0)
            a(f"v_max3_f32 v{dst[u]}, v{dst[u]}, v{b+6}, v{b+7}")
        for u in range(4): a(f"v_max_f32 v{dst[u]}, v{dst[u]}, v{TE+u}")
        quad_max(dst, TE)
        for u in range(4): a(f"v_add_f32 v{dst[u]}, {hex(OFFS)}, v{dst[u]}")
    def fin_items(us, sCTX, scale, T):
        its = []; n = 0
        for ui, u in enumerate(us):
            for dk in range(4):
                pk = PKR + (n % 4) * 4
                for j in range(4):
                    r = o_(u, 2 * dk + (j >> 1)) + (j & 1) * 2
                    t = T + (j % 4) * 2
                    its.append(I(f"v_accvgpr_read_b32 v{t}, a{r}", 5))
                    its.append(I(f"v_accvgpr_read_b32 v{t+1}, a{r+1}", 5))
                    its.append(I(f"v_mul_f32 v{t}, v{t}, v{scale[ui]}"))
                    its.append(I(f"v_mul_f32 v{t+1}, v{t+1}, v{scale[ui]}"))
                    its.append(I(f"v_cvt_pk_bf16_f32 v{pk+j}, v{t}, v{t+1}", 5))
                its.append(mk.VM(f"buffer_store_dwordx4 v[{pk}:{pk+3}], v{vST[ui]}, s[{sWS}:{sWS+3}], s{sCTX} offen offset:{dk*1024} sc1", "st"))
                n += 1
        return its

    for f in range(NPRE): kread(0, f).fn()
    for u in range(4):
        for dk in range(4):
            if (u, dk) in qearly: continue
            for j in range(4): a(qcvt(u, dk, j))
    a(zero16(f"v[{NM}:{NM+15}]")); a(zero16(f"v[{NM+16}:{NM+31}]"))
    for r in range(4): a(f"v_cmp_gt_i32 s[{sM[r]}:{sM[r]+1}], {r}, v{vDG}")
    a(f"""
s_add_u32 s{sKSRC}, s{sKSRC}, 32768
s_add_u32 s{sVSRC}, s{sVSRC}, 16384
s_lshl_b32 s{sOFF}, s{sI}, 15
s_sub_u32 s{sOFF}, {15*16384}, s{sOFF}    ; T tiles
s_add_u32 s{sT0}, s{sKSRC}, {15*16384}    ; tile D+T = 17
""")
    for u in range(2):
        for dk in range(4):
            a.lg(f"ds_write_b128 v{vQX}, v[{q(u,dk)}:{q(u,dk)+3}] offset:{(u*4+dk)*1024}", "qx")
    a.stamp(4)
    for it in mask_items(): it.fn()
    B = Body(32)
    qk_mfma(B, 0, 0)
    for f in range(NPRE, 8): B.put(4 * (f - NPRE), kread(0, f))
    for f in range(NPRE): B.put(8 + 4 * f, kread(1, f))
    B.spread(tile_dma(sT0, (sW4, 0x18000), "kd") + tile_dma(sT0, (sW4, 0x8000), "kd", 16384), 1, 25)
    put_mask(B, 26)
    if CH == 2:
        B.stream([I(f"s_lshl_b32 s{sCW}, s2, 2"), I(f"s_add_u32 s{sCW}, s{sCW}, s{sWAVE}"), I(f"s_mul_i32 s{sCC}, s{sCW}, 6144"),
                  I(f"s_add_u32 s{sCC}, s{sCC}, {PART}"), I(f"s_add_u32 s{sCE}, s{sCC}, 6144"), I(f"s_lshl_b32 s59, s{sCW}, 9"),
                  I(f"s_lshl_b32 s{sCW}, s{sCW}, 12"), I(f"v_and_b32 v{vX16}, 3, v{vL}"), I(f"v_lshlrev_b32 v{vX16}, 7, v{vX16}"),
                  mk.VM(f"buffer_load_dword v{vT2}, v{vX16}, s[92:95], s59 offen", "warm"), I(f"v_min_u32 v{vX16}, 0x100, v{vX16}")]
                 + ([I(f"s_lshr_b32 s{sCW}, s2, 3"), I(f"s_lshl_b32 s{sCW}, s{sCW}, 2"), I(f"s_add_u32 s{sCW}, s{sCW}, s{sWAVE}"), I(f"s_lshl_b32 s{sCW}, s{sCW}, 13"),
                     I(f"s_and_b32 s59, s2, 6"), I(f"s_lshl_b32 s59, s59, 19"), I(f"s_add_u32 s{sCW}, s{sCW}, s59"),
                     I(f"v_min_u32 v{vX16}, 4, v{vL}"), I(f"v_lshlrev_b32 v{vX16}, 7, v{vX16}")] if L2W == 3 else [])
                 + [I(f"v_accvgpr_write_b32 a{236+r}, -1") for r in range(4)], 1, 31)
    B.emit(a)
    for f in range(NPRE, 8): kread(1, f).fn()
    togK().fn()
    a("s_nop 4")
    DE = [D, D + 2, F, F + 2]
    row_max(0, DE)
    for u in range(4):
        a(f"v_mov_b32 v{M+u}, v{DE[u]}")
        for r in range(0, 8, 2):
            a(f"v_pk_add_f32 v[{nm(u,0)+r}:{nm(u,0)+r+1}], v[{nm(u,0)+r}:{nm(u,0)+r+1}], v[{DE[u]}:{DE[u]+1}] op_sel_hi:[1,0] neg_lo:[0,1] neg_hi:[0,1]")
    for k in range(0, 32, 2):
        a(f"v_pk_add_f32 v[{S+k}:{S+k+1}], v[{S+k}:{S+k+1}], v[{DE[k>>3]}:{DE[k>>3]+1}] op_sel_hi:[1,0] neg_lo:[0,1] neg_hi:[0,1]")
    B = Body(32)
    qk_mfma(B, 0, 1, 8)
    put_bar(B, 1)
    for f in range(NPRE): B.put(8 + 4 * f, kread(0, f))
    softmax_tail(B, 23, 0, check=False)
    B.spread(softmax_items(0), 0, 23)
    put_mask(B, 25)
    B.stream(kv_dmas(sKSRC, sKD, False), 23, 32)
    B.emit(a)
    a("s_nop 3")
    for it in early(1): it.fn()
    a.stamp(5); a.stamp(16, real=True)
    LD = a.newlabel("K2_dual")
    a(f"""
s_lshl_b32 s{sCNT}, s{sI}, 1
s_add_u32 s{sCNT}, s{sCNT}, 1
""")
    a(f".p2align {AL}")
    a.label(LD)
    loop_emit(a, lambda: body_emit(False))
    a(f"""
s_cmp_lg_u32 s{sCNT}, 0
s_cbranch_scc1 {LD}
""")
    a.stamp(6); a.stamp(17, real=True)
    B = Body(128)
    pv_mfma(B, 0, 0); pv_mfma(B, 32, 1, 2, "b"); qk_mfma(B, 64, 0, 4); qk_mfma(B, 96, 1, 4)
    for f in range(NPRE): vread(0, f).fn()
    for f in range(NPRE, 8): B.put(3 * (f - NPRE), vread(0, f))
    for f in range(7): B.put(4 * f + 4, vread(1, f))
    B.put(31, vread(1, 7))
    softmax_tail(B, 21, 1)
    B.spread(softmax_items(1, True), 0, 21)
    def sw1():
        a.lg(f"ds_write_b64 v{vMX}, v[{M}:{M+1}]", "mx")
        a(f"v_xor_b32 v{vMX}, 512, v{vMX}")
        a(f"v_xor_b32 v{vQX}, 0x2000, v{vQX}")
        a(f"v_rcp_f32 v{F}, v{lc(1,2)}")
        a(f"v_rcp_f32 v{F+1}, v{lc(1,3)}")
    B.put(32, Item(sw1, 28))
    B.put(33, togV())
    B.put(35, I(f"v_mul_f32 v{F}, {hex(f2u(2.0 ** -VEXP))}, v{F}")); B.put(35, I(f"v_mul_f32 v{F+1}, {hex(f2u(2.0 ** -VEXP))}, v{F+1}"))
    def sw2():
        a(f"""
s_xor_b32 s{sDGB}, s{sDGA}, 1
s_mov_b32 s{sEVB}, s{sDGB}
s_min_u32 s{sDMIN}, s{sEVA}, s{sEVB}
s_sub_u32 s{sKAP}, s{sKAP}, 1
s_cmp_eq_u32 s{sP}, 1
s_cselect_b32 s{sKAP}, 33, s{sKAP}
s_lshl_b32 s{sT0}, s{sP}, 15
v_add_u32 v{vK}, s{sT0}, v{vK}
v_add_u32 v{vV}, s{sT0}, v{vV}
""")
    B.put(34, Item(sw2, 28))
    def sw3():
        a("s_waitcnt lgkmcnt(0)"); a.lgq = []
        a("s_barrier")
        a.lg(f"ds_read_b64 v[{M+2}:{M+3}], v{vMX}", "mx")
    B.put(36, Item(sw3, 12))
    for k in range(8):
        u, dk = k >> 2, k & 3
        B.put(37 + k, mk.LG(f"ds_read_b128 v[{q(2+u,dk)}:{q(2+u,dk)+3}], v{vQX} offset:{(u*4+dk)*1024}", "qx"))
    for f in range(8): B.put(46 + 2 * f, kread(0, f))
    B.put(45, mk.WL("mx"), 3)
    nmi = []
    for u in (2, 3):
        for r in range(8): nmi.append(I(f"v_sub_f32 v{nm(u,0)+r}, 0, v{M+u}"))
        nmi.append(I(f"v_mov_b32 v{lc(1,u)}, 0"))
        nmi.append(I(f"v_accvgpr_write_b32 a{LA+4*u}, 0", 5))
    B.spread(nmi, 46, 56)
    put_mask(B, 60)
    put_mask(B, 92)
    for f in range(8): B.put(68 + 4 * f, kread(1, f))
    B.put(97, togK())
    put_bar(B, 104)
    for f in range(NPRE): B.put(106 + 4 * f, kread(0, f)) if 106 + 4 * f < 128 else None
    B.spread(kv_dmas(sVSRC, sVD, True), 22, 56)
    B.spread(fin_items([2, 3], sCTXB, [F, F + 1], S + 32), 56, 95)
    zs = [Item(lambda k=k: a(zero16(f"a[{o_(2,0)+k*16}:{o_(2,0)+k*16+15}]")), 32, "X") for k in range(4)]
    for k in range(4): B.put(96 + k, zs[k])
    softmax_tail(B, 117, 0)
    B.spread(softmax_items(0), 100, 117)
    put_mask(B, 121)
    B.stream(kv_dmas(sKSRC, sKD, True), 108, 127)
    B.emit(a)
    a("s_nop 2")
    for it in early(1): it.fn()
    a.stamp(7); a.stamp(18, real=True)
    LS1 = a.newlabel("K2_single"); LS2 = a.newlabel("K2_sdone")
    if CH == 0:
        for it in chores(): it.fn()
    if PROG:
        a(f"""
s_lshl_b32 s{sF3}, s2, 7
s_add_u32 s{sF3}, s{sF3}, {FLAGS}
s_cmp_eq_u32 s{sWAVE}, 0
s_cselect_b32 s{sF3}, s{sF3}, s{sWS+2}
""")
    a(f"""
s_lshl_b32 s{sCNT}, s{sI}, 1
s_sub_u32 s{sCNT}, 14, s{sCNT}
s_cmp_eq_u32 s{sCNT}, 0
s_cbranch_scc1 {LS2}
""")
    st = (list(a.vmq), list(a.lgq))
    a(f".p2align {AL}")
    a.label(LS1)
    loop_emit(a, lambda: body_emit(True))
    a(f"""
s_cmp_lg_u32 s{sCNT}, 0
s_cbranch_scc1 {LS1}
""")
    a.label(LS2)
    assert a.diag or st[1] == a.lgq, (st[1], a.lgq)
    a.vmq = ["kv"]
    a.stamp(8); a.stamp(20, real=True)
    BQ, BZ = 220, 212
    a(f"""
s_mul_i32 s{sB0}, s{sH}, {8 * BKV_P}
s_add_u32 s{sB0}, s{sB0}, {BKV}
s_lshl_b32 s{sB1}, s{sH}, 17
s_lshl_b32 s{sT2}, s{sI}, 14
s_add_u32 s{sB1}, s{sB1}, s{sT2}
s_add_u32 s{sB1}, s{sB1}, s{sW4}
s_add_u32 s{sB1}, s{sB1}, {PHIQ}
s_lshl_b32 s{sT0}, s{sWAVE}, 15
v_add_u32 v{vK}, s{sT0}, v{vL16}
v_lshrrev_b32 v{vT1}, 4, v{vL}
v_and_b32 v{vMX}, 7, v{vL}
v_mul_u32_u24 v{vMX}, {BKV_P}, v{vMX}
v_lshl_add_u32 v{vMX}, v{vT1}, 4, v{vMX}
v_xor_b32 v{vQX}, 0x2000, v{vQX}
""")
    B = Body(64)
    pv_mfma(B, 0, 0); pv_mfma(B, 32, 1, 2, "b")
    for f in range(NPRE): vread(0, f).fn()
    for f in range(NPRE, 8): B.put(3 * (f - NPRE), vread(0, f))
    for f in range(7): B.put(4 * f + 4, vread(1, f))
    B.put(31, vread(1, 7))
    softmax_tail(B, 21, 1)
    bl = []
    if fused3 and L2W != 1: bl += code_prefetch(a, "K3_fused_entry", "K3_code_end", 96, sT0, sWAVE, vL, vX16, vT2)
    if L2W == 1:
        a(f"""
s_lshr_b32 s{sT0}, s2, 3
s_lshl_b32 s{sT0}, s{sT0}, 2
s_add_u32 s{sT0}, s{sT0}, s{sWAVE}        ; 0..127
s_lshl_b32 s{sKSRC}, s{sT0}, 13
s_and_b32 s{sT1}, s2, 6
s_lshl_b32 s{sT1}, s{sT1}, 19
s_add_u32 s{sKSRC}, s{sKSRC}, s{sT1}
s_lshl_b32 s{sVSRC}, s{sT0}, 12
v_lshlrev_b32 v{vDG}, 7, v{vL}
v_and_b32 v{vBIG}, 0xfff, v{vDG}
""")
        bl.append(mk.VM(f"buffer_load_dword v{vT2}, v{vDG}, s[88:91], s{sKSRC} offen", "l2w"))
        bl.append(mk.VM(f"buffer_load_dword v{vT2}, v{vBIG}, s[92:95], s{sVSRC} offen", "l2w"))
        if fused3: bl += code_prefetch(a, "K3_fused_entry", "K3_code_end", 96, sT0, sWAVE, vL, vX16, vT2)
    for ft in range(2):
        bl.append(mk.VM(f"buffer_load_dwordx4 a[{BZ+ft*4}:{BZ+ft*4+3}], v{vMX}, s[{sWS}:{sWS+3}], s{sB0} offen offset:{2048+ft*64}{SC}", "bl"))
    for t in range(4):
        bl.append(mk.VM(f"buffer_load_dwordx4 a[{BQ+4*t}:{BQ+4*t+3}], v{vL16}, s[{sWS}:{sWS+3}], s{sB1} offen offset:{t*1024}{SC}", "bl"))
    for pp in range(8):
        for ft in range(2):
            bl.append(mk.VM(f"buffer_load_dwordx4 v[{Q+pp*8+ft*4}:{Q+pp*8+ft*4+3}], v{vL16}, s[{sWS}:{sWS+3}], s{sB0} offen offset:{ft*1024}{SC}", "bl"))
        bl.append(I(f"s_add_u32 s{sB0}, s{sB0}, {BKV_P}"))
    B.spread(bl, 0, 60)
    B.spread(softmax_items(1, True), 0, 21)
    def st1():
        a(f"v_mov_b32 v{D}, v{M+2}")
        a(f"v_mov_b32 v{D+1}, v{M+3}")
        a(f"v_mov_b32 v{D+2}, v{lc(1,2)}")
        a(f"v_mov_b32 v{D+3}, v{lc(1,3)}")
        a.lg(f"ds_write_b128 v{vQX}, v[{D}:{D+3}]", "sx")
        a(f"v_xor_b32 v{vQX}, 0x2000, v{vQX}")
    B.put(32, Item(st1, 24))
    def st2():
        a.wait_vm("kv", always=True)
        a("s_waitcnt lgkmcnt(0)"); a.lgq = []
        a("s_barrier")
        a.lg(f"ds_read_b128 v[{D}:{D+3}], v{vQX}", "sx")
        if PROG: f3_item().fn()
    B.put(38, Item(st2, 12))
    for f in range(8):
        for ub in range(2):
            o = o_(2 + ub, f)
            B.put(min(32 + 2 * f + ub + 10, 63), Item(lambda o=o, f=f, ub=ub: a.lg(f"ds_write_b128 v{vK}, a[{o}:{o+3}] offset:{(ub*8+f)*1024}", "ox"), 8))
    FA = [F, F + 2]; FB = [TE, TE + 2]
    def st3():
        a.wait_lg("sx", always=True)
        for u in range(2):
            a(f"v_max_f32 v{vT1}, v{M+u}, v{D+u}")
            a(f"v_sub_f32 v{FA[u]}, v{M+u}, v{vT1}")
            a(f"v_sub_f32 v{FB[u]}, v{D+u}, v{vT1}")
        for u in range(2):
            a(f"v_exp_f32 v{FA[u]}, v{FA[u]}")
            a(f"v_exp_f32 v{FB[u]}, v{FB[u]}")
    def st4():
        for u in range(2):
            a(f"v_mul_f32 v{lc(1,u)}, v{lc(1,u)}, v{FA[u]}")
            a(f"v_fmac_f32 v{lc(1,u)}, v{D+2+u}, v{FB[u]}")
        for u in range(2): a(f"v_rcp_f32 v{lc(1,u)}, v{lc(1,u)}")
    def st5():
        for u in range(2): a(f"v_mul_f32 v{lc(1,u)}, {hex(f2u(2.0 ** -VEXP))}, v{lc(1,u)}")
        for u in range(2):
            a(f"v_mul_f32 v{FA[u]}, v{FA[u]}, v{lc(1,u)}")
            a(f"v_mul_f32 v{FB[u]}, v{FB[u]}, v{lc(1,u)}")
    B.put(46, Item(st3, 60)); B.put(50, Item(st4, 32)); B.put(53, Item(st5, 16))
    B.emit(a)
    a(f"""
v_xor_b32 v{vK}, 0x8000, v{vK}
s_waitcnt lgkmcnt(0)
s_barrier
""")
    a.lgq = []
    OB = S
    for r in range(15): a.lg(f"ds_read_b128 v[{OB+r*4}:{OB+r*4+3}], v{vK} offset:{r*1024}", ("ob", r))
    T = P
    n = 0
    for u in range(2):
        for r in range(32): a(f"v_accvgpr_read_b32 v{T+r}, a{o_(u,0)+r}")
        if u == 0: a.lg(f"ds_read_b128 v[{OB+60}:{OB+63}], v{vK} offset:{15*1024}", ("ob", 15))
        for r in range(0, 32, 2):
            a(f"v_pk_mul_f32 v[{T+r}:{T+r+1}], v[{T+r}:{T+r+1}], v[{FA[u]}:{FA[u]+1}] op_sel_hi:[1,0]")
        a.wait_lg(("ob", u * 8 + 7))
        for dk in range(4):
            pk = PKR + (n % 4) * 4
            for j in range(4):
                r = dk * 8 + j * 2
                a(f"v_pk_fma_f32 v[{T+r}:{T+r+1}], v[{OB+u*32+r}:{OB+u*32+r+1}], v[{FB[u]}:{FB[u]+1}], v[{T+r}:{T+r+1}] op_sel_hi:[1,0,1]")
            for j in range(4):
                r = dk * 8 + j * 2
                a(f"v_cvt_pk_bf16_f32 v{pk+j}, v{T+r}, v{T+r+1}")
            a.vm(f"buffer_store_dwordx4 v[{pk}:{pk+3}], v{vST[u]}, s[{sWS}:{sWS+3}], s{sCTXA} offen offset:{dk*1024} {FST}", "st")
            n += 1
    a.stamp(9)
    a.wait_vm("bl")
    ZS = P + 16
    for r in range(8): a(f"v_accvgpr_read_b32 v{ZS+r}, a{BZ+r}")
    for step in (32, 16, 8):
        for r in range(0, step, 2): a(f"v_pk_add_f32 v[{Q+r}:{Q+r+1}], v[{Q+r}:{Q+r+1}], v[{Q+step+r}:{Q+step+r+1}]")
    for dpp in ("quad_perm:[1,0,3,2]", "quad_perm:[2,3,0,1]", "row_half_mirror"):
        for r in range(8): a(f"v_add_f32_dpp v{ZS+r}, v{ZS+r}, v{ZS+r} {dpp} row_mask:0xf bank_mask:0xf")
    KVF, ZF = Q + 8, Q + 12
    for j in range(4):
        a(f"v_cvt_pk_bf16_f32 v{KVF+j}, v{Q+2*j}, v{Q+2*j+1}")
        a(f"v_cvt_pk_bf16_f32 v{ZF+j}, v{ZS+2*j}, v{ZS+2*j+1}")
    a("s_nop 1")
    NUM, DEN = Q + 16, Q + 32
    for t in range(4):
        a(f"{MF} v[{NUM+t*4}:{NUM+t*4+3}], v[{KVF}:{KVF+3}], a[{BQ+t*4}:{BQ+t*4+3}], 0")
        a(f"{MF} v[{DEN+t*4}:{DEN+t*4+3}], v[{ZF}:{ZF+3}], a[{BQ+t*4}:{BQ+t*4+3}], 0")
    a(f"""
s_lshl_b32 s{sT0}, s{sI}, 2
s_add_u32 s{sT0}, s{sT0}, s{sWAVE}
s_mul_i32 s{sT0}, s{sT0}, {4*144*1024}
s_lshr_b32 s{sT1}, s{sH}, 1
s_lshl_b32 s{sT1}, s{sT1}, 10
s_add_u32 s{sT0}, s{sT0}, s{sT1}
s_and_b32 s{sT2}, s{sH}, 1
s_lshl_b32 s{sT2}, s{sT2}, 3
s_add_u32 s{sT0}, s{sT0}, s{sT2}
s_add_u32 s{sT0}, s{sT0}, {CTX + 128*1024}
""")
    for t in range(4): a(f"v_add_f32 v{TE+t}, {hex(f2u(1e-6))}, v{DEN+t*4}")
    for t in range(4): a(f"v_rcp_f32 v{TE+t}, v{TE+t}")
    for t in range(4):
        for r in range(4): a(f"v_mul_f32 v{NUM+t*4+r}, v{NUM+t*4+r}, v{TE+t}")
        a(f"v_cvt_pk_bf16_f32 v{NUM+t*4}, v{NUM+t*4}, v{NUM+t*4+1}")
        a(f"v_cvt_pk_bf16_f32 v{NUM+t*4+1}, v{NUM+t*4+2}, v{NUM+t*4+3}")
        a.vm(f"buffer_store_dwordx2 v[{NUM+t*4}:{NUM+t*4+1}], v{vL16}, s[{sWS}:{sWS+3}], s{sT0} offen {OST}", "ost")
        a(f"s_add_u32 s{sT0}, s{sT0}, {144*1024}")
    a.stamp(12)
    if a.diag and not fused3: a("s_waitcnt vmcnt(0)")
    a.stamp(23); a.stamp(10, real=True)
    a.stamp_flush(sWS, sWAVE, 24, DIAG, kidx=1)
    a.k2_exit = list(a.vmq)
    if fused3:
        a(f"""
s_lshl_b32 s99, s{sH}, 3
s_add_u32 s99, s99, s{sI}
s_lshl_b32 s99, s99, 7
s_branch K3_fused_entry
""")
    a.label(END)
    a("s_endpgm")
    a.flush_stubs()

    a.label(LMASK)
    a(f"s_add_u32 s{sRET}, s{sRET}, 4")
    a(f"s_addc_u32 s{sRET+1}, s{sRET+1}, 0")
    for g, sD, sE in ((0, sDGA, sEVA), (1, sDGB, sEVB)):
        L1 = a.newlabel("K2_m1"); L2 = a.newlabel("K2_m2")
        a(f"""
s_cmp_lt_u32 s{sKAP}, s{sE}
s_cbranch_scc1 {L2}
s_cmp_eq_u32 s{sKAP}, s{sD}
s_cbranch_scc1 {L1}
s_mov_b32 s{sE}, 0x7fffffff
""")
        for r in range(0, 16, 2): a(f"v_pk_mov_b32 v[{nm(2*g,0)+r}:{nm(2*g,0)+r+1}], v[{vBIG}:{vBIG+1}], v[{vBIG}:{vBIG+1}] op_sel:[0,0]")
        a(f"s_branch {L2}")
        a.label(L1)
        a(f"s_add_u32 s{sE}, s{sD}, 1")
        for r in range(0, 4, 2): a(f"v_pk_mov_b32 v[{nm(2*g,1)+r}:{nm(2*g,1)+r+1}], v[{vBIG}:{vBIG+1}], v[{vBIG}:{vBIG+1}] op_sel:[0,0]")
        for r in range(4):
            a(f"v_cndmask_b32 v{nm(2*g,0)+r}, v{nm(2*g,0)+r}, v{vBIG}, s[{sM[r]}:{sM[r]+1}]")
            a(f"v_cndmask_b32 v{nm(2*g+1,1)+r}, v{nm(2*g+1,1)+r}, v{vBIG}, s[{sM[r]}:{sM[r]+1}]")
        a.label(L2)
    a(f"s_min_u32 s{sDMIN}, s{sEVA}, s{sEVB}")
    a(f"s_setpc_b64 s[{sRET}:{sRET+1}]")
    def adjust(par):
        a("s_nop 15")
        DD = [D + u for u in range(4)]
        row_max(par, DD)
        for u in range(4): a(f"v_max_f32 v{D+u}, 0, v{D+u}")
        for u in range(4): a(f"v_exp_f32 v{F+u}, -v{D+u}")
        a("s_nop 0")
        for u in range(4):
            a(f"v_mul_f32 v{lc(par^1,u)}, v{lc(par^1,u)}, v{F+u}")
            a(f"v_accvgpr_write_b32 a{LA+4*u}, v{lc(par^1,u)}")
            for r in range(32):
                t = TE + r % 8
                a(f"v_accvgpr_read_b32 v{t}, a{o_(u,0)+r}")
                a(f"v_mul_f32 v{t}, v{t}, v{F+u}")
                a(f"v_accvgpr_write_b32 a{o_(u,0)+r}, v{t}")
        for u in range(4):
            a(f"v_add_f32 v{M+u}, v{M+u}, v{D+u}")
            for r in range(8):
                a(f"v_sub_f32 v{s_(0,u,0)+r}, v{s_(0,u,0)+r}, v{D+u}")
                a(f"v_sub_f32 v{s_(1,u,0)+r}, v{s_(1,u,0)+r}, v{D+u}")
                a(f"v_sub_f32 v{nm(u,0)+r}, v{nm(u,0)+r}, v{D+u}")
        for it in softmax_items(par): it.fn()
        a("s_nop 1"); lmfma(par, 3).fn(); a("s_nop 7")
        lread(par, 2).fn(); lread(par, 3).fn()
        for it in early(par ^ 1): it.fn()
        a("s_nop 1")
        a(f"s_setpc_b64 s[{sRET}:{sRET+1}]")
    for par in range(2):
        a.label(LADJ[par]); adjust(par)
    a.label("K2_code_end")
    a("s_endpgm")
```

```python
from asmlib import Asm
from sched import *
from common import *

def gen_k3m(a, L2W=0, PROG=0, BP=48, FAST=2, SPLITF=1, RS=4, OWN=1):
    sWO, sWB, sWS, sOUT = 4, 8, 12, 16
    (sWAVE, sRB, sCB, sKQ, sT0, sT1, sCNT, sCSRC, sWSRC, sW4, sOB, sPSRC, sOBB, sRH, sCH, sBC, sBW) = range(24, 41)
    sPD = [41, 42, 43]
    sIX, sHALF, sJX, sCB0, sWB0, sAT = 46, 47, 48, 49, 52, 53
    ACC = 0
    ACB = 64
    FR = 80
    vL16, vC1, vC2, vL, vT0, vT1, vT2, vO, vCR, vCR2 = 191, 192, 193, 194, 195, 196, 197, 198, 199, 200
    vWD = [201, 202, 203, 204]
    vZ = 205
    vWR = [144, 145, 146, 147]; vWR2 = [148, 149, 150, 151]
    vBD = [152, 153, 154, 155]; vBC = [156, 157, 158]; vBW = [159, 160, 161, 162, 163, 164]
    RX = 166
    mk = Mk(a); I = mk.I
    a.label("K3_fused_entry")
    a.vmq = list(a.k2_exit) if SPLITF else []; a.lgq = []
    a(f"v_mov_b32 v{vL}, v215")
    a(f"s_mov_b32 s{sWAVE}, s16")
    a.stamp(14)
    a(f"""
s_load_dwordx2 s[50:51], s[0:1], 80     ; out
""")
    if OWN: a(f"""
s_lshr_b32 s{sCB}, s2, 6
s_bfe_u32 s{sRB}, s2, 0x30003
s_sub_u32 s{sT0}, 15, s{sRB}
s_and_b32 s{sHALF}, s2, 1
s_cselect_b32 s{sRB}, s{sRB}, s{sT0}
s_lshl_b32 s{sHALF}, s{sHALF}, 3
s_lshl_b32 s{sIX}, s{sCB}, 1
""")
    else: a(f"""
s_lshr_b32 s{sT1}, s2, 3                ; q
s_and_b32 s{sCB}, s{sT1}, 3
s_lshr_b32 s{sRB}, s{sT1}, 2
s_and_b32 s{sT0}, s2, 1
s_xor_b32 s{sT0}, s{sT0}, {1 if PROG else 0}
s_lshl_b32 s{sT0}, s{sT0}, 3
s_add_u32 s{sRB}, s{sRB}, s{sT0}
""")
    a(f"""
s_bfe_u32 s{sKQ}, s2, 0x20001           ; K quarter
s_lshl_b32 s{sWSRC}, s{sKQ}, 20
s_lshl_b32 s{sT0}, s{sWAVE}, 14
s_add_u32 s{sWSRC}, s{sWSRC}, s{sT0}
s_lshl_b32 s{sT0}, s{sCB}, 8
s_add_u32 s{sWSRC}, s{sWSRC}, s{sT0}
s_lshl_b32 s{sW4}, s{sWAVE}, 12
s_mov_b32 s{sWO}, s88
s_mov_b32 s{sWO+1}, s89
s_mov_b32 s{sWO+2}, 0x400000
s_mov_b32 s{sWO+3}, 0x20000
v_lshrrev_b32 v{vT2}, 4, v{vL}
v_lshlrev_b32 v{vT0}, 10, v{vT2}
v_and_b32 v{vT1}, 15, v{vL}
v_lshlrev_b32 v{vT2}, 1, v{vT2}
v_xor_b32 v{vT1}, v{vT1}, v{vT2}
v_lshl_add_u32 v{vWD[0]}, v{vT1}, 4, v{vT0}
v_xor_b32 v{vT1}, 8, v{vT1}
v_lshl_add_u32 v{vWD[1]}, v{vT1}, 4, v{vT0}
v_add_u32 v{vWD[1]}, 3072, v{vWD[1]}
v_add_u32 v{vWD[2]}, 6144, v{vWD[0]}
v_add_u32 v{vWD[3]}, 6144, v{vWD[1]}
s_barrier
""")
    a.stamp(0); a.stamp(1, real=True)
    def addr_c(n=None):
        if not OWN: return []
        its = [I(f"s_add_u32 s{sJX}, s{sIX}, {n}"), I(f"s_and_b32 s{sJX}, s{sJX}, 7"), I(f"s_or_b32 s{sJX}, s{sJX}, s{sHALF}")] if n is not None else []
        return its + [I(f"s_lshl_b32 s{sAT}, s{sJX}, 11"), I(f"s_add_u32 s{sCSRC}, s{sCB0}, s{sAT}")]
    def addr_w(n=None):
        if not OWN: return []
        its = [I(f"s_add_u32 s{sJX}, s{sIX}, {n}"), I(f"s_and_b32 s{sJX}, s{sJX}, 7"), I(f"s_or_b32 s{sJX}, s{sJX}, s{sHALF}")] if n is not None else []
        return its + [I(f"s_lshl_b32 s{sAT}, s{sJX}, 16"), I(f"s_add_u32 s{sWSRC}, s{sWB0}, s{sAT}")]
    def a_dma_c(slot, n=None):
        its = [I(f"s_add_u32 m0, s{sW4}, {slot * 32768}")] + (addr_c(slot if n is None else n) or [I("s_nop 0")])
        for i in range(4):
            its.append(mk.VM(f"buffer_load_dwordx4 v{vC1 if i < 2 else vC2}, s[{sWS}:{sWS+3}], s{sCSRC} offen offset:{i*1024} sc1 lds", ("st", slot)))
        return its + ([] if OWN else [I(f"s_add_u32 s{sCSRC}, s{sCSRC}, 2048")])
    def a_dma_w(slot, tag=None, same=False):
        its = [I(f"s_add_u32 m0, s{sW4}, {slot * 32768 + 16384}")] + (addr_w(None if same else slot) or [I("s_nop 0")])
        for i in range(4):
            its.append(mk.VM(f"buffer_load_dwordx4 v{vWD[i]}, s[{sWO}:{sWO+3}], s{sWSRC} offen offset:{i*1024} lds", tag or ("st", slot)))
        return its + ([] if OWN else [I(f"s_add_u32 s{sWSRC}, s{sWSRC}, 0x10000")])
    def a_dma(slot, n=None):
        if OWN: return a_dma_c(slot, n) + a_dma_w(slot, same=True)
        c = a_dma_c(slot); w = a_dma_w(slot)
        return c[:-1] + [w[0], c[-1]] + w[2:]
    if OWN: a(f"s_mov_b32 s{sWB0}, s{sWSRC}")
    def b_dma(slot):
        its = [I(f"s_add_u32 m0, s{sW4}, {slot * 32768}"), I("s_nop 0")]
        for i in range(4):
            its.append(mk.VM(f"buffer_load_dwordx4 v{vL16}, s[{sWS}:{sWS+3}], s{sBC} offen offset:{i*1024} sc1 lds", ("st", slot)))
        its += [I(f"s_add_u32 m0, s{sW4}, {slot * 32768 + 16384}"), I(f"s_add_u32 s{sBC}, s{sBC}, 4096")]
        for i in range(4):
            its.append(mk.VM(f"buffer_load_dwordx4 v{vBD[i]}, s[{sWB}:{sWB+3}], s{sBW} offen offset:{i*1024} lds", ("st", slot)))
        its.append(I(f"s_add_u32 s{sBW}, s{sBW}, 0x20000"))
        return its
    for it in a_dma_w(0, "w0") + ([] if FAST else a_dma_w(1) + a_dma_w(2)): it.fn()
    a(f"""
s_mov_b32 s{sWB}, s92
s_mov_b32 s{sWB+1}, s93
s_mov_b32 s{sWB+2}, 0x80000
s_mov_b32 s{sWB+3}, 0x20000
s_mov_b32 s{sOUT+2}, 0x400000
s_mov_b32 s{sOUT+3}, 0x20000
s_lshr_b32 s{sRH}, s{sWAVE}, 1
s_and_b32 s{sCH}, s{sWAVE}, 1
v_lshlrev_b32 v{vL16}, 4, v{vL}
s_lshl_b32 s{sT0}, s{sRB}, 1
s_add_u32 s{sT0}, s{sT0}, s{sRH}
s_mul_i32 s{sCSRC}, s{sT0}, {4*144*1024}
s_lshl_b32 s{sT0}, s{sKQ}, 15
s_add_u32 s{sCSRC}, s{sCSRC}, s{sT0}
s_add_u32 s{sCSRC}, s{sCSRC}, {CTX - 2048}
s_mov_b32 s{sCB0}, s{sCSRC}
s_lshl_b32 s{sT0}, s{sCH}, 1
s_add_u32 s{sT0}, s{sT0}, s{sKQ}
s_and_b32 s{sT1}, s{sT0}, 3
s_mul_i32 s{sT1}, s{sT1}, {144*1024}
s_add_u32 s{sT1}, s{sT1}, 2048
v_add_u32 v{vC1}, s{sT1}, v{vL16}
s_add_u32 s{sT0}, s{sT0}, 1
s_and_b32 s{sT1}, s{sT0}, 3
s_mul_i32 s{sT1}, s{sT1}, {144*1024}
v_add_u32 v{vC2}, s{sT1}, v{vL16}
""")
    def setup_rest():
        a(f"""
s_lshl_b32 s{sT0}, s{sRH}, 13
v_add_u32 v{vCR}, s{sT0}, v{vL16}
v_add_u32 v{vCR2}, 0x10000, v{vCR}
v_mov_b32 v{vBC[0]}, v{vCR}
v_mov_b32 v{vBC[1]}, v{vCR2}
v_add_u32 v{vBC[2]}, 0x10000, v{vCR2}
v_lshrrev_b32 v{vT0}, 4, v{vL}              ; kq
v_bfe_u32 v{vT1}, v{vL}, 2, 2               ; r
v_lshl_add_u32 v{vT2}, v{vT0}, 2, v{vT1}    ; kq*4+r
v_and_b32 v{vT0}, 3, v{vL}
v_lshlrev_b32 v{vT0}, 3, v{vT0}
v_add_u32 v{vT0}, 16384, v{vT0}             ; c4*8 + W part
v_lshl_add_u32 v{vZ}, v{vT2}, 8, v{vT0}
v_and_b32 v{vT1}, 7, v{vT2}
s_lshl_b32 s{sT0}, s{sCH}, 2
v_xor_b32 v{vT1}, s{sT0}, v{vT1}
""")
        for mt in range(4):
            a(f"v_xor_b32 v{vO}, {mt}, v{vT1}")
            a(f"v_lshl_add_u32 v{vWR[mt]}, v{vO}, 5, v{vZ}")
            a(f"v_add_u32 v{vWR2[mt]}, 0x10000, v{vWR[mt]}")
        a(f"""
v_lshl_add_u32 v{vZ}, v{vT2}, 7, v{vT0}
v_bfe_u32 v{vT1}, v{vT2}, 1, 2
s_lshl_b32 s{sT0}, s{sCH}, 1
v_xor_b32 v{vT1}, s{sT0}, v{vT1}
v_lshl_add_u32 v{vBW[0]}, v{vT1}, 5, v{vZ}
v_xor_b32 v{vT1}, 1, v{vT1}
v_lshl_add_u32 v{vBW[1]}, v{vT1}, 5, v{vZ}
v_add_u32 v{vBW[2]}, 0x10000, v{vBW[0]}
v_add_u32 v{vBW[3]}, 0x10000, v{vBW[1]}
v_add_u32 v{vBW[4]}, 0x20000, v{vBW[0]}
v_add_u32 v{vBW[5]}, 0x20000, v{vBW[1]}
v_lshrrev_b32 v{vT0}, 3, v{vL}
v_lshlrev_b32 v{vT0}, 10, v{vT0}
v_and_b32 v{vT1}, 7, v{vL}
v_lshrrev_b32 v{vT2}, 4, v{vL}
v_lshlrev_b32 v{vT2}, 1, v{vT2}
v_xor_b32 v{vT1}, v{vT1}, v{vT2}
v_lshl_add_u32 v{vBD[0]}, v{vT1}, 4, v{vT0}
v_add_u32 v{vBD[1]}, {7*1024}, v{vBD[0]}
v_add_u32 v{vBD[2]}, {14*1024}, v{vBD[0]}
v_add_u32 v{vBD[3]}, {21*1024}, v{vBD[0]}
v_and_b32 v{vT0}, 15, v{vL}
v_lshlrev_b32 v{vT0}, 11, v{vT0}
v_lshrrev_b32 v{vT1}, 4, v{vL}
v_lshl_add_u32 v{vO}, v{vT1}, 3, v{vT0}
v_mov_b32 v{vZ}, 0
s_lshl_b32 s{sOB}, s{sRB}, 18
s_lshl_b32 s{sT0}, s{sCB}, 8
s_add_u32 s{sOB}, s{sOB}, s{sT0}
s_mov_b32 s{sOBB}, s{sOB}
s_lshl_b32 s{sT0}, s{sRH}, 17
s_add_u32 s{sOB}, s{sOB}, s{sT0}
s_lshl_b32 s{sT0}, s{sKQ}, 15
s_add_u32 s{sOB}, s{sOB}, s{sT0}
s_lshl_b32 s{sT0}, s{sCH}, 7
s_add_u32 s{sOB}, s{sOB}, s{sT0}
s_lshr_b32 s{sT0}, s{sKQ}, 1
s_lshl_b32 s{sT0}, s{sT0}, 17
s_add_u32 s{sOBB}, s{sOBB}, s{sT0}
s_lshl_b32 s{sT0}, s{sRH}, 16
s_add_u32 s{sOBB}, s{sOBB}, s{sT0}
s_and_b32 s{sT0}, s{sKQ}, 1
s_lshl_b32 s{sT0}, s{sT0}, 7
s_add_u32 s{sOBB}, s{sOBB}, s{sT0}
s_lshl_b32 s{sT0}, s{sCH}, 6
s_add_u32 s{sOBB}, s{sOBB}, s{sT0}
s_lshl_b32 s{sT0}, s{sRB}, 3
s_and_b32 s{sT1}, s{sKQ}, 2
s_lshl_b32 s{sT1}, s{sT1}, 1
s_add_u32 s{sT0}, s{sT0}, s{sT1}
s_add_u32 s{sT0}, s{sT0}, s{sWAVE}
s_mul_i32 s{sBC}, s{sT0}, {144*1024}
s_add_u32 s{sBC}, s{sBC}, {CTX + 128*1024}
s_lshl_b32 s{sBW}, s{sWAVE}, 15
s_lshl_b32 s{sT0}, s{sCB}, 8
s_add_u32 s{sBW}, s{sBW}, s{sT0}
s_and_b32 s{sT0}, s{sKQ}, 1
s_lshl_b32 s{sT0}, s{sT0}, 7
s_add_u32 s{sBW}, s{sBW}, s{sT0}
s_lshl_b32 s{sT0}, s2, 2
s_add_u32 s{sT0}, s{sT0}, s{sWAVE}
s_mul_i32 s{sPSRC}, s{sT0}, 6144
s_add_u32 s{sPSRC}, s{sPSRC}, {PART}
""")
        for j in range(1, 4):
            a(f"""
s_sub_u32 s{sT0}, s{sKQ}, {j}
s_and_b32 s{sT0}, s{sT0}, 3
s_sub_u32 s{sT0}, s{sT0}, s{sKQ}
s_mul_i32 s{sT0}, s{sT0}, {2*4*6144}
s_add_u32 s{sPD[j-1]}, s{sPSRC}, s{sT0}
s_add_u32 s{sPD[j-1]}, s{sPD[j-1]}, {(j-1)*2048}
""")
        MF32 = "v_mfma_f32_32x32x16_bf16"
        for k in range(5): a(f"{MF32} v[{k*16}:{k*16+15}], v[236:239], v[236:239], 0")
    if not FAST: setup_rest()
    LS = a.newlabel("K3_in"); LP0 = a.newlabel("K3_inp"); LT = a.newlabel("K3_int")
    vP1, vP2, vP3, vPV, vEXP, vE3, vTWO = 206, 207, 208, 209, 210, 211, 212
    sPO = 44
    def spin(vaddr, back):
        L = a.newlabel("K3_sp"); LP = a.newlabel("K3_spl")
        a.stubs.append(f"""{L}:
s_mov_b32 s45, 0x40000
{LP}:
buffer_load_dword v{vPV}, v{vaddr}, s[{sWS}:{sWS+3}], s{sPO} offen sc1
s_waitcnt vmcnt(0)
v_cmp_gt_u32 vcc, v{vEXP}, v{vPV}
s_sub_u32 s45, s45, 1
s_cmp_eq_u32 s45, 0
s_cbranch_scc1 {back}
s_cbranch_vccz {back}
s_sleep 1
s_branch {LP}""")
        return L
    def poll_issue(vaddr): return mk.VM(f"buffer_load_dword v{vPV}, v{vaddr}, s[{sWS}:{sWS+3}], s{sPO} offen sc1", "poll")
    def poll_check(vaddr):
        def f():
            R = a.newlabel("K3_ok")
            a.wait_vm("poll", always=True)
            a(f"v_cmp_gt_u32 vcc, v{vEXP}, v{vPV}")
            a("s_nop 1")
            a(f"s_cbranch_vccnz {spin(vaddr, R)}")
            a.label(R)
        return Item(f, 16, "X")
    if PROG:
        a(f"""
s_waitcnt lgkmcnt(0)
s_mov_b32 s{sOUT}, s50
s_mov_b32 s{sOUT+1}, s51
s_sub_u32 s{sT0}, 15, s{sRB}
s_min_u32 s{sT0}, s{sT0}, s{sRB}
s_lshl_b32 s{sT0}, s{sT0}, 3
s_and_b32 s{sT1}, s2, {7 if OWN else 6}
s_add_u32 s{sT0}, s{sT0}, s{sT1}
s_cmp_ge_u32 s{sRB}, 8
s_cselect_b32 s{sT1}, 512, 0
s_add_u32 s{sT0}, s{sT0}, s{sT1}
v_and_b32 v{vT2}, 3, v{vL}
v_lshlrev_b32 v{vT1}, 6, v{vT2}
v_add_u32 v{vP1}, s{sT0}, v{vT1}
v_xor_b32 v{vP2}, 1, v{vP1}
v_lshlrev_b32 v{vP1}, 7, v{vP1}
v_lshlrev_b32 v{vP2}, 7, v{vP2}
s_lshr_b32 s{sT0}, s{sRB}, 1
s_lshl_b32 s{sT0}, s{sT0}, 3
s_add_u32 s{sT0}, s{sT0}, 512
v_add_u32 v{vT1}, s{sT0}, v{vT1}
v_bfe_u32 v{vT0}, v{vL}, 2, 3
v_add_u32 v{vT1}, v{vT0}, v{vT1}
v_cmp_gt_u32 vcc, 32, v{vL}
s_and_b32 s{sT0}, s2, 0xf9
s_add_u32 s{sT0}, s{sT0}, 512
v_lshl_add_u32 v{vT2}, v{vT2}, 1, s{sT0}
v_cndmask_b32 v{vP3}, v{vT2}, v{vT1}, vcc
v_lshlrev_b32 v{vP3}, 7, v{vP3}
s_lshl_b32 s99, s2, 7
s_add_u32 s99, s99, {FLAGS + 65536}
s_cmp_eq_u32 s{sWAVE}, 0
s_cselect_b32 s{sPO}, {FLAGS}, s{sWS+2}
s_cselect_b32 s99, s99, s{sWS+2}
s_cselect_b32 s{sT0}, 1, 0
v_mov_b32 v{vEXP}, s{sT0}
v_lshlrev_b32 v{vTWO}, {1 if SPLITF else 0}, v{vEXP}
v_cndmask_b32 v{vE3}, v{vEXP}, v{vTWO}, vcc
""")
        if SPLITF: a.wait_vm("st")
        elif FAST == 1:
            poll_issue(vP1).fn()
            a.wait_vm("poll")
        else: a.wait_vm("w0")
        a("s_barrier")
        a.vm(f"buffer_store_dword v{vEXP}, v236, s[{sWS}:{sWS+3}], s99 offen sc1", "f2")
        if FAST == 2:
            if OWN:
                for it in a_dma_c(0) + a_dma(1, 1) + a_dma_w(2): it.fn()
            else:
                for it in a_dma_w(1) + a_dma_w(2): it.fn()
            poll_issue(vP1).fn()
            setup_rest()
        elif FAST == 0: poll_issue(vP1).fn()
        poll_check(vP1).fn()
        a("s_barrier")
        a(f"v_mov_b32 v{vP1}, v{vP1}")
    else:
        a(f"""
s_waitcnt lgkmcnt(0)
s_mov_b32 s{sOUT}, s50
s_mov_b32 s{sOUT+1}, s51
s_sub_u32 s{sT0}, 15, s{sRB}
s_min_u32 s{sT0}, s{sT0}, s{sRB}
s_lshl_b32 s{sT0}, s{sT0}, 3
s_lshl_b32 s{sT1}, s{sKQ}, 1
s_add_u32 s{sT0}, s{sT0}, s{sT1}
v_and_b32 v{vT2}, 3, v{vL}
v_lshlrev_b32 v{vT1}, 6, v{vT2}
v_bfe_u32 v{vT0}, v{vL}, 2, 1
v_add3_u32 v{vT0}, v{vT0}, v{vT1}, s{sT0}
s_lshr_b32 s{sT0}, s{sRB}, 1
s_lshl_b32 s{sT0}, s{sT0}, 3
v_add_u32 v{vT1}, s{sT0}, v{vT1}
v_bfe_u32 v{RX}, v{vL}, 2, 3
v_add_u32 v{vT1}, v{RX}, v{vT1}
v_cmp_gt_u32 vcc, 32, v{vL}
s_and_b32 s{sT0}, s2, 0xf9
v_lshl_add_u32 v{vT2}, v{vT2}, 1, s{sT0}
v_cndmask_b32 v{vT1}, v{vT0}, v{vT1}, vcc
v_cmp_le_u32 vcc, 48, v{vL}
s_lshl_b32 s99, s2, 7
s_add_u32 s99, s99, {FLAGS + 65536}
v_cndmask_b32 v{vT1}, v{vT1}, v{vT2}, vcc
v_lshlrev_b32 v{vT1}, 7, v{vT1}
v_mov_b32 v{vT0}, 1
s_mov_b32 s{sT0}, {FLAGS + 65536}
s_mov_b32 s{sCNT}, 0x40000
""")
        a.wait_vm("w0")
        if L2W:
            a(f"""
s_lshr_b32 s60, s2, 3
s_lshl_b32 s60, s60, 2
s_add_u32 s60, s60, s{sWAVE}
s_lshl_b32 s61, s60, 13
s_lshl_b32 s62, s{sKQ}, 20
s_add_u32 s61, s61, s62
s_lshl_b32 s60, s60, 12
v_lshlrev_b32 v{RX+1}, 7, v{vL}
v_and_b32 v{RX+2}, 0xfff, v{RX+1}
""")
        a(f"""
s_barrier
s_cmp_lg_u32 s{sWAVE}, 0
s_cbranch_scc1 {LT}
s_mov_b64 exec, 1
buffer_store_dword v{vT0}, v{vZ}, s[{sWS}:{sWS+3}], s99 offen sc1
s_mov_b64 exec, -1
{LP0}:
buffer_load_dword v{vT2}, v{vT1}, s[{sWS}:{sWS+3}], s{sT0} offen sc1
s_waitcnt vmcnt(0)
v_cmp_ne_u32 vcc, 1, v{vT2}
s_nop 1
s_cbranch_vccz {LS}
s_sleep 1
s_sub_u32 s{sCNT}, s{sCNT}, 1
s_cmp_lg_u32 s{sCNT}, 0
s_cbranch_scc1 {LP0}
{LS}:
{LT}:
""")
        if L2W:
            a(f"buffer_load_dword v{RX+3}, v{RX+1}, s[{sWO}:{sWO+3}], s61 offen")
            a(f"buffer_load_dword v{RX+3}, v{RX+2}, s[{sWB}:{sWB+3}], s60 offen")
        a("s_barrier")
    a.stamp(7)
    if FAST == 1:
        for it in a_dma_c(0) + a_dma(1): it.fn()
        setup_rest()
        for it in a_dma(2): it.fn()
    elif OWN:
        for it in a_dma_c(2): it.fn()
    else:
        for it in a_dma_c(0) + a_dma_c(1) + a_dma_c(2): it.fn()
    def a_reads(slot, k, st):
        c = vCR if slot < 2 else vCR2; w = vWR if slot < 2 else vWR2
        so = (slot & 1) * 32768
        fb = FR + st * 32
        its = []
        for x in range(4):
            its.append(mk.LG(f"ds_read_b128 v[{fb+x*4}:{fb+x*4+3}], v{c} offset:{so + x*2048 + k*1024}", ("fc", st)))
        for x in range(4):
            for jj in range(2):
                b = fb + 16 + x * 4 + jj * 2
                its.append(mk.LG(f"ds_read_b64_tr_b16 v[{b}:{b+1}], v{w[x]} offset:{so + k*8192 + jj*4096}", ("fw", st, x)))
        return its
    def pub(j):
        d = ACC + j * 16
        its = [I(f"v_cvt_pk_bf16_f32 v{d+x}, v{d+2*x}, v{d+2*x+1}") for x in range(8)]
        st = [mk.VM(f"buffer_store_dwordx4 v[{d+hf*4}:{d+hf*4+3}], v{vL16}, s[{sWS}:{sWS+3}], s{sPSRC} offen offset:{((j-1)*2048 + hf*1024) % 4096} sc1", "pub") for hf in range(2)]
        pre = [I(f"s_add_u32 s{sPSRC}, s{sPSRC}, 4096")] if j == 3 else []
        return pre + its[:4] + [st[0]] + its[4:] + [st[1]]
    def a_stage(slot, refill, last=False, pi=None, pc=None):
        B = Body(32)
        for k in range(2):
            fb = FR + k * 32
            for mt in range(4):
                for qt in range(4):
                    d = ACC + (qt * 4 + mt) * 4
                    s = f"{MF} v[{d}:{d+3}], v[{fb+16+mt*4}:{fb+19+mt*4}], v[{fb+qt*4}:{fb+qt*4+3}], v[{d}:{d+3}]"
                    m = mt * 4 + (qt ^ 3 if mt & 1 else qt) if not (last and k) else ((qt + 3) & 3) * 4 + mt
                    B.mfma[k * 16 + m] = (lambda s=s: a(s))
                if last and k:
                    if mt == 0: B.put_pre(16, mk.WL(("fw", k, 3)))
                elif mt % 2 == 0: B.put_pre(k * 16 + mt * 4, mk.WL(("fw", k, mt + 1)))
        r1 = a_reads(slot, 1, 1)
        for j, it in enumerate(r1): B.put((2 if not last else 1) * (j >> 1), it)
        if not last:
            n = (slot + 1) % 4
            B.put(16, mk.WV(("st", n), lg0=True), 3); B.put(16, I("s_barrier"), 3)
            for j, it in enumerate(a_reads(n, 0, 0)): B.put(18 + 2 * (j >> 1), it)
        if pi: B.put(1, pi[0]); [B.put(3, x) for x in pi[1:]]
        if pc: B.put(15, pc, 3)
        if refill: B.stream(refill, 0, 32 if not last else 26)
        if last: B.stream(pub(1), 27, 32)
        B.emit(a)
    a.wait_vm(("st", 0)); a("s_barrier")
    if SPLITF: a.vm(f"buffer_store_dword v{vTWO}, v236, s[{sWS}:{sWS+3}], s99 offen sc1", "f2")
    for it in a_reads(0, 0, 0): it.fn()
    L = a.newlabel("K3_loop")
    a(f"s_mov_b32 s{sCNT}, 3")
    a.stamp(2)
    a.label(L)
    def it_():
        for s in range(4):
            if OWN and s == 1:
                a(f"s_cmp_eq_u32 s{sCNT}, 2")
                a(f"s_cselect_b32 s{sAT}, 8, 0")
                a(f"s_xor_b32 s{sHALF}, s{sHALF}, s{sAT}")
            a_stage(s, a_dma((s + 3) % 4, s + 3),
                    pi=[I(f"v_mov_b32 v{vP1}, v{vP2}")] if PROG and s == 2 else [poll_issue(vP1)] if PROG and s == 3 else None,
                    pc=poll_check(vP1) if PROG and s == 0 else None)
            if PROG and s == 1:
                a(f"s_cmp_eq_u32 s{sCNT}, 1")
                a(f"s_cselect_b64 vcc, -1, 0")
                a(f"v_cndmask_b32 v{vP2}, v{vP2}, v{vP3}, vcc")
                a(f"v_cndmask_b32 v{vEXP}, v{vEXP}, v{vE3}, vcc")
    loop_emit(a, it_)
    a(f"""
s_add_u32 s{sIX}, s{sIX}, 4
s_sub_u32 s{sCNT}, s{sCNT}, 1
s_cmp_lg_u32 s{sCNT}, 0
s_cbranch_scc1 {L}
""")
    a_stage(0, a_dma(3, 3) + b_dma(4)[:2], pc=poll_check(vP1) if PROG else None)
    bd = b_dma(4)[2:] + b_dma(0) + b_dma(1) + b_dma(2)
    n3 = len(bd) // 3
    a_stage(1, b_dma(4)[2:] + b_dma(0)[:6]); a_stage(2, b_dma(0)[6:] + b_dma(1)); a_stage(3, b_dma(2), last=True)
    a.stamp(3)
    if BP:
        a.wait_vm(("st", 1)); a("s_barrier")
        pre_b = True
    for it in pub(2) + pub(3): it.fn()
    a.stamp(6)
    def b_stage(slot, idx):
        a.wait_vm(("st", slot), always=True)
        a("s_barrier")
        a.stamp(15 + idx)
        c = vBC[slot >> 1]; w = vBW[(slot >> 1) * 2:(slot >> 1) * 2 + 2]
        so = (slot & 1) * 32768
        def reads(k):
            fb = FR + k * 16
            for qt in range(2):
                a.lg(f"ds_read_b128 v[{fb+qt*4}:{fb+qt*4+3}], v{c} offset:{so + qt*4096 + k*1024}", ("f", k))
            for mt in range(2):
                for jj in range(2):
                    b = fb + 8 + mt * 4 + jj * 2
                    a.lg(f"ds_read_b64_tr_b16 v[{b}:{b+1}], v{w[mt]} offset:{so + k*4096 + jj*2048}", ("f", k))
        def mf(k):
            fb = FR + k * 16
            a.wait_lg(("f", k), always=True)
            for mt in range(2):
                for qt in range(2):
                    d = ACB + (mt * 2 + qt) * 4
                    a(f"{MF} v[{d}:{d+3}], v[{fb+8+mt*4}:{fb+8+mt*4+3}], v[{fb+qt*4}:{fb+qt*4+3}], v[{d}:{d+3}]")
        reads(0); reads(1); mf(0); reads(2); mf(1); reads(3); mf(2); mf(3)
    def rx_loads():
        for j in range(3):
            for hf in range(2):
                a(f"buffer_load_dwordx4 v[{RX+j*8+hf*4}:{RX+j*8+hf*4+3}], v{vL16}, s[{sWS}:{sWS+3}], s{sPD[j]} offen offset:{hf*1024} sc1")
    if BP:
        order = [4, 0, 1, 2]
        def breads(kk):
            slot, k = order[kk >> 2], kk & 3
            c = vBC[slot >> 1]; w = vBW[(slot >> 1) * 2:(slot >> 1) * 2 + 2]
            so = (slot & 1) * 32768; fb = FR + (kk & 3) * 16
            its = [mk.LG(f"ds_read_b128 v[{fb+qt*4}:{fb+qt*4+3}], v{c} offset:{so + qt*4096 + k*1024}", ("f", kk)) for qt in range(2)]
            for mt in range(2):
                for jj in range(2):
                    b = fb + 8 + mt * 4 + jj * 2
                    its.append(mk.LG(f"ds_read_b64_tr_b16 v[{b}:{b+1}], v{w[mt]} offset:{so + k*4096 + jj*2048}", ("f", kk)))
            return its
        for kk in range(2):
            for it in breads(kk): it.fn()
        Bb = Body(64)
        for kk in range(16):
            fb = FR + (kk & 3) * 16
            for mt in range(2):
                for qt in range(2):
                    d = ACB + (mt * 2 + qt) * 4
                    t = f"{MF} v[{d}:{d+3}], v[{fb+8+mt*4}:{fb+8+mt*4+3}], v[{fb+qt*4}:{fb+qt*4+3}], v[{d}:{d+3}]"
                    Bb.mfma[kk * 4 + mt * 2 + qt] = (lambda t=t: a(t))
            Bb.put_pre(kk * 4, mk.WL(("f", kk)))
            if kk >= 2:
                if kk == 12:
                    Bb.put(39, mk.WV(("st", 2)), 3); Bb.put(39, I("s_barrier"), 3)
                for j, it in enumerate(breads(kk)): Bb.put((kk - 2) * 4 + (j >> 1), it)
        rx = [mk.VM(f"buffer_load_dwordx4 v[{RX+j*8+hf*4}:{RX+j*8+hf*4+3}], v{vL16}, s[{sWS}:{sWS+3}], s{sPD[j]} offen offset:{hf*1024} sc1", "rx") for j in range(3) for hf in range(2)]
        for n, it in enumerate(rx): Bb.put(BP + (n if BP >= 44 else 4 * n + 3), it)
        Bb.emit(a)
    else:
        b_stage(4, 0); b_stage(0, 1); b_stage(1, 2)
        a.wait_vm(("st", 2))
        rx_loads()
        a.vmq += ["rx"] * 6
        b_stage(2, 3)
    a.stamp(4)
    for mt in range(2):
        for qt in range(2):
            d = ACB + (mt * 2 + qt) * 4
            if mt == 0 and qt == 0: a("s_nop 7")
            a(f"v_cvt_pk_bf16_f32 v{d}, v{d}, v{d+1}")
            a(f"v_cvt_pk_bf16_f32 v{d+1}, v{d+2}, v{d+3}")
    a(f"s_add_u32 s{sT0}, s{sOBB}, 32768")
    for mt in range(2):
        for qt in range(2):
            d = ACB + (mt * 2 + qt) * 4
            a.vm(f"buffer_store_dwordx2 v[{d}:{d+1}], v{vO}, s[{sOUT}:{sOUT+3}], s{sOBB if qt == 0 else sT0} offen offset:{1024 + mt*32}", "o")
    LP = a.newlabel("K3_poll"); LPD = a.newlabel("K3_polled")
    a(f"s_mov_b32 s{sCNT}, 0x40000")
    a.wait_vm("rx")
    a.label(LP)
    a(f"v_max3_u32 v{vT0}, v{RX}, v{RX+1}, v{RX+2}")
    a(f"v_max3_u32 v{vT1}, v{RX+3}, v{RX+4}, v{RX+5}")
    for r in range(6, 22, 4):
        a(f"v_max3_u32 v{vT0}, v{vT0}, v{RX+r}, v{RX+r+1}")
        a(f"v_max3_u32 v{vT1}, v{vT1}, v{RX+r+2}, v{RX+r+3}")
    a(f"v_max3_u32 v{vT0}, v{vT0}, v{RX+22}, v{RX+23}")
    a(f"""
v_max_u32 v{vT0}, v{vT0}, v{vT1}
v_cmp_eq_u32 vcc, -1, v{vT0}
s_sub_u32 s{sCNT}, s{sCNT}, 1
s_cmp_eq_u32 s{sCNT}, 0
s_cbranch_scc1 {LPD}
s_cbranch_vccz {LPD}
s_sleep {RS}
""")
    rx_loads()
    a(f"""
s_waitcnt vmcnt(0)
s_branch {LP}
{LPD}:
""")
    a.stamp(5)
    for j in range(3):
        for r in range(8):
            a(f"v_lshlrev_b32 v{32+2*r}, 16, v{RX+j*8+r}")
            a(f"v_and_b32 v{33+2*r}, 0xffff0000, v{RX+j*8+r}")
        for r in range(0, 16, 2):
            a(f"v_pk_add_f32 v[{ACC+r}:{ACC+r+1}], v[{ACC+r}:{ACC+r+1}], v[{32+r}:{33+r}]")
    for mt in range(4):
        d = ACC + mt * 4
        a(f"v_cvt_pk_bf16_f32 v{d}, v{d}, v{d+1}")
        a(f"v_cvt_pk_bf16_f32 v{d+1}, v{d+2}, v{d+3}")
        a(f"buffer_store_dwordx2 v[{d}:{d+1}], v{vO}, s[{sOUT}:{sOUT+3}], s{sOB} offen offset:{mt*32}")
    a.stamp(9)
    if a.diag: a("s_waitcnt vmcnt(0)")
    a.stamp(23); a.stamp(10, real=True)
    a.stamp_flush(sWS, sWAVE, 24, DIAG, vt=(195, 196), kidx=2)
    a("s_endpgm")
    a.flush_stubs()
    a.label("K3_code_end")
    a("s_endpgm")
```
